```python
import torch

def _softmax(x, axis=-1):
    return torch.softmax(x, dim=axis)

def _gelu(x):
    return torch.nn.functional.gelu(x, approximate='tanh')

def _silu(x):
    return torch.nn.functional.silu(x)

def _sigmoid(x):
    return torch.sigmoid(x)

def _layernorm(x, axis=-1, eps=1e-05):
    m = x.mean(dim=axis, keepdim=True)
    v = x.var(dim=axis, keepdim=True, unbiased=False)
    return (x - m) / torch.sqrt(v + eps)

def _scatter_add(tgt, idx, src, axis=0):
    return tgt.clone().index_add_(axis, idx, src)

def _segment_sum(src, seg, n):
    out = torch.zeros((n,) + src.shape[1:], dtype=src.dtype)
    return out.index_add_(0, seg, src)

def _pad(x, pw):
    flat = tuple((v for pair in reversed(pw) for v in pair))
    return torch.nn.functional.pad(x, flat)
kernel_name = 'gated_mix__sliding_local_dilated__mixer_gmlp__prompt'

def setup_inputs():

    _w = lambda a: (lambda t: t.to(torch.bfloat16) if t.is_floating_point() else t)(torch.as_tensor(a))

    def _A_setup():
        B, S, D = (1, 2048, 448)
        return {'x': _w((lambda *s: torch.randn(*s, dtype=torch.bfloat16) * 0.05)(B, S, D)), 'wqkv': _w((lambda *s: torch.randn(*s, dtype=torch.bfloat16) * 1.6)(D, 3 * D)), 'wo': _w((lambda *s: torch.randn(*s, dtype=torch.bfloat16) * 0.05)(D, D))}
    _A_in = _A_setup()

    def _B_setup():
        B, S, D, F = (1, 2048, 448, 1792)
        Fh = F // 2
        return {'x': _w((lambda *s: torch.randn(*s, dtype=torch.bfloat16) * 0.05)(B, S, D)), 'w_in': _w((lambda *s: torch.randn(*s, dtype=torch.bfloat16) * 0.4)(D, 2 * Fh)), 'w_sp': _w(0.01 * (lambda *s: torch.randn(*s, dtype=torch.bfloat16) * 0.4)(S, S)), 'b_sp': _w(1.0 + 0.01 * (lambda *s: torch.randn(*s, dtype=torch.bfloat16) * 0.2)(S)), 'w_out': _w((lambda *s: torch.randn(*s, dtype=torch.bfloat16) * 0.2)(Fh, D))}
    _B_in = _B_setup()
    return {'A_x': _A_in['x'], 'A_wqkv': _A_in['wqkv'], 'A_wo': _A_in['wo'], 'B_x': _B_in['x'], 'B_w_in': _B_in['w_in'], 'B_w_sp': _B_in['w_sp'], 'B_b_sp': _B_in['b_sp'], 'B_w_out': _B_in['w_out'], 'gate_w': _w((lambda *s: torch.randn(*s, dtype=torch.bfloat16) * 0.05)(448) * 16.0)}

def reference(A_x, A_wqkv, A_wo, B_x, B_w_in, B_w_sp, B_b_sp, B_w_out, gate_w):

    def _A_ref(x, wqkv, wo):
        B, S, D = x.shape
        H = 16
        Dh = D // H
        W, dil = (8, 2)
        qkv = (lambda x, *d: x.permute(*d))((x @ wqkv).reshape(B, S, 3, H, Dh), 2, 0, 3, 1, 4)
        q, k, v = (qkv[0], qkv[1], qkv[2])
        scale = Dh ** (-0.5)
        pos = torch.arange(S)
        off = torch.arange(W) * dil
        idx = pos[:, None] - off[None, :]
        mask = idx >= 0
        idx_c = torch.where(mask, idx, 0).reshape(-1)
        kg = k[:, :, idx_c, :].reshape(B, H, S, W, Dh)
        vg = v[:, :, idx_c, :].reshape(B, H, S, W, Dh)
        logits = torch.einsum('bhsd,bhswd->bhsw', q, kg) * scale
        logits = torch.where(mask[None, None, :, :], logits, -1000000000.0)
        attn = _softmax(logits, axis=-1)
        o = torch.einsum('bhsw,bhswd->bhsd', attn, vg)
        return (lambda x, *d: x.permute(*d))(o, 0, 2, 1, 3).reshape(B, S, D) @ wo

    def _B_ref(x, w_in, w_sp, b_sp, w_out):
        B, S, D = x.shape
        F = w_in.shape[-1]
        Fh = F // 2
        z = _gelu(torch.einsum('bsd,df->bsf', x, w_in))
        z1 = z[..., :Fh].clone()
        z2 = _layernorm(z[..., Fh:], axis=-1)
        g = torch.einsum('ts,bsf->btf', w_sp, z2) + b_sp[None, :, None]
        return torch.einsum('bsf,fd->bsd', z1 * g, w_out)
    x = A_x
    g = _sigmoid((x * gate_w).sum(-1, keepdims=True))
    a = _A_ref(x, A_wqkv, A_wo)
    b = _B_ref(x, B_w_in, B_w_sp, B_b_sp, B_w_out)
    return g * a + (1 - g) * b
```

```python
import re

def R(kind, idx, n=1):
    return f"{kind}{idx}" if n == 1 else f"{kind}[{idx}:{idx+n-1}]"
def v(i, n=1): return R('v', i, n)
def a(i, n=1): return R('a', i, n)
def s(i, n=1): return R('s', i, n)
def u(i, n=1): return v(i, n) if i < 256 else a(i-256, n)

REG_RE = re.compile(r'^(-|abs\()?([vas])(\d+)\)?$')
RNG_RE = re.compile(r'^(-)?([vas])\[(\d+):(\d+)\]$')
def regs_of(op):
    op = op.strip()
    m = REG_RE.match(op)
    if m: return {(m.group(2), int(m.group(3)))}
    m = RNG_RE.match(op)
    if m: return {(m.group(2), i) for i in range(int(m.group(3)), int(m.group(4))+1)}
    if op == 'vcc': return {('s', 106), ('s', 107)}
    if op == 'exec': return {('s', 126), ('s', 127)}
    if op == 'm0': return {('s', 124)}
    return set()

TRANS = ('v_exp_f32', 'v_log_f32', 'v_rcp_f32', 'v_rsq_f32', 'v_sqrt_f32', 'v_sin_f32', 'v_cos_f32', 'v_rcp_iflag_f32')

class Ins:
    __slots__ = ('text', 'op', 'dst', 'src', 'cls', 'dpp', 'storedata', 'srcC')
    def __init__(self, text):
        self.text = text
        t = text.split(';')[0].strip()
        self.op = t.split()[0] if t else ''
        rest = t[len(self.op):].strip()
        ops = [o.strip() for o in rest.split(',')] if rest else []
        mods = ''
        if ops:
            parts = ops[-1].split(None, 1)
            ops[-1] = parts[0]
            mods = parts[1] if len(parts) > 1 else ''
        op = self.op
        self.dst = set(); self.src = set(); self.storedata = set(); self.srcC = set()
        self.dpp = ('row_' in mods or 'quad_perm' in mods or 'wave_' in mods or '_dpp' in op)
        rr = [regs_of(o) for o in ops]
        if op.startswith('v_mfma'):
            self.cls = 'mfma'; self.dst = rr[0]; self.src = rr[1] | rr[2] | rr[3]; self.srcC = rr[3]
        elif op.startswith('v_cmp'):
            self.cls = 'valu'; self.dst = rr[0]; self.src = set().union(*rr[1:])
        elif op.startswith('v_readfirstlane') or op.startswith('v_readlane'):
            self.cls = 'valu'; self.dst = rr[0]; self.src = set().union(*rr[1:])
        elif op.startswith('v_permlane'):
            self.cls = 'valu'; self.dst = rr[0] | rr[1]; self.src = rr[0] | rr[1]
        elif op.startswith('v_'):
            self.cls = 'valu'; self.dst = rr[0]; self.src = set().union(*rr[1:]) if len(rr) > 1 else set()
            if op.startswith(('v_fmac', 'v_dot2c', 'v_pk_fmac')): self.src |= rr[0]
            if op.startswith(('v_add_co', 'v_sub_co', 'v_addc_co', 'v_subb_co')): self.dst |= rr[1]
            if op.startswith('v_cndmask') and len(ops) == 3: self.src |= regs_of('vcc')
            if self.dpp: self.src |= rr[0]
        elif op.startswith(('buffer_load', 'global_load')):
            self.cls = 'vmem'
            if 'lds' in mods.split():
                self.src = set().union(*rr) | regs_of('m0')
            else:
                self.dst = rr[0]; self.src = set().union(*rr[1:])
                if 'd16' in op: self.src |= rr[0]
        elif op.startswith(('buffer_store', 'global_store')):
            self.cls = 'vmem'; self.src = set().union(*rr)
            self.storedata = rr[0] if op.startswith('buffer') else rr[1]
        elif op.startswith(('buffer_atomic', 'global_atomic')):
            self.cls = 'vmem'; self.src = set().union(*rr)
            if 'sc0' in mods.split(): self.dst = rr[0]
        elif op.startswith('ds_read'):
            self.cls = 'ds'; self.dst = rr[0]; self.src = rr[1]
        elif op.startswith('ds_'):
            self.cls = 'ds'; self.src = set().union(*rr)
        elif op.startswith(('s_load', 's_memtime', 's_memrealtime')):
            self.cls = 'smem'; self.dst = rr[0]; self.src = set().union(*rr[1:]) if len(rr) > 1 else set()
        elif op.startswith(('s_cmp', 's_waitcnt', 's_nop', 's_barrier', 's_branch', 's_cbranch', 's_endpgm', 's_sleep', 's_setprio')):
            self.cls = 'salu'; self.src = set().union(*rr) if rr else set()
        elif op.startswith('s_'):
            self.cls = 'salu'; self.dst = rr[0] if rr else set(); self.src = set().union(*rr[1:]) if len(rr) > 1 else set()
            if 'saveexec' in op: self.dst |= regs_of('exec'); self.src |= regs_of('exec')
        else:
            self.cls = 'other'
    def states(self):
        if self.op == 's_nop':
            return int(self.text.split()[1], 0) + 1
        return 1

def is_vreg(r): return r[0] in 'va'

def required_wait(p, c):
    w = 0
    pv = {r for r in p.dst if is_vreg(r)}; ps = {r for r in p.dst if r[0] == 's'}
    if p.cls == 'valu':
        if c.cls == 'mfma' and pv & c.src: w = max(w, 2)
        if c.cls == 'valu':
            if c.dpp and pv & c.src: w = max(w, 2)
            if c.op.startswith('v_permlane') and pv & c.src: w = max(w, 2)
            if c.op.startswith(('v_readfirstlane', 'v_readlane')) and pv & c.src: w = max(w, 1)
            if ps & c.src: w = max(w, 4 if c.op.startswith(('v_readlane', 'v_writelane')) else 2)
            if p.op.startswith(TRANS) and not c.op.startswith(TRANS) and pv & (c.src | c.dst): w = max(w, 1)
            if p.op.startswith(TRANS) and c.op.startswith(TRANS) and pv & c.src: w = max(w, 1)
        if c.cls == 'vmem' and ps & c.src: w = max(w, 5)
        if c.cls in ('salu', 'smem') and ps & c.src: w = max(w, 1)
        if c.cls in ('vmem', 'ds') and p.op.startswith(TRANS) and pv & c.src: w = max(w, 1)
    if p.cls == 'mfma':
        if c.cls == 'mfma':
            if pv & c.srcC and not (c.srcC == p.dst): w = max(w, 6)
            ab = c.src - c.srcC if c.srcC != c.src else set()
            if pv & (c.src - c.srcC): w = max(w, 8)
        elif c.cls == 'valu':
            if pv & (c.src | c.dst): w = max(w, 8)
            if p.srcC & c.dst: w = max(w, 3)
        elif c.cls in ('vmem', 'ds'):
            if pv & (c.src | c.dst): w = max(w, 8)
    if p.cls == 'salu' and ('s', 124) in p.dst and c.cls == 'vmem' and ('s', 124) in c.src: w = max(w, 1)
    if p.cls == 'vmem' and p.storedata and len(p.storedata) >= 3:
        if c.cls == 'valu' and p.storedata & c.dst: w = max(w, 2)
        elif p.storedata & c.dst: w = max(w, 1)
    return w

class Asm:
    def __init__(self):
        self.lines = []
        self.vm = []
        self.lg = []
        self.nops_inserted = 0
        self.window = []
    def raw(self, text):
        self.lines.append(text)
    def label(self, name):
        self.lines.append(f"{name}:")
        self.window = []
    def comment(self, t): self.lines.append(f"; {t}")
    def __call__(self, text, tag=None):
        ins = Ins(text)
        need = 0
        dist = 0
        for p in reversed(self.window):
            w = required_wait(p, ins)
            if w > dist: need = max(need, w - dist)
            dist += p.states()
            if dist >= 12: break
        while need > 0:
            k = min(need, 16)
            nop = Ins(f"s_nop {k-1}")
            self.lines.append(f"  s_nop {k-1}")
            self.window.append(nop); self.nops_inserted += k
            need -= k
        self.lines.append("  " + text)
        self.window.append(ins)
        if len(self.window) > 24: self.window = self.window[-24:]
        if ins.cls == 'vmem': self.vm.append(tag)
        elif ins.cls == 'ds': self.lg.append(tag)
        elif ins.cls == 'smem': self.lg.append('smem')
        return ins
    def wait_vm(self, tag=None, extra=0):
        if tag is None: n = 0
        else:
            tags = tag if isinstance(tag, (list, set)) else [tag]
            idx = [i for i, t in enumerate(self.vm) if t in tags]
            if not idx: return
            n = len(self.vm) - 1 - idx[-1]
        assert n <= 63, f"vmcnt {n} > 63"
        self(f"s_waitcnt vmcnt({n})")
        self.vm = self.vm[len(self.vm)-n:] if n else []
    def wait_lg(self, tag=None):
        if tag is None or 'smem' in self.lg: n = 0
        else:
            tags = tag if isinstance(tag, (list, set)) else [tag]
            idx = [i for i, t in enumerate(self.lg) if t in tags]
            if not idx: return
            n = len(self.lg) - 1 - idx[-1]
        n = min(n, 15)
        self(f"s_waitcnt lgkmcnt({n})")
        self.lg = self.lg[len(self.lg)-n:] if n else []
    def check_vm(self):
        assert len(self.vm) <= 63, f"too many outstanding vmem ops: {len(self.vm)}"
    def text(self): return "\n".join(self.lines)
```

```python
import sys, importlib
from layout import *
HEADER = open('gated_mix__sliding_local_dilated__mixer_gmlp__prompt.s.ref').read().split('; Override launch')[0]
KD = """.amdhsa_kernel {name}
  .amdhsa_next_free_vgpr {vgpr}
  .amdhsa_next_free_sgpr 102
  .amdhsa_accum_offset {accum}
  .amdhsa_group_segment_fixed_size 0
  .amdhsa_kernarg_size 96
  .amdhsa_user_sgpr_count 2
  .amdhsa_user_sgpr_kernarg_segment_ptr 1
  .amdhsa_system_sgpr_workgroup_id_x 1
.end_amdhsa_kernel
"""
def assemble(kernels):
    out = [HEADER.rstrip()]
    for k in kernels:
        out.append(f"; @launch kernel={k['name']} grid=({k['grid']},1,1) block=({k['block']},1,1) lds={k['lds']}")
    out.append('.amdgcn_target "amdgcn-amd-amdhsa--gfx950"')
    out.append('.text')
    for k in kernels:
        out += [f".globl {k['name']}", ".p2align 8", f".type {k['name']},@function", f"{k['name']}:", k['text']]
    out.append('.section .rodata,"a"')
    for k in kernels:
        out.append('.p2align 6')
        out.append(KD.format(name=k['name'], vgpr=k['vgpr'], accum=k['accum']))
    return "\n".join(out) + "\n"
```

```python
from asmlib import *
from layout import *
from k3 import code_prefetch
from k1z import gen_z, gen_z2, gen_z3
from k1q import gen_q, gen_q2

def wf_job_issue(A):
    A("v_and_b32 v60, 15, v12"); A("v_lshrrev_b32 v61, 4, v12")
    A("v_lshrrev_b32 v62, 2, v60"); A("v_lshlrev_b32 v62, 3, v62"); A("v_and_b32 v63, 3, v60"); A("v_add_u32 v62, v62, v63")
    A("v_lshlrev_b32 v62, 1, v62")
    A(f"v_mul_u32_u24 v63, {4*896}, v61"); A("v_add_u32 v62, v62, v63")
    for q in range(2):
        A("s_lshl_b32 s48, s2, 2"); A("s_add_u32 s48, s48, s3")
        if q: A("s_add_u32 s48, s48, 1024")
        A("s_and_b32 s49, s48, 3")
        A("s_lshr_b32 s50, s48, 2")
        A("s_mul_i32 s51, s50, 1490"); A("s_lshr_b32 s51, s51, 16")
        A("s_mul_i32 s60, s51, 44"); A("s_sub_u32 s60, s50, s60")
        A("s_lshl_b32 s61, s51, 7"); A("s_lshr_b32 s62, s49, 1"); A("s_lshl_b32 s62, s62, 6"); A("s_add_u32 s61, s61, s62")
        A("s_and_b32 s62, s49, 1"); A("s_lshl_b32 s62, s62, 3"); A("s_add_u32 s61, s61, s62")
        A("s_cmp_lt_u32 s60, 16")
        A("s_cselect_b32 s52, s64, s66"); A("s_cselect_b32 s53, s65, s67")
        A("s_cselect_b32 s54, 1, 2"); A(f"s_mul_i32 s54, s54, {448*896}"); A("s_mov_b32 s55, 0x20000"); A("s_and_b32 s53, s53, 0xffff")
        A("s_mul_i32 s62, s60, 28"); A("s_mul_i32 s63, s60, 32"); A("s_sub_u32 s63, s63, 512")
        A("s_cmp_lt_u32 s60, 16"); A("s_cselect_b32 s62, s62, s63"); A("s_cselect_b64 s[68:69], -1, 0")
        A("s_mul_i32 s62, s62, 896"); A("s_add_u32 s62, s62, s61")
        A("s_cmp_ge_u32 s48, 1232"); A("s_cselect_b32 s54, 0, s54")
        A(f"v_add_u32 v58, 0, v62"); A(f"v_add_u32 v59, {16*896}, v62")
        A("v_cmp_eq_u32 vcc, 3, v61"); A("s_and_b64 s[68:69], s[68:69], vcc"); A("v_mov_b32 v63, 0x7fff0000")
        A("v_cndmask_b32 v59, v59, v63, s[68:69]")
        for e in range(8):
            A(f"buffer_load_ushort v{40 + 8*q + e}, v{58 + (e >> 2)}, s[52:55], s62 offen offset:{(e & 3)*896}", tag='wfj')
def wf_job_store(A):
    for q in range(2):
        for p in range(4):
            A(f"v_lshl_or_b32 v{40 + 4*q + p}, v{40 + 8*q + 2*p + 1}, 16, v{40 + 8*q + 2*p}")
    A(f"s_add_u32 s52, s4, {WS_WF}"); A("s_addc_u32 s53, s5, 0"); A("s_and_b32 s53, s53, 0xffff")
    A(f"s_mov_b32 s54, {1232*1024}"); A("s_mov_b32 s55, 0x20000")
    A("v_and_b32 v60, 63, v0"); A("v_lshlrev_b32 v60, 4, v60")
    A("s_lshl_b32 s48, s2, 2"); A("s_add_u32 s48, s48, s3"); A("s_lshl_b32 s48, s48, 10")
    A("buffer_store_dwordx4 v[40:43], v60, s[52:55], s48 offen")
    A("s_add_u32 s48, s48, 0x100000")
    A("buffer_store_dwordx4 v[44:47], v60, s[52:55], s48 offen")

def gen_k1(name="k1", prefetch_bytes=0):
    A = Asm()
    L = lambda x: f"{name}_{x}"
    A("s_cmp_ge_u32 s2, 256"); A(f"s_cbranch_scc1 {L('end')}")
    A(f"s_load_dwordx2 s[4:5], s[0:1], {KA_WS}")
    A(f"s_load_dwordx2 s[6:7], s[0:1], {KA_AX}")
    A(f"s_load_dwordx2 s[28:29], s[0:1], {KA_WIN}")
    A(f"s_load_dwordx2 s[30:31], s[0:1], {KA_DBG}")
    A(f"s_load_dwordx2 s[44:45], s[0:1], {KA_WQKV}")
    A(f"s_load_dwordx2 s[46:47], s[0:1], {KA_GW}")
    A(f"s_load_dwordx2 s[64:65], s[0:1], {KA_WO}")
    A(f"s_load_dwordx2 s[66:67], s[0:1], {KA_WOUT}")
    if prefetch_bytes: code_prefetch(A, prefetch_bytes, 10, 56, 22, L('end'), name)
    A("v_lshrrev_b32 v6, 6, v0"); A("s_and_b32 s20, s2, 7"); A("v_readfirstlane_b32 s3, v6")
    A("s_lshr_b32 s21, s2, 3")
    A("s_lshr_b32 s33, s21, 4")
    A("s_and_b32 s21, s21, 15")
    A("s_lshr_b32 s22, s20, 1"); A("s_lshl_b32 s22, s22, 2"); A("s_lshr_b32 s23, s21, 2"); A("s_add_u32 s22, s22, s23")
    A("s_and_b32 s20, s20, 1"); A("s_lshl_b32 s20, s20, 2"); A("s_and_b32 s21, s21, 3"); A("s_add_u32 s21, s21, s20")
    A("s_mov_b32 s20, s22")
    A.wait_lg()
    A("s_cmp_eq_u32 s33, 0"); A(f"s_cbranch_scc0 {L('qrole')}")
    vm0 = list(A.vm)
    E = gen_z(A, L); wf_job_issue(A); E = gen_z2(A, L, E); gen_z3(A, L, E); wf_job_store(A)
    A("s_endpgm")
    A.label(L('qrole')); A.vm = vm0; A.lg = []
    E = gen_q(A, L); wf_job_issue(A); gen_q2(A, L, E); wf_job_store(A)
    A.label(L('end'))
    A("s_endpgm")
    return A
if __name__ == "__main__":
    A = gen_k1(); t = A.text(); print(t); print("; nops", A.nops_inserted)
```

```python
from asmlib import *
from layout import *
from k1z import hexf
import math

STG = 45056
GWB = 3*STG
ZRB = GWB + 1024
GLB = ZRB + 1024
QP = 400

def gen_q(A, L):
    A("v_and_b32 v12, 63, v0")
    A("v_lshrrev_b32 v13, 3, v12")
    A("v_and_b32 v14, 7, v12")
    A("v_and_b32 v15, 3, v13"); A("v_xor_b32 v15, v14, v15"); A("v_lshlrev_b32 v15, 4, v15")
    A("s_lshl_b32 s22, s20, 7"); A("s_sub_u32 s22, s22, 16")
    A("s_mul_i32 s23, s3, 5")
    for uu in range(5):
        A(f"s_add_u32 s24, s23, {uu}")
        A("s_lshl_b32 s25, s24, 3"); A("s_add_u32 s25, s25, s22")
        A("v_add_u32 v16, s25, v13"); A("v_max_i32 v16, 0, v16")
        A("v_mul_u32_u24 v16, 896, v16")
        A("s_and_b32 s25, s24, 1"); A("s_lshl_b32 s25, s25, 6"); A("v_xor_b32 v17, s25, v15")
        A("s_cmp_ge_u32 s24, 18"); A("s_cselect_b32 s25, 0x7fff0000, 0")
        A(f"v_add3_u32 v{1+uu}, v16, v17, s25")
    A("v_and_b32 v16, 2, v13"); A("v_xor_b32 v16, v14, v16")
    A("v_mul_u32_u24 v17, 2688, v13"); A("v_mov_b32 v18, 0x7fff0000")
    for uu in range(2):
        if uu: A("v_xor_b32 v16, 4, v16")
        A(f"v_lshl_add_u32 v{6+uu}, v16, 4, v17")
        A("v_cmp_eq_u32 vcc, 7, v16"); A(f"v_cndmask_b32 v{6+uu}, v{6+uu}, v18, vcc")
    A("s_mov_b32 s8, s6"); A("s_and_b32 s9, s7, 0xffff"); A(f"s_mov_b32 s10, {S*896}"); A("s_mov_b32 s11, 0x20000")
    A("s_mov_b32 s12, s44"); A("s_and_b32 s13, s45, 0xffff"); A(f"s_mov_b32 s14, {448*2688}"); A("s_mov_b32 s15, 0x20000")
    A("s_mov_b32 s16, s46"); A("s_and_b32 s17, s47, 0xffff"); A("s_mov_b32 s18, 896"); A("s_mov_b32 s19, 0x20000")
    A(f"s_mul_i32 s24, s3, {16*2688}"); A("s_mul_i32 s25, s21, 112"); A("s_add_u32 s24, s24, s25")
    A("s_mul_i32 s25, s3, 5120")
    A("s_lshl_b32 s26, s3, 11"); A("s_add_u32 s26, s26, 20480")
    def dma(c):
        st = (c % 3)*STG
        for seg in range(3):
            for uu in range(2):
                A(f"s_add_u32 m0, s26, {st + seg*8192 + uu*1024}")
                A(f"s_add_u32 s23, s24, {(64*c + 8*uu)*2688 + seg*896}")
                A(f"buffer_load_dwordx4 v{6+uu}, s[12:15], s23 offen lds", tag=('c', c))
        for uu in range(5):
            A(f"s_add_u32 m0, s25, {st + uu*1024}")
            A(f"s_mov_b32 s23, {c*128}") if uu == 0 else None
            A(f"buffer_load_dwordx4 v{1+uu}, s[8:11], s23 offen lds", tag=('c', c))
    A("v_lshlrev_b32 v16, 4, v12")
    A(f"s_mov_b32 m0, {GWB}"); A("s_nop 0"); A("buffer_load_dwordx4 v16, s[16:19], 0 offen lds", tag=('c', 0))
    A(f"s_mov_b32 m0, {ZRB}"); A("s_nop 0"); A("buffer_load_dwordx4 v18, s[16:19], 0 offen lds", tag=('c', 0))
    for c in range(3): dma(c)
    return dict(locals())

def gen_q2(A, L, E):
    dma = E['dma']
    A("v_and_b32 v13, 15, v12"); A("v_lshrrev_b32 v14, 4, v12")
    A("v_lshrrev_b32 v15, 3, v13"); A("v_lshlrev_b32 v15, 2, v15"); A("v_and_b32 v16, 3, v13"); A("v_or_b32 v15, v15, v16")
    A("v_xor_b32 v15, v15, v14"); A("v_lshlrev_b32 v15, 4, v15"); A("v_lshl_add_u32 v20, v13, 7, v15")
    A("v_xor_b32 v21, 64, v20")
    A("s_lshl_b32 s23, s3, 12"); A("s_add_u32 s23, s23, 2048")
    A("v_add_u32 v22, s23, v20"); A("v_add_u32 v23, s23, v21")
    A("s_lshr_b32 s23, s3, 1"); A("s_mul_i32 s23, s23, 56"); A("s_and_b32 s33, s3, 1"); A("s_lshl_b32 s34, s33, 5"); A("s_add_u32 s23, s23, s34")
    A("v_and_b32 v15, 3, v13"); A("v_lshlrev_b32 v16, 3, v15"); A("v_add_u32 v16, s23, v16")
    A("v_cmp_eq_u32 vcc, 3, v15"); A("s_cmp_eq_u32 s33, 1"); A("s_cselect_b64 s[34:35], vcc, 0")
    A("v_mov_b32 v17, 112"); A("v_cndmask_b32 v16, v16, v17, s[34:35]")
    A("v_lshrrev_b32 v17, 3, v13"); A("v_lshlrev_b32 v17, 1, v17"); A("v_and_b32 v18, 1, v14"); A("v_lshl_or_b32 v17, v18, 2, v17")
    A("v_lshrrev_b32 v18, 4, v16"); A("v_xor_b32 v18, v18, v17"); A("v_and_b32 v16, 8, v16"); A("v_lshl_or_b32 v16, v18, 4, v16")
    A("v_lshrrev_b32 v17, 2, v13"); A("v_lshl_add_u32 v17, v14, 3, v17"); A("v_lshl_add_u32 v24, v17, 7, v16"); A("v_add_u32 v24, 20480, v24")
    A("v_cmp_eq_u32 vcc, 0, v13"); A(f"v_mov_b32 v16, {ZRB}"); A(f"v_mov_b32 v17, {GWB}"); A("v_cndmask_b32 v25, v16, v17, vcc")
    A("v_lshl_add_u32 v25, v14, 4, v25")
    XB = 256
    xf = lambda buf, t: XB + buf*44 + t*4
    WB = 256 + 88
    wf = lambda buf, t: WB + buf*16 + t*4
    ACC = 64
    def acc(t, RT):
        if t == 0: return ACC + (RT-1)*4
        if t == 3: return ACC + (26 + RT)*4
        return ACC + (8 + (t-1)*9 + RT)*4
    def reads(c, h, buf):
        out = []
        for t in range(3):
            for sec in range(2):
                out.append((f"ds_read_b64_tr_b16 {u(wf(buf,t)+2*sec,2)}, v24 offset:{t*8192 + h*4096 + sec*512}", ('w', c, h)))
        out.append((f"ds_read_b128 {u(wf(buf,3),4)}, v25 offset:{(2*c+h)*64}", ('w', c, h)))
        for RT in range(9):
            out.append((f"ds_read_b128 {u(xf(buf,RT),4)}, v{20+h} offset:{RT*2048}", ('x', c, h, RT)))
        for q in range(2):
            out.append((f"ds_read_b128 {u(xf(buf,9+q),4)}, v{22+h} offset:{q*2048}", ('x', c, h, 9+q)))
        return out
    def bump(c):
        d = STG if (c % 3) < 2 else -2*STG
        for r in (20, 21, 22, 23, 24):
            if d > 0: A(f"v_add_u32 v{r}, {d}, v{r}")
            else: A(f"v_subrev_u32 v{r}, {-d}, v{r}")
    A.wait_vm(('c', 0))
    A("s_barrier")
    for t, tg in reads(0, 0, 0): A(t, tag=tg)
    for c in range(7):
        for h in range(2):
            kk = 2*c + h; buf = kk & 1
            todo = []
            if h == 0: todo = reads(c, 1, buf ^ 1)
            else:
                if c < 6: A.wait_vm(('c', c+1))
                A.wait_lg()
                A("s_barrier")
                if c + 3 <= 6: dma(c+3)
                if c < 6:
                    bump(c)
                    todo = reads(c+1, 0, buf ^ 1)
            order = [(1,0),(2,0)] + [(t, RT) for RT in range(1, 9) for t in range(3)] + [(3,0),(3,1)]
            n = 0
            for (t, RT) in order:
                xt = RT if t < 3 else 9 + RT
                A.wait_lg([('w', c, h), ('x', c, h, xt)])
                d = v(acc(t, RT), 4)
                A(f"v_mfma_f32_16x16x32_bf16 {d}, {u(wf(buf,t),4)}, {u(xf(buf,xt),4)}, {d if kk else 0}")
                n += 1
                if todo and n % 3 != 0:
                    tt, tg = todo.pop(0); A(tt, tag=tg)
            while todo:
                tt, tg = todo.pop(0); A(tt, tag=tg)
    A("s_barrier")
    A(f"v_mul_u32_u24 v15, {QP}, v13")
    A("s_lshr_b32 s23, s3, 1"); A("s_lshl_b32 s23, s23, 6"); A("s_and_b32 s33, s3, 1"); A("s_lshl_b32 s33, s33, 5"); A("s_add_u32 s23, s23, s33")
    A("v_lshl_add_u32 v15, v14, 3, v15"); A("v_add_u32 v26, s23, v15")
    P = 176
    n = 0
    for t in range(3):
        for RT in range(0 if t else 1, 9):
            c = acc(t, RT); p = P + 2*(n & 7); n += 1
            A(f"v_cvt_pk_bf16_f32 v{p}, v{c}, v{c+1}"); A(f"v_cvt_pk_bf16_f32 v{p+1}, v{c+2}, v{c+3}")
            A(f"ds_write_b64 v26, {v(p,2)} offset:{RT*16*QP + t*128}", tag='qkv')
    for q in range(2):
        c = acc(3, q)
        A(f"v_mul_f32 v{c}, {hexf(-1.4426950408889634)}, v{c}")
        A(f"v_exp_f32 v{c}, v{c}"); A(f"v_add_f32 v{c}, 1.0, v{c}"); A(f"v_rcp_f32 v{c}, v{c}")
    A("s_lshl_b32 s23, s3, 7"); A(f"s_add_u32 s23, s23, {GLB}")
    A("v_lshlrev_b32 v15, 2, v13"); A("v_add_u32 v16, s23, v15")
    A("s_mov_b64 s[40:41], exec"); A("s_mov_b64 exec, 0xffff")
    for q in range(2):
        A(f"ds_write_b32 v16, v{acc(3,q)} offset:{q*64}", tag='qkv')
    A(f"s_add_u32 s36, s4, {WS_GATE}"); A("s_addc_u32 s37, s5, 0"); A("s_and_b32 s37, s37, 0xffff")
    A("s_cmp_eq_u32 s21, 0"); A(f"s_cselect_b32 s38, {S*4}, 0"); A("s_mov_b32 s39, 0x20000")
    A("s_lshl_b32 s23, s20, 9"); A("s_lshl_b32 s33, s3, 7"); A("s_add_u32 s23, s23, s33")
    for q in range(2):
        A(f"buffer_store_dword v{acc(3,q)}, v15, s[36:39], s23 offen offset:{q*64}", tag='gst')
    A("s_mov_b64 exec, s[40:41]")
    A.wait_lg()
    A("s_barrier")
    A("s_lshr_b32 s33, s3, 1"); A("s_and_b32 s34, s3, 1")
    A("s_lshl_b32 s35, s33, 6")
    A("v_lshlrev_b32 v15, 1, v13"); A("v_add_u32 v15, s34, v15")
    A(f"v_mul_u32_u24 v16, {QP}, v15"); A("v_lshl_add_u32 v16, v14, 4, v16"); A("v_add_u32 v16, s35, v16")
    A(f"v_add_u32 v20, {16*QP}, v16")
    A(f"v_add_u32 v21, 128, v16")
    A("v_lshlrev_b32 v17, 2, v15"); A(f"v_add_u32 v22, {GLB}, v17")
    A("v_lshrrev_b32 v17, 2, v13"); A("v_and_b32 v18, 3, v13"); A("v_lshlrev_b32 v18, 3, v18"); A("v_add_u32 v18, s35, v18"); A("v_add_u32 v18, 256, v18")
    for T in range(2):
        if T == 0: A("v_lshl_add_u32 v19, v14, 2, v17")
        else:
            A("v_and_b32 v19, 1, v14"); A("v_lshl_add_u32 v19, v19, 2, v17"); A("v_add_u32 v19, 16, v19")
        A("v_lshlrev_b32 v19, 1, v19"); A("v_add_u32 v19, s34, v19"); A(f"v_mul_u32_u24 v19, {QP}, v19")
        A(f"v_add_u32 v{23+T}, v19, v18")
    UB = 64
    Q_ = lambda b: UB + b*24
    K_ = lambda b, T: UB + b*24 + 4 + 4*T
    V_ = lambda b, mt: UB + b*24 + 12 + 4*mt
    G_ = lambda b: UB + b*24 + 20
    for b in range(4):
        A(f"ds_read_b128 {v(Q_(b),4)}, v20 offset:{b*32*QP}", tag=('u', b))
        for T in range(2): A(f"ds_read_b128 {v(K_(b,T),4)}, v21 offset:{(b+T)*32*QP}", tag=('u', b))
    for b in range(4):
        for mt in range(2):
            for T in range(2):
                A(f"ds_read_b64_tr_b16 {v(V_(b,mt)+2*T,2)}, v{23+T} offset:{b*32*QP + mt*32}", tag=('vv', b))
        A(f"ds_read_b32 v{G_(b)}, v22 offset:{b*128}", tag=('vv', b))
    A("v_lshlrev_b32 v15, 2, v14"); A("v_sub_u32 v15, v13, v15"); A("v_add_u32 v15, 8, v15")
    A("v_min_u32 v16, 7, v13"); A("s_cmp_eq_u32 s20, 0"); A("s_cselect_b64 s[34:35], -1, 0")
    A("v_mov_b32 v17, 7"); A("v_cndmask_b32 v16, v17, v16, s[34:35]")
    for T in range(2):
        for r in range(4):
            q = 4*T + r
            A(f"v_subrev_u32 v18, {16*T + r}, v15")
            A(f"v_cmp_le_u32 s[{48+2*q}:{49+2*q}], v18, v17")
            A(f"v_cmp_le_u32 s[{64+2*q}:{65+2*q}], v18, v16")
    SC = 160
    sc = lambda b, T: SC + b*8 + 4*T
    for b in range(4):
        A.wait_lg(('u', b))
        for T in range(2):
            A(f"v_mfma_f32_16x16x32_bf16 {v(sc(b,T),4)}, {v(K_(b,T),4)}, {v(Q_(b),4)}, 0")
    cs = (28 ** -0.5) * 1.4426950408889634
    A(f"v_mov_b32 v26, {hexf(cs)}"); A(f"v_mov_b32 v27, {hexf(cs)}"); A(f"v_mov_b32 v28, {hexf(-1e30)}")
    for b in range(4):
        for q in range(4): A(f"v_pk_mul_f32 {v(sc(b,0)+2*q,2)}, {v(sc(b,0)+2*q,2)}, {v(26,2)}")
    for b in range(4):
        for q in range(8):
            ms = (64 if b == 0 else 48) + 2*q
            A(f"v_cndmask_b32 v{sc(b,0)+q}, v28, v{sc(b,0)+q}, s[{ms}:{ms+1}]")
    MX = 192; M2 = 196
    def xreduce(op):
        for swap in ("v_permlane16_swap_b32", "v_permlane32_swap_b32"):
            for b in range(4): A(f"v_mov_b32 v{M2+b}, v{MX+b}")
            for b in range(4): A(f"{swap} v{MX+b}, v{M2+b}")
            for b in range(4): A(f"{op} v{MX+b}, v{MX+b}, v{M2+b}")
    for b in range(4):
        s0 = sc(b,0)
        A(f"v_max3_f32 v{MX+b}, v{s0}, v{s0+1}, v{s0+2}")
    for b in range(4):
        s0 = sc(b,0); A(f"v_max3_f32 v{MX+b}, v{MX+b}, v{s0+3}, v{s0+4}")
    for b in range(4):
        s0 = sc(b,0); A(f"v_max3_f32 v{MX+b}, v{MX+b}, v{s0+5}, v{s0+6}")
    for b in range(4):
        s0 = sc(b,0); A(f"v_max_f32 v{MX+b}, v{MX+b}, v{s0+7}")
    xreduce("v_max_f32")
    for b in range(4):
        for q in range(8): A(f"v_sub_f32 v{sc(b,0)+q}, v{sc(b,0)+q}, v{MX+b}")
    for b in range(4):
        for q in range(8): A(f"v_exp_f32 v{sc(b,0)+q}, v{sc(b,0)+q}")
    for b in range(4):
        s0 = sc(b,0)
        A(f"v_add_f32 v{MX+b}, v{s0}, v{s0+1}")
    for q in range(2, 8):
        for b in range(4): A(f"v_add_f32 v{MX+b}, v{MX+b}, v{sc(b,0)+q}")
    xreduce("v_add_f32")
    for b in range(4): A(f"v_rcp_f32 v{MX+b}, v{MX+b}")
    PB = 200
    for b in range(4):
        for q in range(8): A(f"v_mul_f32 v{sc(b,0)+q}, v{sc(b,0)+q}, v{MX+b}")
    for b in range(4):
        for q in range(4): A(f"v_cvt_pk_bf16_f32 v{PB+4*b+q}, v{sc(b,0)+2*q}, v{sc(b,0)+2*q+1}")
    OB = 160
    for b in range(4):
        A.wait_lg(('vv', b))
        for mt in range(2):
            A(f"v_mfma_f32_16x16x32_bf16 {v(OB+8*b+4*mt,4)}, {v(V_(b,mt),4)}, {v(PB+4*b,4)}, 0")
    A("s_and_b32 s34, s3, 1")
    A("v_lshrrev_b32 v15, 2, v13"); A("v_lshlrev_b32 v15, 2, v15"); A("v_and_b32 v16, 1, v13"); A("v_lshl_add_u32 v15, v16, 1, v15"); A("v_add_u32 v15, s34, v15")
    A("v_lshl_add_u32 v15, v14, 4, v15"); A("v_lshlrev_b32 v15, 4, v15")
    A("v_bfe_u32 v16, v13, 1, 1"); A("v_lshl_add_u32 v29, v16, 10, v15")
    A("s_lshl_b32 s23, s20, 1"); A("s_mul_i32 s23, s23, 44"); A("s_lshl_b32 s33, s21, 1"); A("s_add_u32 s23, s23, s33")
    A("s_lshr_b32 s33, s3, 1"); A("s_add_u32 s23, s23, s33"); A("s_lshl_b32 s23, s23, 12"); A(f"s_add_u32 s23, s23, {WS_AF}")
    A("s_add_u32 s36, s4, s23"); A("s_addc_u32 s37, s5, 0"); A("s_and_b32 s37, s37, 0xffff")
    A(f"s_mov_b32 s38, {44*4096 + 4096}"); A("s_mov_b32 s39, 0x20000")
    for b in range(4):
        o = OB + 8*b
        for q in range(8): A(f"v_mul_f32 v{o+q}, v{o+q}, v{G_(b)}")
        p = PB + 4*b
        for q in range(4): A(f"v_cvt_pk_bf16_f32 v{p+q}, v{o+2*q}, v{o+2*q+1}")
        A(f"s_mov_b32 s23, {(b >> 1)*44*4096 + 2*(b & 1)*1024}")
        A(f"buffer_store_dwordx4 {v(p,4)}, v29, s[36:39], s23 offen", tag='ost')
```

```python
from asmlib import *
from layout import *

GELU_C1 = -2.0*1.4426950408889634*0.7978845608028654
GELU_C2 = GELU_C1*0.044715
import struct
def f2u(x): return struct.unpack('<I', struct.pack('<f', x))[0]
def hexf(x): return f"0x{f2u(x):08x}"

def gelu_pairs(A, regs, tmp, VC1, VC2, VONE):
    for q in range(0, len(regs), 2):
        grp = regs[q:q+2]
        for n, r in enumerate(grp):
            t = tmp + 4*n
            A(f"v_pk_mul_f32 {v(t,2)}, {v(r,2)}, {v(r,2)}")
        for n, r in enumerate(grp):
            t = tmp + 4*n
            A(f"v_pk_fma_f32 {v(t,2)}, {v(t,2)}, {v(VC2,2)}, {v(VC1,2)}")
        for n, r in enumerate(grp):
            t = tmp + 4*n
            A(f"v_pk_mul_f32 {v(t,2)}, {v(t,2)}, {v(r,2)}")
        for n, r in enumerate(grp):
            t = tmp + 4*n
            A(f"v_exp_f32 v{t}, v{t}"); A(f"v_exp_f32 v{t+1}, v{t+1}")
        for n, r in enumerate(grp):
            t = tmp + 4*n
            A(f"v_pk_add_f32 {v(t,2)}, {v(t,2)}, {v(VONE,2)}")
        for n, r in enumerate(grp):
            t = tmp + 4*n
            A(f"v_rcp_f32 v{t}, v{t}"); A(f"v_rcp_f32 v{t+1}, v{t+1}")
        for n, r in enumerate(grp):
            t = tmp + 4*n
            A(f"v_pk_mul_f32 {v(r,2)}, {v(r,2)}, {v(t,2)}")

def gen_z(A, L):
    XREG = 256
    xf = lambda kk, aa: XREG + (kk*2+aa)*4
    WB = 112
    wf = lambda buf, j: 256 + WB + buf*28 + j*4
    ACC1, ACC2 = 64, 120
    acc1 = lambda j, aa: ACC1 + (j*2+aa)*4
    acc2 = lambda j, aa: ACC2 + (j*2+aa)*4
    RING = 114688
    A("v_and_b32 v12, 63, v0")
    A("v_lshrrev_b32 v13, 3, v12")
    A("v_and_b32 v14, 7, v12"); A("v_and_b32 v15, 3, v13"); A("v_xor_b32 v14, v14, v15"); A("v_lshlrev_b32 v14, 4, v14")
    A("v_mul_u32_u24 v1, 896, v13"); A("v_add_u32 v1, v1, v14"); A("v_xor_b32 v2, 64, v14"); A("v_mul_u32_u24 v15, 896, v13"); A("v_add_u32 v2, v2, v15")
    A("v_lshrrev_b32 v13, 4, v12")
    A("v_and_b32 v14, 15, v12")
    A("v_lshrrev_b32 v15, 1, v14")
    A("v_xor_b32 v15, v15, v13")
    A("v_and_b32 v16, 1, v14"); A("v_lshlrev_b32 v16, 4, v16")
    A("v_mul_u32_u24 v17, 3584, v13"); A("v_add_u32 v16, v16, v17")
    A("v_mov_b32 v18, 0x7fff0000")
    for uh in range(2):
        if uh: A("v_xor_b32 v15, 4, v15")
        A(f"v_lshl_add_u32 v{3+uh}, v15, 5, v16")
        A("v_cmp_eq_u32 vcc, 7, v15")
        A(f"v_cndmask_b32 v{3+uh}, v{3+uh}, v18, vcc")
    A("s_lshl_b32 s22, s20, 2"); A("s_add_u32 s22, s22, s3")
    A(f"s_mul_i32 s23, s22, {32*896}")
    A("s_add_u32 s8, s6, s23"); A("s_addc_u32 s9, s7, 0"); A("s_and_b32 s9, s9, 0xffff")
    A(f"s_mov_b32 s10, {32*896}"); A("s_mov_b32 s11, 0x20000")
    A("s_mov_b32 s12, s28"); A("s_and_b32 s13, s29, 0xffff"); A(f"s_mov_b32 s14, {448*3584}"); A("s_mov_b32 s15, 0x20000")
    A(f"s_mul_i32 s25, s3, {16*3584}"); A("s_mul_i32 s23, s21, 224"); A("s_add_u32 s25, s25, s23")
    A("s_add_u32 s24, s25, 1792")
    A("s_lshl_b32 s26, s3, 12")
    def dma_x(c):
        for uu in range(4):
            A(f"s_add_u32 m0, s26, {c*16384 + uu*1024}")
            A(f"s_mov_b32 s23, {uu*8*896 + c*128}")
            A(f"buffer_load_dwordx4 v{1+(uu&1)}, s[8:11], s23 offen lds", tag=('x', c))
    def dma_w(c, which):
        base = (RING + (c % 3)*16384) if which == 1 else c*16384
        sreg = 24 if which == 1 else 25
        for uu in range(4):
            A(f"s_add_u32 m0, s26, {base + uu*1024}")
            A(f"s_add_u32 s23, s{sreg}, {(64*c + 4*uu)*3584}")
            A(f"buffer_load_dwordx4 v{3+(uu>>1)}, s[12:15], s23 offen lds", tag=('w', which, c))
    for c in range(3):
        dma_w(c, 1); dma_x(c)
    return dict(locals())

def gen_z2(A, L, E):
    globals_ = E
    xf, wf, acc1, acc2, RING, dma_x, dma_w = (E[k] for k in ('xf','wf','acc1','acc2','RING','dma_x','dma_w'))
    ACC1, ACC2 = E['ACC1'], E['ACC2']
    A("v_and_b32 v13, 15, v12"); A("v_lshrrev_b32 v14, 4, v12")
    A("v_lshrrev_b32 v15, 2, v13"); A("v_lshlrev_b32 v16, 3, v15"); A("v_and_b32 v17, 3, v13"); A("v_add_u32 v16, v16, v17")
    A("v_and_b32 v17, 7, v13"); A("v_xor_b32 v17, v17, v14"); A("v_lshlrev_b32 v17, 4, v17")
    A("v_lshl_add_u32 v17, v16, 7, v17"); A("v_add_u32 v20, s26, v17")
    A("v_xor_b32 v21, 64, v20")
    A("v_add_u32 v22, 0x10000, v20"); A("v_add_u32 v23, 0x10000, v21")
    A("v_lshl_add_u32 v16, v14, 3, v15"); A("v_lshlrev_b32 v16, 8, v16")
    A("v_and_b32 v17, 3, v13"); A("v_lshl_add_u32 v16, v17, 3, v16"); A(f"v_add_u32 v16, {RING}, v16")
    A("v_and_b32 v17, 1, v14"); A("v_lshl_or_b32 v17, v17, 2, v15")
    for j in range(7):
        A(f"v_xor_b32 v18, {j}, v17"); A(f"v_lshl_add_u32 v{24+j}, v18, 5, v16")
    VC1, VC2, VONE = 32, 34, 36
    for r, val in ((VC1, GELU_C1), (VC2, GELU_C2), (VONE, 1.0)):
        A(f"v_mov_b32 v{r}, {hexf(val)}"); A(f"v_mov_b32 v{r+1}, {hexf(val)}")
    def read_w(which, c, h, buf, js):
        for j in js:
            if which == 1: off = (c % 3)*16384 + h*8192
            else: off = (c % 4)*16384 + h*8192
            for sec in range(2):
                A(f"ds_read_b64_tr_b16 {u(wf(buf,j)+2*sec,2)}, v{24+j} offset:{off + sec*1024}", tag=('wf', which, c, h, j))
    def read_x(c):
        for h in range(2):
            for aa in range(2):
                base = 20 + h + (2 if c >= 4 else 0)
                A(f"ds_read_b128 {u(xf(2*c+h,aa),4)}, v{base} offset:{(c%4)*16384 + aa*512}", tag=('xf', c, h))
    def gemm_pass(which):
        acc = acc1 if which == 1 else acc2
        for c in range(7):
            for h in range(2):
                kk = 2*c + h; buf = kk & 1
                nxt = None
                if h == 0: nxt = (c, 1)
                elif c < 6: nxt = (c+1, 0)
                xreads = False
                if h == 1:
                    if which == 1:
                        if c < 6: A.wait_vm([('w',1,c+1), ('x',c+1)])
                        A.wait_lg()
                        A("s_barrier")
                        if c + 3 <= 6: dma_w(c+3, 1); dma_x(c+3)
                        for cc in {4: (0,1), 5: (2,3,4), 6: (5,6)}.get(c, ()): dma_w(cc, 2)
                        xreads = c < 6
                    elif c == 3:
                        pass
                todo = []
                if nxt:
                    nc, nh = nxt
                    if which == 2 and nc == 4 and nh == 0:
                        for j in range(7): A(f"v_add_u32 v{24+j}, 0x10000, v{24+j}")
                    todo = [(nc, nh, j) for j in range(7)]
                if xreads: read_x(c+1)
                for j in range(7):
                    A.wait_lg([('wf', which, c, h, j), ('xf', c, h)])
                    for aa in range(2):
                        d = v(acc(j,aa),4); cc_ = d if kk else 0
                        if which == 1: A(f"v_mfma_f32_16x16x32_bf16 {d}, {u(xf(kk,aa),4)}, {u(wf(buf,j),4)}, {cc_}")
                        else: A(f"v_mfma_f32_16x16x32_bf16 {d}, {u(wf(buf,j),4)}, {u(xf(kk,aa),4)}, {cc_}")
                    if todo:
                        nc, nh, jj = todo.pop(0)
                        read_w(which, nc, nh, buf ^ 1, [jj])
    A.wait_vm([('w',1,0), ('x',0)])
    A("s_barrier")
    read_x(0)
    read_w(1, 0, 0, 0, range(7))
    gemm_pass(1)
    TMP = 176
    gelu_pairs(A, [ACC1 + 2*p for p in range(28)], TMP, VC1, VC2, VONE)
    SUM = 184
    for aa in range(2):
        for rp in range(2):
            d = SUM + aa*4 + rp*2
            A(f"v_pk_add_f32 {v(d,2)}, {v(acc1(0,aa)+2*rp,2)}, {v(acc1(1,aa)+2*rp,2)}")
            for j in range(2, 7):
                A(f"v_pk_add_f32 {v(d,2)}, {v(d,2)}, {v(acc1(j,aa)+2*rp,2)}")
    def dpp_reduce16(regs):
        for sh in (8, 4, 2, 1):
            for r in regs:
                A(f"v_add_f32_dpp v{r}, v{r}, v{r} row_ror:{sh} row_mask:0xf bank_mask:0xf")
    dpp_reduce16(range(SUM, SUM+8))
    A(f"v_mov_b32 v38, {hexf(1.0/112)}"); A(f"v_mov_b32 v39, {hexf(1.0/112)}")
    for p in range(4):
        A(f"v_pk_mul_f32 {v(SUM+2*p,2)}, {v(SUM+2*p,2)}, {v(38,2)}")
    M2 = 192
    for aa in range(2):
        for rp in range(2):
            d = M2 + aa*4 + rp*2; mreg = SUM + aa*4 + rp*2
            for j in range(7):
                t = TMP + 2*(j & 1)
                A(f"v_pk_add_f32 {v(t,2)}, {v(acc1(j,aa)+2*rp,2)}, {v(mreg,2)} neg_lo:[0,1] neg_hi:[0,1]")
                if j == 0: A(f"v_pk_mul_f32 {v(d,2)}, {v(t,2)}, {v(t,2)}")
                else: A(f"v_pk_fma_f32 {v(d,2)}, {v(t,2)}, {v(t,2)}, {v(d,2)}")
    dpp_reduce16(range(M2, M2+8))
    PUB = 200
    for q in range(8):
        A(f"v_mov_b32 v{PUB+2*q}, v{SUM+q}"); A(f"v_mov_b32 v{PUB+2*q+1}, v{M2+q}")
    A("s_lshl_b32 s23, s20, 3"); A("s_add_u32 s23, s23, s21"); A("s_lshl_b32 s23, s23, 7")
    A("s_lshl_b32 s33, s3, 5"); A("s_add_u32 s23, s23, s33"); A("s_lshl_b32 s23, s23, 3")
    A(f"s_add_u32 s36, s4, {WS_LNP}"); A("s_addc_u32 s37, s5, 0"); A("s_and_b32 s37, s37, 0xffff")
    A(f"s_mov_b32 s38, {16*8*128*8}"); A("s_mov_b32 s39, 0x20000")
    A("v_lshrrev_b32 v14, 4, v12"); A("v_lshlrev_b32 v19, 6, v14")
    A("s_mov_b64 s[40:41], exec")
    A("s_mov_b32 exec_lo, 0x00010001"); A("s_mov_b32 exec_hi, 0x00010001")
    for q in range(4):
        A(f"buffer_store_dwordx4 {v(PUB+4*q,4)}, v19, s[36:39], s23 offen offset:{16*q} sc0 sc1", tag='pub')
    A("s_mov_b64 exec, s[40:41]")
    A.wait_vm([('w',2,c) for c in range(7)])
    A("s_barrier")
    for j in range(7): A(f"v_subrev_u32 v{24+j}, {RING}, v{24+j}")
    E2 = dict(locals())
    read_w(2, 0, 0, 0, range(7))
    return E2

def gen_z3(A, L, E):
    (xf, wf, acc1, acc2, read_w, TMP, VC1, VC2, VONE, ACC1, ACC2) = (E[k] for k in ('xf','wf','acc1','acc2','read_w','TMP','VC1','VC2','VONE','ACC1','ACC2'))
    for c in range(7):
        for h in range(2):
            kk = 2*c + h; buf = kk & 1
            nxt = (c, 1) if h == 0 else ((c+1, 0) if c < 6 else None)
            if c == 3 and h == 0:
                A.wait_vm()
                A("s_barrier")
                A("s_cmp_lg_u32 s3, 0"); A(f"s_cbranch_scc1 {L('nosig')}")
                A("s_lshl_b32 s23, s20, 2"); A("v_mov_b32 v18, s23"); A("v_mov_b32 v19, 1")
                A("s_mov_b64 s[40:41], exec"); A("s_mov_b64 exec, 1")
                A.raw("  global_atomic_add v18, v19, s[30:31] sc1")
                A("s_mov_b64 exec, s[40:41]")
                A.label(L('nosig'))
            todo = []
            if nxt:
                nc, nh = nxt
                if nc == 4 and nh == 0:
                    for j in range(7): A(f"v_add_u32 v{24+j}, 0x10000, v{24+j}")
                todo = [(nc, nh, j) for j in range(7)]
            for j in range(7):
                A.wait_lg([('wf', 2, c, h, j)])
                for aa in range(2):
                    d = v(acc2(j,aa),4)
                    A(f"v_mfma_f32_16x16x32_bf16 {d}, {u(wf(buf,j),4)}, {u(xf(kk,aa),4)}, {d if kk else 0}")
                if todo:
                    nc, nh, jj = todo.pop(0)
                    read_w(2, nc, nh, buf ^ 1, [jj])
    gelu_pairs(A, [ACC2 + 2*p for p in range(28)], TMP, VC1, VC2, VONE)
    A("s_lshl_b32 s23, s22, 1"); A("s_mul_i32 s23, s23, 56"); A("s_mul_i32 s33, s21, 7"); A("s_add_u32 s23, s23, s33"); A("s_lshl_b32 s23, s23, 9")
    A(f"s_add_u32 s23, s23, {WS_Z1F}")
    A("s_add_u32 s36, s4, s23"); A("s_addc_u32 s37, s5, 0"); A("s_and_b32 s37, s37, 0xffff")
    A(f"s_mov_b32 s38, {56*512 + 7*512}"); A("s_mov_b32 s39, 0x20000")
    A("v_lshlrev_b32 v18, 3, v12")
    P = 200
    for aa in range(2):
        if aa: A(f"s_mov_b32 s23, {56*512}")
        for j in range(7):
            c = acc2(j,aa); p = P + 2*(j & 3)
            A(f"v_cvt_pk_bf16_f32 v{p}, v{c}, v{c+1}"); A(f"v_cvt_pk_bf16_f32 v{p+1}, v{c+2}, v{c+3}")
            A(f"buffer_store_dwordx2 {v(p,2)}, v18, s[36:39], {'s23' if aa else 0} offen offset:{j*512}", tag='z1st')
    A("s_lshl_b32 s23, s20, 2"); A("v_mov_b32 v18, s23")
    A("s_mov_b32 s33, 0")
    A.label(L('poll'))
    A.raw("  global_load_dword v19, v18, s[30:31] sc1")
    A.raw("  s_waitcnt vmcnt(0)")
    A.raw("  v_readfirstlane_b32 s34, v19")
    A.raw("  s_add_u32 s33, s33, 1")
    A.raw("  s_cmp_ge_u32 s34, 8")
    A.raw(f"  s_cbranch_scc1 {L('polled')}")
    A.raw("  s_cmp_lt_u32 s33, 0x40000")
    A.raw(f"  s_cbranch_scc1 {L('poll')}")
    A.label(L('polled'))
    A.vm = []
    A("s_lshl_b32 s23, s20, 3"); A("s_lshl_b32 s23, s23, 7"); A("s_lshl_b32 s33, s3, 5"); A("s_add_u32 s23, s23, s33"); A("s_lshl_b32 s23, s23, 3")
    A(f"s_add_u32 s36, s4, {WS_LNP}"); A("s_addc_u32 s37, s5, 0"); A("s_and_b32 s37, s37, 0xffff")
    A(f"s_mov_b32 s38, {16*8*128*8}"); A("s_mov_b32 s39, 0x20000")
    A("v_and_b32 v18, 7, v12"); A("v_lshlrev_b32 v18, 10, v18")
    A("v_lshrrev_b32 v14, 4, v12"); A("v_lshl_add_u32 v18, v14, 6, v18")
    Q = 200
    for q in range(4):
        A(f"buffer_load_dwordx4 {v(Q+4*q,4)}, v18, s[36:39], s23 offen offset:{16*q} sc0 sc1", tag='lnp')
    A.wait_vm('lnp')
    def red8(regs):
        for pat in ("quad_perm:[1,0,3,2]", "quad_perm:[2,3,0,1]", "row_half_mirror"):
            for r in regs:
                A(f"v_add_f32_dpp v{r}, v{r}, v{r} {pat} row_mask:0xf bank_mask:0xf")
    MB = 216
    for q in range(8): A(f"v_mov_b32 v{MB+q}, v{Q+2*q}")
    red8(range(MB, MB+8))
    for q in range(8): A(f"v_mul_f32 v{MB+q}, 0.125, v{MB+q}")
    A(f"v_mov_b32 v38, {hexf(112.0)}")
    for q in range(8):
        A(f"v_sub_f32 v{Q+2*q}, v{Q+2*q}, v{MB+q}")
        A(f"v_mul_f32 v{Q+2*q}, v{Q+2*q}, v{Q+2*q}")
        A(f"v_fma_f32 v{MB+8+q}, v{Q+2*q}, v38, v{Q+2*q+1}")
    red8(range(MB+8, MB+16))
    A(f"v_mov_b32 v38, {hexf(1.0/896)}"); A(f"v_mov_b32 v39, {hexf(1e-5)}")
    for q in range(8): A(f"v_fma_f32 v{MB+8+q}, v{MB+8+q}, v38, v39")
    for q in range(8): A(f"v_rsq_f32 v{MB+8+q}, v{MB+8+q}")
    for q in range(8): A(f"v_mul_f32 v{MB+q}, v{MB+q}, v{MB+8+q}")
    A(f"s_mul_i32 s23, s21, {64*7168}"); A("s_mul_i32 s33, s22, 7168"); A("s_add_u32 s23, s23, s33")
    A("s_add_u32 s36, s4, s23"); A("s_addc_u32 s37, s5, 0"); A("s_and_b32 s37, s37, 0xffff")
    A(f"s_mov_b32 s38, 7168"); A("s_mov_b32 s39, 0x20000")
    A("v_lshlrev_b32 v18, 4, v12"); A("v_add_u32 v19, 4096, v18")
    for j in range(7):
        p = Q + 4*(j & 3)
        for aa in range(2):
            c = acc1(j,aa)
            for rp in range(2):
                A(f"v_pk_fma_f32 {v(c+2*rp,2)}, {v(c+2*rp,2)}, {v(MB+8+aa*4+2*rp,2)}, {v(MB+aa*4+2*rp,2)} neg_lo:[0,0,1] neg_hi:[0,0,1]")
            A(f"v_cvt_pk_bf16_f32 v{p+2*aa}, v{c}, v{c+1}"); A(f"v_cvt_pk_bf16_f32 v{p+2*aa+1}, v{c+2}, v{c+3}")
        A(f"buffer_store_dwordx4 {v(p,4)}, v{18 if j < 4 else 19}, s[36:39], 0 offen offset:{(j%4)*1024}", tag='z2st')
```

```python
from asmlib import *
from layout import *
from k3 import srd, code_prefetch

def gen_k2(name="k2", prefetch_bytes=0):
    A = Asm()
    L = lambda x: f"{name}_{x}"
    A("s_cmp_ge_u32 s2, 256"); A(f"s_cbranch_scc1 {L('end')}")
    A(f"s_load_dwordx2 s[4:5], s[0:1], {KA_WS}")
    A(f"s_load_dwordx2 s[6:7], s[0:1], {KA_WSP}")
    A(f"s_load_dwordx2 s[28:29], s[0:1], {KA_BSP}")
    if prefetch_bytes: code_prefetch(A, prefetch_bytes, 10, 56, 22, L('end'), name)
    A("v_lshrrev_b32 v6, 6, v0")
    A("v_and_b32 v12, 63, v0")
    A("v_readfirstlane_b32 s3, v6")
    A("s_and_b32 s20, s2, 7"); A("s_lshr_b32 s21, s2, 3")
    A("s_lshr_b32 s22, s20, 1"); A("s_lshl_b32 s22, s22, 3"); A("s_lshr_b32 s23, s21, 2"); A("s_add_u32 s22, s22, s23")
    A("s_and_b32 s23, s20, 1"); A("s_lshl_b32 s23, s23, 2"); A("s_and_b32 s24, s21, 3"); A("s_add_u32 s23, s23, s24")
    A("v_lshrrev_b32 v13, 3, v12")
    A("v_and_b32 v14, 7, v12")
    A("v_and_b32 v15, 3, v13")
    A("v_xor_b32 v14, v14, v15")
    A("v_lshlrev_b32 v14, 4, v14")
    A("v_lshl_add_u32 v1, v13, 12, v14")
    A("v_xor_b32 v2, 64, v1")
    A("v_lshlrev_b32 v3, 4, v12")
    A("v_add_u32 v4, 4096, v3")
    A.wait_lg()
    A("s_lshl_b32 s24, s22, 18")
    A("s_add_u32 s8, s6, s24"); A("s_addc_u32 s9, s7, 0"); A("s_and_b32 s9, s9, 0xffff")
    A(f"s_mov_b32 s10, {64*4096}"); A("s_mov_b32 s11, 0x20000")
    A(f"s_mul_i32 s24, s23, {64*7168}")
    A("s_add_u32 s12, s4, s24"); A("s_addc_u32 s13, s5, 0"); A("s_and_b32 s13, s13, 0xffff")
    A(f"s_mov_b32 s14, {64*7168}"); A("s_mov_b32 s15, 0x20000")
    A("s_lshl_b32 s25, s3, 10")
    A(f"s_mul_i32 s26, s3, {16*7168}")
    A(f"s_mul_i32 s27, s3, {3*8192}")
    NST = 3
    BB = 256
    def bfrag(stage, h, j): return BB + stage*56 + (h*7 + j)*4
    def issueA(ss, js):
        st = ss % NST
        for j in js:
            A(f"s_add_u32 m0, s27, {st*8192 + j*1024}")
            A(f"s_add_u32 s30, s25, {j*32768 + ss*128}")
            A(f"buffer_load_dwordx4 v{1 + (j&1)}, s[8:11], s30 offen lds", tag=('A', ss))
    def issueB(ss, h, js):
        st = ss % NST
        ks = ss*2 + h
        for j in js:
            off = ks*7168 + j*1024
            A(f"s_add_u32 s31, s26, {off - (off % 4096)}") if (j == js[0] or (off % 4096) < 1024) else None
            A(f"buffer_load_dwordx4 {u(bfrag(st,h,j),4)}, v3, s[12:15], s31 offen offset:{off % 4096}", tag=('B', ss, h))
    def issue_full(ss):
        issueA(ss, range(8)); issueB(ss, 0, list(range(7))); issueB(ss, 1, list(range(7)))
    issue_full(0); issue_full(1)
    A("v_and_b32 v13, 15, v12")
    A("v_lshrrev_b32 v14, 4, v12")
    A("v_lshrrev_b32 v15, 2, v13"); A("v_lshlrev_b32 v15, 3, v15"); A("v_and_b32 v16, 3, v13"); A("v_add_u32 v15, v15, v16")
    A("v_and_b32 v16, 7, v13"); A("v_xor_b32 v16, v16, v14"); A("v_lshlrev_b32 v16, 4, v16")
    A("v_lshl_add_u32 v16, v15, 7, v16")
    VA = 20
    for tau in range(4):
        A(f"s_xor_b32 s30, s3, {tau}")
        A("s_lshr_b32 s31, s30, 1"); A("s_lshl_b32 s31, s31, 12")
        A("s_and_b32 s30, s30, 1"); A("s_lshl_b32 s30, s30, 9")
        A("s_add_u32 s30, s30, s31"); A("s_add_u32 s30, s30, s27")
        A(f"v_add_u32 v{VA+2*tau}, s30, v16")
        A(f"v_xor_b32 v{VA+2*tau+1}, 64, v{VA+2*tau}")
    A("s_lshl_b32 s30, s22, 2"); A("s_add_u32 s30, s30, s3")
    A("s_lshl_b32 s31, s22, 6"); A("s_lshr_b32 s32, s3, 1"); A("s_lshl_b32 s32, s32, 5"); A("s_add_u32 s31, s31, s32")
    A("s_and_b32 s32, s3, 1"); A("s_lshl_b32 s32, s32, 2"); A("s_add_u32 s31, s31, s32")
    A("v_add_u32 v17, s31, v15")
    A("s_mul_i32 s32, s30, 56"); A("s_mul_i32 s33, s23, 7"); A("s_add_u32 s32, s32, s33"); A("s_lshl_b32 s32, s32, 9")
    A(f"s_add_u32 s32, s32, {WS_Z1F}")
    A("s_add_u32 s16, s4, s32"); A("s_addc_u32 s17, s5, 0"); A("s_and_b32 s17, s17, 0xffff")
    A(f"s_mov_b32 s18, {7*512}"); A("s_mov_b32 s19, 0x20000")
    srd(A, 36, 28, 29, S*2)
    A(f"s_add_u32 s40, s4, {WS_GATE}"); A("s_addc_u32 s41, s5, 0"); A("s_and_b32 s41, s41, 0xffff")
    A(f"s_mov_b32 s42, {S*4}"); A("s_mov_b32 s43, 0x20000")
    Z1 = 28
    A("v_lshlrev_b32 v18, 3, v12")
    for j in range(7):
        A(f"buffer_load_dwordx2 {v(Z1+2*j,2)}, v18, s[16:19], 0 offen offset:{j*512}", tag='epi')
    A("v_lshlrev_b32 v19, 1, v17")
    A("buffer_load_ushort v42, v19, s[36:39], 0 offen", tag='epi')
    A("v_lshlrev_b32 v19, 2, v17")
    A("buffer_load_dword v43, v19, s[40:43], 0 offen", tag='epi')
    ACC = 48
    acc = lambda j, tau: ACC + (j*4+tau)*4
    AF0 = 160
    def readA(ss, h, buf):
        st = ss % NST
        for tau in range(4):
            A(f"ds_read_b128 {v(AF0+buf*16+tau*4,4)}, v{VA+2*tau+h} offset:{st*8192}", tag=('a', ss, h))
    A.wait_vm(('A', 0))
    readA(0, 0, 0)
    for ss in range(8):
        for h in range(2):
            kk = ss*2 + h
            buf = kk & 1
            nss, nh = (ss, 1) if h == 0 else (ss+1, 0)
            if nss < 8:
                if nh == 0: A.wait_vm(('A', nss))
                readA(nss, nh, buf ^ 1)
            A.wait_vm(('B', ss, h))
            A.wait_lg(('a', ss, h))
            pend = []
            if ss + 2 < 8:
                if h == 0:
                    pend = [('A', j) for j in range(8)] + [('B0', j) for j in range(3)]
                else:
                    pend = [('B0', j) for j in range(3, 7)] + [('B1', j) for j in range(7)]
            m = 0
            for j in range(7):
                for tau in range(4):
                    c = v(acc(j,tau),4)
                    A(f"v_mfma_f32_16x16x32_bf16 {c}, {u(bfrag(ss%NST,h,j),4)}, {v(AF0+buf*16+tau*4,4)}, {c if kk else 0}")
                    m += 1
                    if pend and m % 2 == 0:
                        kind, jj = pend.pop(0)
                        if kind == 'A': issueA(ss+2, [jj])
                        elif kind == 'B0': issueB(ss+2, 0, [jj])
                        else: issueB(ss+2, 1, [jj])
            assert not pend
            A.check_vm()
    A("v_lshlrev_b32 v13, 4, v12")
    A("v_add_u32 v5, s27, v13")
    for tau in (1,2,3):
        A(f"s_xor_b32 s30, s3, {tau}"); A(f"s_mul_i32 s30, s30, {3*8192}"); A(f"s_add_u32 s30, s30, {(tau-1)*7168}")
        A(f"v_add_u32 v{5+tau}, s30, v13")
    for tau in (1,2,3):
        for j in range(7):
            A(f"ds_write_b128 v5, {v(acc(j,tau),4)} offset:{(tau-1)*7168+j*1024}", tag='w')
    A.wait_lg()
    A("s_barrier")
    T0 = 160
    for tau in (1,2,3):
        for j in range(7):
            A(f"ds_read_b128 {v(T0+((tau-1)*7+j)*4,4)}, v{5+tau} offset:{j*1024}", tag=('r',tau))
    A.wait_vm('epi')
    A("v_sub_f32 v43, 1.0, v43")
    A("v_lshlrev_b32 v42, 16, v42")
    for tau in (1,2,3):
        A.wait_lg(('r',tau))
        for j in range(7):
            c = acc(j,0); t = T0+((tau-1)*7+j)*4
            A(f"v_pk_add_f32 {v(c,2)}, {v(c,2)}, {v(t,2)}")
            A(f"v_pk_add_f32 {v(c+2,2)}, {v(c+2,2)}, {v(t+2,2)}")
    H = 160
    for j in range(7):
        c = acc(j,0)
        for r in range(4):
            z = Z1 + 2*j + (r >> 1)
            if r & 1: A(f"v_and_b32 v12, 0xffff0000, v{z}")
            else: A(f"v_lshlrev_b32 v12, 16, v{z}")
            A(f"v_add_f32 v{c+r}, v{c+r}, v42")
            A(f"v_mul_f32 v12, v12, v43")
            A(f"v_mul_f32 v{c+r}, v{c+r}, v12")
        A(f"v_cvt_pk_bf16_f32 v{H+2*j}, v{c}, v{c+1}")
        A(f"v_cvt_pk_bf16_f32 v{H+2*j+1}, v{c+2}, v{c+3}")
    A(f"s_mul_i32 s30, s22, {44*4096}"); A(f"s_add_u32 s30, s30, {WS_AF}")
    A("s_add_u32 s16, s4, s30"); A("s_addc_u32 s17, s5, 0"); A("s_and_b32 s17, s17, 0xffff")
    A(f"s_mov_b32 s18, {44*4096}"); A("s_mov_b32 s19, 0x20000")
    A("s_mul_i32 s30, s23, 7"); A("s_lshr_b32 s31, s30, 1"); A("s_add_u32 s31, s31, 16"); A("s_lshl_b32 s31, s31, 12")
    A("s_lshl_b32 s32, s3, 10"); A("s_add_u32 s31, s31, s32")
    A("v_and_b32 v13, 63, v0"); A("v_lshlrev_b32 v13, 4, v13")
    A("s_and_b32 s30, s30, 1"); A("s_cmp_eq_u32 s30, 0"); A(f"s_cbranch_scc0 {L('odd')}")
    for p in range(3):
        A(f"buffer_store_dwordx4 {v(H+4*p,4)}, v13, s[16:19], s31 offen")
        A("s_add_u32 s31, s31, 4096")
    A(f"buffer_store_dwordx2 {v(H+12,2)}, v13, s[16:19], s31 offen")
    A(f"s_branch {L('end')}")
    A.label(L('odd'))
    A(f"buffer_store_dwordx2 {v(H,2)}, v13, s[16:19], s31 offen offset:8")
    for p in range(3):
        A("s_add_u32 s31, s31, 4096")
        A(f"buffer_store_dwordx4 {v(H+2+4*p,4)}, v13, s[16:19], s31 offen")
    A.label(L('end'))
    A("s_endpgm")
    return A

if __name__ == "__main__":
    A = gen_k2(); t = A.text(); print(t); print("; nops", A.nops_inserted)
```

```python
from asmlib import *
from layout import *

def srd(A, sreg, base_lo, base_hi, nbytes):
    A(f"s_mov_b32 s{sreg}, s{base_lo}")
    A(f"s_and_b32 s{sreg+1}, s{base_hi}, 0xffff")
    A(f"s_mov_b32 s{sreg+2}, {nbytes}")
    A(f"s_mov_b32 s{sreg+3}, 0x20000")

def code_prefetch(A, nbytes, vtmp, vdst, stmp, endlabel=None, name="k"):
    A(f"s_getpc_b64 s[{stmp}:{stmp+1}]")
    A.raw(f"{name}_pc:")
    A(f"v_and_b32 v{vtmp}, 63, v0")
    A(f"v_lshlrev_b32 v{vtmp}, 7, v{vtmp}")
    n = (nbytes + 8191)//8192
    for i in range(n):
        A(f"v_min_u32 v{vdst+1}, {endlabel}-{name}_pc, v{vtmp}")
        A(f"global_load_dword v{vdst}, v{vdst+1}, s[{stmp}:{stmp+1}]", tag='pf')
        if i+1 < n: A(f"v_add_u32 v{vtmp}, 0x2000, v{vtmp}")

def gen_k3(name="k3", prefetch_bytes=0):
    A = Asm()
    L = lambda x: f"{name}_{x}"
    A("s_cmp_ge_u32 s2, 224"); A(f"s_cbranch_scc1 {L('end')}")
    A(f"s_load_dwordx2 s[4:5], s[0:1], {KA_WS}")
    A(f"s_load_dwordx2 s[6:7], s[0:1], {KA_OUT}")
    if prefetch_bytes: code_prefetch(A, prefetch_bytes, 10, 56, 22, L('end'), name)
    A("v_lshrrev_b32 v6, 6, v0")
    A("v_and_b32 v5, 63, v0")
    A("v_readfirstlane_b32 s3, v6")
    A("v_lshlrev_b32 v5, 4, v5")
    A("s_and_b32 s20, s2, 7"); A("s_lshr_b32 s21, s2, 3")
    A("s_mul_i32 s22, s21, 37"); A("s_lshr_b32 s22, s22, 8")
    A("s_mul_i32 s23, s22, 7"); A("s_sub_u32 s23, s21, s23")
    A("s_lshl_b32 s20, s20, 2"); A("s_add_u32 s20, s20, s22")
    for tau in range(4):
        A(f"s_xor_b32 s24, s3, {tau}"); A("s_lshl_b32 s24, s24, 10")
        A(f"v_add_u32 v{1+tau}, s24, v5")
    A.wait_lg()
    A(f"s_mul_i32 s24, s20, {44*4096}"); A(f"s_add_u32 s24, s24, {WS_AF}")
    A("s_add_u32 s8, s4, s24"); A("s_addc_u32 s9, s5, 0"); A("s_and_b32 s9, s9, 0xffff")
    A(f"s_mov_b32 s10, {44*4096}"); A("s_mov_b32 s11, 0x20000")
    A(f"s_mul_i32 s24, s23, {44*4096}"); A(f"s_add_u32 s24, s24, {WS_WF}")
    A("s_add_u32 s12, s4, s24"); A("s_addc_u32 s13, s5, 0"); A("s_and_b32 s13, s13, 0xffff")
    A(f"s_mov_b32 s14, {44*4096}"); A("s_mov_b32 s15, 0x20000")
    srd(A, 16, 6, 7, S*D*2)
    A(f"s_mul_i32 s25, s3, {11*4096}")
    NB = 7
    def issue(step):
        b = step % NB
        if step: A("s_add_u32 s25, s25, 4096")
        for tau in range(4):
            A(f"buffer_load_dwordx4 {a(32*b+4*tau,4)}, v{1+tau}, s[8:11], s25 offen", tag=('st', step))
        for uu in range(4):
            A(f"buffer_load_dwordx4 {a(32*b+16+4*uu,4)}, v5, s[12:15], s25 offen offset:{uu*1024}", tag=('st', step))
    acc = lambda uu, tau: 16 + (uu*4+tau)*4
    for st in range(NB): issue(st)
    A("s_mul_i32 s26, s3, 12288"); A("v_add_u32 v6, s26, v5")
    for tau in (1,2,3):
        A(f"s_xor_b32 s26, s3, {tau}"); A("s_mul_i32 s26, s26, 12288"); A(f"s_add_u32 s26, s26, {(tau-1)*4096}")
        A(f"v_add_u32 v{6+tau}, s26, v5")
    A("v_and_b32 v10, 15, v0")
    A("v_lshrrev_b32 v11, 2, v10"); A("v_lshlrev_b32 v11, 3, v11")
    A("v_and_b32 v10, 3, v10"); A("v_add_u32 v10, v10, v11")
    A("s_lshl_b32 s26, s20, 6")
    A("s_lshr_b32 s27, s3, 1"); A("s_lshl_b32 s27, s27, 5"); A("s_add_u32 s26, s26, s27")
    A("s_and_b32 s27, s3, 1"); A("s_lshl_b32 s27, s27, 2"); A("s_add_u32 s26, s26, s27")
    A("v_add_u32 v10, s26, v10")
    A("v_mul_u32_u24 v10, 896, v10")
    A("v_bfe_u32 v11, v0, 4, 2"); A("v_lshlrev_b32 v11, 4, v11")
    A("s_lshl_b32 s27, s23, 7"); A("v_add_u32 v11, s27, v11")
    A("v_add_u32 v10, v10, v11")
    for st in range(11):
        b = st % NB
        A.wait_vm(('st', st))
        for tau in range(4):
            for uu in range(4):
                c = v(acc(uu,tau),4)
                A(f"v_mfma_f32_16x16x32_bf16 {c}, {a(32*b+16+4*uu,4)}, {a(32*b+4*tau,4)}, {c if st else 0}")
        if st + NB <= 10: issue(st + NB)
    for tau in (1,2,3):
        for uu in range(4):
            A(f"ds_write_b128 v6, {v(acc(uu,tau),4)} offset:{(tau-1)*4096+uu*1024}", tag='w')
    A.wait_lg()
    A("s_barrier")
    T0 = 96
    for tau in (1,2,3):
        for uu in range(4):
            A(f"ds_read_b128 {v(T0+((tau-1)*4+uu)*4,4)}, v{6+tau} offset:{uu*1024}", tag=('r',tau))
    for tau in (1,2,3):
        A.wait_lg(('r',tau))
        for uu in range(4):
            c = acc(uu,0); t = T0+((tau-1)*4+uu)*4
            A(f"v_pk_add_f32 {v(c,2)}, {v(c,2)}, {v(t,2)}")
            A(f"v_pk_add_f32 {v(c+2,2)}, {v(c+2,2)}, {v(t+2,2)}")
    for vv in range(2):
        o = 160 + 4*vv
        c0 = acc(2*vv,0); c1 = acc(2*vv+1,0)
        A(f"v_cvt_pk_bf16_f32 v{o}, v{c0}, v{c0+1}")
        A(f"v_cvt_pk_bf16_f32 v{o+1}, v{c0+2}, v{c0+3}")
        A(f"v_cvt_pk_bf16_f32 v{o+2}, v{c1}, v{c1+1}")
        A(f"v_cvt_pk_bf16_f32 v{o+3}, v{c1+2}, v{c1+3}")
        A(f"buffer_store_dwordx4 {v(o,4)}, v10, s[16:19], 0 offen offset:{vv*64}")
    A.label(L('end'))
    A("s_endpgm")
    return A

if __name__ == "__main__":
    A = gen_k3(); print(A.text()); print("; nops", A.nops_inserted)
```

```python
S, D, F, FH = 2048, 448, 1792, 896
WS_Z2F = 0
WS_Z1F = 0x380000
WS_AF  = 0x700000
WS_WF  = 0xC80000
WS_GATE= 0xDB4000
WS_LNP = 0xDB6000
WS_END = 0xDD6000
KA_AX, KA_WQKV, KA_WO, KA_BX, KA_WIN, KA_WSP, KA_BSP, KA_WOUT, KA_GW, KA_OUT, KA_DBG, KA_WS = [8*i for i in range(12)]
def trow(TT, i):
    return 32*(TT >> 1) + 8*(i >> 2) + 4*(TT & 1) + (i & 3)
def dslot(g, e):
    return 4*g + e if e < 4 else 16 + 4*g + (e-4)
```

```python
import sys
from build import *
from k1 import gen_k1
from k2 import gen_k2
from k3 import gen_k3
def make(path, pf=True):
    ks = []
    def sz(gen, nm):
        t = gen(nm).text(); return (len([l for l in t.split('\n') if l.startswith('  ')])*8 + 8191)//8192*8192
    for gen, nm, grid, lds in ((gen_k1,'k1',256,163840),(gen_k2,'k2',256,98304),(gen_k3,'k3',224,49152)):
        A = gen(nm, prefetch_bytes=(sz(gen,nm) if pf else 0))
        ks.append(dict(name=nm+"_kernel", text=A.text(), grid=grid, block=256, lds=lds, vgpr=512, accum=256))
    open(path,'w').write(assemble(ks))
if __name__ == "__main__":
    make(sys.argv[1] if len(sys.argv) > 1 else 'all.s')
```

```python
import re

def R(kind, idx, n=1):
    return f"{kind}{idx}" if n == 1 else f"{kind}[{idx}:{idx+n-1}]"
def v(i, n=1): return R('v', i, n)
def a(i, n=1): return R('a', i, n)
def s(i, n=1): return R('s', i, n)
def u(i, n=1): return v(i, n) if i < 256 else a(i-256, n)

REG_RE = re.compile(r'^(-|abs\()?([vas])(\d+)\)?$')
RNG_RE = re.compile(r'^(-)?([vas])\[(\d+):(\d+)\]$')
def regs_of(op):
    op = op.strip()
    m = REG_RE.match(op)
    if m: return {(m.group(2), int(m.group(3)))}
    m = RNG_RE.match(op)
    if m: return {(m.group(2), i) for i in range(int(m.group(3)), int(m.group(4))+1)}
    if op == 'vcc': return {('s', 106), ('s', 107)}
    if op == 'exec': return {('s', 126), ('s', 127)}
    if op == 'm0': return {('s', 124)}
    return set()

TRANS = ('v_exp_f32', 'v_log_f32', 'v_rcp_f32', 'v_rsq_f32', 'v_sqrt_f32', 'v_sin_f32', 'v_cos_f32', 'v_rcp_iflag_f32')

class Ins:
    __slots__ = ('text', 'op', 'dst', 'src', 'cls', 'dpp', 'storedata', 'srcC')
    def __init__(self, text):
        self.text = text
        t = text.split(';')[0].strip()
        self.op = t.split()[0] if t else ''
        rest = t[len(self.op):].strip()
        ops = [o.strip() for o in rest.split(',')] if rest else []
        mods = ''
        if ops:
            parts = ops[-1].split(None, 1)
            ops[-1] = parts[0]
            mods = parts[1] if len(parts) > 1 else ''
        op = self.op
        self.dst = set(); self.src = set(); self.storedata = set(); self.srcC = set()
        self.dpp = ('row_' in mods or 'quad_perm' in mods or 'wave_' in mods or '_dpp' in op)
        rr = [regs_of(o) for o in ops]
        if op.startswith('v_mfma'):
            self.cls = 'mfma'; self.dst = rr[0]; self.src = rr[1] | rr[2] | rr[3]; self.srcC = rr[3]
        elif op.startswith('v_cmp'):
            self.cls = 'valu'; self.dst = rr[0]; self.src = set().union(*rr[1:])
        elif op.startswith('v_readfirstlane') or op.startswith('v_readlane'):
            self.cls = 'valu'; self.dst = rr[0]; self.src = set().union(*rr[1:])
        elif op.startswith('v_permlane'):
            self.cls = 'valu'; self.dst = rr[0] | rr[1]; self.src = rr[0] | rr[1]
        elif op.startswith('v_'):
            self.cls = 'valu'; self.dst = rr[0]; self.src = set().union(*rr[1:]) if len(rr) > 1 else set()
            if op.startswith(('v_fmac', 'v_dot2c', 'v_pk_fmac')): self.src |= rr[0]
            if op.startswith(('v_add_co', 'v_sub_co', 'v_addc_co', 'v_subb_co')): self.dst |= rr[1]
            if op.startswith('v_cndmask') and len(ops) == 3: self.src |= regs_of('vcc')
            if self.dpp: self.src |= rr[0]
        elif op.startswith(('buffer_load', 'global_load')):
            self.cls = 'vmem'
            if 'lds' in mods.split():
                self.src = set().union(*rr) | regs_of('m0')
            else:
                self.dst = rr[0]; self.src = set().union(*rr[1:])
                if 'd16' in op: self.src |= rr[0]
        elif op.startswith(('buffer_store', 'global_store')):
            self.cls = 'vmem'; self.src = set().union(*rr)
            self.storedata = rr[0] if op.startswith('buffer') else rr[1]
        elif op.startswith(('buffer_atomic', 'global_atomic')):
            self.cls = 'vmem'; self.src = set().union(*rr)
            if 'sc0' in mods.split(): self.dst = rr[0]
        elif op.startswith('ds_read'):
            self.cls = 'ds'; self.dst = rr[0]; self.src = rr[1]
        elif op.startswith('ds_'):
            self.cls = 'ds'; self.src = set().union(*rr)
        elif op.startswith(('s_load', 's_memtime', 's_memrealtime')):
            self.cls = 'smem'; self.dst = rr[0]; self.src = set().union(*rr[1:]) if len(rr) > 1 else set()
        elif op.startswith(('s_cmp', 's_waitcnt', 's_nop', 's_barrier', 's_branch', 's_cbranch', 's_endpgm', 's_sleep', 's_setprio')):
            self.cls = 'salu'; self.src = set().union(*rr) if rr else set()
        elif op.startswith('s_'):
            self.cls = 'salu'; self.dst = rr[0] if rr else set(); self.src = set().union(*rr[1:]) if len(rr) > 1 else set()
            if 'saveexec' in op: self.dst |= regs_of('exec'); self.src |= regs_of('exec')
        else:
            self.cls = 'other'
    def states(self):
        if self.op == 's_nop':
            return int(self.text.split()[1], 0) + 1
        return 1

def is_vreg(r): return r[0] in 'va'

def required_wait(p, c):
    w = 0
    pv = {r for r in p.dst if is_vreg(r)}; ps = {r for r in p.dst if r[0] == 's'}
    if p.cls == 'valu':
        if c.cls == 'mfma' and pv & c.src: w = max(w, 2)
        if c.cls == 'valu':
            if c.dpp and pv & c.src: w = max(w, 2)
            if c.op.startswith('v_permlane') and pv & c.src: w = max(w, 2)
            if c.op.startswith(('v_readfirstlane', 'v_readlane')) and pv & c.src: w = max(w, 1)
            if ps & c.src: w = max(w, 4 if c.op.startswith(('v_readlane', 'v_writelane')) else 2)
            if p.op.startswith(TRANS) and not c.op.startswith(TRANS) and pv & (c.src | c.dst): w = max(w, 1)
            if p.op.startswith(TRANS) and c.op.startswith(TRANS) and pv & c.src: w = max(w, 1)
        if c.cls == 'vmem' and ps & c.src: w = max(w, 5)
        if c.cls in ('salu', 'smem') and ps & c.src: w = max(w, 1)
        if c.cls in ('vmem', 'ds') and p.op.startswith(TRANS) and pv & c.src: w = max(w, 1)
    if p.cls == 'mfma':
        if c.cls == 'mfma':
            if pv & c.srcC and not (c.srcC == p.dst): w = max(w, 6)
            ab = c.src - c.srcC if c.srcC != c.src else set()
            if pv & (c.src - c.srcC): w = max(w, 8)
        elif c.cls == 'valu':
            if pv & (c.src | c.dst): w = max(w, 8)
            if p.srcC & c.dst: w = max(w, 3)
        elif c.cls in ('vmem', 'ds'):
            if pv & (c.src | c.dst): w = max(w, 8)
    if p.cls == 'salu' and ('s', 124) in p.dst and c.cls == 'vmem' and ('s', 124) in c.src: w = max(w, 1)
    if p.cls == 'vmem' and p.storedata and len(p.storedata) >= 3:
        if c.cls == 'valu' and p.storedata & c.dst: w = max(w, 2)
        elif p.storedata & c.dst: w = max(w, 1)
    return w

class Asm:
    def __init__(self):
        self.lines = []
        self.vm = []
        self.lg = []
        self.nops_inserted = 0
        self.window = []
    def raw(self, text):
        self.lines.append(text)
    def label(self, name):
        self.lines.append(f"{name}:")
        self.window = []
    def comment(self, t): self.lines.append(f"; {t}")
    def __call__(self, text, tag=None):
        ins = Ins(text)
        need = 0
        dist = 0
        for p in reversed(self.window):
            w = required_wait(p, ins)
            if w > dist: need = max(need, w - dist)
            dist += p.states()
            if dist >= 12: break
        while need > 0:
            k = min(need, 16)
            nop = Ins(f"s_nop {k-1}")
            self.lines.append(f"  s_nop {k-1}")
            self.window.append(nop); self.nops_inserted += k
            need -= k
        self.lines.append("  " + text)
        self.window.append(ins)
        if len(self.window) > 24: self.window = self.window[-24:]
        if ins.cls == 'vmem': self.vm.append(tag)
        elif ins.cls == 'ds': self.lg.append(tag)
        elif ins.cls == 'smem': self.lg.append('smem')
        return ins
    def wait_vm(self, tag=None, extra=0):
        if tag is None: n = 0
        else:
            tags = tag if isinstance(tag, (list, set)) else [tag]
            idx = [i for i, t in enumerate(self.vm) if t in tags]
            if not idx: return
            n = len(self.vm) - 1 - idx[-1]
        assert n <= 63, f"vmcnt {n} > 63"
        self(f"s_waitcnt vmcnt({n})")
        self.vm = self.vm[len(self.vm)-n:] if n else []
    def wait_lg(self, tag=None):
        if tag is None or 'smem' in self.lg: n = 0
        else:
            tags = tag if isinstance(tag, (list, set)) else [tag]
            idx = [i for i, t in enumerate(self.lg) if t in tags]
            if not idx: return
            n = len(self.lg) - 1 - idx[-1]
        n = min(n, 15)
        self(f"s_waitcnt lgkmcnt({n})")
        self.lg = self.lg[len(self.lg)-n:] if n else []
    def check_vm(self):
        assert len(self.vm) <= 63, f"too many outstanding vmem ops: {len(self.vm)}"
    def text(self): return "\n".join(self.lines)


WS_STAMP = 0xE00000
class Stamps:
    enabled = False
    op = 's_memrealtime'
    @staticmethod
    def reg(k): return Stamps.map[k]
    map = [80+2*k for k in range(10)] + [70, 72, 74, 76]
    @staticmethod
    def mark(A, k):
        if Stamps.enabled:
            A.raw(f"  {Stamps.op} s[{Stamps.reg(k)}:{Stamps.reg(k)+1}]")
    @staticmethod
    def flush(A, kidx, n, ws_lo=4):
        if not Stamps.enabled: return
        A.raw("  s_waitcnt lgkmcnt(0)")
        A.raw("  s_lshl_b32 s100, s2, 2"); A.raw("  s_add_u32 s100, s100, s3"); A.raw("  s_lshl_b32 s100, s100, 6")
        A.raw(f"  s_add_u32 s100, s100, {WS_STAMP + kidx*256*4*64}")
        A.raw("  v_mov_b32 v250, s100")
        for k in range(n):
            A.raw(f"  v_mov_b32 v251, s{Stamps.reg(k)}")
            A.raw(f"  global_store_dword v250, v251, s[{ws_lo}:{ws_lo+1}] offset:{4*k}")
```

```python
from asmlib import *
from layout import *

GELU_C1 = -2.0*1.4426950408889634*0.7978845608028654
GELU_C2 = GELU_C1*0.044715
import struct
def f2u(x): return struct.unpack('<I', struct.pack('<f', x))[0]
def hexf(x): return f"0x{f2u(x):08x}"

def gelu_pairs(A, regs, tmp, VC1, VC2, VONE):
    for q in range(0, len(regs), 2):
        grp = regs[q:q+2]
        for n, r in enumerate(grp):
            t = tmp + 4*n
            A(f"v_pk_mul_f32 {v(t,2)}, {v(r,2)}, {v(r,2)}")
        for n, r in enumerate(grp):
            t = tmp + 4*n
            A(f"v_pk_fma_f32 {v(t,2)}, {v(t,2)}, {v(VC2,2)}, {v(VC1,2)}")
        for n, r in enumerate(grp):
            t = tmp + 4*n
            A(f"v_pk_mul_f32 {v(t,2)}, {v(t,2)}, {v(r,2)}")
        for n, r in enumerate(grp):
            t = tmp + 4*n
            A(f"v_exp_f32 v{t}, v{t}"); A(f"v_exp_f32 v{t+1}, v{t+1}")
        for n, r in enumerate(grp):
            t = tmp + 4*n
            A(f"v_pk_add_f32 {v(t,2)}, {v(t,2)}, {v(VONE,2)}")
        for n, r in enumerate(grp):
            t = tmp + 4*n
            A(f"v_rcp_f32 v{t}, v{t}"); A(f"v_rcp_f32 v{t+1}, v{t+1}")
        for n, r in enumerate(grp):
            t = tmp + 4*n
            A(f"v_pk_mul_f32 {v(r,2)}, {v(r,2)}, {v(t,2)}")

def gen_z(A, L):
    XREG = 256
    xf = lambda kk, aa: XREG + (kk*2+aa)*4
    WB = 112
    wf = lambda buf, j: 256 + WB + buf*28 + j*4
    ACC1, ACC2 = 64, 120
    acc1 = lambda j, aa: ACC1 + (j*2+aa)*4
    acc2 = lambda j, aa: ACC2 + (j*2+aa)*4
    RING = 114688
    A("v_and_b32 v12, 63, v0")
    A("v_lshrrev_b32 v13, 3, v12")
    A("v_and_b32 v14, 7, v12"); A("v_and_b32 v15, 3, v13"); A("v_xor_b32 v14, v14, v15"); A("v_lshlrev_b32 v14, 4, v14")
    A("v_mul_u32_u24 v1, 896, v13"); A("v_add_u32 v1, v1, v14"); A("v_xor_b32 v2, 64, v14"); A("v_mul_u32_u24 v15, 896, v13"); A("v_add_u32 v2, v2, v15")
    A("v_lshrrev_b32 v13, 4, v12")
    A("v_and_b32 v14, 15, v12")
    A("v_lshrrev_b32 v15, 1, v14")
    A("v_xor_b32 v15, v15, v13")
    A("v_and_b32 v16, 1, v14"); A("v_lshlrev_b32 v16, 4, v16")
    A("v_mul_u32_u24 v17, 3584, v13"); A("v_add_u32 v16, v16, v17")
    A("v_mov_b32 v18, 0x7fff0000")
    for uh in range(2):
        if uh: A("v_xor_b32 v15, 4, v15")
        A(f"v_lshl_add_u32 v{3+uh}, v15, 5, v16")
        A("v_cmp_eq_u32 vcc, 7, v15")
        A(f"v_cndmask_b32 v{3+uh}, v{3+uh}, v18, vcc")
    A("s_lshl_b32 s22, s20, 2"); A("s_add_u32 s22, s22, s3")
    A(f"s_mul_i32 s23, s22, {32*896}")
    A("s_add_u32 s8, s6, s23"); A("s_addc_u32 s9, s7, 0"); A("s_and_b32 s9, s9, 0xffff")
    A(f"s_mov_b32 s10, {32*896}"); A("s_mov_b32 s11, 0x20000")
    A("s_mov_b32 s12, s28"); A("s_and_b32 s13, s29, 0xffff"); A(f"s_mov_b32 s14, {448*3584}"); A("s_mov_b32 s15, 0x20000")
    A(f"s_mul_i32 s25, s3, {16*3584}"); A("s_mul_i32 s23, s21, 224"); A("s_add_u32 s25, s25, s23")
    A("s_add_u32 s24, s25, 1792")
    A("s_lshl_b32 s26, s3, 12")
    def dma_x(c):
        for uu in range(4):
            A(f"s_add_u32 m0, s26, {c*16384 + uu*1024}")
            A(f"s_mov_b32 s23, {uu*8*896 + c*128}")
            A(f"buffer_load_dwordx4 v{1+(uu&1)}, s[8:11], s23 offen lds", tag=('x', c))
    def dma_w(c, which):
        base = (RING + (c % 3)*16384) if which == 1 else c*16384
        sreg = 24 if which == 1 else 25
        for uu in range(4):
            A(f"s_add_u32 m0, s26, {base + uu*1024}")
            A(f"s_add_u32 s23, s{sreg}, {(64*c + 4*uu)*3584}")
            A(f"buffer_load_dwordx4 v{3+(uu>>1)}, s[12:15], s23 offen lds", tag=('w', which, c))
    for c in range(3):
        dma_w(c, 1); dma_x(c)
    return dict(locals())

def gen_z2(A, L, E):
    globals_ = E
    xf, wf, acc1, acc2, RING, dma_x, dma_w = (E[k] for k in ('xf','wf','acc1','acc2','RING','dma_x','dma_w'))
    ACC1, ACC2 = E['ACC1'], E['ACC2']
    A("v_and_b32 v13, 15, v12"); A("v_lshrrev_b32 v14, 4, v12")
    A("v_lshrrev_b32 v15, 2, v13"); A("v_lshlrev_b32 v16, 3, v15"); A("v_and_b32 v17, 3, v13"); A("v_add_u32 v16, v16, v17")
    A("v_and_b32 v17, 7, v13"); A("v_xor_b32 v17, v17, v14"); A("v_lshlrev_b32 v17, 4, v17")
    A("v_lshl_add_u32 v17, v16, 7, v17"); A("v_add_u32 v20, s26, v17")
    A("v_xor_b32 v21, 64, v20")
    A("v_add_u32 v22, 0x10000, v20"); A("v_add_u32 v23, 0x10000, v21")
    A("v_lshl_add_u32 v16, v14, 3, v15"); A("v_lshlrev_b32 v16, 8, v16")
    A("v_and_b32 v17, 3, v13"); A("v_lshl_add_u32 v16, v17, 3, v16"); A(f"v_add_u32 v16, {RING}, v16")
    A("v_and_b32 v17, 1, v14"); A("v_lshl_or_b32 v17, v17, 2, v15")
    for j in range(7):
        A(f"v_xor_b32 v18, {j}, v17"); A(f"v_lshl_add_u32 v{24+j}, v18, 5, v16")
    VC1, VC2, VONE = 32, 34, 36
    for r, val in ((VC1, GELU_C1), (VC2, GELU_C2), (VONE, 1.0)):
        A(f"v_mov_b32 v{r}, {hexf(val)}"); A(f"v_mov_b32 v{r+1}, {hexf(val)}")
    def read_w(which, c, h, buf, js):
        for j in js:
            if which == 1: off = (c % 3)*16384 + h*8192
            else: off = (c % 4)*16384 + h*8192
            for sec in range(2):
                A(f"ds_read_b64_tr_b16 {u(wf(buf,j)+2*sec,2)}, v{24+j} offset:{off + sec*1024}", tag=('wf', which, c, h, j))
    def read_x(c):
        for h in range(2):
            for aa in range(2):
                base = 20 + h + (2 if c >= 4 else 0)
                A(f"ds_read_b128 {u(xf(2*c+h,aa),4)}, v{base} offset:{(c%4)*16384 + aa*512}", tag=('xf', c, h))
    def gemm_pass(which):
        acc = acc1 if which == 1 else acc2
        for c in range(7):
            for h in range(2):
                kk = 2*c + h; buf = kk & 1
                nxt = None
                if h == 0: nxt = (c, 1)
                elif c < 6: nxt = (c+1, 0)
                xreads = False
                if h == 1:
                    if which == 1:
                        if c < 6: A.wait_vm([('w',1,c+1), ('x',c+1)])
                        A.wait_lg()
                        A("s_barrier")
                        if c + 3 <= 6: dma_w(c+3, 1); dma_x(c+3)
                        for cc in {4: (0,1), 5: (2,3,4), 6: (5,6)}.get(c, ()): dma_w(cc, 2)
                        xreads = c < 6
                    elif c == 3:
                        pass
                todo = []
                if nxt:
                    nc, nh = nxt
                    if which == 2 and nc == 4 and nh == 0:
                        for j in range(7): A(f"v_add_u32 v{24+j}, 0x10000, v{24+j}")
                    todo = [(nc, nh, j) for j in range(7)]
                if xreads: read_x(c+1)
                for j in range(7):
                    A.wait_lg([('wf', which, c, h, j), ('xf', c, h)])
                    for aa in range(2):
                        d = v(acc(j,aa),4); cc_ = d if kk else 0
                        if which == 1: A(f"v_mfma_f32_16x16x32_bf16 {d}, {u(xf(kk,aa),4)}, {u(wf(buf,j),4)}, {cc_}")
                        else: A(f"v_mfma_f32_16x16x32_bf16 {d}, {u(wf(buf,j),4)}, {u(xf(kk,aa),4)}, {cc_}")
                    if todo:
                        nc, nh, jj = todo.pop(0)
                        read_w(which, nc, nh, buf ^ 1, [jj])
    Stamps.mark(A, 1)
    A.wait_vm([('w',1,0), ('x',0)])
    A("s_barrier")
    Stamps.mark(A, 2)
    read_x(0)
    read_w(1, 0, 0, 0, range(7))
    gemm_pass(1)
    Stamps.mark(A, 3)
    TMP = 176
    gelu_pairs(A, [ACC1 + 2*p for p in range(28)], TMP, VC1, VC2, VONE)
    SUM = 184
    for aa in range(2):
        for rp in range(2):
            d = SUM + aa*4 + rp*2
            A(f"v_pk_add_f32 {v(d,2)}, {v(acc1(0,aa)+2*rp,2)}, {v(acc1(1,aa)+2*rp,2)}")
            for j in range(2, 7):
                A(f"v_pk_add_f32 {v(d,2)}, {v(d,2)}, {v(acc1(j,aa)+2*rp,2)}")
    def dpp_reduce16(regs):
        for sh in (8, 4, 2, 1):
            for r in regs:
                A(f"v_add_f32_dpp v{r}, v{r}, v{r} row_ror:{sh} row_mask:0xf bank_mask:0xf")
    dpp_reduce16(range(SUM, SUM+8))
    A(f"v_mov_b32 v38, {hexf(1.0/112)}"); A(f"v_mov_b32 v39, {hexf(1.0/112)}")
    for p in range(4):
        A(f"v_pk_mul_f32 {v(SUM+2*p,2)}, {v(SUM+2*p,2)}, {v(38,2)}")
    M2 = 192
    for aa in range(2):
        for rp in range(2):
            d = M2 + aa*4 + rp*2; mreg = SUM + aa*4 + rp*2
            for j in range(7):
                t = TMP + 2*(j & 1)
                A(f"v_pk_add_f32 {v(t,2)}, {v(acc1(j,aa)+2*rp,2)}, {v(mreg,2)} neg_lo:[0,1] neg_hi:[0,1]")
                if j == 0: A(f"v_pk_mul_f32 {v(d,2)}, {v(t,2)}, {v(t,2)}")
                else: A(f"v_pk_fma_f32 {v(d,2)}, {v(t,2)}, {v(t,2)}, {v(d,2)}")
    dpp_reduce16(range(M2, M2+8))
    PUB = 200
    for q in range(8):
        A(f"v_mov_b32 v{PUB+2*q}, v{SUM+q}"); A(f"v_mov_b32 v{PUB+2*q+1}, v{M2+q}")
    A("s_lshl_b32 s23, s20, 3"); A("s_add_u32 s23, s23, s21"); A("s_lshl_b32 s23, s23, 7")
    A("s_lshl_b32 s33, s3, 5"); A("s_add_u32 s23, s23, s33"); A("s_lshl_b32 s23, s23, 3")
    A(f"s_add_u32 s36, s4, {WS_LNP}"); A("s_addc_u32 s37, s5, 0"); A("s_and_b32 s37, s37, 0xffff")
    A(f"s_mov_b32 s38, {16*8*128*8}"); A("s_mov_b32 s39, 0x20000")
    A("v_lshrrev_b32 v14, 4, v12"); A("v_lshlrev_b32 v19, 6, v14")
    A("s_mov_b64 s[40:41], exec")
    A("s_mov_b32 exec_lo, 0x00010001"); A("s_mov_b32 exec_hi, 0x00010001")
    for q in range(4):
        A(f"buffer_store_dwordx4 {v(PUB+4*q,4)}, v19, s[36:39], s23 offen offset:{16*q} sc0 sc1", tag='pub')
    A("s_mov_b64 exec, s[40:41]")
    Stamps.mark(A, 4)
    A.wait_vm([('w',2,c) for c in range(7)])
    A("s_barrier")
    for j in range(7): A(f"v_subrev_u32 v{24+j}, {RING}, v{24+j}")
    E2 = dict(locals())
    read_w(2, 0, 0, 0, range(7))
    return E2

def gen_z3(A, L, E):
    (xf, wf, acc1, acc2, read_w, TMP, VC1, VC2, VONE, ACC1, ACC2) = (E[k] for k in ('xf','wf','acc1','acc2','read_w','TMP','VC1','VC2','VONE','ACC1','ACC2'))
    for c in range(7):
        for h in range(2):
            kk = 2*c + h; buf = kk & 1
            nxt = (c, 1) if h == 0 else ((c+1, 0) if c < 6 else None)
            if c == 3 and h == 0:
                A.wait_vm()
                A("s_barrier")
                A("s_cmp_lg_u32 s3, 0"); A(f"s_cbranch_scc1 {L('nosig')}")
                A("s_lshl_b32 s23, s20, 2"); A("v_mov_b32 v18, s23"); A("v_mov_b32 v19, 1")
                A("s_mov_b64 s[40:41], exec"); A("s_mov_b64 exec, 1")
                A.raw("  global_atomic_add v18, v19, s[30:31] sc1")
                A("s_mov_b64 exec, s[40:41]")
                A.label(L('nosig'))
            todo = []
            if nxt:
                nc, nh = nxt
                if nc == 4 and nh == 0:
                    for j in range(7): A(f"v_add_u32 v{24+j}, 0x10000, v{24+j}")
                todo = [(nc, nh, j) for j in range(7)]
            for j in range(7):
                A.wait_lg([('wf', 2, c, h, j)])
                for aa in range(2):
                    d = v(acc2(j,aa),4)
                    A(f"v_mfma_f32_16x16x32_bf16 {d}, {u(wf(buf,j),4)}, {u(xf(kk,aa),4)}, {d if kk else 0}")
                if todo:
                    nc, nh, jj = todo.pop(0)
                    read_w(2, nc, nh, buf ^ 1, [jj])
    Stamps.mark(A, 5)
    gelu_pairs(A, [ACC2 + 2*p for p in range(28)], TMP, VC1, VC2, VONE)
    A("s_lshl_b32 s23, s22, 1"); A("s_mul_i32 s23, s23, 56"); A("s_mul_i32 s33, s21, 7"); A("s_add_u32 s23, s23, s33"); A("s_lshl_b32 s23, s23, 9")
    A(f"s_add_u32 s23, s23, {WS_Z1F}")
    A("s_add_u32 s36, s4, s23"); A("s_addc_u32 s37, s5, 0"); A("s_and_b32 s37, s37, 0xffff")
    A(f"s_mov_b32 s38, {56*512 + 7*512}"); A("s_mov_b32 s39, 0x20000")
    A("v_lshlrev_b32 v18, 3, v12")
    P = 200
    for aa in range(2):
        if aa: A(f"s_mov_b32 s23, {56*512}")
        for j in range(7):
            c = acc2(j,aa); p = P + 2*(j & 3)
            A(f"v_cvt_pk_bf16_f32 v{p}, v{c}, v{c+1}"); A(f"v_cvt_pk_bf16_f32 v{p+1}, v{c+2}, v{c+3}")
            A(f"buffer_store_dwordx2 {v(p,2)}, v18, s[36:39], {'s23' if aa else 0} offen offset:{j*512}", tag='z1st')
    Stamps.mark(A, 6)
    A("s_lshl_b32 s23, s20, 2"); A("v_mov_b32 v18, s23")
    A("s_mov_b32 s33, 0")
    A.label(L('poll'))
    A.raw("  global_load_dword v19, v18, s[30:31] sc1")
    A.raw("  s_waitcnt vmcnt(0)")
    A.raw("  v_readfirstlane_b32 s34, v19")
    A.raw("  s_add_u32 s33, s33, 1")
    A.raw("  s_cmp_ge_u32 s34, 8")
    A.raw(f"  s_cbranch_scc1 {L('polled')}")
    A.raw("  s_cmp_lt_u32 s33, 0x40000")
    A.raw(f"  s_cbranch_scc1 {L('poll')}")
    A.label(L('polled'))
    A.vm = []
    Stamps.mark(A, 7)
    A("s_lshl_b32 s23, s20, 3"); A("s_lshl_b32 s23, s23, 7"); A("s_lshl_b32 s33, s3, 5"); A("s_add_u32 s23, s23, s33"); A("s_lshl_b32 s23, s23, 3")
    A(f"s_add_u32 s36, s4, {WS_LNP}"); A("s_addc_u32 s37, s5, 0"); A("s_and_b32 s37, s37, 0xffff")
    A(f"s_mov_b32 s38, {16*8*128*8}"); A("s_mov_b32 s39, 0x20000")
    A("v_and_b32 v18, 7, v12"); A("v_lshlrev_b32 v18, 10, v18")
    A("v_lshrrev_b32 v14, 4, v12"); A("v_lshl_add_u32 v18, v14, 6, v18")
    Q = 200
    for q in range(4):
        A(f"buffer_load_dwordx4 {v(Q+4*q,4)}, v18, s[36:39], s23 offen offset:{16*q} sc0 sc1", tag='lnp')
    A.wait_vm('lnp')
    def red8(regs):
        for pat in ("quad_perm:[1,0,3,2]", "quad_perm:[2,3,0,1]", "row_half_mirror"):
            for r in regs:
                A(f"v_add_f32_dpp v{r}, v{r}, v{r} {pat} row_mask:0xf bank_mask:0xf")
    MB = 216
    for q in range(8): A(f"v_mov_b32 v{MB+q}, v{Q+2*q}")
    red8(range(MB, MB+8))
    for q in range(8): A(f"v_mul_f32 v{MB+q}, 0.125, v{MB+q}")
    A(f"v_mov_b32 v38, {hexf(112.0)}")
    for q in range(8):
        A(f"v_sub_f32 v{Q+2*q}, v{Q+2*q}, v{MB+q}")
        A(f"v_mul_f32 v{Q+2*q}, v{Q+2*q}, v{Q+2*q}")
        A(f"v_fma_f32 v{MB+8+q}, v{Q+2*q}, v38, v{Q+2*q+1}")
    red8(range(MB+8, MB+16))
    A(f"v_mov_b32 v38, {hexf(1.0/896)}"); A(f"v_mov_b32 v39, {hexf(1e-5)}")
    for q in range(8): A(f"v_fma_f32 v{MB+8+q}, v{MB+8+q}, v38, v39")
    for q in range(8): A(f"v_rsq_f32 v{MB+8+q}, v{MB+8+q}")
    for q in range(8): A(f"v_mul_f32 v{MB+q}, v{MB+q}, v{MB+8+q}")
    A(f"s_mul_i32 s23, s21, {64*7168}"); A("s_mul_i32 s33, s22, 7168"); A("s_add_u32 s23, s23, s33")
    A("s_add_u32 s36, s4, s23"); A("s_addc_u32 s37, s5, 0"); A("s_and_b32 s37, s37, 0xffff")
    A(f"s_mov_b32 s38, 7168"); A("s_mov_b32 s39, 0x20000")
    A("v_lshlrev_b32 v18, 4, v12"); A("v_add_u32 v19, 4096, v18")
    for j in range(7):
        p = Q + 4*(j & 3)
        for aa in range(2):
            c = acc1(j,aa)
            for rp in range(2):
                A(f"v_pk_fma_f32 {v(c+2*rp,2)}, {v(c+2*rp,2)}, {v(MB+8+aa*4+2*rp,2)}, {v(MB+aa*4+2*rp,2)} neg_lo:[0,0,1] neg_hi:[0,0,1]")
            A(f"v_cvt_pk_bf16_f32 v{p+2*aa}, v{c}, v{c+1}"); A(f"v_cvt_pk_bf16_f32 v{p+2*aa+1}, v{c+2}, v{c+3}")
        A(f"buffer_store_dwordx4 {v(p,4)}, v{18 if j < 4 else 19}, s[36:39], 0 offen offset:{(j%4)*1024}", tag='z2st')
```

```python
S, D, F, FH = 2048, 448, 1792, 896
WS_Z2F = 0
WS_Z1F = 0x380000
WS_AF  = 0x700000
WS_WF  = 0xC80000
WS_GATE= 0xDB4000
WS_LNP = 0xDB6000
WS_END = 0xDD6000
KA_AX, KA_WQKV, KA_WO, KA_BX, KA_WIN, KA_WSP, KA_BSP, KA_WOUT, KA_GW, KA_OUT, KA_DBG, KA_WS = [8*i for i in range(12)]
def trow(TT, i):
    return 32*(TT >> 1) + 8*(i >> 2) + 4*(TT & 1) + (i & 3)
def dslot(g, e):
    return 4*g + e if e < 4 else 16 + 4*g + (e-4)

WS_F0 = 0xDD8000
WS_F1 = 0xDDA000
WS_F2 = 0xDDC000
WS_F3 = 0xDDE000
WS_END = 0xDE0000
```

```python
from asmlib import *
from layout import *
from k1z import hexf, gelu_pairs, GELU_C1, GELU_C2
import os
PROFILE = os.environ.get('PROFILE', 'all')
SLEEP = int(os.environ.get('SLEEP', '2'))
def ST(A, k):
    if PROFILE == 'all':
        if isinstance(k, int): Stamps.mark(A, k)
    elif PROFILE == 'p1':
        if isinstance(k, str): return
        if isinstance(k, int) and k in (0, 1, 2): Stamps.mark(A, k)
        elif isinstance(k, int) and k == 3: Stamps.mark(A, 10)
        elif isinstance(k, int) and k == 4: Stamps.mark(A, 11)
        elif isinstance(k, tuple) and k[0] == 'g': Stamps.mark(A, 3 + k[1])
        elif isinstance(k, int) and k in (5, 6, 7, 8): Stamps.mark(A, 7 + k)
    elif PROFILE == 'p4':
        m = {0: 0, 3: 1, 5: 2, 7: 3, 'sig': 4, ('au', 8): 5, ('au', 9): 6, ('au', 10): 7, ('au', 11): 8, ('au', 12): 9, ('au', 13): 10, ('au', 14): 11, ('au', 15): 12, 8: 13, 'pubw': 14, 10: 15}
        if k in m: Stamps.mark(A, m[k])
    elif PROFILE == 'p3':
        m = {0: 0, 3: 1, 4: 2, 5: 3, 6: 4, 7: 5, 'lnq': 6, 'norm': 7, 'pubw': 8, 'sig': 9, 8: 10, 10: 11, 11: 12, 'w2': 13, 'st0': 14, 'st3': 15}
        if k in m: Stamps.mark(A, m[k])
    elif PROFILE == 'p2':
        m = {0: 0, 3: 1, 4: 2, 8: 13, 10: 14, 'z1in': 3, 'z1out': 11, 'z1epi': 12, 11: 15}
        if isinstance(k, tuple) and k[0] == 'z': Stamps.mark(A, 4 + k[1])
        elif k in m: Stamps.mark(A, m[k])

S_X, S_WQKV, S_WO, S_WIN, S_WSP, S_BSP, S_WOUT = 36, 38, 40, 44, 46, 48, 50
S_GW, S_OUT, S_DBG, S_WS = 52, 54, 56, 58
S_RB, S_CB, S_RB2 = 20, 21, 22
SRD_A = 60
OOB = 0x7fff0000
C_LN, C_ZD, C_QD, C_HD = 0, 16, 24, 32

def srd_from(A, d, ptr, off_sreg, nbytes):
    if off_sreg is None:
        A(f"s_mov_b32 s{d}, s{ptr}"); A(f"s_and_b32 s{d+1}, s{ptr+1}, 0xffff")
    else:
        A(f"s_add_u32 s{d}, s{ptr}, s{off_sreg}"); A(f"s_addc_u32 s{d+1}, s{ptr+1}, 0"); A(f"s_and_b32 s{d+1}, s{d+1}, 0xffff")
    A(f"s_mov_b32 s{d+2}, {nbytes}"); A(f"s_mov_b32 s{d+3}, 0x20000")

S_TAG = 76
def tag_publish(A, L):
    A("s_cmp_lg_u32 s2, 0"); A(f"s_cbranch_scc1 {L('notag')}")
    A.raw("  s_cmp_lg_u32 s3, 0"); A.raw(f"  s_cbranch_scc1 {L('notag')}")
    A.raw("  s_memrealtime s[30:31]"); A.raw("  s_waitcnt lgkmcnt(0)"); A.raw("  s_or_b32 s30, s30, 1")
    A.raw("  v_mov_b32 v16, s30"); A.raw("  v_mov_b32 v17, s31"); A.raw("  v_mov_b32 v18, 0")
    A.raw("  s_mov_b64 s[34:35], exec"); A.raw("  s_mov_b64 exec, 1")
    A.raw(f"  global_store_dwordx2 v18, v[16:17], s[{S_DBG}:{S_DBG+1}] sc1")
    A.raw("  s_mov_b64 exec, s[34:35]")
    A.label(L('notag'))
def tag_issue(A):
    A("v_mov_b32 v9, 0"); A(f"global_load_dwordx2 v[10:11], v9, s[{S_DBG}:{S_DBG+1}] sc1", tag='tagld')
def tag_take(A, L):
    A.wait_vm('tagld')
    A(f"v_readfirstlane_b32 s{S_TAG}, v10"); A(f"v_readfirstlane_b32 s{S_TAG+1}, v11")
    A(f"s_cmp_lg_u32 s{S_TAG}, 0"); A(f"s_cbranch_scc1 {L('tagd')}")
    A.raw("  s_mov_b32 s33, 0")
    A.raw(f"{L('tagl')}:")
    A.raw(f"  global_load_dwordx2 v[10:11], v9, s[{S_DBG}:{S_DBG+1}] sc1")
    A.raw("  s_add_u32 s33, s33, 1")
    A.raw("  s_waitcnt vmcnt(0)")
    A.raw(f"  v_readfirstlane_b32 s{S_TAG}, v10"); A.raw(f"  v_readfirstlane_b32 s{S_TAG+1}, v11")
    A.raw("  s_nop 1")
    A.raw(f"  s_cmp_lg_u32 s{S_TAG}, 0"); A.raw(f"  s_cbranch_scc1 {L('tagd')}")
    A.raw("  s_cmp_lt_u32 s33, 0x20000"); A.raw(f"  s_cbranch_scc1 {L('tagl')}")
    A.label(L('tagd'))

def signal(A, L, tag, off_sreg):
    A("s_cmp_lg_u32 s3, 0"); A(f"s_cbranch_scc1 {L(tag)}")
    A.raw(f"  v_mov_b32 v18, s{off_sreg}"); A.raw(f"  v_mov_b32 v16, s{S_TAG}"); A.raw(f"  v_mov_b32 v17, s{S_TAG+1}")
    A.raw("  s_mov_b64 s[34:35], exec"); A.raw("  s_mov_b64 exec, 1")
    A.raw(f"  global_store_dwordx2 v18, v[16:17], s[{S_WS}:{S_WS+1}] sc1")
    A.raw("  s_mov_b64 exec, s[34:35]")
    A.label(L(tag))

def poll(A, L, tag, vaddr, nlanes):
    A("s_cmp_lg_u32 s3, 0"); A(f"s_cbranch_scc1 {L(tag+'_done')}")
    A.raw("  s_mov_b32 s33, 0"); A.raw("  s_mov_b64 s[34:35], exec"); A.raw(f"  s_mov_b64 exec, {hex((1 << nlanes) - 1) if nlanes < 64 else -1}")
    A.label(L(tag+'_loop'))
    A.raw(f"  global_load_dwordx2 v[18:19], v{vaddr}, s[{S_WS}:{S_WS+1}] sc1")
    A.raw("  s_add_u32 s33, s33, 1")
    A.raw("  s_waitcnt vmcnt(0)")
    A.raw(f"  v_xor_b32 v18, s{S_TAG}, v18"); A.raw(f"  v_xor_b32 v19, s{S_TAG+1}, v19"); A.raw("  v_or_b32 v18, v18, v19")
    A.raw("  v_cmp_eq_u32 vcc, 0, v18")
    A.raw("  s_nop 1")
    A.raw("  s_cmp_eq_u64 vcc, exec")
    A.raw(f"  s_cbranch_scc1 {L(tag+'_out')}")
    A.raw(f"  s_sleep {SLEEP}")
    A.raw("  s_cmp_lt_u32 s33, 0x20000")
    A.raw(f"  s_cbranch_scc1 {L(tag+'_loop')}")
    A.label(L(tag+'_out'))
    A.raw("  s_mov_b64 exec, s[34:35]")
    A.label(L(tag+'_done'))
    A("s_barrier")

def poll_wave(A, L, tag, vaddr):
    A.raw("  s_mov_b32 s33, 0")
    A.label(L(tag+'_loop'))
    A.raw(f"  global_load_dwordx2 v[18:19], v{vaddr}, s[{S_WS}:{S_WS+1}] sc1")
    A.raw("  s_add_u32 s33, s33, 1")
    A.raw("  s_waitcnt vmcnt(0)")
    A.raw(f"  v_xor_b32 v18, s{S_TAG}, v18"); A.raw(f"  v_xor_b32 v19, s{S_TAG+1}, v19"); A.raw("  v_or_b32 v18, v18, v19")
    A.raw("  v_cmp_eq_u32 vcc, 0, v18")
    A.raw("  s_nop 1")
    A.raw("  s_cmp_eq_u64 vcc, exec")
    A.raw(f"  s_cbranch_scc1 {L(tag+'_out')}")
    A.raw(f"  s_sleep {SLEEP}")
    A.raw("  s_cmp_lt_u32 s33, 0x20000")
    A.raw(f"  s_cbranch_scc1 {L(tag+'_loop')}")
    A.label(L(tag+'_out')); A.vm = []

class AService:
    VD, VR = 232, 236
    def __init__(self, A, lds_sreg):
        self.A = A; self.n_dma = 0; self.n_rd = 0; self.sl = lds_sreg
    def setup(self):
        A = self.A
        A(f"s_lshl_b32 s23, s{S_RB2}, 18"); srd_from(A, SRD_A, S_WSP, 23, 64*4096)
        A("v_lshrrev_b32 v16, 3, v12"); A("v_and_b32 v17, 7, v12"); A("v_and_b32 v18, 3, v16"); A("v_xor_b32 v17, v17, v18")
        A("v_lshlrev_b32 v17, 4, v17"); A("v_lshl_add_u32 v17, v16, 12, v17")
        for uu in range(4):
            if uu & 1: A(f"v_xor_b32 v{self.VD+uu}, 64, v17")
            else: A(f"v_mov_b32 v{self.VD+uu}, v17")
            if uu: A(f"v_add_u32 v{self.VD+uu}, {uu*(32768-1024)}, v{self.VD+uu}")
        A("v_lshrrev_b32 v16, 2, v13"); A("v_lshlrev_b32 v16, 3, v16"); A("v_and_b32 v17, 3, v13"); A("v_add_u32 v16, v16, v17")
        A("v_and_b32 v17, 7, v13"); A("v_xor_b32 v17, v17, v14"); A("v_lshlrev_b32 v17, 4, v17"); A("v_lshl_add_u32 v17, v16, 7, v17")
        A(f"v_add_u32 v17, s{self.sl}, v17")
        A("s_and_b32 s23, s3, 1"); A("s_lshl_b32 s23, s23, 9")
        for b in range(2):
            if b: A("s_xor_b32 s23, s23, 512")
            A(f"v_add_u32 v{self.VR+2*b}, s23, v17"); A(f"v_xor_b32 v{self.VR+2*b+1}, 64, v{self.VR+2*b}")
        A("s_lshr_b32 s23, s3, 1"); A("s_lshl_b32 s68, s23, 17"); A("s_lshl_b32 s23, s3, 10"); A("s_add_u32 s68, s68, s23")
        A("s_xor_b32 s69, s68, 0x20000")
    def dma(self):
        A = self.A; n = self.n_dma
        if n >= 16: return
        ss, gt = n >> 1, n & 1
        A(f"s_add_u32 m0, s{self.sl}, {(n % 3)*4096}")
        A(f"s_add_u32 s70, s{68+gt}, {ss*128}")
        for uu in range(4):
            A(f"buffer_load_dwordx4 v{self.VD+uu}, s[{SRD_A}:{SRD_A+3}], s70 offen offset:{uu*1024} lds", tag=('Au', n))
        self.n_dma += 1
    def start(self):
        for _ in range(3): self.dma()
    def step(self):
        A = self.A; n = self.n_rd
        if n >= 16: return
        if n >= 1 and self.n_dma < 16:
            A.wait_lg(('Ar', n-1)); self.dma()
        A.wait_vm(('Au', n)); ST(A, ('au', n))
        ss, gt = n >> 1, n & 1
        for b in range(2):
            for h in range(2):
                tau = 2*gt + b
                A(f"ds_read_b128 {a((ss*8 + h*4 + tau)*4, 4)}, v{self.VR+2*b+h} offset:{(n % 3)*4096}", tag=('Ar', n))
        self.n_rd += 1
    def finish(self):
        while self.n_rd < 16: self.step()

def wf_issue(A):
    A("v_lshrrev_b32 v62, 2, v13"); A("v_lshlrev_b32 v62, 3, v62"); A("v_and_b32 v63, 3, v13"); A("v_add_u32 v62, v62, v63")
    A("v_lshlrev_b32 v62, 1, v62")
    A(f"v_mul_u32_u24 v63, {4*896}, v14"); A("v_add_u32 v62, v62, v63")
    for q in range(2):
        A("s_lshl_b32 s23, s2, 2"); A("s_add_u32 s23, s23, s3")
        if q: A("s_add_u32 s23, s23, 1024")
        A("s_and_b32 s24, s23, 3"); A("s_lshr_b32 s25, s23, 2")
        A("s_mul_i32 s26, s25, 1490"); A("s_lshr_b32 s26, s26, 16")
        A("s_mul_i32 s27, s26, 44"); A("s_sub_u32 s27, s25, s27")
        A("s_lshl_b32 s28, s26, 7"); A("s_lshr_b32 s29, s24, 1"); A("s_lshl_b32 s29, s29, 6"); A("s_add_u32 s28, s28, s29")
        A("s_and_b32 s29, s24, 1"); A("s_lshl_b32 s29, s29, 3"); A("s_add_u32 s28, s28, s29")
        A("s_cmp_lt_u32 s27, 16")
        A(f"s_cselect_b32 s64, s{S_WO}, s{S_WOUT}"); A(f"s_cselect_b32 s65, s{S_WO+1}, s{S_WOUT+1}")
        A("s_cselect_b32 s66, 1, 2"); A(f"s_mul_i32 s66, s66, {448*896}"); A("s_mov_b32 s67, 0x20000"); A("s_and_b32 s65, s65, 0xffff")
        A("s_mul_i32 s29, s27, 28"); A("s_mul_i32 s30, s27, 32"); A("s_sub_u32 s30, s30, 512")
        A("s_cmp_lt_u32 s27, 16"); A("s_cselect_b32 s29, s29, s30"); A("s_cselect_b64 s[30:31], -1, 0")
        A("s_mul_i32 s29, s29, 896"); A("s_add_u32 s29, s29, s28")
        A("s_cmp_ge_u32 s23, 1232"); A("s_cselect_b32 s66, 0, s66")
        A(f"v_add_u32 v58, 0, v62"); A(f"v_add_u32 v59, {16*896}, v62")
        A("v_cmp_eq_u32 vcc, 3, v14"); A("s_and_b64 s[30:31], s[30:31], vcc"); A(f"v_mov_b32 v63, {OOB}")
        A("v_cndmask_b32 v59, v59, v63, s[30:31]")
        for e in range(8):
            A(f"buffer_load_ushort v{40 + 8*q + e}, v{58 + (e >> 2)}, s[64:67], s29 offen offset:{(e & 3)*896}", tag='wfj')
def wf_store(A):
    A.wait_vm('wfj')
    for q in range(2):
        for p in range(4):
            A(f"v_lshl_or_b32 v{40 + 4*q + p}, v{40 + 8*q + 2*p + 1}, 16, v{40 + 8*q + 2*p}")
    A(f"s_mov_b32 s23, {WS_WF}"); srd_from(A, 64, S_WS, 23, 1232*1024)
    A("v_lshlrev_b32 v60, 4, v12")
    A("s_lshl_b32 s23, s2, 2"); A("s_add_u32 s23, s23, s3"); A("s_lshl_b32 s23, s23, 10")
    A("buffer_store_dwordx4 v[40:43], v60, s[64:67], s23 offen sc1", tag='pubst')
    A("s_add_u32 s23, s23, 0x100000")
    A("buffer_store_dwordx4 v[44:47], v60, s[64:67], s23 offen sc1", tag='pubst')

def touch_lines(A, ptr, vaddr, n, step, vdst=56):
    for k in range(n):
        A(f"global_load_dword v{vdst}, v{vaddr}, s[{ptr}:{ptr+1}]", tag='touch')
        if k + 1 < n: A(f"v_add_u32 v{vaddr}, {step}, v{vaddr}")

def touch_late(A):
    A(f"s_lshl_b32 s27, s{S_RB}, 3"); A(f"s_add_u32 s27, s27, s{S_CB}"); A("s_lshl_b32 s27, s27, 2"); A("s_add_u32 s27, s27, s3")
    A("s_lshl_b32 s28, s27, 14"); A("v_lshlrev_b32 v57, 7, v12"); A("v_add_u32 v57, s28, v57")
    touch_lines(A, S_WSP, 57, 2, 8192)
    A("s_min_u32 s27, s27, 447")
    A("s_mul_i32 s28, s27, 1792"); A("v_min_u32 v57, 13, v12"); A("v_lshlrev_b32 v57, 7, v57"); A("v_add_u32 v58, s28, v57")
    A(f"global_load_dword v56, v58, s[{S_WOUT}:{S_WOUT+1}]", tag='touch')
    A("s_mul_i32 s28, s27, 3584"); A("v_add_u32 v58, s28, v57")
    A(f"global_load_dword v56, v58, s[{S_WIN}:{S_WIN+1}]", tag='touch')
    A("s_mul_i32 s28, s27, 896"); A("v_min_u32 v57, 6, v12"); A("v_lshlrev_b32 v57, 7, v57"); A("v_add_u32 v58, s28, v57")
    A(f"global_load_dword v56, v58, s[{S_WO}:{S_WO+1}]", tag='touch')

def wdma_setup(A, V):
    A("v_lshrrev_b32 v15, 1, v13"); A("v_xor_b32 v15, v15, v14")
    A("v_and_b32 v16, 1, v13"); A("v_lshlrev_b32 v16, 4, v16")
    A("v_mul_u32_u24 v17, 3584, v14"); A("v_add_u32 v16, v16, v17"); A(f"v_mov_b32 v18, {OOB}")
    for uu in range(4):
        if uu == 2: A("v_xor_b32 v15, 4, v15")
        A(f"v_lshl_add_u32 v{V+uu}, v15, 5, v16")
        if uu: A(f"v_add_u32 v{V+uu}, {uu*(4*3584-1024)}, v{V+uu}")
        A("v_cmp_eq_u32 vcc, 7, v15"); A(f"v_cndmask_b32 v{V+uu}, v{V+uu}, v18, vcc")
def wread_setup(A, V, base):
    A("v_lshrrev_b32 v15, 2, v13"); A("v_lshl_add_u32 v16, v14, 3, v15"); A("v_lshlrev_b32 v16, 8, v16")
    A("v_and_b32 v17, 3, v13"); A("v_lshl_add_u32 v16, v17, 3, v16"); A(f"v_add_u32 v16, {base}, v16")
    A("v_and_b32 v17, 1, v14"); A("v_lshl_or_b32 v17, v17, 2, v15")
    for j in range(7):
        A(f"v_xor_b32 v18, {j}, v17"); A(f"v_lshl_add_u32 v{V+j}, v18, 5, v16")

GC = dict(VC1=32, VC2=34, VONE=36)
def gelu_consts(A):
    for r, val in ((32, GELU_C1), (34, GELU_C2), (36, 1.0)):
        A(f"v_mov_b32 v{r}, {hexf(val)}"); A(f"v_mov_b32 v{r+1}, {hexf(val)}")

class Z1Tile:
    WB, XB, ACC, GACC = 120, 176, 192, 220
    VW = 24
    def __init__(self, A, L, ring_base, vdma, sW):
        self.A, self.L, self.ring_base, self.vdma, self.sW = A, L, ring_base, vdma, sW
    def dma_w_list(self, c):
        st = (c + 1) % 3
        return [(f"s_add_u32 m0, s71, {self.ring_base + st*16384}", None), (f"s_add_u32 s23, s{self.sW}, {64*c*3584}", None)] + \
               [(f"buffer_load_dwordx4 v{self.vdma+uu}, s[12:15], s23 offen offset:{uu*1024} lds", ('w1', c)) for uu in range(4)]
    def dma_w(self, c):
        for t, tg in self.dma_w_list(c): self.A(t, tag=tg)
    def reads(self, c, h, buf, xoff):
        out = []
        st = (c + 1) % 3
        out.append((f"ds_read_b128 {v(self.XB+buf*8,4)}, v{20+h} offset:{xoff(c)}", ('zx', c, h)))
        out.append((f"ds_read_b128 {v(self.XB+buf*8+4,4)}, v31 offset:{(2*c+h)*64}", ('zx', c, h)))
        for j in range(7):
            for sec in range(2):
                out.append((f"ds_read_b64_tr_b16 {v(self.WB+buf*28+j*4+2*sec,2)}, v{self.VW+j} offset:{st*16384 + h*8192 + sec*1024}", ('zw', c, h, j)))
        return out
    def run(self, xoff, xwait, hooks):
        A = self.A
        ST(A, 'z1in')
        A.wait_vm([('w1', 0)] + xwait(0)); A.wait_lg(); A("s_barrier")
        if ('pre',) in hooks: hooks[('pre',)]()
        for t, tg in self.reads(0, 0, 0, xoff): A(t, tag=tg)
        for c in range(7):
            for h in range(2):
                kk = 2*c + h; buf = kk & 1
                todo = []
                if h == 0: todo = self.reads(c, 1, buf ^ 1, xoff)
                else:
                    if c < 6:
                        A.wait_vm([('w1', c+1)] + xwait(c+1))
                        A.wait_lg(); A("s_barrier"); ST(A, ('z', c))
                        if c + 3 <= 6: self.dma_w(c + 3)
                        todo = self.reads(c+1, 0, buf ^ 1, xoff)
                if (c, h) in hooks: hooks[(c, h)]()
                A.wait_lg([('zx', c, h)])
                d = v(self.GACC, 4)
                A(f"v_mfma_f32_16x16x32_bf16 {d}, {v(self.XB+buf*8+4,4)}, {v(self.XB+buf*8,4)}, {d if kk else 0}")
                for _ in range(2):
                    if todo: t, tg = todo.pop(0); A(t, tag=tg)
                for j in range(7):
                    A.wait_lg([('zw', c, h, j)])
                    d = v(self.ACC + 4*j, 4)
                    A(f"v_mfma_f32_16x16x32_bf16 {d}, {v(self.WB+buf*28+j*4,4)}, {v(self.XB+buf*8,4)}, {d if kk else 0}")
                    for _ in range(2):
                        if todo: t, tg = todo.pop(0); A(t, tag=tg)
    def epilogue(self, svc):
        A = self.A
        ST(A, 'z1out')
        G = self.GACC
        A(f"v_mul_f32 v{G}, {hexf(1.4426950408889634)}, v{G}")
        A(f"v_exp_f32 v{G}, v{G}"); A(f"v_add_f32 v{G}, 1.0, v{G}"); A(f"v_rcp_f32 v{G}, v{G}")
        A("v_lshlrev_b32 v16, 2, v13")
        A(f"ds_bpermute_b32 v{G+1}, v16, v{G}", tag='gb')
        regs = [self.ACC + 2*p for p in range(14)]
        for q in range(0, 14, 4):
            gelu_pairs(A, regs[q:q+4], 224, 32, 34, 36)
            svc.step()
        A.wait_lg('gb')
        for p in range(14):
            r = self.ACC + 2*p
            A(f"v_mul_f32 v{r}, v{r}, v{G+1}"); A(f"v_mul_f32 v{r+1}, v{r+1}, v{G+1}")
            A(f"v_cvt_pk_bf16_f32 v{240+p}, v{r}, v{r+1}")
        ST(A, 'z1epi')

L_AST, L_GW, L_ZR, L_GL, L_RING = 58368, 107520, 108544, 110592, 114688
XH = 57344

def load_gw_tables(A, gwb, zrb, tag):
    A(f"s_mov_b32 s23, 896"); srd_from(A, 16, S_GW, None, 896)
    A("v_lshlrev_b32 v16, 4, v12"); A(f"v_mov_b32 v18, {OOB}")
    A(f"s_mov_b32 m0, {gwb}"); A("buffer_load_dwordx4 v16, s[16:19], 0 offen lds", tag=tag)
    A(f"s_mov_b32 m0, {zrb}"); A("buffer_load_dwordx4 v18, s[16:19], 0 offen lds", tag=tag)
def gw_addr(A, vreg, gwb, zrb):
    A("v_cmp_eq_u32 vcc, 0, v13"); A(f"v_mov_b32 v16, {zrb}"); A(f"v_mov_b32 v17, {gwb}"); A(f"v_cndmask_b32 v{vreg}, v16, v17, vcc")
    A(f"v_lshl_add_u32 v{vreg}, v14, 4, v{vreg}")
def z1_xaddr(A):
    A("v_lshrrev_b32 v15, 2, v13"); A("v_lshlrev_b32 v15, 3, v15"); A("v_and_b32 v16, 3, v13"); A("v_add_u32 v15, v15, v16")
    A("v_and_b32 v16, 7, v13"); A("v_xor_b32 v16, v16, v14"); A("v_lshlrev_b32 v16, 4, v16"); A("v_lshl_add_u32 v16, v15, 7, v16")
    A("s_lshr_b32 s23, s3, 1"); A("s_lshl_b32 s23, s23, 12"); A("s_and_b32 s24, s3, 1"); A("s_lshl_b32 s24, s24, 9"); A("s_add_u32 s23, s23, s24")
    A("v_add_u32 v20, s23, v16"); A("v_xor_b32 v21, 64, v20")
def load_bias(A):
    A(f"s_lshl_b32 s23, s{S_RB2}, 6"); A("s_lshr_b32 s24, s3, 1"); A("s_lshl_b32 s24, s24, 5"); A("s_add_u32 s23, s23, s24")
    A("s_and_b32 s24, s3, 1"); A("s_lshl_b32 s24, s24, 2"); A("s_add_u32 s23, s23, s24")
    A("v_lshrrev_b32 v15, 2, v13"); A("v_lshlrev_b32 v15, 3, v15"); A("v_and_b32 v16, 3, v13"); A("v_add_u32 v15, v15, v16")
    A("v_add_u32 v15, s23, v15"); A("v_lshlrev_b32 v15, 1, v15")
    srd_from(A, 16, S_BSP, None, S*2)
    A("buffer_load_ushort v254, v15, s[16:19], 0 offen", tag='bias')

def role_z(A, L):
    ACC1, ACC2 = 64, 120
    acc1 = lambda j, aa: ACC1 + (j*2+aa)*4
    acc2 = lambda j, aa: ACC2 + (j*2+aa)*4
    WB = 176
    wf = lambda buf, j: WB + buf*28 + j*4
    xf = lambda kk, aa: 144 + (kk*2+aa)*4
    A("v_lshrrev_b32 v15, 3, v12"); A("v_and_b32 v16, 7, v12"); A("v_and_b32 v17, 3, v15"); A("v_xor_b32 v16, v16, v17"); A("v_lshlrev_b32 v16, 4, v16")
    A("v_mul_u32_u24 v17, 896, v15")
    for uu in range(4):
        if uu & 1: A("v_xor_b32 v18, 64, v16"); A(f"v_add_u32 v{1+uu}, v18, v17")
        else: A(f"v_add_u32 v{1+uu}, v16, v17")
        if uu: A(f"v_add_u32 v{1+uu}, {uu*(8*896-1024)}, v{1+uu}")
    wdma_setup(A, 5)
    A(f"s_lshl_b32 s72, s{S_RB}, 2"); A("s_add_u32 s72, s72, s3")
    A(f"s_mul_i32 s23, s72, {32*896}"); srd_from(A, 8, S_X, 23, 32*896)
    srd_from(A, 12, S_WIN, None, 448*3584)
    A(f"s_mul_i32 s25, s3, {16*3584}"); A(f"s_mul_i32 s23, s{S_CB}, 224"); A("s_add_u32 s25, s25, s23"); A("s_add_u32 s24, s25, 1792")
    A("s_lshl_b32 s71, s3, 12")
    def dma_x(c):
        return [(f"s_add_u32 m0, s71, {c*16384}", None), (f"s_mov_b32 s23, {c*128}", None)] + \
               [(f"buffer_load_dwordx4 v{1+uu}, s[8:11], s23 offen offset:{uu*1024} lds", ('x', c)) for uu in range(4)]
    def dma_w(c, which=1):
        base = (L_RING + (c % 3)*16384) if which == 1 else c*16384
        return [(f"s_add_u32 m0, s71, {base}", None), (f"s_add_u32 s23, s{24 if which == 1 else 25}, {64*c*3584}", None)] + \
               [(f"buffer_load_dwordx4 v{5+uu}, s[12:15], s23 offen offset:{uu*1024} lds", ('w', which, c)) for uu in range(4)]
    def emit(lst):
        for t, tg in lst: A(t, tag=tg)
    for c in range(2): emit(dma_w(c)); emit(dma_x(c))
    ST(A, 1)
    A("v_lshrrev_b32 v15, 2, v13"); A("v_lshlrev_b32 v15, 3, v15"); A("v_and_b32 v16, 3, v13"); A("v_add_u32 v15, v15, v16")
    A("v_and_b32 v16, 7, v13"); A("v_xor_b32 v16, v16, v14"); A("v_lshlrev_b32 v16, 4, v16"); A("v_lshl_add_u32 v16, v15, 7, v16")
    A("v_add_u32 v20, s71, v16"); A("v_xor_b32 v21, 64, v20"); A("v_add_u32 v22, 0x10000, v20"); A("v_add_u32 v23, 0x10000, v21")
    wread_setup(A, 24, L_RING)
    gelu_consts(A)
    A(f"s_mul_i32 s74, s3, 12288"); A(f"s_add_u32 s74, s74, {L_RING}")
    svc = AService(A, 74)
    def reads_w(which, c, h, buf):
        out = []
        off = ((c % 3) if which == 1 else (c % 4))*16384 + h*8192
        for j in range(7):
            for sec in range(2):
                out.append((f"ds_read_b64_tr_b16 {v(wf(buf,j)+2*sec,2)}, v{24+j} offset:{off + sec*1024}", ('wf', which, c, h, j)))
        return out
    def reads_x(c):
        return [(f"ds_read_b128 {a(xf(2*c+h,aa),4)}, v{20 + h + (2 if c >= 4 else 0)} offset:{(c % 4)*16384 + aa*512}", ('xf', c, h)) for h in range(2) for aa in range(2)]
    A.wait_vm([('w', 1, 0), ('x', 0)]); A("s_barrier")
    ST(A, 2)
    emit(reads_x(0)); emit(reads_w(1, 0, 0, 0))
    for c in range(7):
        for h in range(2):
            kk = 2*c + h; buf = kk & 1
            todo = []; vq = []
            if h == 0:
                todo = reads_w(1, c, 1, buf ^ 1)
                if c == 0: vq += dma_w(2)
                if c + 2 <= 6: vq += dma_x(c + 2)
            else:
                if c < 6: A.wait_vm([('w', 1, c+1), ('x', c+1)])
                A.wait_lg(); A("s_barrier"); ST(A, ('g', c))
                if c + 3 <= 6: vq += dma_w(c + 3)
                for cc in {3: (0,), 4: (1, 2), 5: (3, 4), 6: (5, 6)}.get(c, ()): vq += dma_w(cc, 2)
                if c < 6: todo = reads_w(1, c+1, 0, buf ^ 1)[:2] + reads_x(c+1) + reads_w(1, c+1, 0, buf ^ 1)[2:]
            A.wait_lg([('xf', c, h)])
            for j in range(7):
                A.wait_lg([('wf', 1, c, h, j)])
                for aa in range(2):
                    d = v(acc1(j,aa), 4)
                    A(f"v_mfma_f32_16x16x32_bf16 {d}, {a(xf(kk,aa),4)}, {v(wf(buf,j),4)}, {d if kk else 0}")
                    for _ in range(2):
                        if todo: t, tg = todo.pop(0); A(t, tag=tg)
                    if vq: t, tg = vq.pop(0); A(t, tag=tg)
            emit(todo); emit(vq)
            if c == 4 and h == 1: touch_late(A)
    ST(A, 3)
    tag_issue(A)
    svc.setup(); svc.start()
    TMP = 232 - 8 - 0
    TMP = 176
    regs = [ACC1 + 2*p for p in range(28)]
    for q in range(0, 28, 4): gelu_pairs(A, regs[q:q+4], TMP, 32, 34, 36)
    SUM, M2, PUB = 192, 200, 208
    for aa in range(2):
        for rp in range(2):
            d = SUM + aa*4 + rp*2
            A(f"v_pk_add_f32 {v(d,2)}, {v(acc1(0,aa)+2*rp,2)}, {v(acc1(1,aa)+2*rp,2)}")
            for j in range(2, 7): A(f"v_pk_add_f32 {v(d,2)}, {v(d,2)}, {v(acc1(j,aa)+2*rp,2)}")
    def dpp16(rs):
        for sh in (8, 4, 2, 1):
            for r in rs: A(f"v_add_f32_dpp v{r}, v{r}, v{r} row_ror:{sh} row_mask:0xf bank_mask:0xf")
    dpp16(range(SUM, SUM+8))
    A(f"v_mov_b32 v38, {hexf(1.0/112)}"); A(f"v_mov_b32 v39, {hexf(1.0/112)}")
    for p in range(4): A(f"v_pk_mul_f32 {v(SUM+2*p,2)}, {v(SUM+2*p,2)}, {v(38,2)}")
    for aa in range(2):
        for rp in range(2):
            d = M2 + aa*4 + rp*2; mreg = SUM + aa*4 + rp*2
            for j in range(7):
                t = TMP + 2*(j & 1)
                A(f"v_pk_add_f32 {v(t,2)}, {v(acc1(j,aa)+2*rp,2)}, {v(mreg,2)} neg_lo:[0,1] neg_hi:[0,1]")
                if j == 0: A(f"v_pk_mul_f32 {v(d,2)}, {v(t,2)}, {v(t,2)}")
                else: A(f"v_pk_fma_f32 {v(d,2)}, {v(t,2)}, {v(t,2)}, {v(d,2)}")
    dpp16(range(M2, M2+8))
    A("v_and_b32 v16, 3, v13")
    for q in range(3): A(f"v_cmp_eq_u32 s[{26+2*q}:{27+2*q}], {q+1}, v16")
    for e, (base, odd) in enumerate(((SUM, 0), (M2, 0), (SUM, 1), (M2, 1))):
        A(f"v_mov_b32 v{PUB+e}, v{base+odd}")
        for q in range(3): A(f"v_cndmask_b32 v{PUB+e}, v{PUB+e}, v{base+2*(q+1)+odd}, s[{26+2*q}:{27+2*q}]")
    A(f"s_lshl_b32 s23, s{S_RB}, 3"); A(f"s_add_u32 s23, s23, s{S_CB}"); A("s_lshl_b32 s23, s23, 7")
    A("s_lshl_b32 s27, s3, 5"); A("s_add_u32 s23, s23, s27"); A("s_lshl_b32 s23, s23, 3")
    A(f"s_mov_b32 s27, {WS_LNP}"); srd_from(A, 16, S_WS, 27, 16*8*128*8)
    A("v_lshlrev_b32 v19, 6, v14"); A("v_lshl_add_u32 v19, v16, 4, v19")
    A("s_mov_b64 s[34:35], exec"); A("s_mov_b32 exec_lo, 0x000f000f"); A("s_mov_b32 exec_hi, 0x000f000f")
    A(f"buffer_store_dwordx4 {v(PUB,4)}, v19, s[16:19], s23 offen sc1", tag='lnp')
    A("s_mov_b64 exec, s[34:35]")
    ST(A, 4)
    A.wait_vm([('w', 2, c) for c in range(7)]); A("s_barrier"); ST(A, 'w2')
    for j in range(7): A(f"v_subrev_u32 v{24+j}, {L_RING}, v{24+j}")
    emit(reads_w(2, 0, 0, 0))
    for c in range(7):
        for h in range(2):
            kk = 2*c + h; buf = kk & 1
            nxt = (c, 1) if h == 0 else ((c+1, 0) if c < 6 else None)
            if h == 0 and c in (0, 1, 2, 4, 5, 6): svc.step()
            if h == 1 and c in (1, 5): svc.step()
            if c == 3 and h == 0:
                A.wait_vm('lnp'); tag_take(A, lambda x: L('z' + x)); A("s_barrier")
                A(f"s_lshl_b32 s27, s{S_RB}, 7"); A(f"s_lshl_b32 s28, s{S_CB}, 3"); A("s_add_u32 s27, s27, s28"); A(f"s_add_u32 s27, s27, {WS_F0}")
                signal(A, L, 'sigln', 27)
            todo = []
            if nxt:
                if nxt == (4, 0):
                    for j in range(7): A(f"v_add_u32 v{24+j}, 0x10000, v{24+j}")
                todo = reads_w(2, nxt[0], nxt[1], buf ^ 1)
            for j in range(7):
                A.wait_lg([('wf', 2, c, h, j)])
                for aa in range(2):
                    d = v(acc2(j,aa), 4)
                    A(f"v_mfma_f32_16x16x32_bf16 {d}, {v(wf(buf,j),4)}, {a(xf(kk,aa),4)}, {d if kk else 0}")
                    if todo: t, tg = todo.pop(0); A(t, tag=tg)
            emit(todo)
    ST(A, 5)
    wf_issue(A)
    TMP = 176
    regs = [ACC2 + 2*p for p in range(28)]
    for q in range(0, 28, 4):
        gelu_pairs(A, regs[q:q+4], TMP, 32, 34, 36)
        if q in (0, 4, 8, 12, 16, 20): svc.step()
    A("s_lshl_b32 s23, s72, 1"); A("s_mul_i32 s23, s23, 56"); A(f"s_mul_i32 s27, s{S_CB}, 7"); A("s_add_u32 s23, s23, s27"); A("s_lshl_b32 s23, s23, 9")
    A(f"s_add_u32 s23, s23, {WS_Z1F}"); srd_from(A, 16, S_WS, 23, 56*512 + 7*512)
    A("v_lshlrev_b32 v18, 3, v12")
    P = 192
    for aa in range(2):
        if aa: A(f"s_mov_b32 s23, {56*512}")
        for j in range(7):
            c = acc2(j,aa); p = P + 2*(j & 3)
            A(f"v_cvt_pk_bf16_f32 v{p}, v{c}, v{c+1}"); A(f"v_cvt_pk_bf16_f32 v{p+1}, v{c+2}, v{c+3}")
            A(f"buffer_store_dwordx2 {v(p,2)}, v18, s[16:19], {'s23' if aa else 0} offen offset:{j*512} sc1", tag='pubst')
    ST(A, 6)
    A(f"s_lshl_b32 s27, s{S_RB}, 7"); A(f"s_add_u32 s27, s27, {WS_F0}"); A("v_lshl_add_u32 v17, v12, 3, s27")
    poll(A, L, 'pln', 17, 8)
    ST(A, 7)
    A(f"s_lshl_b32 s23, s{S_RB}, 10"); A("s_lshl_b32 s27, s3, 5"); A("s_add_u32 s23, s23, s27"); A("s_lshl_b32 s23, s23, 3")
    A(f"s_mov_b32 s27, {WS_LNP}"); srd_from(A, 16, S_WS, 27, 16*8*128*8)
    A("v_and_b32 v18, 7, v12"); A("v_lshlrev_b32 v18, 10, v18"); A("v_lshl_add_u32 v18, v14, 6, v18")
    Q, MB = 192, 208
    for q in range(4): A(f"buffer_load_dwordx4 {v(Q+4*q,4)}, v18, s[16:19], s23 offen offset:{16*q} sc1", tag='lnq')
    svc.step()
    wf_store(A)
    A.wait_vm('lnq')
    ST(A, 'lnq')
    def red8(rs):
        for pat in ("quad_perm:[1,0,3,2]", "quad_perm:[2,3,0,1]", "row_half_mirror"):
            for r in rs: A(f"v_add_f32_dpp v{r}, v{r}, v{r} {pat} row_mask:0xf bank_mask:0xf")
    for q in range(8): A(f"v_mov_b32 v{MB+q}, v{Q+2*q}")
    red8(range(MB, MB+8))
    for q in range(8): A(f"v_mul_f32 v{MB+q}, 0.125, v{MB+q}")
    A(f"v_mov_b32 v38, {hexf(112.0)}")
    for q in range(8):
        A(f"v_sub_f32 v{Q+2*q}, v{Q+2*q}, v{MB+q}"); A(f"v_mul_f32 v{Q+2*q}, v{Q+2*q}, v{Q+2*q}")
        A(f"v_fma_f32 v{MB+8+q}, v{Q+2*q}, v38, v{Q+2*q+1}")
    red8(range(MB+8, MB+16))
    svc.step()
    A(f"v_mov_b32 v38, {hexf(1.0/896)}"); A(f"v_mov_b32 v39, {hexf(1e-5)}")
    for q in range(8): A(f"v_fma_f32 v{MB+8+q}, v{MB+8+q}, v38, v39")
    for q in range(8): A(f"v_rsq_f32 v{MB+8+q}, v{MB+8+q}")
    for q in range(8): A(f"v_mul_f32 v{MB+q}, v{MB+q}, v{MB+8+q}")
    A(f"s_mul_i32 s23, s{S_CB}, {64*7168}"); A("s_mul_i32 s27, s72, 7168"); A("s_add_u32 s23, s23, s27")
    srd_from(A, 16, S_WS, 23, 7168)
    A("v_lshlrev_b32 v18, 4, v12"); A("v_add_u32 v19, 4096, v18")
    for j in range(7):
        p = Q + 4*(j & 3)
        for aa in range(2):
            c = acc1(j,aa)
            for rp in range(2):
                A(f"v_pk_fma_f32 {v(c+2*rp,2)}, {v(c+2*rp,2)}, {v(MB+8+aa*4+2*rp,2)}, {v(MB+aa*4+2*rp,2)} neg_lo:[0,0,1] neg_hi:[0,0,1]")
            A(f"v_cvt_pk_bf16_f32 v{p+2*aa}, v{c}, v{c+1}"); A(f"v_cvt_pk_bf16_f32 v{p+2*aa+1}, v{c+2}, v{c+3}")
        A(f"buffer_store_dwordx4 {v(p,4)}, v{18 if j < 4 else 19}, s[16:19], 0 offen offset:{(j%4)*1024} sc1", tag='pubst')
    ST(A, 'norm')
    if PROFILE == 'p3':
        A.raw("  s_waitcnt vmcnt(6)"); ST(A, 'st0'); A.raw("  s_waitcnt vmcnt(3)"); ST(A, 'st3')
    A.wait_vm('pubst'); ST(A, 'pubw'); A("s_barrier")
    A(f"s_lshl_b32 s27, s{S_CB}, 4"); A(f"s_add_u32 s27, s27, s{S_RB}"); A("s_lshl_b32 s27, s27, 3"); A(f"s_add_u32 s27, s27, {WS_F1}")
    signal(A, L, 'sigzd', 27)
    ST(A, 'sig')
    svc.finish()
    A.wait_lg()
    ST(A, 8)

QSTG = 45056; QGW = 3*QSTG; QZR = QGW + 1024; QP = 400
def role_q(A, L):
    A("v_lshrrev_b32 v15, 3, v12"); A("v_and_b32 v16, 7, v12")
    A("v_and_b32 v17, 3, v15"); A("v_xor_b32 v17, v16, v17"); A("v_lshlrev_b32 v17, 4, v17")
    A(f"s_lshl_b32 s24, s{S_RB}, 7"); A("s_sub_u32 s24, s24, 16"); A("s_mul_i32 s25, s3, 5")
    for uu in range(5):
        A(f"s_add_u32 s26, s25, {uu}")
        A("s_lshl_b32 s27, s26, 3"); A("s_add_u32 s27, s27, s24")
        A("v_add_u32 v18, s27, v15"); A("v_max_i32 v18, 0, v18"); A("v_mul_u32_u24 v18, 896, v18")
        A("s_and_b32 s27, s26, 1"); A("s_lshl_b32 s27, s27, 6"); A("v_xor_b32 v19, s27, v17")
        A("s_cmp_ge_u32 s26, 18"); A(f"s_cselect_b32 s27, {OOB}, 0")
        A(f"v_add3_u32 v{1+uu}, v18, v19, s27")
        if uu in (1, 2, 3): A(f"v_subrev_u32 v{1+uu}, {uu*1024}, v{1+uu}")
    A("v_and_b32 v18, 2, v15"); A("v_xor_b32 v18, v16, v18"); A("v_mul_u32_u24 v19, 2688, v15")
    for uu in range(2):
        if uu: A("v_xor_b32 v18, 4, v18")
        A(f"v_lshl_add_u32 v{6+uu}, v18, 4, v19")
        if uu: A(f"v_add_u32 v{6+uu}, {8*2688-1024}, v{6+uu}")
        A("v_cmp_eq_u32 vcc, 7, v18"); A(f"v_mov_b32 v16, {OOB}"); A(f"v_cndmask_b32 v{6+uu}, v{6+uu}, v16, vcc")
    A.wait_lg()
    A(f"s_sub_u32 s8, s{S_X}, 4096"); A(f"s_subb_u32 s9, s{S_X+1}, 0"); A("s_and_b32 s9, s9, 0xffff"); A(f"s_mov_b32 s10, {S*896 + 4096}"); A("s_mov_b32 s11, 0x20000")
    for uu in range(5): A(f"v_add_u32 v{1+uu}, 4096, v{1+uu}")
    srd_from(A, 12, S_WQKV, None, 448*2688)
    A(f"s_mul_i32 s24, s3, {16*2688}"); A(f"s_mul_i32 s25, s{S_CB}, 112"); A("s_add_u32 s24, s24, s25")
    A("s_mul_i32 s25, s3, 5120"); A("s_lshl_b32 s26, s3, 11"); A("s_add_u32 s26, s26, 20480")
    def dma(c):
        st = (c % 3)*QSTG; out = []
        for seg in range(3):
            out += [(f"s_add_u32 m0, s26, {st + seg*8192}", None), (f"s_add_u32 s23, s24, {64*c*2688 + seg*896}", None)]
            out += [(f"buffer_load_dwordx4 v{6+uu}, s[12:15], s23 offen offset:{uu*1024} lds", ('c', c)) for uu in range(2)]
        out += [(f"s_add_u32 m0, s25, {st}", None), (f"s_mov_b32 s23, {c*128}", None)]
        out += [(f"buffer_load_dwordx4 v{1+uu}, s[8:11], s23 offen offset:{uu*1024} lds", ('c', c)) for uu in range(4)]
        out += [(f"s_add_u32 m0, s25, {st + 4096}", None), (f"buffer_load_dwordx4 v5, s[8:11], s23 offen lds", ('c', c))]
        return out
    def emit(lst):
        for t, tg in lst: A(t, tag=tg)
    load_gw_tables(A, QGW, QZR, ('c', 0))
    for c in range(2): emit(dma(c))
    ST(A, 1)
    A("v_lshrrev_b32 v15, 3, v13"); A("v_lshlrev_b32 v15, 2, v15"); A("v_and_b32 v16, 3, v13"); A("v_or_b32 v15, v15, v16")
    A("v_xor_b32 v15, v15, v14"); A("v_lshlrev_b32 v15, 4, v15"); A("v_lshl_add_u32 v20, v13, 7, v15"); A("v_xor_b32 v21, 64, v20")
    A("s_lshl_b32 s23, s3, 12"); A("s_add_u32 s23, s23, 2048"); A("v_add_u32 v22, s23, v20"); A("v_add_u32 v23, s23, v21")
    A("s_lshr_b32 s23, s3, 1"); A("s_mul_i32 s23, s23, 56"); A("s_and_b32 s33, s3, 1"); A("s_lshl_b32 s34, s33, 5"); A("s_add_u32 s23, s23, s34")
    A("v_and_b32 v15, 3, v13"); A("v_lshlrev_b32 v16, 3, v15"); A("v_add_u32 v16, s23, v16")
    A("v_cmp_eq_u32 vcc, 3, v15"); A("s_cmp_eq_u32 s33, 1"); A("s_cselect_b64 s[34:35], vcc, 0")
    A("v_mov_b32 v17, 112"); A("v_cndmask_b32 v16, v16, v17, s[34:35]")
    A("v_lshrrev_b32 v17, 3, v13"); A("v_lshlrev_b32 v17, 1, v17"); A("v_and_b32 v18, 1, v14"); A("v_lshl_or_b32 v17, v18, 2, v17")
    A("v_lshrrev_b32 v18, 4, v16"); A("v_xor_b32 v18, v18, v17"); A("v_and_b32 v16, 8, v16"); A("v_lshl_or_b32 v16, v18, 4, v16")
    A("v_lshrrev_b32 v17, 2, v13"); A("v_lshl_add_u32 v17, v14, 3, v17"); A("v_lshl_add_u32 v24, v17, 7, v16"); A("v_add_u32 v24, 20480, v24")
    gw_addr(A, 25, QGW, QZR)
    XB = 256; xf = lambda buf, t: XB + buf*44 + t*4
    WB = 256 + 88; wf = lambda buf, t: WB + buf*16 + t*4
    ACC = 64
    def acc(t, RT):
        if t == 0: return ACC + (RT-1)*4
        if t == 3: return ACC + (26 + RT)*4
        return ACC + (8 + (t-1)*9 + RT)*4
    def reads(c, h, buf):
        out = []
        for t in range(3):
            for sec in range(2):
                out.append((f"ds_read_b64_tr_b16 {u(wf(buf,t)+2*sec,2)}, v24 offset:{t*8192 + h*4096 + sec*512}", ('w', c, h)))
        out.append((f"ds_read_b128 {u(wf(buf,3),4)}, v25 offset:{(2*c+h)*64}", ('w', c, h)))
        for RT in range(9): out.append((f"ds_read_b128 {u(xf(buf,RT),4)}, v{20+h} offset:{RT*2048}", ('x', c, h, RT)))
        for q in range(2): out.append((f"ds_read_b128 {u(xf(buf,9+q),4)}, v{22+h} offset:{q*2048}", ('x', c, h, 9+q)))
        return out
    def bump(c):
        d = QSTG if (c % 3) < 2 else -2*QSTG
        for r in (20, 21, 22, 23, 24):
            if d > 0: A(f"v_add_u32 v{r}, {d}, v{r}")
            else: A(f"v_subrev_u32 v{r}, {-d}, v{r}")
    A.wait_vm(('c', 0)); A("s_barrier")
    ST(A, 2)
    for t, tg in reads(0, 0, 0): A(t, tag=tg)
    for c in range(7):
        for h in range(2):
            kk = 2*c + h; buf = kk & 1
            todo = []; vq = []
            if h == 0:
                todo = reads(c, 1, buf ^ 1)
                if c == 0: vq = dma(2)
            else:
                if c < 6: A.wait_vm(('c', c+1))
                A.wait_lg(); A("s_barrier"); ST(A, ('g', c))
                if c + 3 <= 6: vq = dma(c+3)
                if c < 6:
                    bump(c); todo = reads(c+1, 0, buf ^ 1)
            order = [(1,0),(2,0)] + [(t, RT) for RT in range(1, 9) for t in range(3)] + [(3,0),(3,1)]
            n = 0
            for (t, RT) in order:
                xt = RT if t < 3 else 9 + RT
                A.wait_lg([('w', c, h), ('x', c, h, xt)])
                d = v(acc(t, RT), 4)
                A(f"v_mfma_f32_16x16x32_bf16 {d}, {u(wf(buf,t),4)}, {u(xf(buf,xt),4)}, {d if kk else 0}")
                n += 1
                if todo: tt, tg = todo.pop(0); A(tt, tag=tg)
                if vq: tt, tg = vq.pop(0); A(tt, tag=tg)
            while todo: tt, tg = todo.pop(0); A(tt, tag=tg)
            emit(vq)
    ST(A, 3)
    tag_issue(A)
    A(f"s_mul_i32 s74, s3, 12288"); A(f"s_add_u32 s74, s74, {L_AST}")
    svc = AService(A, 74); svc.setup()
    A(f"v_mul_u32_u24 v15, {QP}, v13")
    A("s_lshr_b32 s23, s3, 1"); A("s_lshl_b32 s23, s23, 6"); A("s_and_b32 s33, s3, 1"); A("s_lshl_b32 s33, s33, 5"); A("s_add_u32 s23, s23, s33")
    A("v_lshl_add_u32 v15, v14, 3, v15"); A("v_add_u32 v26, s23, v15")
    P = 176; n = 0
    for t in range(3):
        for RT in range(0 if t else 1, 9):
            c = acc(t, RT); p = P + 2*(n & 7); n += 1
            A(f"v_cvt_pk_bf16_f32 v{p}, v{c}, v{c+1}"); A(f"v_cvt_pk_bf16_f32 v{p+1}, v{c+2}, v{c+3}")
            A(f"ds_write_b64 v26, {v(p,2)} offset:{RT*16*QP + t*128}", tag='qkv')
    for q in range(2):
        c = acc(3, q)
        A(f"v_mul_f32 v{c}, {hexf(-1.4426950408889634)}, v{c}")
        A(f"v_exp_f32 v{c}, v{c}"); A(f"v_add_f32 v{c}, 1.0, v{c}"); A(f"v_rcp_f32 v{c}, v{c}")
    A("s_lshl_b32 s23, s3, 7"); A(f"s_add_u32 s23, s23, {L_GL}")
    A("v_lshlrev_b32 v15, 2, v13"); A("v_add_u32 v16, s23, v15")
    A("s_mov_b64 s[34:35], exec"); A("s_mov_b64 exec, 0xffff")
    for q in range(2): A(f"ds_write_b32 v16, v{acc(3,q)} offset:{q*64}", tag='qkv')
    A(f"s_mov_b32 s23, {WS_GATE}"); srd_from(A, 16, S_WS, 23, S*4)
    A(f"s_cmp_eq_u32 s{S_CB}, 0"); A("s_cselect_b32 s18, s18, 0")
    A(f"s_lshl_b32 s23, s{S_RB}, 9"); A("s_lshl_b32 s33, s3, 7"); A("s_add_u32 s23, s23, s33")
    for q in range(2): A(f"buffer_store_dword v{acc(3,q)}, v15, s[16:19], s23 offen offset:{q*64} sc1", tag='pubst')
    A("s_mov_b64 exec, s[34:35]")
    svc.start()
    A.wait_lg(); A("s_barrier")
    ST(A, 4)
    A("s_lshr_b32 s33, s3, 1"); A("s_and_b32 s34, s3, 1"); A("s_lshl_b32 s35, s33, 6")
    A(f"s_mul_i32 s32, s34, {64*QP}"); A("s_add_u32 s35, s35, s32")
    A("v_lshlrev_b32 v15, 1, v13")
    A(f"v_mul_u32_u24 v16, {QP}, v15"); A("v_lshl_add_u32 v16, v14, 4, v16"); A("v_add_u32 v16, s35, v16")
    A(f"v_add_u32 v20, {16*QP}, v16"); A(f"v_add_u32 v21, 128, v16")
    A("v_lshlrev_b32 v17, 2, v15"); A("s_lshl_b32 s32, s34, 8"); A(f"s_add_u32 s32, s32, {L_GL}"); A("v_add_u32 v22, s32, v17")
    A("v_lshrrev_b32 v17, 2, v13"); A("v_and_b32 v18, 3, v13"); A("v_lshlrev_b32 v18, 3, v18"); A("v_add_u32 v18, s35, v18"); A("v_add_u32 v18, 256, v18")
    for T in range(2):
        if T == 0: A("v_lshl_add_u32 v19, v14, 2, v17")
        else: A("v_and_b32 v19, 1, v14"); A("v_lshl_add_u32 v19, v19, 2, v17"); A("v_add_u32 v19, 16, v19")
        A("v_lshlrev_b32 v19, 1, v19"); A(f"v_mul_u32_u24 v19, {QP}, v19"); A(f"v_add_u32 v{23+T}, v19, v18")
    UB = 64
    rowoff = lambda b: (32*(b >> 1) + (b & 1))
    Q_ = lambda b: UB + b*24; K_ = lambda b, T: UB + b*24 + 4 + 4*T; V_ = lambda b, mt: UB + b*24 + 12 + 4*mt; G_ = lambda b: UB + b*24 + 20
    for b in range(4):
        A(f"ds_read_b128 {v(Q_(b),4)}, v20 offset:{rowoff(b)*QP}", tag=('u', b))
        for T in range(2): A(f"ds_read_b128 {v(K_(b,T),4)}, v21 offset:{(rowoff(b)+32*T)*QP}", tag=('u', b))
    for b in range(4):
        for mt in range(2):
            for T in range(2): A(f"ds_read_b64_tr_b16 {v(V_(b,mt)+2*T,2)}, v{23+T} offset:{rowoff(b)*QP + mt*32}", tag=('vv', b))
        A(f"ds_read_b32 v{G_(b)}, v22 offset:{rowoff(b)*4}", tag=('vv', b))
    SC = 160; sc = lambda b, T: SC + b*8 + 4*T
    for b in range(4):
        A.wait_lg(('u', b))
        for T in range(2): A(f"v_mfma_f32_16x16x32_bf16 {v(sc(b,T),4)}, {v(K_(b,T),4)}, {v(Q_(b),4)}, 0")
    wf_issue(A)
    svc.step()
    cs = (28 ** -0.5) * 1.4426950408889634
    A(f"v_mov_b32 v26, {hexf(cs)}"); A(f"v_mov_b32 v27, {hexf(cs)}"); A(f"v_mov_b32 v28, {hexf(-1e30)}")
    for b in range(4):
        for q in range(4): A(f"v_pk_mul_f32 {v(sc(b,0)+2*q,2)}, {v(sc(b,0)+2*q,2)}, {v(26,2)}")
    A("v_lshlrev_b32 v15, 2, v14"); A("v_sub_u32 v15, v13, v15"); A("v_add_u32 v15, 8, v15")
    A("s_and_b32 s34, s3, 1"); A(f"s_or_b32 s34, s34, s{S_RB}")
    A("v_min_u32 v16, 7, v13"); A("s_cmp_eq_u32 s34, 0"); A("s_cselect_b64 s[34:35], -1, 0")
    A("v_mov_b32 v17, 7"); A("v_cndmask_b32 v16, v17, v16, s[34:35]")
    MS = [24, 26, 28, 30, 64, 66, 32, 34]
    for (lim, bs) in ((17, (2, 3)), (16, (0, 1))):
        for q in range(8):
            A(f"v_subrev_u32 v18, {16*(q >> 2) + (q & 3)}, v15")
            A(f"v_cmp_le_u32 s[{MS[q]}:{MS[q]+1}], v18, v{lim}")
        for b in bs:
            for q in range(8):
                A(f"v_cndmask_b32 v{sc(b,0)+q}, v28, v{sc(b,0)+q}, s[{MS[q]}:{MS[q]+1}]")
    MX = 192; M2 = 196
    def xreduce(op):
        for swap in ("v_permlane16_swap_b32", "v_permlane32_swap_b32"):
            for b in range(4): A(f"v_mov_b32 v{M2+b}, v{MX+b}")
            for b in range(4): A(f"{swap} v{MX+b}, v{M2+b}")
            for b in range(4): A(f"{op} v{MX+b}, v{MX+b}, v{M2+b}")
    for b in range(4): s0 = sc(b,0); A(f"v_max3_f32 v{MX+b}, v{s0}, v{s0+1}, v{s0+2}")
    for b in range(4): s0 = sc(b,0); A(f"v_max3_f32 v{MX+b}, v{MX+b}, v{s0+3}, v{s0+4}")
    for b in range(4): s0 = sc(b,0); A(f"v_max3_f32 v{MX+b}, v{MX+b}, v{s0+5}, v{s0+6}")
    for b in range(4): s0 = sc(b,0); A(f"v_max_f32 v{MX+b}, v{MX+b}, v{s0+7}")
    xreduce("v_max_f32")
    for b in range(4):
        for q in range(8): A(f"v_sub_f32 v{sc(b,0)+q}, v{sc(b,0)+q}, v{MX+b}")
    for b in range(4):
        for q in range(8): A(f"v_exp_f32 v{sc(b,0)+q}, v{sc(b,0)+q}")
    svc.step()
    for b in range(4): s0 = sc(b,0); A(f"v_add_f32 v{MX+b}, v{s0}, v{s0+1}")
    for q in range(2, 8):
        for b in range(4): A(f"v_add_f32 v{MX+b}, v{MX+b}, v{sc(b,0)+q}")
    xreduce("v_add_f32")
    for b in range(4): A(f"v_rcp_f32 v{MX+b}, v{MX+b}")
    PB = 200
    for b in range(4):
        for q in range(8): A(f"v_mul_f32 v{sc(b,0)+q}, v{sc(b,0)+q}, v{MX+b}")
    for b in range(4):
        for q in range(4): A(f"v_cvt_pk_bf16_f32 v{PB+4*b+q}, v{sc(b,0)+2*q}, v{sc(b,0)+2*q+1}")
    OB = 160
    for b in range(4):
        for mt in range(2): A(f"v_mfma_f32_16x16x32_bf16 {v(OB+8*b+4*mt,4)}, {v(V_(b,mt),4)}, {v(PB+4*b,4)}, 0")
    ST(A, 5)
    svc.step()
    A("v_and_b32 v15, 1, v13"); A("v_lshlrev_b32 v15, 1, v15"); A("v_bfe_u32 v16, v13, 1, 1"); A("v_or_b32 v15, v15, v16")
    A("v_and_b32 v16, 12, v13"); A("v_or_b32 v15, v15, v16"); A("v_lshl_add_u32 v15, v14, 4, v15"); A("v_lshlrev_b32 v29, 4, v15")
    A(f"s_lshl_b32 s23, s{S_RB}, 1"); A("s_and_b32 s33, s3, 1"); A("s_add_u32 s23, s23, s33"); A("s_mul_i32 s23, s23, 44")
    A(f"s_lshl_b32 s33, s{S_CB}, 1"); A("s_add_u32 s23, s23, s33"); A("s_lshr_b32 s33, s3, 1"); A("s_add_u32 s23, s23, s33")
    A("s_lshl_b32 s23, s23, 12"); A(f"s_add_u32 s23, s23, {WS_AF}")
    srd_from(A, 16, S_WS, 23, 4096)
    A("v_and_b32 v15, 2, v13"); A("v_cmp_eq_u32 vcc, 0, v15"); A("v_cmp_ne_u32 s[24:25], 0, v15")
    for b in range(4):
        o = OB + 8*b
        for q in range(8): A(f"v_mul_f32 v{o+q}, v{o+q}, v{G_(b)}")
        for q in range(4): A(f"v_cvt_pk_bf16_f32 v{PB+4*b+q}, v{o+2*q}, v{o+2*q+1}")
    for bb in range(2):
        X0 = PB + 8*bb; X1 = X0 + 4; Y = 216 + 8*bb
        for q in range(4):
            A(f"v_mov_b32_dpp v{Y+q}, v{X1+q} quad_perm:[2,3,0,1] row_mask:0xf bank_mask:0xf")
            A(f"v_mov_b32_dpp v{Y+4+q}, v{X0+q} quad_perm:[2,3,0,1] row_mask:0xf bank_mask:0xf")
        for q in range(4):
            A(f"v_cndmask_b32 v{Y+q}, v{Y+q}, v{X0+q}, vcc")
            A(f"v_cndmask_b32 v{Y+4+q}, v{Y+4+q}, v{X1+q}, s[24:25]")
        for aa in range(2):
            A(f"buffer_store_dwordx4 {v(Y+4*aa,4)}, v29, s[16:19], 0 offen offset:{(2*bb+aa)*1024} sc1", tag='pubst')
    ST(A, 6)
    svc.step()
    wf_store(A)
    A.wait_vm('pubst'); tag_take(A, lambda x: L('q' + x)); A("s_barrier")
    A(f"s_lshl_b32 s27, s{S_RB}, 3"); A(f"s_add_u32 s27, s27, s{S_CB}"); A("s_add_u32 s27, s27, 128"); A("s_lshl_b32 s27, s27, 3"); A(f"s_add_u32 s27, s27, {WS_F1}")
    signal(A, L, 'sigqd', 27)
    ST(A, 7)
    svc.finish()
    A.wait_lg()
    ST(A, 8)

def phase2(A, L):
    ACC, BR = 32, 144
    acc = lambda j, tau: ACC + (j*4+tau)*4
    bfrag = lambda kk, j: BR + (kk % 4)*28 + j*4
    afrag = lambda kk, tau: ((kk >> 1)*8 + (kk & 1)*4 + tau)*4
    A("v_lshlrev_b32 v3, 4, v12")
    A(f"s_mul_i32 s23, s{S_CB}, {64*7168}"); srd_from(A, 12, S_WS, 23, 64*7168)
    A(f"s_mul_i32 s26, s3, {16*7168}")
    A("v_add_u32 v4, 4096, v3")
    A(f"s_lshl_b32 s27, s{S_CB}, 7"); A(f"s_add_u32 s27, s27, {WS_F1}"); A("v_lshl_add_u32 v17, v12, 3, s27")
    A.wait_lg()
    poll(A, L, 'pa', 17, 16)
    ST(A, 10)
    def issueB(kk, js):
        for j in js:
            if j == js[0]: A(f"s_add_u32 s27, s26, {kk*7168}")
            A(f"buffer_load_dwordx4 {v(bfrag(kk,j),4)}, v{3 if j < 4 else 4}, s[12:15], s27 offen offset:{(j % 4)*1024} sc1", tag=('B', kk))
    for kk in range(3): issueB(kk, list(range(7)))
    c3ok = None
    A(f"s_mul_i32 s23, s{S_CB}, {44*4096}"); A(f"s_add_u32 s23, s23, {WS_WF}"); srd_from(A, 8, S_WS, 23, 44*4096)
    A(f"s_cmp_eq_u32 s{S_CB}, 7"); A("s_cselect_b32 s10, 0, s10")
    A(f"s_mul_i32 s23, s{S_RB2}, {44*4096}"); A(f"s_add_u32 s23, s23, {WS_AF}"); srd_from(A, 16, S_WS, 23, 44*4096)
    for tau in range(4):
        A(f"s_xor_b32 s24, s3, {tau}"); A("s_lshl_b32 s24, s24, 10"); A(f"v_add_u32 v{5+tau}, s24, v3")
    A("s_lshl_b32 s28, s3, 14")
    A(f"s_mul_i32 s29, s3, {7*4096}"); A(f"s_add_u32 s29, s29, {16*4096}")
    wq = []
    for s_ in range(4):
        for uu in range(4): wq.append((f"buffer_load_dwordx4 {a((s_*4+uu)*4,4)}, v3, s[8:11], SOFF offen offset:{uu*1024} sc1", 28, s_, ('Wo', s_)))
    for s_ in range(7):
        for uu in range(4): wq.append((f"buffer_load_dwordx4 {a(64+(s_*4+uu)*4,4)}, v3, s[8:11], SOFF offen offset:{uu*1024} sc1", 29, s_, ('Wh', s_)))
    def issueW(n):
        for _ in range(n):
            if not wq: return
            t, base, s_, tg = wq.pop(0)
            if 'offset:0 ' in t: A(f"s_add_u32 s30, s{base}, {s_*4096}")
            A(t.replace('SOFF', 's30'), tag=tg)
    def epi_loads():
        A(f"s_lshl_b32 s30, s{S_RB2}, 2"); A("s_add_u32 s30, s30, s3")
        A("s_mul_i32 s31, s30, 56"); A(f"s_mul_i32 s32, s{S_CB}, 7"); A("s_add_u32 s31, s31, s32"); A("s_lshl_b32 s31, s31, 9"); A(f"s_add_u32 s31, s31, {WS_Z1F}")
        srd_from(A, 64, S_WS, 31, 7*512)
        A("v_lshlrev_b32 v2, 3, v12")
        for j in range(7): A(f"buffer_load_dwordx2 {v(16+2*j,2)}, v2, s[64:67], 0 offen offset:{j*512} sc1", tag='epi')
        A(f"s_lshl_b32 s31, s{S_RB2}, 6"); A("s_lshr_b32 s32, s3, 1"); A("s_lshl_b32 s32, s32, 5"); A("s_add_u32 s31, s31, s32")
        A("s_and_b32 s32, s3, 1"); A("s_lshl_b32 s32, s32, 2"); A("s_add_u32 s31, s31, s32")
        A("v_lshrrev_b32 v2, 2, v13"); A("v_lshlrev_b32 v2, 3, v2"); A("v_and_b32 v1, 3, v13"); A("v_add_u32 v2, v2, v1"); A("v_add_u32 v2, s31, v2")
        A("v_lshlrev_b32 v1, 1, v2"); srd_from(A, 64, S_BSP, None, S*2)
        A("buffer_load_ushort v30, v1, s[64:67], 0 offen", tag='epi')
        A(f"s_mov_b32 s31, {WS_GATE}"); srd_from(A, 64, S_WS, 31, S*4)
        A("v_lshlrev_b32 v1, 2, v2"); A("buffer_load_dword v31, v1, s[64:67], 0 offen sc1", tag='epi')
    for kk in range(16):
        A.wait_vm(('B', kk))
        pend = list(range(7)) if kk + 3 < 16 else []
        m = 0
        if kk == 9:
            A(f"s_mov_b32 s27, {WS_F1}"); A("v_lshl_add_u32 v2, v12, 5, s27")
            for q2 in range(2): A(f"global_load_dwordx4 {v(16+4*q2,4)}, v2, s[{S_WS}:{S_WS+1}] offset:{16*q2} sc1", tag='fl')
        if kk == 12:
            A.wait_vm('fl')
            def check():
                out = []
                for q in range(8): out.append(f"v_xor_b32 v{16+q}, s{S_TAG + (q & 1)}, v{16+q}")
                out += ["v_or3_b32 v16, v16, v17, v18", "v_or3_b32 v19, v19, v20, v21", "v_or3_b32 v16, v16, v22, v23", "v_or_b32 v16, v16, v19", "v_cmp_eq_u32 vcc, 0, v16"]
                return out
            for t in check(): A(t)
            A("s_nop 1"); A("s_cmp_eq_u64 vcc, exec"); A(f"s_cbranch_scc1 {L('allok')}")
            A.raw("  s_mov_b32 s33, 0")
            A.raw(f"{L('allloop')}:")
            for q2 in range(2): A.raw(f"  global_load_dwordx4 {v(16+4*q2,4)}, v2, s[{S_WS}:{S_WS+1}] offset:{16*q2} sc1")
            A.raw("  s_add_u32 s33, s33, 1"); A.raw("  s_waitcnt vmcnt(0)")
            for t in check(): A.raw("  " + t)
            A.raw("  s_nop 1"); A.raw("  s_cmp_eq_u64 vcc, exec"); A.raw(f"  s_cbranch_scc1 {L('allok')}")
            A.raw(f"  s_sleep {SLEEP}"); A.raw("  s_cmp_lt_u32 s33, 0x20000"); A.raw(f"  s_cbranch_scc1 {L('allloop')}")
            A.label(L('allok'))
        if kk == 13: epi_loads()
        for j in range(7):
            for tau in range(4):
                c = v(acc(j,tau),4)
                A(f"v_mfma_f32_16x16x32_bf16 {c}, {v(bfrag(kk,j),4)}, {a(afrag(kk,tau),4)}, {c if kk else 0}")
                m += 1
                if pend and m % 4 == 1:
                    jj = pend.pop(0)
                    A(f"s_add_u32 s27, s26, {(kk+3)*7168}") if jj == 0 else None
                    A(f"buffer_load_dwordx4 {v(bfrag(kk+3,jj),4)}, v{3 if jj < 4 else 4}, s[12:15], s27 offen offset:{(jj % 4)*1024} sc1", tag=('B', kk+3))
                if kk >= 13 and m % 2 == 0: issueW(1)
        A.check_vm()
    ST(A, 11)
    A("s_mul_i32 s23, s3, 21504"); A("v_add_u32 v9, s23, v3")
    for tau in (1,2,3):
        A(f"s_xor_b32 s24, s3, {tau}"); A("s_mul_i32 s24, s24, 21504"); A(f"s_add_u32 s24, s24, {(tau-1)*7168}"); A(f"v_add_u32 v{(10,11,15)[tau-1]}, s24, v3")
    for tau in (1,2,3):
        for j in range(7): A(f"ds_write_b128 v9, {v(acc(j,tau),4)} offset:{(tau-1)*7168+j*1024}", tag='w')
    issueW(64)
    A.wait_lg(); A("s_barrier")
    T0 = 144
    for tau in (1,2,3):
        for j in range(7): A(f"ds_read_b128 {v(T0+((tau-1)*7+j)*4,4)}, v{(10,11,15)[tau-1]} offset:{j*1024}", tag=('r',tau))
    A.wait_vm('epi')
    for s_ in range(4):
        A(f"s_add_u32 s30, s28, {s_*4096}")
        for tau in range(4): A(f"buffer_load_dwordx4 {a(176+(s_*4+tau)*4,4)}, v{5+tau}, s[16:19], s30 offen sc1", tag=('Ao', s_))
    A.check_vm()
    for tau in (1,2,3):
        A.wait_lg(('r',tau))
        for j in range(7):
            c = acc(j,0); t = T0+((tau-1)*7+j)*4
            A(f"v_pk_add_f32 {v(c,2)}, {v(c,2)}, {v(t,2)}"); A(f"v_pk_add_f32 {v(c+2,2)}, {v(c+2,2)}, {v(t+2,2)}")
    A.wait_vm('epi')
    A("v_lshlrev_b32 v30, 16, v30"); A("v_sub_f32 v31, 1.0, v31")
    H = 144
    for j in range(7):
        c = acc(j,0)
        for r in range(4):
            z = 16 + 2*j + (r >> 1); t = 1 + (r & 1)
            if r & 1: A(f"v_and_b32 v{t}, 0xffff0000, v{z}")
            else: A(f"v_lshlrev_b32 v{t}, 16, v{z}")
            A(f"v_add_f32 v{c+r}, v{c+r}, v30")
            A(f"v_mul_f32 v{t}, v{t}, v31")
            A(f"v_mul_f32 v{c+r}, v{c+r}, v{t}")
        A(f"v_cvt_pk_bf16_f32 v{H+2*j}, v{c}, v{c+1}"); A(f"v_cvt_pk_bf16_f32 v{H+2*j+1}, v{c+2}, v{c+3}")
    A(f"s_mul_i32 s30, s{S_CB}, 7"); A("s_lshr_b32 s31, s30, 1"); A("s_add_u32 s31, s31, 16"); A("s_lshl_b32 s31, s31, 12")
    A("s_lshl_b32 s32, s3, 10"); A("s_add_u32 s31, s31, s32")
    A("s_and_b32 s30, s30, 1"); A("s_cmp_eq_u32 s30, 0"); A(f"s_cbranch_scc0 {L('odd')}")
    vm0 = list(A.vm)
    for p in range(3):
        A(f"buffer_store_dwordx4 {v(H+4*p,4)}, v3, s[16:19], s31 offen sc1", tag='hst'); A("s_add_u32 s31, s31, 4096")
    A(f"buffer_store_dwordx2 {v(H+12,2)}, v3, s[16:19], s31 offen sc1", tag='hst')
    A(f"s_branch {L('hfin')}")
    A.label(L('odd')); A.vm = list(vm0)
    A(f"buffer_store_dwordx2 {v(H,2)}, v3, s[16:19], s31 offen offset:8 sc1", tag='hst')
    for p in range(3):
        A("s_add_u32 s31, s31, 4096"); A(f"buffer_store_dwordx4 {v(H+2+4*p,4)}, v3, s[16:19], s31 offen sc1", tag='hst')
    A.label(L('hfin'))
    ST(A, 12)

def phase3(A, L):
    ACC = 32; acc = lambda uu, tau: ACC + (uu*4+tau)*4
    HA = 96
    for s_ in range(4):
        A.wait_vm([('Wo', s_), ('Ao', s_)])
        for tau in range(4):
            for uu in range(4):
                c = v(acc(uu,tau),4)
                A(f"v_mfma_f32_16x16x32_bf16 {c}, {a((s_*4+uu)*4,4)}, {a(176+(s_*4+tau)*4,4)}, {c if s_ else 0}")
    A.wait_vm(); A("s_barrier")
    A(f"s_lshl_b32 s27, s{S_RB2}, 7"); A(f"s_lshl_b32 s26, s{S_CB}, 3"); A("s_add_u32 s27, s27, s26"); A(f"s_add_u32 s27, s27, {WS_F2}")
    signal(A, L, 'sighd', 27)
    A(f"s_cmp_eq_u32 s{S_CB}, 7"); A(f"s_cbranch_scc1 {L('fin')}")
    ST(A, 13)
    A("s_mul_i32 s26, s3, 12288"); A("v_add_u32 v20, s26, v3")
    for tau in (1,2,3):
        A(f"s_xor_b32 s26, s3, {tau}"); A("s_mul_i32 s26, s26, 12288"); A(f"s_add_u32 s26, s26, {(tau-1)*4096}"); A(f"v_add_u32 v{20+tau}, s26, v3")
    A("v_lshrrev_b32 v15, 2, v13"); A("v_lshlrev_b32 v15, 3, v15"); A("v_and_b32 v16, 3, v13"); A("v_add_u32 v15, v15, v16")
    A(f"s_lshl_b32 s26, s{S_RB2}, 6"); A("s_lshr_b32 s27, s3, 1"); A("s_lshl_b32 s27, s27, 5"); A("s_add_u32 s26, s26, s27")
    A("s_and_b32 s27, s3, 1"); A("s_lshl_b32 s27, s27, 2"); A("s_add_u32 s26, s26, s27")
    A("v_add_u32 v15, s26, v15"); A("v_mul_u32_u24 v15, 896, v15")
    A("v_lshlrev_b32 v16, 4, v14"); A(f"s_lshl_b32 s27, s{S_CB}, 7"); A("v_add_u32 v16, s27, v16"); A("v_add_u32 v1, v15, v16")
    srd_from(A, 12, S_OUT, None, S*D*2)
    A(f"s_lshl_b32 s27, s{S_RB2}, 7"); A(f"s_add_u32 s27, s27, {WS_F2}"); A("v_lshl_add_u32 v17, v12, 3, s27")
    poll(A, L, 'pb', 17, 8)
    ST(A, 14)
    for s_ in range(7):
        A(f"s_add_u32 s30, s29, {s_*4096}")
        for tau in range(4): A(f"buffer_load_dwordx4 {v(HA+(s_*4+tau)*4,4)}, v{5+tau}, s[16:19], s30 offen sc1", tag=('Ah', s_))
    for s_ in range(7):
        A.wait_vm(('Ah', s_))
        for tau in range(4):
            for uu in range(4):
                c = v(acc(uu,tau),4)
                A(f"v_mfma_f32_16x16x32_bf16 {c}, {a(64+(s_*4+uu)*4,4)}, {v(HA+(s_*4+tau)*4,4)}, {c}")
    ST(A, 15)
    for tau in (1,2,3):
        for uu in range(4): A(f"ds_write_b128 v20, {v(acc(uu,tau),4)} offset:{(tau-1)*4096+uu*1024}", tag='w')
    A.wait_lg(); A("s_barrier")
    T0 = 208
    for tau in (1,2,3):
        for uu in range(4): A(f"ds_read_b128 {v(T0+((tau-1)*4+uu)*4,4)}, v{20+tau} offset:{uu*1024}", tag=('r',tau))
    for tau in (1,2,3):
        A.wait_lg(('r',tau))
        for uu in range(4):
            c = acc(uu,0); t = T0+((tau-1)*4+uu)*4
            A(f"v_pk_add_f32 {v(c,2)}, {v(c,2)}, {v(t,2)}"); A(f"v_pk_add_f32 {v(c+2,2)}, {v(c+2,2)}, {v(t+2,2)}")
    for vv in range(2):
        o = 96 + 4*vv; c0 = acc(2*vv,0); c1 = acc(2*vv+1,0)
        A(f"v_cvt_pk_bf16_f32 v{o}, v{c0}, v{c0+1}"); A(f"v_cvt_pk_bf16_f32 v{o+1}, v{c0+2}, v{c0+3}")
        A(f"v_cvt_pk_bf16_f32 v{o+2}, v{c1}, v{c1+1}"); A(f"v_cvt_pk_bf16_f32 v{o+3}, v{c1+2}, v{c1+3}")
        A(f"buffer_store_dwordx4 {v(o,4)}, v1, s[12:15], 0 offen offset:{vv*64}")

def gen_mega(name="mega", code_bytes=0):
    Stamps.map = [78+2*k for k in range(11)] + [4, 6, 42, 0, 74+0*0]
    A = Asm(); L = lambda x: f"{name}_{x}"
    A("s_cmp_ge_u32 s2, 256"); A(f"s_cbranch_scc1 {L('end')}")
    ST(A, 0)
    A("s_load_dwordx16 s[36:51], s[0:1], 0")
    A("s_load_dwordx8 s[52:59], s[0:1], 64")
    A("v_lshrrev_b32 v6, 6, v0"); A("v_and_b32 v12, 63, v0"); A("v_readfirstlane_b32 s3, v6")
    A("s_lshr_b32 s24, s2, 3"); A("s_lshl_b32 s24, s24, 2"); A("s_add_u32 s24, s24, s3")
    if code_bytes:
        A("s_getpc_b64 s[22:23]"); A.raw(f"{name}_pc:")
        A("v_and_b32 v10, 3, v0"); A("s_lshl_b32 s25, s24, 2"); A("v_add_u32 v10, s25, v10"); A("v_lshlrev_b32 v10, 7, v10")
        assert code_bytes <= 512*128
        A(f"v_min_u32 v57, {L('end')}-{name}_pc, v10"); A("global_load_dword v56, v57, s[22:23]", tag='pf')
    A("v_and_b32 v13, 15, v12"); A("v_lshrrev_b32 v14, 4, v12")
    A("s_and_b32 s20, s2, 7"); A("s_lshr_b32 s21, s2, 3"); A("s_lshr_b32 s33, s21, 4"); A("s_and_b32 s21, s21, 15")
    A("s_lshr_b32 s22, s20, 1"); A("s_lshl_b32 s22, s22, 2"); A("s_lshr_b32 s23, s21, 2"); A("s_add_u32 s22, s22, s23")
    A("s_and_b32 s20, s20, 1"); A("s_lshl_b32 s20, s20, 2"); A("s_and_b32 s21, s21, 3"); A("s_add_u32 s21, s21, s20")
    A("s_mov_b32 s20, s22"); A("s_lshl_b32 s22, s20, 1"); A("s_add_u32 s22, s22, s33")
    A("v_lshrrev_b32 v15, 3, v12"); A("v_and_b32 v16, 7, v12"); A("v_min_u32 v16, 6, v16"); A("v_lshlrev_b32 v16, 7, v16")
    A("s_and_b32 s25, s2, 1"); A("s_mul_i32 s26, s25, 896")
    A("s_and_b32 s27, s20, 12"); A("s_lshl_b32 s27, s27, 7")
    A("s_lshl_b32 s28, s24, 3"); A("s_add_u32 s27, s27, s28"); A("s_mul_i32 s27, s27, 896")
    A("s_sub_u32 s28, s24, 64"); A("s_min_u32 s28, s28, 55"); A(f"s_mul_i32 s28, s28, {8*3584}"); A("s_add_u32 s28, s28, s26"); A("s_add_u32 s28, s28, 1792")
    A("s_cmp_lt_u32 s24, 64"); A("s_cselect_b32 s27, s27, s28"); A("s_cselect_b32 s28, 1, 4"); A("s_mul_i32 s28, s28, 896")
    A("v_mul_lo_u32 v15, v15, s28"); A("v_add3_u32 v57, v15, v16, s27")
    A("v_lshrrev_b32 v15, 4, v12"); A("s_min_u32 s29, s24, 111"); A("s_lshl_b32 s29, s29, 2"); A("v_add_u32 v15, s29, v15"); A("v_mul_u32_u24 v15, 2688, v15")
    A("v_bfe_u32 v16, v12, 2, 2"); A("v_min_u32 v16, 2, v16"); A("v_mul_u32_u24 v16, 896, v16"); A("v_and_b32 v17, 3, v12"); A("v_lshlrev_b32 v17, 7, v17")
    A("s_lshr_b32 s26, s26, 1"); A("v_add3_u32 v15, v15, v16, v17"); A("v_add_u32 v58, s26, v15")
    A.wait_lg()
    tag_publish(A, L)
    A("s_cmp_lt_u32 s24, 64"); A(f"s_cselect_b32 s28, s{S_X}, s{S_WIN}"); A(f"s_cselect_b32 s29, s{S_X+1}, s{S_WIN+1}")
    A("global_load_dword v56, v57, s[28:29]", tag='pf')
    A(f"global_load_dword v56, v58, s[{S_WQKV}:{S_WQKV+1}]", tag='pf')
    A("s_cmp_eq_u32 s33, 0"); A(f"s_cbranch_scc0 {L('qrole')}")
    vm0 = list(A.vm); lg0 = list(A.lg)
    role_z(A, L)
    A(f"s_branch {L('p2')}")
    A.label(L('qrole')); A.vm = list(vm0); A.lg = list(lg0)
    role_q(A, L)
    A.label(L('p2')); A.vm = []; A.lg = []
    ST(A, 9)
    phase2(A, L)
    phase3(A, L)
    if Stamps.enabled:
        A.raw("  s_waitcnt vmcnt(0)")
    A.label(L('fin'))
    Stamps.flush(A, 0, 16, S_WS)
    A.label(L('end'))
    A("s_endpgm")
    return A

if __name__ == "__main__":
    import sys, asmlib
    from build import assemble
    if len(sys.argv) > 2 and sys.argv[2].startswith('stamp'): asmlib.Stamps.enabled = True
    if len(sys.argv) > 2 and sys.argv[2] == 'stampcyc': asmlib.Stamps.op = 's_memtime'
    t = gen_mega().text(); sz = len([l for l in t.split('\n') if l.startswith('  ')])*8
    A = gen_mega(code_bytes=sz)
    open(sys.argv[1], 'w').write(assemble([dict(name="mega_kernel", text=A.text(), grid=256, block=256, lds=163840, vgpr=512, accum=256)]))
    print("nops", A.nops_inserted, "est bytes", sz)
```

```python
import sys, importlib
from layout import *
HEADER = open('gated_mix__sliding_local_dilated__mixer_gmlp__prompt.s.ref').read().split('; Override launch')[0]
KD = """.amdhsa_kernel {name}
  .amdhsa_next_free_vgpr {vgpr}
  .amdhsa_next_free_sgpr 102
  .amdhsa_accum_offset {accum}
  .amdhsa_group_segment_fixed_size 0
  .amdhsa_kernarg_size 96
  .amdhsa_user_sgpr_count 2
  .amdhsa_user_sgpr_kernarg_segment_ptr 1
  .amdhsa_system_sgpr_workgroup_id_x 1
.end_amdhsa_kernel
"""
def assemble(kernels):
    out = [HEADER.rstrip()]
    for k in kernels:
        out.append(f"; @launch kernel={k['name']} grid=({k['grid']},1,1) block=({k['block']},1,1) lds={k['lds']}")
    out.append('.amdgcn_target "amdgcn-amd-amdhsa--gfx950"')
    out.append('.text')
    for k in kernels:
        out += [f".globl {k['name']}", ".p2align 8", f".type {k['name']},@function", f"{k['name']}:", k['text']]
    out.append('.section .rodata,"a"')
    for k in kernels:
        out.append('.p2align 6')
        out.append(KD.format(name=k['name'], vgpr=k['vgpr'], accum=k['accum']))
    return "\n".join(out) + "\n"

def assemble_single(k):
    out = [HEADER.rstrip()]
    out.append(f"; @launch grid=({k['grid']},1,1) block=({k['block']},1,1) lds={k['lds']}")
    out.append('.amdgcn_target "amdgcn-amd-amdhsa--gfx950"')
    out.append('.text')
    out += [f".globl {k['name']}", ".p2align 8", f".type {k['name']},@function", f"{k['name']}:", k['text']]
    out.append('.section .rodata,"a"')
    out.append('.p2align 6')
    out.append(KD.format(name=k['name'], vgpr=k['vgpr'], accum=k['accum']))
    return "\n".join(out) + "\n"
```

```python
from asmlib import *
from layout import *
from k1z import hexf, gelu_pairs, GELU_C1, GELU_C2
import os
PROFILE = os.environ.get('PROFILE', 'all')
SLEEP = int(os.environ.get('SLEEP', '2'))
def ST(A, k):
    if PROFILE == 'all':
        if isinstance(k, int): Stamps.mark(A, k)
    elif PROFILE == 'p1':
        if isinstance(k, str): return
        if isinstance(k, int) and k in (0, 1, 2): Stamps.mark(A, k)
        elif isinstance(k, int) and k == 3: Stamps.mark(A, 10)
        elif isinstance(k, int) and k == 4: Stamps.mark(A, 11)
        elif isinstance(k, tuple) and k[0] == 'g': Stamps.mark(A, 3 + k[1])
        elif isinstance(k, int) and k in (5, 6, 7, 8): Stamps.mark(A, 7 + k)
    elif PROFILE == 'p4':
        m = {0: 0, 3: 1, 5: 2, 7: 3, 'sig': 4, ('au', 8): 5, ('au', 9): 6, ('au', 10): 7, ('au', 11): 8, ('au', 12): 9, ('au', 13): 10, ('au', 14): 11, ('au', 15): 12, 8: 13, 'pubw': 14, 10: 15}
        if k in m: Stamps.mark(A, m[k])
    elif PROFILE == 'p3':
        m = {0: 0, 3: 1, 4: 2, 5: 3, 6: 4, 7: 5, 'lnq': 6, 'norm': 7, 'pubw': 8, 'sig': 9, 8: 10, 10: 11, 11: 12, 'w2': 13, 'st0': 14, 'st3': 15}
        if k in m: Stamps.mark(A, m[k])
    elif PROFILE == 'p2':
        m = {0: 0, 3: 1, 4: 2, 8: 13, 10: 14, 'z1in': 3, 'z1out': 11, 'z1epi': 12, 11: 15}
        if isinstance(k, tuple) and k[0] == 'z': Stamps.mark(A, 4 + k[1])
        elif k in m: Stamps.mark(A, m[k])

S_X, S_WQKV, S_WO, S_WIN, S_WSP, S_BSP, S_WOUT = 36, 38, 40, 44, 46, 48, 50
S_GW, S_OUT, S_DBG, S_WS = 52, 54, 56, 58
S_RB, S_CB, S_RB2 = 20, 21, 22
SRD_A = 60
OOB = 0x7fff0000
C_LN, C_ZD, C_QD, C_HD = 0, 16, 24, 32

def srd_from(A, d, ptr, off_sreg, nbytes):
    if off_sreg is None:
        A(f"s_mov_b32 s{d}, s{ptr}"); A(f"s_and_b32 s{d+1}, s{ptr+1}, 0xffff")
    else:
        A(f"s_add_u32 s{d}, s{ptr}, s{off_sreg}"); A(f"s_addc_u32 s{d+1}, s{ptr+1}, 0"); A(f"s_and_b32 s{d+1}, s{d+1}, 0xffff")
    A(f"s_mov_b32 s{d+2}, {nbytes}"); A(f"s_mov_b32 s{d+3}, 0x20000")

S_TAG = 76
def tag_publish(A, L):
    A("s_cmp_lg_u32 s2, 0"); A(f"s_cbranch_scc1 {L('notag')}")
    A.raw("  s_cmp_lg_u32 s3, 0"); A.raw(f"  s_cbranch_scc1 {L('notag')}")
    A.raw("  s_memrealtime s[30:31]"); A.raw("  s_waitcnt lgkmcnt(0)"); A.raw("  s_or_b32 s30, s30, 1")
    A.raw("  v_mov_b32 v16, s30"); A.raw("  v_mov_b32 v17, s31"); A.raw("  v_mov_b32 v18, 0")
    A.raw("  s_mov_b64 s[34:35], exec"); A.raw("  s_mov_b64 exec, 1")
    A.raw(f"  global_store_dwordx2 v18, v[16:17], s[{S_DBG}:{S_DBG+1}] sc1")
    A.raw("  s_mov_b64 exec, s[34:35]")
    A.label(L('notag'))
def tag_issue(A):
    A("v_mov_b32 v9, 0"); A(f"global_load_dwordx2 v[10:11], v9, s[{S_DBG}:{S_DBG+1}] sc1", tag='tagld')
def tag_take(A, L):
    A.wait_vm('tagld')
    A(f"v_readfirstlane_b32 s{S_TAG}, v10"); A(f"v_readfirstlane_b32 s{S_TAG+1}, v11")
    A(f"s_cmp_lg_u32 s{S_TAG}, 0"); A(f"s_cbranch_scc1 {L('tagd')}")
    A.raw("  s_mov_b32 s33, 0")
    A.raw(f"{L('tagl')}:")
    A.raw(f"  global_load_dwordx2 v[10:11], v9, s[{S_DBG}:{S_DBG+1}] sc1")
    A.raw("  s_add_u32 s33, s33, 1")
    A.raw("  s_waitcnt vmcnt(0)")
    A.raw(f"  v_readfirstlane_b32 s{S_TAG}, v10"); A.raw(f"  v_readfirstlane_b32 s{S_TAG+1}, v11")
    A.raw("  s_nop 1")
    A.raw(f"  s_cmp_lg_u32 s{S_TAG}, 0"); A.raw(f"  s_cbranch_scc1 {L('tagd')}")
    A.raw("  s_cmp_lt_u32 s33, 0x20000"); A.raw(f"  s_cbranch_scc1 {L('tagl')}")
    A.label(L('tagd'))

def signal(A, L, tag, off_sreg):
    A("s_cmp_lg_u32 s3, 0"); A(f"s_cbranch_scc1 {L(tag)}")
    A.raw(f"  v_mov_b32 v18, s{off_sreg}"); A.raw(f"  v_mov_b32 v16, s{S_TAG}"); A.raw(f"  v_mov_b32 v17, s{S_TAG+1}")
    A.raw("  s_mov_b64 s[34:35], exec"); A.raw("  s_mov_b64 exec, 1")
    A.raw(f"  global_store_dwordx2 v18, v[16:17], s[{S_WS}:{S_WS+1}] sc1")
    A.raw("  s_mov_b64 exec, s[34:35]")
    A.label(L(tag))

def poll(A, L, tag, vaddr, nlanes):
    A("s_cmp_lg_u32 s3, 0"); A(f"s_cbranch_scc1 {L(tag+'_done')}")
    A.raw("  s_mov_b32 s33, 0"); A.raw("  s_mov_b64 s[34:35], exec"); A.raw(f"  s_mov_b64 exec, {hex((1 << nlanes) - 1) if nlanes < 64 else -1}")
    A.label(L(tag+'_loop'))
    A.raw(f"  global_load_dwordx2 v[18:19], v{vaddr}, s[{S_WS}:{S_WS+1}] sc1")
    A.raw("  s_add_u32 s33, s33, 1")
    A.raw("  s_waitcnt vmcnt(0)")
    A.raw(f"  v_xor_b32 v18, s{S_TAG}, v18"); A.raw(f"  v_xor_b32 v19, s{S_TAG+1}, v19"); A.raw("  v_or_b32 v18, v18, v19")
    A.raw("  v_cmp_eq_u32 vcc, 0, v18")
    A.raw("  s_nop 1")
    A.raw("  s_cmp_eq_u64 vcc, exec")
    A.raw(f"  s_cbranch_scc1 {L(tag+'_out')}")
    A.raw(f"  s_sleep {SLEEP}")
    A.raw("  s_cmp_lt_u32 s33, 0x20000")
    A.raw(f"  s_cbranch_scc1 {L(tag+'_loop')}")
    A.label(L(tag+'_out'))
    A.raw("  s_mov_b64 exec, s[34:35]")
    A.label(L(tag+'_done'))
    A("s_barrier")

def poll_wave(A, L, tag, vaddr):
    A.raw("  s_mov_b32 s33, 0")
    A.label(L(tag+'_loop'))
    A.raw(f"  global_load_dwordx2 v[18:19], v{vaddr}, s[{S_WS}:{S_WS+1}] sc1")
    A.raw("  s_add_u32 s33, s33, 1")
    A.raw("  s_waitcnt vmcnt(0)")
    A.raw(f"  v_xor_b32 v18, s{S_TAG}, v18"); A.raw(f"  v_xor_b32 v19, s{S_TAG+1}, v19"); A.raw("  v_or_b32 v18, v18, v19")
    A.raw("  v_cmp_eq_u32 vcc, 0, v18")
    A.raw("  s_nop 1")
    A.raw("  s_cmp_eq_u64 vcc, exec")
    A.raw(f"  s_cbranch_scc1 {L(tag+'_out')}")
    A.raw(f"  s_sleep {SLEEP}")
    A.raw("  s_cmp_lt_u32 s33, 0x20000")
    A.raw(f"  s_cbranch_scc1 {L(tag+'_loop')}")
    A.label(L(tag+'_out')); A.vm = []

class AService:
    VD, VR = 232, 236
    def __init__(self, A, lds_sreg):
        self.A = A; self.n_dma = 0; self.n_rd = 0; self.sl = lds_sreg
    def setup(self):
        A = self.A
        A(f"s_lshl_b32 s23, s{S_RB2}, 18"); srd_from(A, SRD_A, S_WSP, 23, 64*4096)
        A("v_lshrrev_b32 v16, 3, v12"); A("v_and_b32 v17, 7, v12"); A("v_and_b32 v18, 3, v16"); A("v_xor_b32 v17, v17, v18")
        A("v_lshlrev_b32 v17, 4, v17"); A("v_lshl_add_u32 v17, v16, 12, v17")
        for uu in range(4):
            if uu & 1: A(f"v_xor_b32 v{self.VD+uu}, 64, v17")
            else: A(f"v_mov_b32 v{self.VD+uu}, v17")
            if uu: A(f"v_add_u32 v{self.VD+uu}, {uu*(32768-1024)}, v{self.VD+uu}")
        A("v_lshrrev_b32 v16, 2, v13"); A("v_lshlrev_b32 v16, 3, v16"); A("v_and_b32 v17, 3, v13"); A("v_add_u32 v16, v16, v17")
        A("v_and_b32 v17, 7, v13"); A("v_xor_b32 v17, v17, v14"); A("v_lshlrev_b32 v17, 4, v17"); A("v_lshl_add_u32 v17, v16, 7, v17")
        A(f"v_add_u32 v17, s{self.sl}, v17")
        A("s_and_b32 s23, s3, 1"); A("s_lshl_b32 s23, s23, 9")
        for b in range(2):
            if b: A("s_xor_b32 s23, s23, 512")
            A(f"v_add_u32 v{self.VR+2*b}, s23, v17"); A(f"v_xor_b32 v{self.VR+2*b+1}, 64, v{self.VR+2*b}")
        A("s_lshr_b32 s23, s3, 1"); A("s_lshl_b32 s68, s23, 17"); A("s_lshl_b32 s23, s3, 10"); A("s_add_u32 s68, s68, s23")
        A("s_xor_b32 s69, s68, 0x20000")
    def dma(self):
        A = self.A; n = self.n_dma
        if n >= 16: return
        ss, gt = n >> 1, n & 1
        A(f"s_add_u32 m0, s{self.sl}, {(n % 3)*4096}")
        A(f"s_add_u32 s70, s{68+gt}, {ss*128}")
        for uu in range(4):
            A(f"buffer_load_dwordx4 v{self.VD+uu}, s[{SRD_A}:{SRD_A+3}], s70 offen offset:{uu*1024} lds", tag=('Au', n))
        self.n_dma += 1
    def start(self):
        for _ in range(3): self.dma()
    def step(self):
        A = self.A; n = self.n_rd
        if n >= 16: return
        if n >= 1 and self.n_dma < 16:
            A.wait_lg(('Ar', n-1)); self.dma()
        A.wait_vm(('Au', n)); ST(A, ('au', n))
        ss, gt = n >> 1, n & 1
        for b in range(2):
            for h in range(2):
                tau = 2*gt + b
                A(f"ds_read_b128 {a((ss*8 + h*4 + tau)*4, 4)}, v{self.VR+2*b+h} offset:{(n % 3)*4096}", tag=('Ar', n))
        self.n_rd += 1
    def finish(self):
        while self.n_rd < 16: self.step()

def wf_issue(A):
    A("v_lshrrev_b32 v62, 2, v13"); A("v_lshlrev_b32 v62, 3, v62"); A("v_and_b32 v63, 3, v13"); A("v_add_u32 v62, v62, v63")
    A("v_lshlrev_b32 v62, 1, v62")
    A(f"v_mul_u32_u24 v63, {4*896}, v14"); A("v_add_u32 v62, v62, v63")
    for q in range(2):
        A("s_lshl_b32 s23, s2, 2"); A("s_add_u32 s23, s23, s3")
        if q: A("s_add_u32 s23, s23, 1024")
        A("s_and_b32 s24, s23, 3"); A("s_lshr_b32 s25, s23, 2")
        A("s_mul_i32 s26, s25, 1490"); A("s_lshr_b32 s26, s26, 16")
        A("s_mul_i32 s27, s26, 44"); A("s_sub_u32 s27, s25, s27")
        A("s_lshl_b32 s28, s26, 7"); A("s_lshr_b32 s29, s24, 1"); A("s_lshl_b32 s29, s29, 6"); A("s_add_u32 s28, s28, s29")
        A("s_and_b32 s29, s24, 1"); A("s_lshl_b32 s29, s29, 3"); A("s_add_u32 s28, s28, s29")
        A("s_cmp_lt_u32 s27, 16")
        A(f"s_cselect_b32 s64, s{S_WO}, s{S_WOUT}"); A(f"s_cselect_b32 s65, s{S_WO+1}, s{S_WOUT+1}")
        A("s_cselect_b32 s66, 1, 2"); A(f"s_mul_i32 s66, s66, {448*896}"); A("s_mov_b32 s67, 0x20000"); A("s_and_b32 s65, s65, 0xffff")
        A("s_mul_i32 s29, s27, 28"); A("s_mul_i32 s30, s27, 32"); A("s_sub_u32 s30, s30, 512")
        A("s_cmp_lt_u32 s27, 16"); A("s_cselect_b32 s29, s29, s30"); A("s_cselect_b64 s[30:31], -1, 0")
        A("s_mul_i32 s29, s29, 896"); A("s_add_u32 s29, s29, s28")
        A("s_cmp_ge_u32 s23, 1232"); A("s_cselect_b32 s66, 0, s66")
        A(f"v_add_u32 v58, 0, v62"); A(f"v_add_u32 v59, {16*896}, v62")
        A("v_cmp_eq_u32 vcc, 3, v14"); A("s_and_b64 s[30:31], s[30:31], vcc"); A(f"v_mov_b32 v63, {OOB}")
        A("v_cndmask_b32 v59, v59, v63, s[30:31]")
        for e in range(8):
            A(f"buffer_load_ushort v{40 + 8*q + e}, v{58 + (e >> 2)}, s[64:67], s29 offen offset:{(e & 3)*896}", tag='wfj')
def wf_store(A):
    A.wait_vm('wfj')
    for q in range(2):
        for p in range(4):
            A(f"v_lshl_or_b32 v{40 + 4*q + p}, v{40 + 8*q + 2*p + 1}, 16, v{40 + 8*q + 2*p}")
    A(f"s_mov_b32 s23, {WS_WF}"); srd_from(A, 64, S_WS, 23, 1232*1024)
    A("v_lshlrev_b32 v60, 4, v12")
    A("s_lshl_b32 s23, s2, 2"); A("s_add_u32 s23, s23, s3"); A("s_lshl_b32 s23, s23, 10")
    A("buffer_store_dwordx4 v[40:43], v60, s[64:67], s23 offen sc1", tag='pubst')
    A("s_add_u32 s23, s23, 0x100000")
    A("buffer_store_dwordx4 v[44:47], v60, s[64:67], s23 offen sc1", tag='pubst')

def touch_lines(A, ptr, vaddr, n, step, vdst=56):
    for k in range(n):
        A(f"global_load_dword v{vdst}, v{vaddr}, s[{ptr}:{ptr+1}]", tag='touch')
        if k + 1 < n: A(f"v_add_u32 v{vaddr}, {step}, v{vaddr}")

def touch_late(A):
    A(f"s_lshl_b32 s27, s{S_RB}, 3"); A(f"s_add_u32 s27, s27, s{S_CB}"); A("s_lshl_b32 s27, s27, 2"); A("s_add_u32 s27, s27, s3")
    A("s_lshl_b32 s28, s27, 14"); A("v_lshlrev_b32 v57, 7, v12"); A("v_add_u32 v57, s28, v57")
    touch_lines(A, S_WSP, 57, 2, 8192)
    A("s_min_u32 s27, s27, 447")
    A("s_mul_i32 s28, s27, 1792"); A("v_min_u32 v57, 13, v12"); A("v_lshlrev_b32 v57, 7, v57"); A("v_add_u32 v58, s28, v57")
    A(f"global_load_dword v56, v58, s[{S_WOUT}:{S_WOUT+1}]", tag='touch')
    A("s_mul_i32 s28, s27, 3584"); A("v_add_u32 v58, s28, v57")
    A(f"global_load_dword v56, v58, s[{S_WIN}:{S_WIN+1}]", tag='touch')
    A("s_mul_i32 s28, s27, 896"); A("v_min_u32 v57, 6, v12"); A("v_lshlrev_b32 v57, 7, v57"); A("v_add_u32 v58, s28, v57")
    A(f"global_load_dword v56, v58, s[{S_WO}:{S_WO+1}]", tag='touch')

def wdma_setup(A, V):
    A("v_lshrrev_b32 v15, 1, v13"); A("v_xor_b32 v15, v15, v14")
    A("v_and_b32 v16, 1, v13"); A("v_lshlrev_b32 v16, 4, v16")
    A("v_mul_u32_u24 v17, 3584, v14"); A("v_add_u32 v16, v16, v17"); A(f"v_mov_b32 v18, {OOB}")
    for uu in range(4):
        if uu == 2: A("v_xor_b32 v15, 4, v15")
        A(f"v_lshl_add_u32 v{V+uu}, v15, 5, v16")
        if uu: A(f"v_add_u32 v{V+uu}, {uu*(4*3584-1024)}, v{V+uu}")
        A("v_cmp_eq_u32 vcc, 7, v15"); A(f"v_cndmask_b32 v{V+uu}, v{V+uu}, v18, vcc")
def wread_setup(A, V, base):
    A("v_lshrrev_b32 v15, 2, v13"); A("v_lshl_add_u32 v16, v14, 3, v15"); A("v_lshlrev_b32 v16, 8, v16")
    A("v_and_b32 v17, 3, v13"); A("v_lshl_add_u32 v16, v17, 3, v16"); A(f"v_add_u32 v16, {base}, v16")
    A("v_and_b32 v17, 1, v14"); A("v_lshl_or_b32 v17, v17, 2, v15")
    for j in range(7):
        A(f"v_xor_b32 v18, {j}, v17"); A(f"v_lshl_add_u32 v{V+j}, v18, 5, v16")

GC = dict(VC1=32, VC2=34, VONE=36)
def gelu_consts(A):
    for r, val in ((32, GELU_C1), (34, GELU_C2), (36, 1.0)):
        A(f"v_mov_b32 v{r}, {hexf(val)}"); A(f"v_mov_b32 v{r+1}, {hexf(val)}")

class Z1Tile:
    WB, XB, ACC, GACC = 120, 176, 192, 220
    VW = 24
    def __init__(self, A, L, ring_base, vdma, sW):
        self.A, self.L, self.ring_base, self.vdma, self.sW = A, L, ring_base, vdma, sW
    def dma_w_list(self, c):
        st = (c + 1) % 3
        return [(f"s_add_u32 m0, s71, {self.ring_base + st*16384}", None), (f"s_add_u32 s23, s{self.sW}, {64*c*3584}", None)] + \
               [(f"buffer_load_dwordx4 v{self.vdma+uu}, s[12:15], s23 offen offset:{uu*1024} lds", ('w1', c)) for uu in range(4)]
    def dma_w(self, c):
        for t, tg in self.dma_w_list(c): self.A(t, tag=tg)
    def reads(self, c, h, buf, xoff):
        out = []
        st = (c + 1) % 3
        out.append((f"ds_read_b128 {v(self.XB+buf*8,4)}, v{20+h} offset:{xoff(c)}", ('zx', c, h)))
        out.append((f"ds_read_b128 {v(self.XB+buf*8+4,4)}, v31 offset:{(2*c+h)*64}", ('zx', c, h)))
        for j in range(7):
            for sec in range(2):
                out.append((f"ds_read_b64_tr_b16 {v(self.WB+buf*28+j*4+2*sec,2)}, v{self.VW+j} offset:{st*16384 + h*8192 + sec*1024}", ('zw', c, h, j)))
        return out
    def run(self, xoff, xwait, hooks):
        A = self.A
        ST(A, 'z1in')
        A.wait_vm([('w1', 0)] + xwait(0)); A.wait_lg(); A("s_barrier")
        if ('pre',) in hooks: hooks[('pre',)]()
        for t, tg in self.reads(0, 0, 0, xoff): A(t, tag=tg)
        for c in range(7):
            for h in range(2):
                kk = 2*c + h; buf = kk & 1
                todo = []
                if h == 0: todo = self.reads(c, 1, buf ^ 1, xoff)
                else:
                    if c < 6:
                        A.wait_vm([('w1', c+1)] + xwait(c+1))
                        A.wait_lg(); A("s_barrier"); ST(A, ('z', c))
                        if c + 3 <= 6: self.dma_w(c + 3)
                        todo = self.reads(c+1, 0, buf ^ 1, xoff)
                if (c, h) in hooks: hooks[(c, h)]()
                A.wait_lg([('zx', c, h)])
                d = v(self.GACC, 4)
                A(f"v_mfma_f32_16x16x32_bf16 {d}, {v(self.XB+buf*8+4,4)}, {v(self.XB+buf*8,4)}, {d if kk else 0}")
                for _ in range(2):
                    if todo: t, tg = todo.pop(0); A(t, tag=tg)
                for j in range(7):
                    A.wait_lg([('zw', c, h, j)])
                    d = v(self.ACC + 4*j, 4)
                    A(f"v_mfma_f32_16x16x32_bf16 {d}, {v(self.WB+buf*28+j*4,4)}, {v(self.XB+buf*8,4)}, {d if kk else 0}")
                    for _ in range(2):
                        if todo: t, tg = todo.pop(0); A(t, tag=tg)
    def epilogue(self, svc):
        A = self.A
        ST(A, 'z1out')
        G = self.GACC
        A(f"v_mul_f32 v{G}, {hexf(1.4426950408889634)}, v{G}")
        A(f"v_exp_f32 v{G}, v{G}"); A(f"v_add_f32 v{G}, 1.0, v{G}"); A(f"v_rcp_f32 v{G}, v{G}")
        A("v_lshlrev_b32 v16, 2, v13")
        A(f"ds_bpermute_b32 v{G+1}, v16, v{G}", tag='gb')
        regs = [self.ACC + 2*p for p in range(14)]
        for q in range(0, 14, 4):
            gelu_pairs(A, regs[q:q+4], 224, 32, 34, 36)
            svc.step()
        A.wait_lg('gb')
        for p in range(14):
            r = self.ACC + 2*p
            A(f"v_mul_f32 v{r}, v{r}, v{G+1}"); A(f"v_mul_f32 v{r+1}, v{r+1}, v{G+1}")
            A(f"v_cvt_pk_bf16_f32 v{240+p}, v{r}, v{r+1}")
        ST(A, 'z1epi')

L_AST, L_GW, L_ZR, L_GL, L_RING = 58368, 107520, 108544, 110592, 114688
XH = 57344

def load_gw_tables(A, gwb, zrb, tag):
    A(f"s_mov_b32 s23, 896"); srd_from(A, 16, S_GW, None, 896)
    A("v_lshlrev_b32 v16, 4, v12"); A(f"v_mov_b32 v18, {OOB}")
    A(f"s_mov_b32 m0, {gwb}"); A("buffer_load_dwordx4 v16, s[16:19], 0 offen lds", tag=tag)
    A(f"s_mov_b32 m0, {zrb}"); A("buffer_load_dwordx4 v18, s[16:19], 0 offen lds", tag=tag)
def gw_addr(A, vreg, gwb, zrb):
    A("v_cmp_eq_u32 vcc, 0, v13"); A(f"v_mov_b32 v16, {zrb}"); A(f"v_mov_b32 v17, {gwb}"); A(f"v_cndmask_b32 v{vreg}, v16, v17, vcc")
    A(f"v_lshl_add_u32 v{vreg}, v14, 4, v{vreg}")
def z1_xaddr(A):
    A("v_lshrrev_b32 v15, 2, v13"); A("v_lshlrev_b32 v15, 3, v15"); A("v_and_b32 v16, 3, v13"); A("v_add_u32 v15, v15, v16")
    A("v_and_b32 v16, 7, v13"); A("v_xor_b32 v16, v16, v14"); A("v_lshlrev_b32 v16, 4, v16"); A("v_lshl_add_u32 v16, v15, 7, v16")
    A("s_lshr_b32 s23, s3, 1"); A("s_lshl_b32 s23, s23, 12"); A("s_and_b32 s24, s3, 1"); A("s_lshl_b32 s24, s24, 9"); A("s_add_u32 s23, s23, s24")
    A("v_add_u32 v20, s23, v16"); A("v_xor_b32 v21, 64, v20")
def load_bias(A):
    A(f"s_lshl_b32 s23, s{S_RB2}, 6"); A("s_lshr_b32 s24, s3, 1"); A("s_lshl_b32 s24, s24, 5"); A("s_add_u32 s23, s23, s24")
    A("s_and_b32 s24, s3, 1"); A("s_lshl_b32 s24, s24, 2"); A("s_add_u32 s23, s23, s24")
    A("v_lshrrev_b32 v15, 2, v13"); A("v_lshlrev_b32 v15, 3, v15"); A("v_and_b32 v16, 3, v13"); A("v_add_u32 v15, v15, v16")
    A("v_add_u32 v15, s23, v15"); A("v_lshlrev_b32 v15, 1, v15")
    srd_from(A, 16, S_BSP, None, S*2)
    A("buffer_load_ushort v254, v15, s[16:19], 0 offen", tag='bias')

def role_z(A, L):
    ACC1, ACC2 = 64, 120
    acc1 = lambda j, aa: ACC1 + (j*2+aa)*4
    acc2 = lambda j, aa: ACC2 + (j*2+aa)*4
    WB = 176
    wf = lambda buf, j: WB + buf*28 + j*4
    xf = lambda kk, aa: 144 + (kk*2+aa)*4
    A("v_lshrrev_b32 v15, 3, v12"); A("v_and_b32 v16, 7, v12"); A("v_and_b32 v17, 3, v15"); A("v_xor_b32 v16, v16, v17"); A("v_lshlrev_b32 v16, 4, v16")
    A("v_mul_u32_u24 v17, 896, v15")
    for uu in range(4):
        if uu & 1: A("v_xor_b32 v18, 64, v16"); A(f"v_add_u32 v{1+uu}, v18, v17")
        else: A(f"v_add_u32 v{1+uu}, v16, v17")
        if uu: A(f"v_add_u32 v{1+uu}, {uu*(8*896-1024)}, v{1+uu}")
    wdma_setup(A, 5)
    A(f"s_lshl_b32 s72, s{S_RB}, 2"); A("s_add_u32 s72, s72, s3")
    A(f"s_mul_i32 s23, s72, {32*896}"); srd_from(A, 8, S_X, 23, 32*896)
    srd_from(A, 12, S_WIN, None, 448*3584)
    A(f"s_mul_i32 s25, s3, {16*3584}"); A(f"s_mul_i32 s23, s{S_CB}, 224"); A("s_add_u32 s25, s25, s23"); A("s_add_u32 s24, s25, 1792")
    A("s_lshl_b32 s71, s3, 12")
    def dma_x(c):
        return [(f"s_add_u32 m0, s71, {c*16384}", None), (f"s_mov_b32 s23, {c*128}", None)] + \
               [(f"buffer_load_dwordx4 v{1+uu}, s[8:11], s23 offen offset:{uu*1024} lds", ('x', c)) for uu in range(4)]
    def dma_w(c, which=1):
        base = (L_RING + (c % 3)*16384) if which == 1 else c*16384
        return [(f"s_add_u32 m0, s71, {base}", None), (f"s_add_u32 s23, s{24 if which == 1 else 25}, {64*c*3584}", None)] + \
               [(f"buffer_load_dwordx4 v{5+uu}, s[12:15], s23 offen offset:{uu*1024} lds", ('w', which, c)) for uu in range(4)]
    def emit(lst):
        for t, tg in lst: A(t, tag=tg)
    for c in range(2): emit(dma_w(c)); emit(dma_x(c))
    ST(A, 1)
    A("v_lshrrev_b32 v15, 2, v13"); A("v_lshlrev_b32 v15, 3, v15"); A("v_and_b32 v16, 3, v13"); A("v_add_u32 v15, v15, v16")
    A("v_and_b32 v16, 7, v13"); A("v_xor_b32 v16, v16, v14"); A("v_lshlrev_b32 v16, 4, v16"); A("v_lshl_add_u32 v16, v15, 7, v16")
    A("v_add_u32 v20, s71, v16"); A("v_xor_b32 v21, 64, v20"); A("v_add_u32 v22, 0x10000, v20"); A("v_add_u32 v23, 0x10000, v21")
    wread_setup(A, 24, L_RING)
    gelu_consts(A)
    A(f"s_mul_i32 s74, s3, 12288"); A(f"s_add_u32 s74, s74, {L_RING}")
    svc = AService(A, 74)
    def reads_w(which, c, h, buf):
        out = []
        off = ((c % 3) if which == 1 else (c % 4))*16384 + h*8192
        for j in range(7):
            for sec in range(2):
                out.append((f"ds_read_b64_tr_b16 {v(wf(buf,j)+2*sec,2)}, v{24+j} offset:{off + sec*1024}", ('wf', which, c, h, j)))
        return out
    def reads_x(c):
        return [(f"ds_read_b128 {a(xf(2*c+h,aa),4)}, v{20 + h + (2 if c >= 4 else 0)} offset:{(c % 4)*16384 + aa*512}", ('xf', c, h)) for h in range(2) for aa in range(2)]
    A.wait_vm([('w', 1, 0), ('x', 0)]); A("s_barrier")
    ST(A, 2)
    emit(reads_x(0)); emit(reads_w(1, 0, 0, 0))
    for c in range(7):
        for h in range(2):
            kk = 2*c + h; buf = kk & 1
            todo = []; vq = []
            if h == 0:
                todo = reads_w(1, c, 1, buf ^ 1)
                if c == 0: vq += dma_w(2)
                if c + 2 <= 6: vq += dma_x(c + 2)
            else:
                if c < 6: A.wait_vm([('w', 1, c+1), ('x', c+1)])
                A.wait_lg(); A("s_barrier"); ST(A, ('g', c))
                if c + 3 <= 6: vq += dma_w(c + 3)
                for cc in {3: (0,), 4: (1, 2), 5: (3, 4), 6: (5, 6)}.get(c, ()): vq += dma_w(cc, 2)
                if c < 6: todo = reads_w(1, c+1, 0, buf ^ 1)[:2] + reads_x(c+1) + reads_w(1, c+1, 0, buf ^ 1)[2:]
            A.wait_lg([('xf', c, h)])
            for j in range(7):
                A.wait_lg([('wf', 1, c, h, j)])
                for aa in range(2):
                    d = v(acc1(j,aa), 4)
                    A(f"v_mfma_f32_16x16x32_bf16 {d}, {a(xf(kk,aa),4)}, {v(wf(buf,j),4)}, {d if kk else 0}")
                    for _ in range(2):
                        if todo: t, tg = todo.pop(0); A(t, tag=tg)
                    if vq: t, tg = vq.pop(0); A(t, tag=tg)
            emit(todo); emit(vq)
            if c == 4 and h == 1: touch_late(A)
    ST(A, 3)
    tag_issue(A)
    svc.setup(); svc.start()
    TMP = 232 - 8 - 0
    TMP = 176
    regs = [ACC1 + 2*p for p in range(28)]
    for q in range(0, 28, 4): gelu_pairs(A, regs[q:q+4], TMP, 32, 34, 36)
    SUM, M2, PUB = 192, 200, 208
    for aa in range(2):
        for rp in range(2):
            d = SUM + aa*4 + rp*2
            A(f"v_pk_add_f32 {v(d,2)}, {v(acc1(0,aa)+2*rp,2)}, {v(acc1(1,aa)+2*rp,2)}")
            for j in range(2, 7): A(f"v_pk_add_f32 {v(d,2)}, {v(d,2)}, {v(acc1(j,aa)+2*rp,2)}")
    def dpp16(rs):
        for sh in (8, 4, 2, 1):
            for r in rs: A(f"v_add_f32_dpp v{r}, v{r}, v{r} row_ror:{sh} row_mask:0xf bank_mask:0xf")
    dpp16(range(SUM, SUM+8))
    A(f"v_mov_b32 v38, {hexf(1.0/112)}"); A(f"v_mov_b32 v39, {hexf(1.0/112)}")
    for p in range(4): A(f"v_pk_mul_f32 {v(SUM+2*p,2)}, {v(SUM+2*p,2)}, {v(38,2)}")
    for aa in range(2):
        for rp in range(2):
            d = M2 + aa*4 + rp*2; mreg = SUM + aa*4 + rp*2
            for j in range(7):
                t = TMP + 2*(j & 1)
                A(f"v_pk_add_f32 {v(t,2)}, {v(acc1(j,aa)+2*rp,2)}, {v(mreg,2)} neg_lo:[0,1] neg_hi:[0,1]")
                if j == 0: A(f"v_pk_mul_f32 {v(d,2)}, {v(t,2)}, {v(t,2)}")
                else: A(f"v_pk_fma_f32 {v(d,2)}, {v(t,2)}, {v(t,2)}, {v(d,2)}")
    dpp16(range(M2, M2+8))
    A("v_and_b32 v16, 3, v13")
    for q in range(3): A(f"v_cmp_eq_u32 s[{26+2*q}:{27+2*q}], {q+1}, v16")
    for e, (base, odd) in enumerate(((SUM, 0), (M2, 0), (SUM, 1), (M2, 1))):
        A(f"v_mov_b32 v{PUB+e}, v{base+odd}")
        for q in range(3): A(f"v_cndmask_b32 v{PUB+e}, v{PUB+e}, v{base+2*(q+1)+odd}, s[{26+2*q}:{27+2*q}]")
    A(f"s_lshl_b32 s23, s{S_RB}, 3"); A(f"s_add_u32 s23, s23, s{S_CB}"); A("s_lshl_b32 s23, s23, 7")
    A("s_lshl_b32 s27, s3, 5"); A("s_add_u32 s23, s23, s27"); A("s_lshl_b32 s23, s23, 3")
    A(f"s_mov_b32 s27, {WS_LNP}"); srd_from(A, 16, S_WS, 27, 16*8*128*8)
    A("v_lshlrev_b32 v19, 6, v14"); A("v_lshl_add_u32 v19, v16, 4, v19")
    A("s_mov_b64 s[34:35], exec"); A("s_mov_b32 exec_lo, 0x000f000f"); A("s_mov_b32 exec_hi, 0x000f000f")
    A(f"buffer_store_dwordx4 {v(PUB,4)}, v19, s[16:19], s23 offen sc1", tag='lnp')
    A("s_mov_b64 exec, s[34:35]")
    ST(A, 4)
    A.wait_vm([('w', 2, c) for c in range(7)]); A("s_barrier"); ST(A, 'w2')
    for j in range(7): A(f"v_subrev_u32 v{24+j}, {L_RING}, v{24+j}")
    emit(reads_w(2, 0, 0, 0))
    for c in range(7):
        for h in range(2):
            kk = 2*c + h; buf = kk & 1
            nxt = (c, 1) if h == 0 else ((c+1, 0) if c < 6 else None)
            if h == 0 and c in (0, 1, 2, 4, 5, 6): svc.step()
            if h == 1 and c in (1, 5): svc.step()
            if c == 3 and h == 0:
                A.wait_vm('lnp'); tag_take(A, lambda x: L('z' + x)); A("s_barrier")
                A(f"s_lshl_b32 s27, s{S_RB}, 7"); A(f"s_lshl_b32 s28, s{S_CB}, 3"); A("s_add_u32 s27, s27, s28"); A(f"s_add_u32 s27, s27, {WS_F0}")
                signal(A, L, 'sigln', 27)
            todo = []
            if nxt:
                if nxt == (4, 0):
                    for j in range(7): A(f"v_add_u32 v{24+j}, 0x10000, v{24+j}")
                todo = reads_w(2, nxt[0], nxt[1], buf ^ 1)
            for j in range(7):
                A.wait_lg([('wf', 2, c, h, j)])
                for aa in range(2):
                    d = v(acc2(j,aa), 4)
                    A(f"v_mfma_f32_16x16x32_bf16 {d}, {v(wf(buf,j),4)}, {a(xf(kk,aa),4)}, {d if kk else 0}")
                    if todo: t, tg = todo.pop(0); A(t, tag=tg)
            emit(todo)
    ST(A, 5)
    wf_issue(A)
    TMP = 176
    regs = [ACC2 + 2*p for p in range(28)]
    for q in range(0, 28, 4):
        gelu_pairs(A, regs[q:q+4], TMP, 32, 34, 36)
        if q in (0, 4, 8, 12, 16, 20): svc.step()
    A("s_lshl_b32 s23, s72, 1"); A("s_mul_i32 s23, s23, 56"); A(f"s_mul_i32 s27, s{S_CB}, 7"); A("s_add_u32 s23, s23, s27"); A("s_lshl_b32 s23, s23, 9")
    A(f"s_add_u32 s23, s23, {WS_Z1F}"); srd_from(A, 16, S_WS, 23, 56*512 + 7*512)
    A("v_lshlrev_b32 v18, 3, v12")
    P = 192
    for aa in range(2):
        if aa: A(f"s_mov_b32 s23, {56*512}")
        for j in range(7):
            c = acc2(j,aa); p = P + 2*(j & 3)
            A(f"v_cvt_pk_bf16_f32 v{p}, v{c}, v{c+1}"); A(f"v_cvt_pk_bf16_f32 v{p+1}, v{c+2}, v{c+3}")
            A(f"buffer_store_dwordx2 {v(p,2)}, v18, s[16:19], {'s23' if aa else 0} offen offset:{j*512} sc1", tag='pubst')
    ST(A, 6)
    A(f"s_lshl_b32 s27, s{S_RB}, 7"); A(f"s_add_u32 s27, s27, {WS_F0}"); A("v_lshl_add_u32 v17, v12, 3, s27")
    poll(A, L, 'pln', 17, 8)
    ST(A, 7)
    A(f"s_lshl_b32 s23, s{S_RB}, 10"); A("s_lshl_b32 s27, s3, 5"); A("s_add_u32 s23, s23, s27"); A("s_lshl_b32 s23, s23, 3")
    A(f"s_mov_b32 s27, {WS_LNP}"); srd_from(A, 16, S_WS, 27, 16*8*128*8)
    A("v_and_b32 v18, 7, v12"); A("v_lshlrev_b32 v18, 10, v18"); A("v_lshl_add_u32 v18, v14, 6, v18")
    Q, MB = 192, 208
    for q in range(4): A(f"buffer_load_dwordx4 {v(Q+4*q,4)}, v18, s[16:19], s23 offen offset:{16*q} sc1", tag='lnq')
    svc.step()
    wf_store(A)
    A.wait_vm('lnq')
    ST(A, 'lnq')
    def red8(rs):
        for pat in ("quad_perm:[1,0,3,2]", "quad_perm:[2,3,0,1]", "row_half_mirror"):
            for r in rs: A(f"v_add_f32_dpp v{r}, v{r}, v{r} {pat} row_mask:0xf bank_mask:0xf")
    for q in range(8): A(f"v_mov_b32 v{MB+q}, v{Q+2*q}")
    red8(range(MB, MB+8))
    for q in range(8): A(f"v_mul_f32 v{MB+q}, 0.125, v{MB+q}")
    A(f"v_mov_b32 v38, {hexf(112.0)}")
    for q in range(8):
        A(f"v_sub_f32 v{Q+2*q}, v{Q+2*q}, v{MB+q}"); A(f"v_mul_f32 v{Q+2*q}, v{Q+2*q}, v{Q+2*q}")
        A(f"v_fma_f32 v{MB+8+q}, v{Q+2*q}, v38, v{Q+2*q+1}")
    red8(range(MB+8, MB+16))
    svc.step()
    A(f"v_mov_b32 v38, {hexf(1.0/896)}"); A(f"v_mov_b32 v39, {hexf(1e-5)}")
    for q in range(8): A(f"v_fma_f32 v{MB+8+q}, v{MB+8+q}, v38, v39")
    for q in range(8): A(f"v_rsq_f32 v{MB+8+q}, v{MB+8+q}")
    for q in range(8): A(f"v_mul_f32 v{MB+q}, v{MB+q}, v{MB+8+q}")
    A(f"s_mul_i32 s23, s{S_CB}, {64*7168}"); A("s_mul_i32 s27, s72, 7168"); A("s_add_u32 s23, s23, s27")
    srd_from(A, 16, S_WS, 23, 7168)
    A("v_lshlrev_b32 v18, 4, v12"); A("v_add_u32 v19, 4096, v18")
    for j in range(7):
        p = Q + 4*(j & 3)
        for aa in range(2):
            c = acc1(j,aa)
            for rp in range(2):
                A(f"v_pk_fma_f32 {v(c+2*rp,2)}, {v(c+2*rp,2)}, {v(MB+8+aa*4+2*rp,2)}, {v(MB+aa*4+2*rp,2)} neg_lo:[0,0,1] neg_hi:[0,0,1]")
            A(f"v_cvt_pk_bf16_f32 v{p+2*aa}, v{c}, v{c+1}"); A(f"v_cvt_pk_bf16_f32 v{p+2*aa+1}, v{c+2}, v{c+3}")
        A(f"buffer_store_dwordx4 {v(p,4)}, v{18 if j < 4 else 19}, s[16:19], 0 offen offset:{(j%4)*1024} sc1", tag='pubst')
    ST(A, 'norm')
    if PROFILE == 'p3':
        A.raw("  s_waitcnt vmcnt(6)"); ST(A, 'st0'); A.raw("  s_waitcnt vmcnt(3)"); ST(A, 'st3')
    A.wait_vm('pubst'); ST(A, 'pubw'); A("s_barrier")
    A(f"s_lshl_b32 s27, s{S_CB}, 4"); A(f"s_add_u32 s27, s27, s{S_RB}"); A("s_lshl_b32 s27, s27, 3"); A(f"s_add_u32 s27, s27, {WS_F1}")
    signal(A, L, 'sigzd', 27)
    ST(A, 'sig')
    svc.finish()
    A.wait_lg()
    ST(A, 8)

QSTG = 45056; QGW = 3*QSTG; QZR = QGW + 1024; QP = 400
def role_q(A, L):
    A("v_lshrrev_b32 v15, 3, v12"); A("v_and_b32 v16, 7, v12")
    A("v_and_b32 v17, 3, v15"); A("v_xor_b32 v17, v16, v17"); A("v_lshlrev_b32 v17, 4, v17")
    A(f"s_lshl_b32 s24, s{S_RB}, 7"); A("s_sub_u32 s24, s24, 16"); A("s_mul_i32 s25, s3, 5")
    for uu in range(5):
        A(f"s_add_u32 s26, s25, {uu}")
        A("s_lshl_b32 s27, s26, 3"); A("s_add_u32 s27, s27, s24")
        A("v_add_u32 v18, s27, v15"); A("v_max_i32 v18, 0, v18"); A("v_mul_u32_u24 v18, 896, v18")
        A("s_and_b32 s27, s26, 1"); A("s_lshl_b32 s27, s27, 6"); A("v_xor_b32 v19, s27, v17")
        A("s_cmp_ge_u32 s26, 18"); A(f"s_cselect_b32 s27, {OOB}, 0")
        A(f"v_add3_u32 v{1+uu}, v18, v19, s27")
        if uu in (1, 2, 3): A(f"v_subrev_u32 v{1+uu}, {uu*1024}, v{1+uu}")
    A("v_and_b32 v18, 2, v15"); A("v_xor_b32 v18, v16, v18"); A("v_mul_u32_u24 v19, 2688, v15")
    for uu in range(2):
        if uu: A("v_xor_b32 v18, 4, v18")
        A(f"v_lshl_add_u32 v{6+uu}, v18, 4, v19")
        if uu: A(f"v_add_u32 v{6+uu}, {8*2688-1024}, v{6+uu}")
        A("v_cmp_eq_u32 vcc, 7, v18"); A(f"v_mov_b32 v16, {OOB}"); A(f"v_cndmask_b32 v{6+uu}, v{6+uu}, v16, vcc")
    A.wait_lg()
    A(f"s_sub_u32 s8, s{S_X}, 4096"); A(f"s_subb_u32 s9, s{S_X+1}, 0"); A("s_and_b32 s9, s9, 0xffff"); A(f"s_mov_b32 s10, {S*896 + 4096}"); A("s_mov_b32 s11, 0x20000")
    for uu in range(5): A(f"v_add_u32 v{1+uu}, 4096, v{1+uu}")
    srd_from(A, 12, S_WQKV, None, 448*2688)
    A(f"s_mul_i32 s24, s3, {16*2688}"); A(f"s_mul_i32 s25, s{S_CB}, 112"); A("s_add_u32 s24, s24, s25")
    A("s_mul_i32 s25, s3, 5120"); A("s_lshl_b32 s26, s3, 11"); A("s_add_u32 s26, s26, 20480")
    def dma(c):
        st = (c % 3)*QSTG; out = []
        for seg in range(3):
            out += [(f"s_add_u32 m0, s26, {st + seg*8192}", None), (f"s_add_u32 s23, s24, {64*c*2688 + seg*896}", None)]
            out += [(f"buffer_load_dwordx4 v{6+uu}, s[12:15], s23 offen offset:{uu*1024} lds", ('c', c)) for uu in range(2)]
        out += [(f"s_add_u32 m0, s25, {st}", None), (f"s_mov_b32 s23, {c*128}", None)]
        out += [(f"buffer_load_dwordx4 v{1+uu}, s[8:11], s23 offen offset:{uu*1024} lds", ('c', c)) for uu in range(4)]
        out += [(f"s_add_u32 m0, s25, {st + 4096}", None), (f"buffer_load_dwordx4 v5, s[8:11], s23 offen lds", ('c', c))]
        return out
    def emit(lst):
        for t, tg in lst: A(t, tag=tg)
    load_gw_tables(A, QGW, QZR, ('c', 0))
    for c in range(2): emit(dma(c))
    ST(A, 1)
    A("v_lshrrev_b32 v15, 3, v13"); A("v_lshlrev_b32 v15, 2, v15"); A("v_and_b32 v16, 3, v13"); A("v_or_b32 v15, v15, v16")
    A("v_xor_b32 v15, v15, v14"); A("v_lshlrev_b32 v15, 4, v15"); A("v_lshl_add_u32 v20, v13, 7, v15"); A("v_xor_b32 v21, 64, v20")
    A("s_lshl_b32 s23, s3, 12"); A("s_add_u32 s23, s23, 2048"); A("v_add_u32 v22, s23, v20"); A("v_add_u32 v23, s23, v21")
    A("s_lshr_b32 s23, s3, 1"); A("s_mul_i32 s23, s23, 56"); A("s_and_b32 s33, s3, 1"); A("s_lshl_b32 s34, s33, 5"); A("s_add_u32 s23, s23, s34")
    A("v_and_b32 v15, 3, v13"); A("v_lshlrev_b32 v16, 3, v15"); A("v_add_u32 v16, s23, v16")
    A("v_cmp_eq_u32 vcc, 3, v15"); A("s_cmp_eq_u32 s33, 1"); A("s_cselect_b64 s[34:35], vcc, 0")
    A("v_mov_b32 v17, 112"); A("v_cndmask_b32 v16, v16, v17, s[34:35]")
    A("v_lshrrev_b32 v17, 3, v13"); A("v_lshlrev_b32 v17, 1, v17"); A("v_and_b32 v18, 1, v14"); A("v_lshl_or_b32 v17, v18, 2, v17")
    A("v_lshrrev_b32 v18, 4, v16"); A("v_xor_b32 v18, v18, v17"); A("v_and_b32 v16, 8, v16"); A("v_lshl_or_b32 v16, v18, 4, v16")
    A("v_lshrrev_b32 v17, 2, v13"); A("v_lshl_add_u32 v17, v14, 3, v17"); A("v_lshl_add_u32 v24, v17, 7, v16"); A("v_add_u32 v24, 20480, v24")
    gw_addr(A, 25, QGW, QZR)
    XB = 256; xf = lambda buf, t: XB + buf*44 + t*4
    WB = 256 + 88; wf = lambda buf, t: WB + buf*16 + t*4
    ACC = 64
    def acc(t, RT):
        if t == 0: return ACC + (RT-1)*4
        if t == 3: return ACC + (26 + RT)*4
        return ACC + (8 + (t-1)*9 + RT)*4
    def reads(c, h, buf):
        out = []
        for t in range(3):
            for sec in range(2):
                out.append((f"ds_read_b64_tr_b16 {u(wf(buf,t)+2*sec,2)}, v24 offset:{t*8192 + h*4096 + sec*512}", ('w', c, h)))
        out.append((f"ds_read_b128 {u(wf(buf,3),4)}, v25 offset:{(2*c+h)*64}", ('w', c, h)))
        for RT in range(9): out.append((f"ds_read_b128 {u(xf(buf,RT),4)}, v{20+h} offset:{RT*2048}", ('x', c, h, RT)))
        for q in range(2): out.append((f"ds_read_b128 {u(xf(buf,9+q),4)}, v{22+h} offset:{q*2048}", ('x', c, h, 9+q)))
        return out
    def bump(c):
        d = QSTG if (c % 3) < 2 else -2*QSTG
        for r in (20, 21, 22, 23, 24):
            if d > 0: A(f"v_add_u32 v{r}, {d}, v{r}")
            else: A(f"v_subrev_u32 v{r}, {-d}, v{r}")
    A.wait_vm(('c', 0)); A("s_barrier")
    ST(A, 2)
    for t, tg in reads(0, 0, 0): A(t, tag=tg)
    for c in range(7):
        for h in range(2):
            kk = 2*c + h; buf = kk & 1
            todo = []; vq = []
            if h == 0:
                todo = reads(c, 1, buf ^ 1)
                if c == 0: vq = dma(2)
            else:
                if c < 6: A.wait_vm(('c', c+1))
                A.wait_lg(); A("s_barrier"); ST(A, ('g', c))
                if c + 3 <= 6: vq = dma(c+3)
                if c < 6:
                    bump(c); todo = reads(c+1, 0, buf ^ 1)
            order = [(1,0),(2,0)] + [(t, RT) for RT in range(1, 9) for t in range(3)] + [(3,0),(3,1)]
            n = 0
            for (t, RT) in order:
                xt = RT if t < 3 else 9 + RT
                A.wait_lg([('w', c, h), ('x', c, h, xt)])
                d = v(acc(t, RT), 4)
                A(f"v_mfma_f32_16x16x32_bf16 {d}, {u(wf(buf,t),4)}, {u(xf(buf,xt),4)}, {d if kk else 0}")
                n += 1
                if todo: tt, tg = todo.pop(0); A(tt, tag=tg)
                if vq: tt, tg = vq.pop(0); A(tt, tag=tg)
            while todo: tt, tg = todo.pop(0); A(tt, tag=tg)
            emit(vq)
    ST(A, 3)
    tag_issue(A)
    A(f"s_mul_i32 s74, s3, 12288"); A(f"s_add_u32 s74, s74, {L_AST}")
    svc = AService(A, 74); svc.setup()
    A(f"v_mul_u32_u24 v15, {QP}, v13")
    A("s_lshr_b32 s23, s3, 1"); A("s_lshl_b32 s23, s23, 6"); A("s_and_b32 s33, s3, 1"); A("s_lshl_b32 s33, s33, 5"); A("s_add_u32 s23, s23, s33")
    A("v_lshl_add_u32 v15, v14, 3, v15"); A("v_add_u32 v26, s23, v15")
    P = 176; n = 0
    for t in range(3):
        for RT in range(0 if t else 1, 9):
            c = acc(t, RT); p = P + 2*(n & 7); n += 1
            A(f"v_cvt_pk_bf16_f32 v{p}, v{c}, v{c+1}"); A(f"v_cvt_pk_bf16_f32 v{p+1}, v{c+2}, v{c+3}")
            A(f"ds_write_b64 v26, {v(p,2)} offset:{RT*16*QP + t*128}", tag='qkv')
    for q in range(2):
        c = acc(3, q)
        A(f"v_mul_f32 v{c}, {hexf(-1.4426950408889634)}, v{c}")
        A(f"v_exp_f32 v{c}, v{c}"); A(f"v_add_f32 v{c}, 1.0, v{c}"); A(f"v_rcp_f32 v{c}, v{c}")
    A("s_lshl_b32 s23, s3, 7"); A(f"s_add_u32 s23, s23, {L_GL}")
    A("v_lshlrev_b32 v15, 2, v13"); A("v_add_u32 v16, s23, v15")
    A("s_mov_b64 s[34:35], exec"); A("s_mov_b64 exec, 0xffff")
    for q in range(2): A(f"ds_write_b32 v16, v{acc(3,q)} offset:{q*64}", tag='qkv')
    A(f"s_mov_b32 s23, {WS_GATE}"); srd_from(A, 16, S_WS, 23, S*4)
    A(f"s_cmp_eq_u32 s{S_CB}, 0"); A("s_cselect_b32 s18, s18, 0")
    A(f"s_lshl_b32 s23, s{S_RB}, 9"); A("s_lshl_b32 s33, s3, 7"); A("s_add_u32 s23, s23, s33")
    for q in range(2): A(f"buffer_store_dword v{acc(3,q)}, v15, s[16:19], s23 offen offset:{q*64} sc1", tag='pubst')
    A("s_mov_b64 exec, s[34:35]")
    svc.start()
    A.wait_lg(); A("s_barrier")
    ST(A, 4)
    A("s_lshr_b32 s33, s3, 1"); A("s_and_b32 s34, s3, 1"); A("s_lshl_b32 s35, s33, 6")
    A(f"s_mul_i32 s32, s34, {64*QP}"); A("s_add_u32 s35, s35, s32")
    A("v_lshlrev_b32 v15, 1, v13")
    A(f"v_mul_u32_u24 v16, {QP}, v15"); A("v_lshl_add_u32 v16, v14, 4, v16"); A("v_add_u32 v16, s35, v16")
    A(f"v_add_u32 v20, {16*QP}, v16"); A(f"v_add_u32 v21, 128, v16")
    A("v_lshlrev_b32 v17, 2, v15"); A("s_lshl_b32 s32, s34, 8"); A(f"s_add_u32 s32, s32, {L_GL}"); A("v_add_u32 v22, s32, v17")
    A("v_lshrrev_b32 v17, 2, v13"); A("v_and_b32 v18, 3, v13"); A("v_lshlrev_b32 v18, 3, v18"); A("v_add_u32 v18, s35, v18"); A("v_add_u32 v18, 256, v18")
    for T in range(2):
        if T == 0: A("v_lshl_add_u32 v19, v14, 2, v17")
        else: A("v_and_b32 v19, 1, v14"); A("v_lshl_add_u32 v19, v19, 2, v17"); A("v_add_u32 v19, 16, v19")
        A("v_lshlrev_b32 v19, 1, v19"); A(f"v_mul_u32_u24 v19, {QP}, v19"); A(f"v_add_u32 v{23+T}, v19, v18")
    UB = 64
    rowoff = lambda b: (32*(b >> 1) + (b & 1))
    Q_ = lambda b: UB + b*24; K_ = lambda b, T: UB + b*24 + 4 + 4*T; V_ = lambda b, mt: UB + b*24 + 12 + 4*mt; G_ = lambda b: UB + b*24 + 20
    for b in range(4):
        A(f"ds_read_b128 {v(Q_(b),4)}, v20 offset:{rowoff(b)*QP}", tag=('u', b))
        for T in range(2): A(f"ds_read_b128 {v(K_(b,T),4)}, v21 offset:{(rowoff(b)+32*T)*QP}", tag=('u', b))
    for b in range(4):
        for mt in range(2):
            for T in range(2): A(f"ds_read_b64_tr_b16 {v(V_(b,mt)+2*T,2)}, v{23+T} offset:{rowoff(b)*QP + mt*32}", tag=('vv', b))
        A(f"ds_read_b32 v{G_(b)}, v22 offset:{rowoff(b)*4}", tag=('vv', b))
    SC = 160; sc = lambda b, T: SC + b*8 + 4*T
    for b in range(4):
        A.wait_lg(('u', b))
        for T in range(2): A(f"v_mfma_f32_16x16x32_bf16 {v(sc(b,T),4)}, {v(K_(b,T),4)}, {v(Q_(b),4)}, 0")
    wf_issue(A)
    svc.step()
    cs = (28 ** -0.5) * 1.4426950408889634
    A(f"v_mov_b32 v26, {hexf(cs)}"); A(f"v_mov_b32 v27, {hexf(cs)}"); A(f"v_mov_b32 v28, {hexf(-1e30)}")
    for b in range(4):
        for q in range(4): A(f"v_pk_mul_f32 {v(sc(b,0)+2*q,2)}, {v(sc(b,0)+2*q,2)}, {v(26,2)}")
    A("v_lshlrev_b32 v15, 2, v14"); A("v_sub_u32 v15, v13, v15"); A("v_add_u32 v15, 8, v15")
    A("s_and_b32 s34, s3, 1"); A(f"s_or_b32 s34, s34, s{S_RB}")
    A("v_min_u32 v16, 7, v13"); A("s_cmp_eq_u32 s34, 0"); A("s_cselect_b64 s[34:35], -1, 0")
    A("v_mov_b32 v17, 7"); A("v_cndmask_b32 v16, v17, v16, s[34:35]")
    MS = [24, 26, 28, 30, 64, 66, 32, 34]
    for (lim, bs) in ((17, (2, 3)), (16, (0, 1))):
        for q in range(8):
            A(f"v_subrev_u32 v18, {16*(q >> 2) + (q & 3)}, v15")
            A(f"v_cmp_le_u32 s[{MS[q]}:{MS[q]+1}], v18, v{lim}")
        for b in bs:
            for q in range(8):
                A(f"v_cndmask_b32 v{sc(b,0)+q}, v28, v{sc(b,0)+q}, s[{MS[q]}:{MS[q]+1}]")
    MX = 192; M2 = 196
    def xreduce(op):
        for swap in ("v_permlane16_swap_b32", "v_permlane32_swap_b32"):
            for b in range(4): A(f"v_mov_b32 v{M2+b}, v{MX+b}")
            for b in range(4): A(f"{swap} v{MX+b}, v{M2+b}")
            for b in range(4): A(f"{op} v{MX+b}, v{MX+b}, v{M2+b}")
    for b in range(4): s0 = sc(b,0); A(f"v_max3_f32 v{MX+b}, v{s0}, v{s0+1}, v{s0+2}")
    for b in range(4): s0 = sc(b,0); A(f"v_max3_f32 v{MX+b}, v{MX+b}, v{s0+3}, v{s0+4}")
    for b in range(4): s0 = sc(b,0); A(f"v_max3_f32 v{MX+b}, v{MX+b}, v{s0+5}, v{s0+6}")
    for b in range(4): s0 = sc(b,0); A(f"v_max_f32 v{MX+b}, v{MX+b}, v{s0+7}")
    xreduce("v_max_f32")
    for b in range(4):
        for q in range(8): A(f"v_sub_f32 v{sc(b,0)+q}, v{sc(b,0)+q}, v{MX+b}")
    for b in range(4):
        for q in range(8): A(f"v_exp_f32 v{sc(b,0)+q}, v{sc(b,0)+q}")
    svc.step()
    for b in range(4): s0 = sc(b,0); A(f"v_add_f32 v{MX+b}, v{s0}, v{s0+1}")
    for q in range(2, 8):
        for b in range(4): A(f"v_add_f32 v{MX+b}, v{MX+b}, v{sc(b,0)+q}")
    xreduce("v_add_f32")
    for b in range(4): A(f"v_rcp_f32 v{MX+b}, v{MX+b}")
    PB = 200
    for b in range(4):
        for q in range(8): A(f"v_mul_f32 v{sc(b,0)+q}, v{sc(b,0)+q}, v{MX+b}")
    for b in range(4):
        for q in range(4): A(f"v_cvt_pk_bf16_f32 v{PB+4*b+q}, v{sc(b,0)+2*q}, v{sc(b,0)+2*q+1}")
    OB = 160
    for b in range(4):
        for mt in range(2): A(f"v_mfma_f32_16x16x32_bf16 {v(OB+8*b+4*mt,4)}, {v(V_(b,mt),4)}, {v(PB+4*b,4)}, 0")
    ST(A, 5)
    svc.step()
    A("v_and_b32 v15, 1, v13"); A("v_lshlrev_b32 v15, 1, v15"); A("v_bfe_u32 v16, v13, 1, 1"); A("v_or_b32 v15, v15, v16")
    A("v_and_b32 v16, 12, v13"); A("v_or_b32 v15, v15, v16"); A("v_lshl_add_u32 v15, v14, 4, v15"); A("v_lshlrev_b32 v29, 4, v15")
    A(f"s_lshl_b32 s23, s{S_RB}, 1"); A("s_and_b32 s33, s3, 1"); A("s_add_u32 s23, s23, s33"); A("s_mul_i32 s23, s23, 44")
    A(f"s_lshl_b32 s33, s{S_CB}, 1"); A("s_add_u32 s23, s23, s33"); A("s_lshr_b32 s33, s3, 1"); A("s_add_u32 s23, s23, s33")
    A("s_lshl_b32 s23, s23, 12"); A(f"s_add_u32 s23, s23, {WS_AF}")
    srd_from(A, 16, S_WS, 23, 4096)
    A("v_and_b32 v15, 2, v13"); A("v_cmp_eq_u32 vcc, 0, v15"); A("v_cmp_ne_u32 s[24:25], 0, v15")
    for b in range(4):
        o = OB + 8*b
        for q in range(8): A(f"v_mul_f32 v{o+q}, v{o+q}, v{G_(b)}")
        for q in range(4): A(f"v_cvt_pk_bf16_f32 v{PB+4*b+q}, v{o+2*q}, v{o+2*q+1}")
    for bb in range(2):
        X0 = PB + 8*bb; X1 = X0 + 4; Y = 216 + 8*bb
        for q in range(4):
            A(f"v_mov_b32_dpp v{Y+q}, v{X1+q} quad_perm:[2,3,0,1] row_mask:0xf bank_mask:0xf")
            A(f"v_mov_b32_dpp v{Y+4+q}, v{X0+q} quad_perm:[2,3,0,1] row_mask:0xf bank_mask:0xf")
        for q in range(4):
            A(f"v_cndmask_b32 v{Y+q}, v{Y+q}, v{X0+q}, vcc")
            A(f"v_cndmask_b32 v{Y+4+q}, v{Y+4+q}, v{X1+q}, s[24:25]")
        for aa in range(2):
            A(f"buffer_store_dwordx4 {v(Y+4*aa,4)}, v29, s[16:19], 0 offen offset:{(2*bb+aa)*1024} sc1", tag='pubst')
    ST(A, 6)
    svc.step()
    wf_store(A)
    A.wait_vm('pubst'); tag_take(A, lambda x: L('q' + x)); A("s_barrier")
    A(f"s_lshl_b32 s27, s{S_RB}, 3"); A(f"s_add_u32 s27, s27, s{S_CB}"); A("s_add_u32 s27, s27, 128"); A("s_lshl_b32 s27, s27, 3"); A(f"s_add_u32 s27, s27, {WS_F1}")
    signal(A, L, 'sigqd', 27)
    ST(A, 7)
    svc.finish()
    A.wait_lg()
    ST(A, 8)

def phase2(A, L):
    ACC, BR = 32, 144
    acc = lambda j, tau: ACC + (j*4+tau)*4
    bfrag = lambda kk, j: BR + (kk % 4)*28 + j*4
    afrag = lambda kk, tau: ((kk >> 1)*8 + (kk & 1)*4 + tau)*4
    A("v_lshlrev_b32 v3, 4, v12")
    A(f"s_mul_i32 s23, s{S_CB}, {64*7168}"); srd_from(A, 12, S_WS, 23, 64*7168)
    A(f"s_mul_i32 s26, s3, {16*7168}")
    A("v_add_u32 v4, 4096, v3")
    A(f"s_lshl_b32 s27, s{S_CB}, 7"); A(f"s_add_u32 s27, s27, {WS_F1}"); A("v_lshl_add_u32 v17, v12, 3, s27")
    A.wait_lg()
    poll(A, L, 'pa', 17, 16)
    ST(A, 10)
    def issueB(kk, js):
        for j in js:
            if j == js[0]: A(f"s_add_u32 s27, s26, {kk*7168}")
            A(f"buffer_load_dwordx4 {v(bfrag(kk,j),4)}, v{3 if j < 4 else 4}, s[12:15], s27 offen offset:{(j % 4)*1024} sc1", tag=('B', kk))
    for kk in range(3): issueB(kk, list(range(7)))
    c3ok = None
    A(f"s_mul_i32 s23, s{S_CB}, {44*4096}"); A(f"s_add_u32 s23, s23, {WS_WF}"); srd_from(A, 8, S_WS, 23, 44*4096)
    A(f"s_cmp_eq_u32 s{S_CB}, 7"); A("s_cselect_b32 s10, 0, s10")
    A(f"s_mul_i32 s23, s{S_RB2}, {44*4096}"); A(f"s_add_u32 s23, s23, {WS_AF}"); srd_from(A, 16, S_WS, 23, 44*4096)
    for tau in range(4):
        A(f"s_xor_b32 s24, s3, {tau}"); A("s_lshl_b32 s24, s24, 10"); A(f"v_add_u32 v{5+tau}, s24, v3")
    A("s_lshl_b32 s28, s3, 14")
    A(f"s_mul_i32 s29, s3, {7*4096}"); A(f"s_add_u32 s29, s29, {16*4096}")
    wq = []
    for s_ in range(4):
        for uu in range(4): wq.append((f"buffer_load_dwordx4 {a((s_*4+uu)*4,4)}, v3, s[8:11], SOFF offen offset:{uu*1024} sc1", 28, s_, ('Wo', s_)))
    for s_ in range(7):
        for uu in range(4): wq.append((f"buffer_load_dwordx4 {a(64+(s_*4+uu)*4,4)}, v3, s[8:11], SOFF offen offset:{uu*1024} sc1", 29, s_, ('Wh', s_)))
    def issueW(n):
        for _ in range(n):
            if not wq: return
            t, base, s_, tg = wq.pop(0)
            if 'offset:0 ' in t: A(f"s_add_u32 s30, s{base}, {s_*4096}")
            A(t.replace('SOFF', 's30'), tag=tg)
    def epi_loads():
        A(f"s_lshl_b32 s30, s{S_RB2}, 2"); A("s_add_u32 s30, s30, s3")
        A("s_mul_i32 s31, s30, 56"); A(f"s_mul_i32 s32, s{S_CB}, 7"); A("s_add_u32 s31, s31, s32"); A("s_lshl_b32 s31, s31, 9"); A(f"s_add_u32 s31, s31, {WS_Z1F}")
        srd_from(A, 64, S_WS, 31, 7*512)
        A("v_lshlrev_b32 v2, 3, v12")
        for j in range(7): A(f"buffer_load_dwordx2 {v(16+2*j,2)}, v2, s[64:67], 0 offen offset:{j*512} sc1", tag='epi')
        A(f"s_lshl_b32 s31, s{S_RB2}, 6"); A("s_lshr_b32 s32, s3, 1"); A("s_lshl_b32 s32, s32, 5"); A("s_add_u32 s31, s31, s32")
        A("s_and_b32 s32, s3, 1"); A("s_lshl_b32 s32, s32, 2"); A("s_add_u32 s31, s31, s32")
        A("v_lshrrev_b32 v2, 2, v13"); A("v_lshlrev_b32 v2, 3, v2"); A("v_and_b32 v1, 3, v13"); A("v_add_u32 v2, v2, v1"); A("v_add_u32 v2, s31, v2")
        A("v_lshlrev_b32 v1, 1, v2"); srd_from(A, 64, S_BSP, None, S*2)
        A("buffer_load_ushort v30, v1, s[64:67], 0 offen", tag='epi')
        A(f"s_mov_b32 s31, {WS_GATE}"); srd_from(A, 64, S_WS, 31, S*4)
        A("v_lshlrev_b32 v1, 2, v2"); A("buffer_load_dword v31, v1, s[64:67], 0 offen sc1", tag='epi')
    for kk in range(16):
        A.wait_vm(('B', kk))
        pend = list(range(7)) if kk + 3 < 16 else []
        m = 0
        if kk == 9:
            A(f"s_mov_b32 s27, {WS_F1}"); A("v_lshl_add_u32 v2, v12, 5, s27")
            for q2 in range(2): A(f"global_load_dwordx4 {v(16+4*q2,4)}, v2, s[{S_WS}:{S_WS+1}] offset:{16*q2} sc1", tag='fl')
        if kk == 12:
            A.wait_vm('fl')
            def check():
                out = []
                for q in range(8): out.append(f"v_xor_b32 v{16+q}, s{S_TAG + (q & 1)}, v{16+q}")
                out += ["v_or3_b32 v16, v16, v17, v18", "v_or3_b32 v19, v19, v20, v21", "v_or3_b32 v16, v16, v22, v23", "v_or_b32 v16, v16, v19", "v_cmp_eq_u32 vcc, 0, v16"]
                return out
            for t in check(): A(t)
            A("s_nop 1"); A("s_cmp_eq_u64 vcc, exec"); A(f"s_cbranch_scc1 {L('allok')}")
            A.raw("  s_mov_b32 s33, 0")
            A.raw(f"{L('allloop')}:")
            for q2 in range(2): A.raw(f"  global_load_dwordx4 {v(16+4*q2,4)}, v2, s[{S_WS}:{S_WS+1}] offset:{16*q2} sc1")
            A.raw("  s_add_u32 s33, s33, 1"); A.raw("  s_waitcnt vmcnt(0)")
            for t in check(): A.raw("  " + t)
            A.raw("  s_nop 1"); A.raw("  s_cmp_eq_u64 vcc, exec"); A.raw(f"  s_cbranch_scc1 {L('allok')}")
            A.raw(f"  s_sleep {SLEEP}"); A.raw("  s_cmp_lt_u32 s33, 0x20000"); A.raw(f"  s_cbranch_scc1 {L('allloop')}")
            A.label(L('allok'))
        if kk == 13: epi_loads()
        for j in range(7):
            for tau in range(4):
                c = v(acc(j,tau),4)
                A(f"v_mfma_f32_16x16x32_bf16 {c}, {v(bfrag(kk,j),4)}, {a(afrag(kk,tau),4)}, {c if kk else 0}")
                m += 1
                if pend and m % 4 == 1:
                    jj = pend.pop(0)
                    A(f"s_add_u32 s27, s26, {(kk+3)*7168}") if jj == 0 else None
                    A(f"buffer_load_dwordx4 {v(bfrag(kk+3,jj),4)}, v{3 if jj < 4 else 4}, s[12:15], s27 offen offset:{(jj % 4)*1024} sc1", tag=('B', kk+3))
                if kk >= 13 and m % 2 == 0: issueW(1)
        A.check_vm()
    ST(A, 11)
    A("s_mul_i32 s23, s3, 21504"); A("v_add_u32 v9, s23, v3")
    for tau in (1,2,3):
        A(f"s_xor_b32 s24, s3, {tau}"); A("s_mul_i32 s24, s24, 21504"); A(f"s_add_u32 s24, s24, {(tau-1)*7168}"); A(f"v_add_u32 v{(10,11,15)[tau-1]}, s24, v3")
    for tau in (1,2,3):
        for j in range(7): A(f"ds_write_b128 v9, {v(acc(j,tau),4)} offset:{(tau-1)*7168+j*1024}", tag='w')
    issueW(64)
    A.wait_lg(); A("s_barrier")
    T0 = 144
    for tau in (1,2,3):
        for j in range(7): A(f"ds_read_b128 {v(T0+((tau-1)*7+j)*4,4)}, v{(10,11,15)[tau-1]} offset:{j*1024}", tag=('r',tau))
    A.wait_vm('epi')
    for s_ in range(4):
        A(f"s_add_u32 s30, s28, {s_*4096}")
        for tau in range(4): A(f"buffer_load_dwordx4 {a(176+(s_*4+tau)*4,4)}, v{5+tau}, s[16:19], s30 offen sc1", tag=('Ao', s_))
    A.check_vm()
    for tau in (1,2,3):
        A.wait_lg(('r',tau))
        for j in range(7):
            c = acc(j,0); t = T0+((tau-1)*7+j)*4
            A(f"v_pk_add_f32 {v(c,2)}, {v(c,2)}, {v(t,2)}"); A(f"v_pk_add_f32 {v(c+2,2)}, {v(c+2,2)}, {v(t+2,2)}")
    A.wait_vm('epi')
    A("v_lshlrev_b32 v30, 16, v30"); A("v_sub_f32 v31, 1.0, v31")
    H = 144
    for j in range(7):
        c = acc(j,0)
        for r in range(4):
            z = 16 + 2*j + (r >> 1); t = 1 + (r & 1)
            if r & 1: A(f"v_and_b32 v{t}, 0xffff0000, v{z}")
            else: A(f"v_lshlrev_b32 v{t}, 16, v{z}")
            A(f"v_add_f32 v{c+r}, v{c+r}, v30")
            A(f"v_mul_f32 v{t}, v{t}, v31")
            A(f"v_mul_f32 v{c+r}, v{c+r}, v{t}")
        A(f"v_cvt_pk_bf16_f32 v{H+2*j}, v{c}, v{c+1}"); A(f"v_cvt_pk_bf16_f32 v{H+2*j+1}, v{c+2}, v{c+3}")
    A(f"s_mul_i32 s30, s{S_CB}, 7"); A("s_lshr_b32 s31, s30, 1"); A("s_add_u32 s31, s31, 16"); A("s_lshl_b32 s31, s31, 12")
    A("s_lshl_b32 s32, s3, 10"); A("s_add_u32 s31, s31, s32")
    A("s_and_b32 s30, s30, 1"); A("s_cmp_eq_u32 s30, 0"); A(f"s_cbranch_scc0 {L('odd')}")
    vm0 = list(A.vm)
    for p in range(3):
        A(f"buffer_store_dwordx4 {v(H+4*p,4)}, v3, s[16:19], s31 offen sc1", tag='hst'); A("s_add_u32 s31, s31, 4096")
    A(f"buffer_store_dwordx2 {v(H+12,2)}, v3, s[16:19], s31 offen sc1", tag='hst')
    A(f"s_branch {L('hfin')}")
    A.label(L('odd')); A.vm = list(vm0)
    A(f"buffer_store_dwordx2 {v(H,2)}, v3, s[16:19], s31 offen offset:8 sc1", tag='hst')
    for p in range(3):
        A("s_add_u32 s31, s31, 4096"); A(f"buffer_store_dwordx4 {v(H+2+4*p,4)}, v3, s[16:19], s31 offen sc1", tag='hst')
    A.label(L('hfin'))
    ST(A, 12)

def phase3(A, L):
    ACC = 32; acc = lambda uu, tau: ACC + (uu*4+tau)*4
    HA = 96
    for s_ in range(4):
        A.wait_vm([('Wo', s_), ('Ao', s_)])
        for tau in range(4):
            for uu in range(4):
                c = v(acc(uu,tau),4)
                A(f"v_mfma_f32_16x16x32_bf16 {c}, {a((s_*4+uu)*4,4)}, {a(176+(s_*4+tau)*4,4)}, {c if s_ else 0}")
    A.wait_vm(); A("s_barrier")
    A(f"s_lshl_b32 s27, s{S_RB2}, 7"); A(f"s_lshl_b32 s26, s{S_CB}, 3"); A("s_add_u32 s27, s27, s26"); A(f"s_add_u32 s27, s27, {WS_F2}")
    signal(A, L, 'sighd', 27)
    A(f"s_cmp_eq_u32 s{S_CB}, 7"); A(f"s_cbranch_scc1 {L('fin')}")
    ST(A, 13)
    A("s_mul_i32 s26, s3, 12288"); A("v_add_u32 v20, s26, v3")
    for tau in (1,2,3):
        A(f"s_xor_b32 s26, s3, {tau}"); A("s_mul_i32 s26, s26, 12288"); A(f"s_add_u32 s26, s26, {(tau-1)*4096}"); A(f"v_add_u32 v{20+tau}, s26, v3")
    A("v_lshrrev_b32 v15, 2, v13"); A("v_lshlrev_b32 v15, 3, v15"); A("v_and_b32 v16, 3, v13"); A("v_add_u32 v15, v15, v16")
    A(f"s_lshl_b32 s26, s{S_RB2}, 6"); A("s_lshr_b32 s27, s3, 1"); A("s_lshl_b32 s27, s27, 5"); A("s_add_u32 s26, s26, s27")
    A("s_and_b32 s27, s3, 1"); A("s_lshl_b32 s27, s27, 2"); A("s_add_u32 s26, s26, s27")
    A("v_add_u32 v15, s26, v15"); A("v_mul_u32_u24 v15, 896, v15")
    A("v_lshlrev_b32 v16, 4, v14"); A(f"s_lshl_b32 s27, s{S_CB}, 7"); A("v_add_u32 v16, s27, v16"); A("v_add_u32 v1, v15, v16")
    srd_from(A, 12, S_OUT, None, S*D*2)
    A(f"s_lshl_b32 s27, s{S_RB2}, 7"); A(f"s_add_u32 s27, s27, {WS_F2}"); A("v_lshl_add_u32 v17, v12, 3, s27")
    poll(A, L, 'pb', 17, 8)
    ST(A, 14)
    for s_ in range(7):
        A(f"s_add_u32 s30, s29, {s_*4096}")
        for tau in range(4): A(f"buffer_load_dwordx4 {v(HA+(s_*4+tau)*4,4)}, v{5+tau}, s[16:19], s30 offen sc1", tag=('Ah', s_))
    for s_ in range(7):
        A.wait_vm(('Ah', s_))
        for tau in range(4):
            for uu in range(4):
                c = v(acc(uu,tau),4)
                A(f"v_mfma_f32_16x16x32_bf16 {c}, {a(64+(s_*4+uu)*4,4)}, {v(HA+(s_*4+tau)*4,4)}, {c}")
    ST(A, 15)
    for tau in (1,2,3):
        for uu in range(4): A(f"ds_write_b128 v20, {v(acc(uu,tau),4)} offset:{(tau-1)*4096+uu*1024}", tag='w')
    A.wait_lg(); A("s_barrier")
    T0 = 208
    for tau in (1,2,3):
        for uu in range(4): A(f"ds_read_b128 {v(T0+((tau-1)*4+uu)*4,4)}, v{20+tau} offset:{uu*1024}", tag=('r',tau))
    for tau in (1,2,3):
        A.wait_lg(('r',tau))
        for uu in range(4):
            c = acc(uu,0); t = T0+((tau-1)*4+uu)*4
            A(f"v_pk_add_f32 {v(c,2)}, {v(c,2)}, {v(t,2)}"); A(f"v_pk_add_f32 {v(c+2,2)}, {v(c+2,2)}, {v(t+2,2)}")
    for vv in range(2):
        o = 96 + 4*vv; c0 = acc(2*vv,0); c1 = acc(2*vv+1,0)
        A(f"v_cvt_pk_bf16_f32 v{o}, v{c0}, v{c0+1}"); A(f"v_cvt_pk_bf16_f32 v{o+1}, v{c0+2}, v{c0+3}")
        A(f"v_cvt_pk_bf16_f32 v{o+2}, v{c1}, v{c1+1}"); A(f"v_cvt_pk_bf16_f32 v{o+3}, v{c1+2}, v{c1+3}")
        A(f"buffer_store_dwordx4 {v(o,4)}, v1, s[12:15], 0 offen offset:{vv*64}")

def gen_mega(name="mega", code_bytes=0):
    Stamps.map = [78+2*k for k in range(11)] + [4, 6, 42, 0, 74+0*0]
    A = Asm(); L = lambda x: f"{name}_{x}"
    A("s_cmp_ge_u32 s2, 256"); A(f"s_cbranch_scc1 {L('end')}")
    ST(A, 0)
    A("s_load_dwordx16 s[36:51], s[0:1], 0")
    A("s_load_dwordx8 s[52:59], s[0:1], 64")
    A("v_lshrrev_b32 v6, 6, v0"); A("v_and_b32 v12, 63, v0"); A("v_readfirstlane_b32 s3, v6")
    A("s_lshr_b32 s24, s2, 3"); A("s_lshl_b32 s24, s24, 2"); A("s_add_u32 s24, s24, s3")
    if code_bytes:
        A("s_getpc_b64 s[22:23]"); A.raw(f"{name}_pc:")
        A("v_and_b32 v10, 3, v0"); A("s_lshl_b32 s25, s24, 2"); A("v_add_u32 v10, s25, v10"); A("v_lshlrev_b32 v10, 7, v10")
        assert code_bytes <= 512*128
        A(f"v_min_u32 v57, {L('end')}-{name}_pc, v10"); A("global_load_dword v56, v57, s[22:23]", tag='pf')
    A("v_and_b32 v13, 15, v12"); A("v_lshrrev_b32 v14, 4, v12")
    A("s_and_b32 s20, s2, 7"); A("s_lshr_b32 s21, s2, 3"); A("s_lshr_b32 s33, s21, 4"); A("s_and_b32 s21, s21, 15")
    A("s_lshr_b32 s22, s20, 1"); A("s_lshl_b32 s22, s22, 2"); A("s_lshr_b32 s23, s21, 2"); A("s_add_u32 s22, s22, s23")
    A("s_and_b32 s20, s20, 1"); A("s_lshl_b32 s20, s20, 2"); A("s_and_b32 s21, s21, 3"); A("s_add_u32 s21, s21, s20")
    A("s_mov_b32 s20, s22"); A("s_lshl_b32 s22, s20, 1"); A("s_add_u32 s22, s22, s33")
    A("v_lshrrev_b32 v15, 3, v12"); A("v_and_b32 v16, 7, v12"); A("v_min_u32 v16, 6, v16"); A("v_lshlrev_b32 v16, 7, v16")
    A("s_and_b32 s25, s2, 1"); A("s_mul_i32 s26, s25, 896")
    A("s_and_b32 s27, s20, 12"); A("s_lshl_b32 s27, s27, 7")
    A("s_lshl_b32 s28, s24, 3"); A("s_add_u32 s27, s27, s28"); A("s_mul_i32 s27, s27, 896")
    A("s_sub_u32 s28, s24, 64"); A("s_min_u32 s28, s28, 55"); A(f"s_mul_i32 s28, s28, {8*3584}"); A("s_add_u32 s28, s28, s26"); A("s_add_u32 s28, s28, 1792")
    A("s_cmp_lt_u32 s24, 64"); A("s_cselect_b32 s27, s27, s28"); A("s_cselect_b32 s28, 1, 4"); A("s_mul_i32 s28, s28, 896")
    A("v_mul_lo_u32 v15, v15, s28"); A("v_add3_u32 v57, v15, v16, s27")
    A("v_lshrrev_b32 v15, 4, v12"); A("s_min_u32 s29, s24, 111"); A("s_lshl_b32 s29, s29, 2"); A("v_add_u32 v15, s29, v15"); A("v_mul_u32_u24 v15, 2688, v15")
    A("v_bfe_u32 v16, v12, 2, 2"); A("v_min_u32 v16, 2, v16"); A("v_mul_u32_u24 v16, 896, v16"); A("v_and_b32 v17, 3, v12"); A("v_lshlrev_b32 v17, 7, v17")
    A("s_lshr_b32 s26, s26, 1"); A("v_add3_u32 v15, v15, v16, v17"); A("v_add_u32 v58, s26, v15")
    A.wait_lg()
    tag_publish(A, L)
    A("s_cmp_lt_u32 s24, 64"); A(f"s_cselect_b32 s28, s{S_X}, s{S_WIN}"); A(f"s_cselect_b32 s29, s{S_X+1}, s{S_WIN+1}")
    A("global_load_dword v56, v57, s[28:29]", tag='pf')
    A(f"global_load_dword v56, v58, s[{S_WQKV}:{S_WQKV+1}]", tag='pf')
    A("s_cmp_eq_u32 s33, 0"); A(f"s_cbranch_scc0 {L('qrole')}")
    vm0 = list(A.vm); lg0 = list(A.lg)
    role_z(A, L)
    A(f"s_branch {L('p2')}")
    A.label(L('qrole')); A.vm = list(vm0); A.lg = list(lg0)
    role_q(A, L)
    A.label(L('p2')); A.vm = []; A.lg = []
    ST(A, 9)
    phase2(A, L)
    phase3(A, L)
    if Stamps.enabled:
        A.raw("  s_waitcnt vmcnt(0)")
    A.label(L('fin'))
    Stamps.flush(A, 0, 16, S_WS)
    A.label(L('end'))
    A("s_endpgm")
    return A

if __name__ == "__main__":
    import sys, asmlib
    from build import assemble
    if len(sys.argv) > 2 and sys.argv[2].startswith('stamp'): asmlib.Stamps.enabled = True
    if len(sys.argv) > 2 and sys.argv[2] == 'stampcyc': asmlib.Stamps.op = 's_memtime'
    t = gen_mega().text(); sz = len([l for l in t.split('\n') if l.startswith('  ')])*8
    A = gen_mega(code_bytes=sz)
    if os.environ.get('FINAL'):
        from build import assemble_single
        open(sys.argv[1], 'w').write(assemble_single(dict(name="gated_mix__sliding_local_dilated__mixer_gmlp__prompt_kernel", text=A.text(), grid=256, block=256, lds=163840, vgpr=512, accum=256)))
    else:
        open(sys.argv[1], 'w').write(assemble([dict(name="mega_kernel", text=A.text(), grid=256, block=256, lds=163840, vgpr=512, accum=256)]))
    print("nops", A.nops_inserted, "est bytes", sz)
```

```python
from asmlib import *
from layout import *
from k1z import hexf, gelu_pairs, GELU_C1, GELU_C2
import os
PROFILE = os.environ.get('PROFILE', 'all')
SLEEP = int(os.environ.get('SLEEP', '2'))
def ST(A, k):
    if PROFILE == 'all':
        if isinstance(k, int): Stamps.mark(A, k)
    elif PROFILE == 'p1':
        if isinstance(k, str): return
        if isinstance(k, int) and k in (0, 1, 2): Stamps.mark(A, k)
        elif isinstance(k, int) and k == 3: Stamps.mark(A, 10)
        elif isinstance(k, int) and k == 4: Stamps.mark(A, 11)
        elif isinstance(k, tuple) and k[0] == 'g': Stamps.mark(A, 3 + k[1])
        elif isinstance(k, int) and k in (5, 6, 7, 8): Stamps.mark(A, 7 + k)
    elif PROFILE == 'p4':
        m = {0: 0, 3: 1, 5: 2, 7: 3, 'sig': 4, ('au', 8): 5, ('au', 9): 6, ('au', 10): 7, ('au', 11): 8, ('au', 12): 9, ('au', 13): 10, ('au', 14): 11, ('au', 15): 12, 8: 13, 'pubw': 14, 10: 15}
        if k in m: Stamps.mark(A, m[k])
    elif PROFILE == 'p3':
        m = {0: 0, 3: 1, 4: 2, 5: 3, 6: 4, 7: 5, 'lnq': 6, 'norm': 7, 'pubw': 8, 'sig': 9, 8: 10, 10: 11, 11: 12, 'w2': 13, 'st0': 14, 'st3': 15}
        if k in m: Stamps.mark(A, m[k])
    elif PROFILE == 'p2':
        m = {0: 0, 3: 1, 4: 2, 8: 13, 10: 14, 'z1in': 3, 'z1out': 11, 'z1epi': 12, 11: 15}
        if isinstance(k, tuple) and k[0] == 'z': Stamps.mark(A, 4 + k[1])
        elif k in m: Stamps.mark(A, m[k])

S_X, S_WQKV, S_WO, S_WIN, S_WSP, S_BSP, S_WOUT = 36, 38, 40, 44, 46, 48, 50
S_GW, S_OUT, S_DBG, S_WS = 52, 54, 56, 58
S_RB, S_CB, S_RB2 = 20, 21, 22
SRD_A = 60
OOB = 0x7fff0000
C_LN, C_ZD, C_QD, C_HD = 0, 16, 24, 32

def srd_from(A, d, ptr, off_sreg, nbytes):
    if off_sreg is None:
        A(f"s_mov_b32 s{d}, s{ptr}"); A(f"s_and_b32 s{d+1}, s{ptr+1}, 0xffff")
    else:
        A(f"s_add_u32 s{d}, s{ptr}, s{off_sreg}"); A(f"s_addc_u32 s{d+1}, s{ptr+1}, 0"); A(f"s_and_b32 s{d+1}, s{d+1}, 0xffff")
    A(f"s_mov_b32 s{d+2}, {nbytes}"); A(f"s_mov_b32 s{d+3}, 0x20000")

S_TAG = 76
def tag_publish(A, L):
    A("s_cmp_lg_u32 s2, 0"); A(f"s_cbranch_scc1 {L('notag')}")
    A.raw("  s_cmp_lg_u32 s3, 0"); A.raw(f"  s_cbranch_scc1 {L('notag')}")
    A.raw("  s_memrealtime s[30:31]"); A.raw("  s_waitcnt lgkmcnt(0)"); A.raw("  s_or_b32 s30, s30, 1")
    A.raw("  v_mov_b32 v16, s30"); A.raw("  v_mov_b32 v17, s31"); A.raw("  v_mov_b32 v18, 0")
    A.raw("  s_mov_b64 s[34:35], exec"); A.raw("  s_mov_b64 exec, 1")
    A.raw(f"  global_store_dwordx2 v18, v[16:17], s[{S_DBG}:{S_DBG+1}] sc1")
    A.raw("  s_mov_b64 exec, s[34:35]")
    A.label(L('notag'))
def tag_issue(A):
    A("v_mov_b32 v9, 0"); A(f"global_load_dwordx2 v[10:11], v9, s[{S_DBG}:{S_DBG+1}] sc1", tag='tagld')
def tag_take(A, L):
    A.wait_vm('tagld')
    A(f"v_readfirstlane_b32 s{S_TAG}, v10"); A(f"v_readfirstlane_b32 s{S_TAG+1}, v11")
    A(f"s_cmp_lg_u32 s{S_TAG}, 0"); A(f"s_cbranch_scc1 {L('tagd')}")
    A.raw("  s_mov_b32 s33, 0")
    A.raw(f"{L('tagl')}:")
    A.raw(f"  global_load_dwordx2 v[10:11], v9, s[{S_DBG}:{S_DBG+1}] sc1")
    A.raw("  s_add_u32 s33, s33, 1")
    A.raw("  s_waitcnt vmcnt(0)")
    A.raw(f"  v_readfirstlane_b32 s{S_TAG}, v10"); A.raw(f"  v_readfirstlane_b32 s{S_TAG+1}, v11")
    A.raw("  s_nop 1")
    A.raw(f"  s_cmp_lg_u32 s{S_TAG}, 0"); A.raw(f"  s_cbranch_scc1 {L('tagd')}")
    A.raw("  s_cmp_lt_u32 s33, 0x20000"); A.raw(f"  s_cbranch_scc1 {L('tagl')}")
    A.label(L('tagd'))

def signal(A, L, tag, off_sreg):
    A("s_cmp_lg_u32 s3, 0"); A(f"s_cbranch_scc1 {L(tag)}")
    A.raw(f"  v_mov_b32 v18, s{off_sreg}"); A.raw(f"  v_mov_b32 v16, s{S_TAG}"); A.raw(f"  v_mov_b32 v17, s{S_TAG+1}")
    A.raw("  s_mov_b64 s[34:35], exec"); A.raw("  s_mov_b64 exec, 1")
    A.raw(f"  global_store_dwordx2 v18, v[16:17], s[{S_WS}:{S_WS+1}] sc1")
    A.raw("  s_mov_b64 exec, s[34:35]")
    A.label(L(tag))

def poll(A, L, tag, vaddr, nlanes):
    A("s_cmp_lg_u32 s3, 0"); A(f"s_cbranch_scc1 {L(tag+'_done')}")
    A.raw("  s_mov_b32 s33, 0"); A.raw("  s_mov_b64 s[34:35], exec"); A.raw(f"  s_mov_b64 exec, {hex((1 << nlanes) - 1) if nlanes < 64 else -1}")
    A.label(L(tag+'_loop'))
    A.raw(f"  global_load_dwordx2 v[18:19], v{vaddr}, s[{S_WS}:{S_WS+1}] sc1")
    A.raw("  s_add_u32 s33, s33, 1")
    A.raw("  s_waitcnt vmcnt(0)")
    A.raw(f"  v_xor_b32 v18, s{S_TAG}, v18"); A.raw(f"  v_xor_b32 v19, s{S_TAG+1}, v19"); A.raw("  v_or_b32 v18, v18, v19")
    A.raw("  v_cmp_eq_u32 vcc, 0, v18")
    A.raw("  s_nop 1")
    A.raw("  s_cmp_eq_u64 vcc, exec")
    A.raw(f"  s_cbranch_scc1 {L(tag+'_out')}")
    A.raw(f"  s_sleep {SLEEP}")
    A.raw("  s_cmp_lt_u32 s33, 0x20000")
    A.raw(f"  s_cbranch_scc1 {L(tag+'_loop')}")
    A.label(L(tag+'_out'))
    A.raw("  s_mov_b64 exec, s[34:35]")
    A.label(L(tag+'_done'))
    A("s_barrier")

def poll_wave(A, L, tag, vaddr):
    A.raw("  s_mov_b32 s33, 0")
    A.label(L(tag+'_loop'))
    A.raw(f"  global_load_dwordx2 v[18:19], v{vaddr}, s[{S_WS}:{S_WS+1}] sc1")
    A.raw("  s_add_u32 s33, s33, 1")
    A.raw("  s_waitcnt vmcnt(0)")
    A.raw(f"  v_xor_b32 v18, s{S_TAG}, v18"); A.raw(f"  v_xor_b32 v19, s{S_TAG+1}, v19"); A.raw("  v_or_b32 v18, v18, v19")
    A.raw("  v_cmp_eq_u32 vcc, 0, v18")
    A.raw("  s_nop 1")
    A.raw("  s_cmp_eq_u64 vcc, exec")
    A.raw(f"  s_cbranch_scc1 {L(tag+'_out')}")
    A.raw(f"  s_sleep {SLEEP}")
    A.raw("  s_cmp_lt_u32 s33, 0x20000")
    A.raw(f"  s_cbranch_scc1 {L(tag+'_loop')}")
    A.label(L(tag+'_out')); A.vm = []

class AService:
    VD, VR = 232, 236
    def __init__(self, A, lds_sreg):
        self.A = A; self.n_dma = 0; self.n_rd = 0; self.sl = lds_sreg
    def setup(self):
        A = self.A
        A(f"s_lshl_b32 s23, s{S_RB2}, 18"); srd_from(A, SRD_A, S_WSP, 23, 64*4096)
        A("v_lshrrev_b32 v16, 3, v12"); A("v_and_b32 v17, 7, v12"); A("v_and_b32 v18, 3, v16"); A("v_xor_b32 v17, v17, v18")
        A("v_lshlrev_b32 v17, 4, v17"); A("v_lshl_add_u32 v17, v16, 12, v17")
        for uu in range(4):
            if uu & 1: A(f"v_xor_b32 v{self.VD+uu}, 64, v17")
            else: A(f"v_mov_b32 v{self.VD+uu}, v17")
            if uu: A(f"v_add_u32 v{self.VD+uu}, {uu*(32768-1024)}, v{self.VD+uu}")
        A("v_lshrrev_b32 v16, 2, v13"); A("v_lshlrev_b32 v16, 3, v16"); A("v_and_b32 v17, 3, v13"); A("v_add_u32 v16, v16, v17")
        A("v_and_b32 v17, 7, v13"); A("v_xor_b32 v17, v17, v14"); A("v_lshlrev_b32 v17, 4, v17"); A("v_lshl_add_u32 v17, v16, 7, v17")
        A(f"v_add_u32 v17, s{self.sl}, v17")
        A("s_and_b32 s23, s3, 1"); A("s_lshl_b32 s23, s23, 9")
        for b in range(2):
            if b: A("s_xor_b32 s23, s23, 512")
            A(f"v_add_u32 v{self.VR+2*b}, s23, v17"); A(f"v_xor_b32 v{self.VR+2*b+1}, 64, v{self.VR+2*b}")
        A("s_lshr_b32 s23, s3, 1"); A("s_lshl_b32 s68, s23, 17"); A("s_lshl_b32 s23, s3, 10"); A("s_add_u32 s68, s68, s23")
        A("s_xor_b32 s69, s68, 0x20000")
    def dma(self):
        A = self.A; n = self.n_dma
        if n >= 16: return
        ss, gt = n >> 1, n & 1
        A(f"s_add_u32 m0, s{self.sl}, {(n % 3)*4096}")
        A(f"s_add_u32 s70, s{68+gt}, {ss*128}")
        for uu in range(4):
            A(f"buffer_load_dwordx4 v{self.VD+uu}, s[{SRD_A}:{SRD_A+3}], s70 offen offset:{uu*1024} lds", tag=('Au', n))
        self.n_dma += 1
    def start(self):
        for _ in range(3): self.dma()
    def step(self):
        A = self.A; n = self.n_rd
        if n >= 16: return
        if n >= 1 and self.n_dma < 16:
            A.wait_lg(('Ar', n-1)); self.dma()
        A.wait_vm(('Au', n)); ST(A, ('au', n))
        ss, gt = n >> 1, n & 1
        for b in range(2):
            for h in range(2):
                tau = 2*gt + b
                A(f"ds_read_b128 {a((ss*8 + h*4 + tau)*4, 4)}, v{self.VR+2*b+h} offset:{(n % 3)*4096}", tag=('Ar', n))
        self.n_rd += 1
    def finish(self):
        while self.n_rd < 16: self.step()

def wf_issue(A):
    A("v_lshrrev_b32 v62, 2, v13"); A("v_lshlrev_b32 v62, 3, v62"); A("v_and_b32 v63, 3, v13"); A("v_add_u32 v62, v62, v63")
    A("v_lshlrev_b32 v62, 1, v62")
    A(f"v_mul_u32_u24 v63, {4*896}, v14"); A("v_add_u32 v62, v62, v63")
    for q in range(2):
        A("s_lshl_b32 s23, s2, 2"); A("s_add_u32 s23, s23, s3")
        if q: A("s_add_u32 s23, s23, 1024")
        A("s_and_b32 s24, s23, 3"); A("s_lshr_b32 s25, s23, 2")
        A("s_mul_i32 s26, s25, 1490"); A("s_lshr_b32 s26, s26, 16")
        A("s_mul_i32 s27, s26, 44"); A("s_sub_u32 s27, s25, s27")
        A("s_lshl_b32 s28, s26, 7"); A("s_lshr_b32 s29, s24, 1"); A("s_lshl_b32 s29, s29, 6"); A("s_add_u32 s28, s28, s29")
        A("s_and_b32 s29, s24, 1"); A("s_lshl_b32 s29, s29, 3"); A("s_add_u32 s28, s28, s29")
        A("s_cmp_lt_u32 s27, 16")
        A(f"s_cselect_b32 s64, s{S_WO}, s{S_WOUT}"); A(f"s_cselect_b32 s65, s{S_WO+1}, s{S_WOUT+1}")
        A("s_cselect_b32 s66, 1, 2"); A(f"s_mul_i32 s66, s66, {448*896}"); A("s_mov_b32 s67, 0x20000"); A("s_and_b32 s65, s65, 0xffff")
        A("s_mul_i32 s29, s27, 28"); A("s_mul_i32 s30, s27, 32"); A("s_sub_u32 s30, s30, 512")
        A("s_cmp_lt_u32 s27, 16"); A("s_cselect_b32 s29, s29, s30"); A("s_cselect_b64 s[30:31], -1, 0")
        A("s_mul_i32 s29, s29, 896"); A("s_add_u32 s29, s29, s28")
        A("s_cmp_ge_u32 s23, 1232"); A("s_cselect_b32 s66, 0, s66")
        A(f"v_add_u32 v58, 0, v62"); A(f"v_add_u32 v59, {16*896}, v62")
        A("v_cmp_eq_u32 vcc, 3, v14"); A("s_and_b64 s[30:31], s[30:31], vcc"); A(f"v_mov_b32 v63, {OOB}")
        A("v_cndmask_b32 v59, v59, v63, s[30:31]")
        for e in range(8):
            A(f"buffer_load_ushort v{40 + 8*q + e}, v{58 + (e >> 2)}, s[64:67], s29 offen offset:{(e & 3)*896}", tag='wfj')
def wf_store(A):
    A.wait_vm('wfj')
    for q in range(2):
        for p in range(4):
            A(f"v_lshl_or_b32 v{40 + 4*q + p}, v{40 + 8*q + 2*p + 1}, 16, v{40 + 8*q + 2*p}")
    A(f"s_mov_b32 s23, {WS_WF}"); srd_from(A, 64, S_WS, 23, 1232*1024)
    A("v_lshlrev_b32 v60, 4, v12")
    A("s_lshl_b32 s23, s2, 2"); A("s_add_u32 s23, s23, s3"); A("s_lshl_b32 s23, s23, 10")
    A("buffer_store_dwordx4 v[40:43], v60, s[64:67], s23 offen sc1", tag='pubst')
    A("s_add_u32 s23, s23, 0x100000")
    A("buffer_store_dwordx4 v[44:47], v60, s[64:67], s23 offen sc1", tag='pubst')

def touch_lines(A, ptr, vaddr, n, step, vdst=56):
    for k in range(n):
        A(f"global_load_dword v{vdst}, v{vaddr}, s[{ptr}:{ptr+1}]", tag='touch')
        if k + 1 < n: A(f"v_add_u32 v{vaddr}, {step}, v{vaddr}")

def touch_late(A):
    A(f"s_lshl_b32 s27, s{S_RB}, 3"); A(f"s_add_u32 s27, s27, s{S_CB}"); A("s_lshl_b32 s27, s27, 2"); A("s_add_u32 s27, s27, s3")
    A("s_lshl_b32 s28, s27, 14"); A("v_lshlrev_b32 v57, 7, v12"); A("v_add_u32 v57, s28, v57")
    touch_lines(A, S_WSP, 57, 2, 8192)
    A("s_min_u32 s27, s27, 447")
    A("s_mul_i32 s28, s27, 1792"); A("v_min_u32 v57, 13, v12"); A("v_lshlrev_b32 v57, 7, v57"); A("v_add_u32 v58, s28, v57")
    A(f"global_load_dword v56, v58, s[{S_WOUT}:{S_WOUT+1}]", tag='touch')
    A("s_mul_i32 s28, s27, 3584"); A("v_add_u32 v58, s28, v57")
    A(f"global_load_dword v56, v58, s[{S_WIN}:{S_WIN+1}]", tag='touch')
    A("s_mul_i32 s28, s27, 896"); A("v_min_u32 v57, 6, v12"); A("v_lshlrev_b32 v57, 7, v57"); A("v_add_u32 v58, s28, v57")
    A(f"global_load_dword v56, v58, s[{S_WO}:{S_WO+1}]", tag='touch')

def wdma_setup(A, V):
    A("v_lshrrev_b32 v15, 1, v13"); A("v_xor_b32 v15, v15, v14")
    A("v_and_b32 v16, 1, v13"); A("v_lshlrev_b32 v16, 4, v16")
    A("v_mul_u32_u24 v17, 3584, v14"); A("v_add_u32 v16, v16, v17"); A(f"v_mov_b32 v18, {OOB}")
    for uu in range(4):
        if uu == 2: A("v_xor_b32 v15, 4, v15")
        A(f"v_lshl_add_u32 v{V+uu}, v15, 5, v16")
        if uu: A(f"v_add_u32 v{V+uu}, {uu*(4*3584-1024)}, v{V+uu}")
        A("v_cmp_eq_u32 vcc, 7, v15"); A(f"v_cndmask_b32 v{V+uu}, v{V+uu}, v18, vcc")
def wread_setup(A, V, base):
    A("v_lshrrev_b32 v15, 2, v13"); A("v_lshl_add_u32 v16, v14, 3, v15"); A("v_lshlrev_b32 v16, 8, v16")
    A("v_and_b32 v17, 3, v13"); A("v_lshl_add_u32 v16, v17, 3, v16"); A(f"v_add_u32 v16, {base}, v16")
    A("v_and_b32 v17, 1, v14"); A("v_lshl_or_b32 v17, v17, 2, v15")
    for j in range(7):
        A(f"v_xor_b32 v18, {j}, v17"); A(f"v_lshl_add_u32 v{V+j}, v18, 5, v16")

GC = dict(VC1=32, VC2=34, VONE=36)
def gelu_consts(A):
    for r, val in ((32, GELU_C1), (34, GELU_C2), (36, 1.0)):
        A(f"v_mov_b32 v{r}, {hexf(val)}"); A(f"v_mov_b32 v{r+1}, {hexf(val)}")

class Z1Tile:
    WB, XB, ACC, GACC = 120, 176, 192, 220
    VW = 24
    def __init__(self, A, L, ring_base, vdma, sW):
        self.A, self.L, self.ring_base, self.vdma, self.sW = A, L, ring_base, vdma, sW
    def dma_w_list(self, c):
        st = (c + 1) % 3
        return [(f"s_add_u32 m0, s71, {self.ring_base + st*16384}", None), (f"s_add_u32 s23, s{self.sW}, {64*c*3584}", None)] + \
               [(f"buffer_load_dwordx4 v{self.vdma+uu}, s[12:15], s23 offen offset:{uu*1024} lds", ('w1', c)) for uu in range(4)]
    def dma_w(self, c):
        for t, tg in self.dma_w_list(c): self.A(t, tag=tg)
    def reads(self, c, h, buf, xoff):
        out = []
        st = (c + 1) % 3
        out.append((f"ds_read_b128 {v(self.XB+buf*8,4)}, v{20+h} offset:{xoff(c)}", ('zx', c, h)))
        out.append((f"ds_read_b128 {v(self.XB+buf*8+4,4)}, v31 offset:{(2*c+h)*64}", ('zx', c, h)))
        for j in range(7):
            for sec in range(2):
                out.append((f"ds_read_b64_tr_b16 {v(self.WB+buf*28+j*4+2*sec,2)}, v{self.VW+j} offset:{st*16384 + h*8192 + sec*1024}", ('zw', c, h, j)))
        return out
    def run(self, xoff, xwait, hooks):
        A = self.A
        ST(A, 'z1in')
        A.wait_vm([('w1', 0)] + xwait(0)); A.wait_lg(); A("s_barrier")
        if ('pre',) in hooks: hooks[('pre',)]()
        for t, tg in self.reads(0, 0, 0, xoff): A(t, tag=tg)
        for c in range(7):
            for h in range(2):
                kk = 2*c + h; buf = kk & 1
                todo = []
                if h == 0: todo = self.reads(c, 1, buf ^ 1, xoff)
                else:
                    if c < 6:
                        A.wait_vm([('w1', c+1)] + xwait(c+1))
                        A.wait_lg(); A("s_barrier"); ST(A, ('z', c))
                        if c + 3 <= 6: self.dma_w(c + 3)
                        todo = self.reads(c+1, 0, buf ^ 1, xoff)
                if (c, h) in hooks: hooks[(c, h)]()
                A.wait_lg([('zx', c, h)])
                d = v(self.GACC, 4)
                A(f"v_mfma_f32_16x16x32_bf16 {d}, {v(self.XB+buf*8+4,4)}, {v(self.XB+buf*8,4)}, {d if kk else 0}")
                for _ in range(2):
                    if todo: t, tg = todo.pop(0); A(t, tag=tg)
                for j in range(7):
                    A.wait_lg([('zw', c, h, j)])
                    d = v(self.ACC + 4*j, 4)
                    A(f"v_mfma_f32_16x16x32_bf16 {d}, {v(self.WB+buf*28+j*4,4)}, {v(self.XB+buf*8,4)}, {d if kk else 0}")
                    for _ in range(2):
                        if todo: t, tg = todo.pop(0); A(t, tag=tg)
    def epilogue(self, svc):
        A = self.A
        ST(A, 'z1out')
        G = self.GACC
        A(f"v_mul_f32 v{G}, {hexf(1.4426950408889634)}, v{G}")
        A(f"v_exp_f32 v{G}, v{G}"); A(f"v_add_f32 v{G}, 1.0, v{G}"); A(f"v_rcp_f32 v{G}, v{G}")
        A("v_lshlrev_b32 v16, 2, v13")
        A(f"ds_bpermute_b32 v{G+1}, v16, v{G}", tag='gb')
        regs = [self.ACC + 2*p for p in range(14)]
        for q in range(0, 14, 4):
            gelu_pairs(A, regs[q:q+4], 224, 32, 34, 36)
            svc.step()
        A.wait_lg('gb')
        for p in range(14):
            r = self.ACC + 2*p
            A(f"v_mul_f32 v{r}, v{r}, v{G+1}"); A(f"v_mul_f32 v{r+1}, v{r+1}, v{G+1}")
            A(f"v_cvt_pk_bf16_f32 v{240+p}, v{r}, v{r+1}")
        ST(A, 'z1epi')

L_AST, L_GW, L_ZR, L_GL, L_RING = 58368, 107520, 108544, 110592, 114688
XH = 57344

def load_gw_tables(A, gwb, zrb, tag):
    A(f"s_mov_b32 s23, 896"); srd_from(A, 16, S_GW, None, 896)
    A("v_lshlrev_b32 v16, 4, v12"); A(f"v_mov_b32 v18, {OOB}")
    A(f"s_mov_b32 m0, {gwb}"); A("buffer_load_dwordx4 v16, s[16:19], 0 offen lds", tag=tag)
    A(f"s_mov_b32 m0, {zrb}"); A("buffer_load_dwordx4 v18, s[16:19], 0 offen lds", tag=tag)
def gw_addr(A, vreg, gwb, zrb):
    A("v_cmp_eq_u32 vcc, 0, v13"); A(f"v_mov_b32 v16, {zrb}"); A(f"v_mov_b32 v17, {gwb}"); A(f"v_cndmask_b32 v{vreg}, v16, v17, vcc")
    A(f"v_lshl_add_u32 v{vreg}, v14, 4, v{vreg}")
def z1_xaddr(A):
    A("v_lshrrev_b32 v15, 2, v13"); A("v_lshlrev_b32 v15, 3, v15"); A("v_and_b32 v16, 3, v13"); A("v_add_u32 v15, v15, v16")
    A("v_and_b32 v16, 7, v13"); A("v_xor_b32 v16, v16, v14"); A("v_lshlrev_b32 v16, 4, v16"); A("v_lshl_add_u32 v16, v15, 7, v16")
    A("s_lshr_b32 s23, s3, 1"); A("s_lshl_b32 s23, s23, 12"); A("s_and_b32 s24, s3, 1"); A("s_lshl_b32 s24, s24, 9"); A("s_add_u32 s23, s23, s24")
    A("v_add_u32 v20, s23, v16"); A("v_xor_b32 v21, 64, v20")
def load_bias(A):
    A(f"s_lshl_b32 s23, s{S_RB2}, 6"); A("s_lshr_b32 s24, s3, 1"); A("s_lshl_b32 s24, s24, 5"); A("s_add_u32 s23, s23, s24")
    A("s_and_b32 s24, s3, 1"); A("s_lshl_b32 s24, s24, 2"); A("s_add_u32 s23, s23, s24")
    A("v_lshrrev_b32 v15, 2, v13"); A("v_lshlrev_b32 v15, 3, v15"); A("v_and_b32 v16, 3, v13"); A("v_add_u32 v15, v15, v16")
    A("v_add_u32 v15, s23, v15"); A("v_lshlrev_b32 v15, 1, v15")
    srd_from(A, 16, S_BSP, None, S*2)
    A("buffer_load_ushort v254, v15, s[16:19], 0 offen", tag='bias')

def role_z(A, L):
    ACC1, ACC2 = 64, 120
    acc1 = lambda j, aa: ACC1 + (j*2+aa)*4
    acc2 = lambda j, aa: ACC2 + (j*2+aa)*4
    WB = 176
    wf = lambda buf, j: WB + buf*28 + j*4
    xf = lambda kk, aa: 144 + (kk*2+aa)*4
    A("v_lshrrev_b32 v15, 3, v12"); A("v_and_b32 v16, 7, v12"); A("v_and_b32 v17, 3, v15"); A("v_xor_b32 v16, v16, v17"); A("v_lshlrev_b32 v16, 4, v16")
    A("v_mul_u32_u24 v17, 896, v15")
    for uu in range(4):
        if uu & 1: A("v_xor_b32 v18, 64, v16"); A(f"v_add_u32 v{1+uu}, v18, v17")
        else: A(f"v_add_u32 v{1+uu}, v16, v17")
        if uu: A(f"v_add_u32 v{1+uu}, {uu*(8*896-1024)}, v{1+uu}")
    wdma_setup(A, 5)
    A(f"s_lshl_b32 s72, s{S_RB}, 2"); A("s_add_u32 s72, s72, s3")
    A(f"s_mul_i32 s23, s72, {32*896}"); srd_from(A, 8, S_X, 23, 32*896)
    srd_from(A, 12, S_WIN, None, 448*3584)
    A(f"s_mul_i32 s25, s3, {16*3584}"); A(f"s_mul_i32 s23, s{S_CB}, 224"); A("s_add_u32 s25, s25, s23"); A("s_add_u32 s24, s25, 1792")
    A("s_lshl_b32 s71, s3, 12")
    def dma_x(c):
        return [(f"s_add_u32 m0, s71, {c*16384}", None), (f"s_mov_b32 s23, {c*128}", None)] + \
               [(f"buffer_load_dwordx4 v{1+uu}, s[8:11], s23 offen offset:{uu*1024} lds", ('x', c)) for uu in range(4)]
    def dma_w(c, which=1):
        base = (L_RING + (c % 3)*16384) if which == 1 else c*16384
        return [(f"s_add_u32 m0, s71, {base}", None), (f"s_add_u32 s23, s{24 if which == 1 else 25}, {64*c*3584}", None)] + \
               [(f"buffer_load_dwordx4 v{5+uu}, s[12:15], s23 offen offset:{uu*1024} lds", ('w', which, c)) for uu in range(4)]
    def emit(lst):
        for t, tg in lst: A(t, tag=tg)
    for c in range(2): emit(dma_w(c)); emit(dma_x(c))
    ST(A, 1)
    A("v_lshrrev_b32 v15, 2, v13"); A("v_lshlrev_b32 v15, 3, v15"); A("v_and_b32 v16, 3, v13"); A("v_add_u32 v15, v15, v16")
    A("v_and_b32 v16, 7, v13"); A("v_xor_b32 v16, v16, v14"); A("v_lshlrev_b32 v16, 4, v16"); A("v_lshl_add_u32 v16, v15, 7, v16")
    A("v_add_u32 v20, s71, v16"); A("v_xor_b32 v21, 64, v20"); A("v_add_u32 v22, 0x10000, v20"); A("v_add_u32 v23, 0x10000, v21")
    wread_setup(A, 24, L_RING)
    gelu_consts(A)
    A(f"s_mul_i32 s74, s3, 12288"); A(f"s_add_u32 s74, s74, {L_RING}")
    svc = AService(A, 74)
    def reads_w(which, c, h, buf):
        out = []
        off = ((c % 3) if which == 1 else (c % 4))*16384 + h*8192
        for j in range(7):
            for sec in range(2):
                out.append((f"ds_read_b64_tr_b16 {v(wf(buf,j)+2*sec,2)}, v{24+j} offset:{off + sec*1024}", ('wf', which, c, h, j)))
        return out
    def reads_x(c):
        return [(f"ds_read_b128 {a(xf(2*c+h,aa),4)}, v{20 + h + (2 if c >= 4 else 0)} offset:{(c % 4)*16384 + aa*512}", ('xf', c, h)) for h in range(2) for aa in range(2)]
    A.wait_vm([('w', 1, 0), ('x', 0)]); A("s_barrier")
    ST(A, 2)
    emit(reads_x(0)); emit(reads_w(1, 0, 0, 0))
    for c in range(7):
        for h in range(2):
            kk = 2*c + h; buf = kk & 1
            todo = []; vq = []
            if h == 0:
                todo = reads_w(1, c, 1, buf ^ 1)
                if c == 0: vq += dma_w(2)
                if c + 2 <= 6: vq += dma_x(c + 2)
            else:
                if c < 6: A.wait_vm([('w', 1, c+1), ('x', c+1)])
                A.wait_lg(); A("s_barrier"); ST(A, ('g', c))
                if c + 3 <= 6: vq += dma_w(c + 3)
                for cc in {3: (0,), 4: (1, 2), 5: (3, 4), 6: (5, 6)}.get(c, ()): vq += dma_w(cc, 2)
                if c < 6: todo = reads_w(1, c+1, 0, buf ^ 1)[:2] + reads_x(c+1) + reads_w(1, c+1, 0, buf ^ 1)[2:]
            A.wait_lg([('xf', c, h)])
            for j in range(7):
                A.wait_lg([('wf', 1, c, h, j)])
                for aa in range(2):
                    d = v(acc1(j,aa), 4)
                    A(f"v_mfma_f32_16x16x32_bf16 {d}, {a(xf(kk,aa),4)}, {v(wf(buf,j),4)}, {d if kk else 0}")
                    for _ in range(2):
                        if todo: t, tg = todo.pop(0); A(t, tag=tg)
                    if vq: t, tg = vq.pop(0); A(t, tag=tg)
            emit(todo); emit(vq)
            if c == 4 and h == 1: touch_late(A)
    ST(A, 3)
    tag_issue(A)
    svc.setup(); svc.start()
    TMP = 232 - 8 - 0
    TMP = 176
    regs = [ACC1 + 2*p for p in range(28)]
    for q in range(0, 28, 4): gelu_pairs(A, regs[q:q+4], TMP, 32, 34, 36)
    SUM, M2, PUB = 192, 200, 208
    for aa in range(2):
        for rp in range(2):
            d = SUM + aa*4 + rp*2
            A(f"v_pk_add_f32 {v(d,2)}, {v(acc1(0,aa)+2*rp,2)}, {v(acc1(1,aa)+2*rp,2)}")
            for j in range(2, 7): A(f"v_pk_add_f32 {v(d,2)}, {v(d,2)}, {v(acc1(j,aa)+2*rp,2)}")
    def dpp16(rs):
        for sh in (8, 4, 2, 1):
            for r in rs: A(f"v_add_f32_dpp v{r}, v{r}, v{r} row_ror:{sh} row_mask:0xf bank_mask:0xf")
    dpp16(range(SUM, SUM+8))
    A(f"v_mov_b32 v38, {hexf(1.0/112)}"); A(f"v_mov_b32 v39, {hexf(1.0/112)}")
    for p in range(4): A(f"v_pk_mul_f32 {v(SUM+2*p,2)}, {v(SUM+2*p,2)}, {v(38,2)}")
    for aa in range(2):
        for rp in range(2):
            d = M2 + aa*4 + rp*2; mreg = SUM + aa*4 + rp*2
            for j in range(7):
                t = TMP + 2*(j & 1)
                A(f"v_pk_add_f32 {v(t,2)}, {v(acc1(j,aa)+2*rp,2)}, {v(mreg,2)} neg_lo:[0,1] neg_hi:[0,1]")
                if j == 0: A(f"v_pk_mul_f32 {v(d,2)}, {v(t,2)}, {v(t,2)}")
                else: A(f"v_pk_fma_f32 {v(d,2)}, {v(t,2)}, {v(t,2)}, {v(d,2)}")
    dpp16(range(M2, M2+8))
    A("v_and_b32 v16, 3, v13")
    for q in range(3): A(f"v_cmp_eq_u32 s[{26+2*q}:{27+2*q}], {q+1}, v16")
    for e, (base, odd) in enumerate(((SUM, 0), (M2, 0), (SUM, 1), (M2, 1))):
        A(f"v_mov_b32 v{PUB+e}, v{base+odd}")
        for q in range(3): A(f"v_cndmask_b32 v{PUB+e}, v{PUB+e}, v{base+2*(q+1)+odd}, s[{26+2*q}:{27+2*q}]")
    A(f"s_lshl_b32 s23, s{S_RB}, 3"); A(f"s_add_u32 s23, s23, s{S_CB}"); A("s_lshl_b32 s23, s23, 7")
    A("s_lshl_b32 s27, s3, 5"); A("s_add_u32 s23, s23, s27"); A("s_lshl_b32 s23, s23, 3")
    A(f"s_mov_b32 s27, {WS_LNP}"); srd_from(A, 16, S_WS, 27, 16*8*128*8)
    A("v_lshlrev_b32 v19, 6, v14"); A("v_lshl_add_u32 v19, v16, 4, v19")
    A("s_mov_b64 s[34:35], exec"); A("s_mov_b32 exec_lo, 0x000f000f"); A("s_mov_b32 exec_hi, 0x000f000f")
    A(f"buffer_store_dwordx4 {v(PUB,4)}, v19, s[16:19], s23 offen sc1", tag='lnp')
    A("s_mov_b64 exec, s[34:35]")
    ST(A, 4)
    A.wait_vm([('w', 2, c) for c in range(7)]); A("s_barrier"); ST(A, 'w2')
    for j in range(7): A(f"v_subrev_u32 v{24+j}, {L_RING}, v{24+j}")
    emit(reads_w(2, 0, 0, 0))
    for c in range(7):
        for h in range(2):
            kk = 2*c + h; buf = kk & 1
            nxt = (c, 1) if h == 0 else ((c+1, 0) if c < 6 else None)
            if h == 0 and c in (0, 1, 2, 4, 5, 6): svc.step()
            if h == 1 and c in (1, 5): svc.step()
            if c == 3 and h == 0:
                A.wait_vm('lnp'); tag_take(A, lambda x: L('z' + x)); A("s_barrier")
                A(f"s_lshl_b32 s27, s{S_RB}, 7"); A(f"s_lshl_b32 s28, s{S_CB}, 3"); A("s_add_u32 s27, s27, s28"); A(f"s_add_u32 s27, s27, {WS_F0}")
                signal(A, L, 'sigln', 27)
            todo = []
            if nxt:
                if nxt == (4, 0):
                    for j in range(7): A(f"v_add_u32 v{24+j}, 0x10000, v{24+j}")
                todo = reads_w(2, nxt[0], nxt[1], buf ^ 1)
            for j in range(7):
                A.wait_lg([('wf', 2, c, h, j)])
                for aa in range(2):
                    d = v(acc2(j,aa), 4)
                    A(f"v_mfma_f32_16x16x32_bf16 {d}, {v(wf(buf,j),4)}, {a(xf(kk,aa),4)}, {d if kk else 0}")
                    if todo: t, tg = todo.pop(0); A(t, tag=tg)
            emit(todo)
    ST(A, 5)
    wf_issue(A)
    TMP = 176
    regs = [ACC2 + 2*p for p in range(28)]
    for q in range(0, 28, 4):
        gelu_pairs(A, regs[q:q+4], TMP, 32, 34, 36)
        if q in (0, 4, 8, 12, 16, 20): svc.step()
    A("s_lshl_b32 s23, s72, 1"); A("s_mul_i32 s23, s23, 56"); A(f"s_mul_i32 s27, s{S_CB}, 7"); A("s_add_u32 s23, s23, s27"); A("s_lshl_b32 s23, s23, 9")
    A(f"s_add_u32 s23, s23, {WS_Z1F}"); srd_from(A, 16, S_WS, 23, 56*512 + 7*512)
    A("v_lshlrev_b32 v18, 3, v12")
    P = 192
    for aa in range(2):
        if aa: A(f"s_mov_b32 s23, {56*512}")
        for j in range(7):
            c = acc2(j,aa); p = P + 2*(j & 3)
            A(f"v_cvt_pk_bf16_f32 v{p}, v{c}, v{c+1}"); A(f"v_cvt_pk_bf16_f32 v{p+1}, v{c+2}, v{c+3}")
            A(f"buffer_store_dwordx2 {v(p,2)}, v18, s[16:19], {'s23' if aa else 0} offen offset:{j*512} sc1", tag='pubst')
    ST(A, 6)
    A(f"s_lshl_b32 s27, s{S_RB}, 7"); A(f"s_add_u32 s27, s27, {WS_F0}"); A("v_lshl_add_u32 v17, v12, 3, s27")
    poll(A, L, 'pln', 17, 8)
    ST(A, 7)
    A(f"s_lshl_b32 s23, s{S_RB}, 10"); A("s_lshl_b32 s27, s3, 5"); A("s_add_u32 s23, s23, s27"); A("s_lshl_b32 s23, s23, 3")
    A(f"s_mov_b32 s27, {WS_LNP}"); srd_from(A, 16, S_WS, 27, 16*8*128*8)
    A("v_and_b32 v18, 7, v12"); A("v_lshlrev_b32 v18, 10, v18"); A("v_lshl_add_u32 v18, v14, 6, v18")
    Q, MB = 192, 208
    for q in range(4): A(f"buffer_load_dwordx4 {v(Q+4*q,4)}, v18, s[16:19], s23 offen offset:{16*q} sc1", tag='lnq')
    svc.step()
    wf_store(A)
    A.wait_vm('lnq')
    ST(A, 'lnq')
    def red8(rs):
        for pat in ("quad_perm:[1,0,3,2]", "quad_perm:[2,3,0,1]", "row_half_mirror"):
            for r in rs: A(f"v_add_f32_dpp v{r}, v{r}, v{r} {pat} row_mask:0xf bank_mask:0xf")
    for q in range(8): A(f"v_mov_b32 v{MB+q}, v{Q+2*q}")
    red8(range(MB, MB+8))
    for q in range(8): A(f"v_mul_f32 v{MB+q}, 0.125, v{MB+q}")
    A(f"v_mov_b32 v38, {hexf(112.0)}")
    for q in range(8):
        A(f"v_sub_f32 v{Q+2*q}, v{Q+2*q}, v{MB+q}"); A(f"v_mul_f32 v{Q+2*q}, v{Q+2*q}, v{Q+2*q}")
        A(f"v_fma_f32 v{MB+8+q}, v{Q+2*q}, v38, v{Q+2*q+1}")
    red8(range(MB+8, MB+16))
    svc.step()
    A(f"v_mov_b32 v38, {hexf(1.0/896)}"); A(f"v_mov_b32 v39, {hexf(1e-5)}")
    for q in range(8): A(f"v_fma_f32 v{MB+8+q}, v{MB+8+q}, v38, v39")
    for q in range(8): A(f"v_rsq_f32 v{MB+8+q}, v{MB+8+q}")
    for q in range(8): A(f"v_mul_f32 v{MB+q}, v{MB+q}, v{MB+8+q}")
    A(f"s_mul_i32 s23, s{S_CB}, {64*7168}"); A("s_mul_i32 s27, s72, 7168"); A("s_add_u32 s23, s23, s27")
    srd_from(A, 16, S_WS, 23, 7168)
    A("v_lshlrev_b32 v18, 4, v12"); A("v_add_u32 v19, 4096, v18")
    for j in range(7):
        p = Q + 4*(j & 3)
        for aa in range(2):
            c = acc1(j,aa)
            for rp in range(2):
                A(f"v_pk_fma_f32 {v(c+2*rp,2)}, {v(c+2*rp,2)}, {v(MB+8+aa*4+2*rp,2)}, {v(MB+aa*4+2*rp,2)} neg_lo:[0,0,1] neg_hi:[0,0,1]")
            A(f"v_cvt_pk_bf16_f32 v{p+2*aa}, v{c}, v{c+1}"); A(f"v_cvt_pk_bf16_f32 v{p+2*aa+1}, v{c+2}, v{c+3}")
        A(f"buffer_store_dwordx4 {v(p,4)}, v{18 if j < 4 else 19}, s[16:19], 0 offen offset:{(j%4)*1024} sc1", tag='pubst')
    ST(A, 'norm')
    if PROFILE == 'p3':
        A.raw("  s_waitcnt vmcnt(6)"); ST(A, 'st0'); A.raw("  s_waitcnt vmcnt(3)"); ST(A, 'st3')
    A.wait_vm('pubst'); ST(A, 'pubw'); A("s_barrier")
    A(f"s_lshl_b32 s27, s{S_CB}, 4"); A(f"s_add_u32 s27, s27, s{S_RB}"); A("s_lshl_b32 s27, s27, 3"); A(f"s_add_u32 s27, s27, {WS_F1}")
    signal(A, L, 'sigzd', 27)
    ST(A, 'sig')
    svc.finish()
    A.wait_lg()
    ST(A, 8)

QSTG = 45056; QGW = 3*QSTG; QZR = QGW + 1024; QP = 400
def role_q(A, L):
    A("v_lshrrev_b32 v15, 3, v12"); A("v_and_b32 v16, 7, v12")
    A("v_and_b32 v17, 3, v15"); A("v_xor_b32 v17, v16, v17"); A("v_lshlrev_b32 v17, 4, v17")
    A(f"s_lshl_b32 s24, s{S_RB}, 7"); A("s_sub_u32 s24, s24, 16"); A("s_mul_i32 s25, s3, 5")
    for uu in range(5):
        A(f"s_add_u32 s26, s25, {uu}")
        A("s_lshl_b32 s27, s26, 3"); A("s_add_u32 s27, s27, s24")
        A("v_add_u32 v18, s27, v15"); A("v_max_i32 v18, 0, v18"); A("v_mul_u32_u24 v18, 896, v18")
        A("s_and_b32 s27, s26, 1"); A("s_lshl_b32 s27, s27, 6"); A("v_xor_b32 v19, s27, v17")
        A("s_cmp_ge_u32 s26, 18"); A(f"s_cselect_b32 s27, {OOB}, 0")
        A(f"v_add3_u32 v{1+uu}, v18, v19, s27")
        if uu in (1, 2, 3): A(f"v_subrev_u32 v{1+uu}, {uu*1024}, v{1+uu}")
    A("v_and_b32 v18, 2, v15"); A("v_xor_b32 v18, v16, v18"); A("v_mul_u32_u24 v19, 2688, v15")
    for uu in range(2):
        if uu: A("v_xor_b32 v18, 4, v18")
        A(f"v_lshl_add_u32 v{6+uu}, v18, 4, v19")
        if uu: A(f"v_add_u32 v{6+uu}, {8*2688-1024}, v{6+uu}")
        A("v_cmp_eq_u32 vcc, 7, v18"); A(f"v_mov_b32 v16, {OOB}"); A(f"v_cndmask_b32 v{6+uu}, v{6+uu}, v16, vcc")
    A.wait_lg()
    A(f"s_sub_u32 s8, s{S_X}, 4096"); A(f"s_subb_u32 s9, s{S_X+1}, 0"); A("s_and_b32 s9, s9, 0xffff"); A(f"s_mov_b32 s10, {S*896 + 4096}"); A("s_mov_b32 s11, 0x20000")
    for uu in range(5): A(f"v_add_u32 v{1+uu}, 4096, v{1+uu}")
    srd_from(A, 12, S_WQKV, None, 448*2688)
    A(f"s_mul_i32 s24, s3, {16*2688}"); A(f"s_mul_i32 s25, s{S_CB}, 112"); A("s_add_u32 s24, s24, s25")
    A("s_mul_i32 s25, s3, 5120"); A("s_lshl_b32 s26, s3, 11"); A("s_add_u32 s26, s26, 20480")
    def dma(c):
        st = (c % 3)*QSTG; out = []
        for seg in range(3):
            out += [(f"s_add_u32 m0, s26, {st + seg*8192}", None), (f"s_add_u32 s23, s24, {64*c*2688 + seg*896}", None)]
            out += [(f"buffer_load_dwordx4 v{6+uu}, s[12:15], s23 offen offset:{uu*1024} lds", ('c', c)) for uu in range(2)]
        out += [(f"s_add_u32 m0, s25, {st}", None), (f"s_mov_b32 s23, {c*128}", None)]
        out += [(f"buffer_load_dwordx4 v{1+uu}, s[8:11], s23 offen offset:{uu*1024} lds", ('c', c)) for uu in range(4)]
        out += [(f"s_add_u32 m0, s25, {st + 4096}", None), (f"buffer_load_dwordx4 v5, s[8:11], s23 offen lds", ('c', c))]
        return out
    def emit(lst):
        for t, tg in lst: A(t, tag=tg)
    load_gw_tables(A, QGW, QZR, ('c', 0))
    for c in range(2): emit(dma(c))
    ST(A, 1)
    A("v_lshrrev_b32 v15, 3, v13"); A("v_lshlrev_b32 v15, 2, v15"); A("v_and_b32 v16, 3, v13"); A("v_or_b32 v15, v15, v16")
    A("v_xor_b32 v15, v15, v14"); A("v_lshlrev_b32 v15, 4, v15"); A("v_lshl_add_u32 v20, v13, 7, v15"); A("v_xor_b32 v21, 64, v20")
    A("s_lshl_b32 s23, s3, 12"); A("s_add_u32 s23, s23, 2048"); A("v_add_u32 v22, s23, v20"); A("v_add_u32 v23, s23, v21")
    A("s_lshr_b32 s23, s3, 1"); A("s_mul_i32 s23, s23, 56"); A("s_and_b32 s33, s3, 1"); A("s_lshl_b32 s34, s33, 5"); A("s_add_u32 s23, s23, s34")
    A("v_and_b32 v15, 3, v13"); A("v_lshlrev_b32 v16, 3, v15"); A("v_add_u32 v16, s23, v16")
    A("v_cmp_eq_u32 vcc, 3, v15"); A("s_cmp_eq_u32 s33, 1"); A("s_cselect_b64 s[34:35], vcc, 0")
    A("v_mov_b32 v17, 112"); A("v_cndmask_b32 v16, v16, v17, s[34:35]")
    A("v_lshrrev_b32 v17, 3, v13"); A("v_lshlrev_b32 v17, 1, v17"); A("v_and_b32 v18, 1, v14"); A("v_lshl_or_b32 v17, v18, 2, v17")
    A("v_lshrrev_b32 v18, 4, v16"); A("v_xor_b32 v18, v18, v17"); A("v_and_b32 v16, 8, v16"); A("v_lshl_or_b32 v16, v18, 4, v16")
    A("v_lshrrev_b32 v17, 2, v13"); A("v_lshl_add_u32 v17, v14, 3, v17"); A("v_lshl_add_u32 v24, v17, 7, v16"); A("v_add_u32 v24, 20480, v24")
    gw_addr(A, 25, QGW, QZR)
    XB = 256; xf = lambda buf, t: XB + buf*44 + t*4
    WB = 256 + 88; wf = lambda buf, t: WB + buf*16 + t*4
    ACC = 64
    def acc(t, RT):
        if t == 0: return ACC + (RT-1)*4
        if t == 3: return ACC + (26 + RT)*4
        return ACC + (8 + (t-1)*9 + RT)*4
    def reads(c, h, buf):
        out = []
        for t in range(3):
            for sec in range(2):
                out.append((f"ds_read_b64_tr_b16 {u(wf(buf,t)+2*sec,2)}, v24 offset:{t*8192 + h*4096 + sec*512}", ('w', c, h)))
        out.append((f"ds_read_b128 {u(wf(buf,3),4)}, v25 offset:{(2*c+h)*64}", ('w', c, h)))
        for RT in range(9): out.append((f"ds_read_b128 {u(xf(buf,RT),4)}, v{20+h} offset:{RT*2048}", ('x', c, h, RT)))
        for q in range(2): out.append((f"ds_read_b128 {u(xf(buf,9+q),4)}, v{22+h} offset:{q*2048}", ('x', c, h, 9+q)))
        return out
    def bump(c):
        d = QSTG if (c % 3) < 2 else -2*QSTG
        for r in (20, 21, 22, 23, 24):
            if d > 0: A(f"v_add_u32 v{r}, {d}, v{r}")
            else: A(f"v_subrev_u32 v{r}, {-d}, v{r}")
    A.wait_vm(('c', 0)); A("s_barrier")
    ST(A, 2)
    for t, tg in reads(0, 0, 0): A(t, tag=tg)
    for c in range(7):
        for h in range(2):
            kk = 2*c + h; buf = kk & 1
            todo = []; vq = []
            if h == 0:
                todo = reads(c, 1, buf ^ 1)
                if c == 0: vq = dma(2)
            else:
                if c < 6: A.wait_vm(('c', c+1))
                A.wait_lg(); A("s_barrier"); ST(A, ('g', c))
                if c + 3 <= 6: vq = dma(c+3)
                if c < 6:
                    bump(c); todo = reads(c+1, 0, buf ^ 1)
            order = [(1,0),(2,0)] + [(t, RT) for RT in range(1, 9) for t in range(3)] + [(3,0),(3,1)]
            n = 0
            for (t, RT) in order:
                xt = RT if t < 3 else 9 + RT
                A.wait_lg([('w', c, h), ('x', c, h, xt)])
                d = v(acc(t, RT), 4)
                A(f"v_mfma_f32_16x16x32_bf16 {d}, {u(wf(buf,t),4)}, {u(xf(buf,xt),4)}, {d if kk else 0}")
                n += 1
                if todo: tt, tg = todo.pop(0); A(tt, tag=tg)
                if vq: tt, tg = vq.pop(0); A(tt, tag=tg)
            while todo: tt, tg = todo.pop(0); A(tt, tag=tg)
            emit(vq)
    ST(A, 3)
    tag_issue(A)
    A(f"s_mul_i32 s74, s3, 12288"); A(f"s_add_u32 s74, s74, {L_AST}")
    svc = AService(A, 74); svc.setup()
    A(f"v_mul_u32_u24 v15, {QP}, v13")
    A("s_lshr_b32 s23, s3, 1"); A("s_lshl_b32 s23, s23, 6"); A("s_and_b32 s33, s3, 1"); A("s_lshl_b32 s33, s33, 5"); A("s_add_u32 s23, s23, s33")
    A("v_lshl_add_u32 v15, v14, 3, v15"); A("v_add_u32 v26, s23, v15")
    P = 176; n = 0
    for t in range(3):
        for RT in range(0 if t else 1, 9):
            c = acc(t, RT); p = P + 2*(n & 7); n += 1
            A(f"v_cvt_pk_bf16_f32 v{p}, v{c}, v{c+1}"); A(f"v_cvt_pk_bf16_f32 v{p+1}, v{c+2}, v{c+3}")
            A(f"ds_write_b64 v26, {v(p,2)} offset:{RT*16*QP + t*128}", tag='qkv')
    for q in range(2):
        c = acc(3, q)
        A(f"v_mul_f32 v{c}, {hexf(-1.4426950408889634)}, v{c}")
        A(f"v_exp_f32 v{c}, v{c}"); A(f"v_add_f32 v{c}, 1.0, v{c}"); A(f"v_rcp_f32 v{c}, v{c}")
    A("s_lshl_b32 s23, s3, 7"); A(f"s_add_u32 s23, s23, {L_GL}")
    A("v_lshlrev_b32 v15, 2, v13"); A("v_add_u32 v16, s23, v15")
    A("s_mov_b64 s[34:35], exec"); A("s_mov_b64 exec, 0xffff")
    for q in range(2): A(f"ds_write_b32 v16, v{acc(3,q)} offset:{q*64}", tag='qkv')
    A(f"s_mov_b32 s23, {WS_GATE}"); srd_from(A, 16, S_WS, 23, S*4)
    A(f"s_cmp_eq_u32 s{S_CB}, 0"); A("s_cselect_b32 s18, s18, 0")
    A(f"s_lshl_b32 s23, s{S_RB}, 9"); A("s_lshl_b32 s33, s3, 7"); A("s_add_u32 s23, s23, s33")
    for q in range(2): A(f"buffer_store_dword v{acc(3,q)}, v15, s[16:19], s23 offen offset:{q*64} sc1", tag='pubst')
    A("s_mov_b64 exec, s[34:35]")
    svc.start()
    A.wait_lg(); A("s_barrier")
    ST(A, 4)
    A("s_lshr_b32 s33, s3, 1"); A("s_and_b32 s34, s3, 1"); A("s_lshl_b32 s35, s33, 6")
    A(f"s_mul_i32 s32, s34, {64*QP}"); A("s_add_u32 s35, s35, s32")
    A("v_lshlrev_b32 v15, 1, v13")
    A(f"v_mul_u32_u24 v16, {QP}, v15"); A("v_lshl_add_u32 v16, v14, 4, v16"); A("v_add_u32 v16, s35, v16")
    A(f"v_add_u32 v20, {16*QP}, v16"); A(f"v_add_u32 v21, 128, v16")
    A("v_lshlrev_b32 v17, 2, v15"); A("s_lshl_b32 s32, s34, 8"); A(f"s_add_u32 s32, s32, {L_GL}"); A("v_add_u32 v22, s32, v17")
    A("v_lshrrev_b32 v17, 2, v13"); A("v_and_b32 v18, 3, v13"); A("v_lshlrev_b32 v18, 3, v18"); A("v_add_u32 v18, s35, v18"); A("v_add_u32 v18, 256, v18")
    for T in range(2):
        if T == 0: A("v_lshl_add_u32 v19, v14, 2, v17")
        else: A("v_and_b32 v19, 1, v14"); A("v_lshl_add_u32 v19, v19, 2, v17"); A("v_add_u32 v19, 16, v19")
        A("v_lshlrev_b32 v19, 1, v19"); A(f"v_mul_u32_u24 v19, {QP}, v19"); A(f"v_add_u32 v{23+T}, v19, v18")
    UB = 64
    rowoff = lambda b: (32*(b >> 1) + (b & 1))
    Q_ = lambda b: UB + b*24; K_ = lambda b, T: UB + b*24 + 4 + 4*T; V_ = lambda b, mt: UB + b*24 + 12 + 4*mt; G_ = lambda b: UB + b*24 + 20
    for b in range(4):
        A(f"ds_read_b128 {v(Q_(b),4)}, v20 offset:{rowoff(b)*QP}", tag=('u', b))
        for T in range(2): A(f"ds_read_b128 {v(K_(b,T),4)}, v21 offset:{(rowoff(b)+32*T)*QP}", tag=('u', b))
    for b in range(4):
        for mt in range(2):
            for T in range(2): A(f"ds_read_b64_tr_b16 {v(V_(b,mt)+2*T,2)}, v{23+T} offset:{rowoff(b)*QP + mt*32}", tag=('vv', b))
        A(f"ds_read_b32 v{G_(b)}, v22 offset:{rowoff(b)*4}", tag=('vv', b))
    SC = 160; sc = lambda b, T: SC + b*8 + 4*T
    for b in range(4):
        A.wait_lg(('u', b))
        for T in range(2): A(f"v_mfma_f32_16x16x32_bf16 {v(sc(b,T),4)}, {v(K_(b,T),4)}, {v(Q_(b),4)}, 0")
    wf_issue(A)
    svc.step()
    cs = (28 ** -0.5) * 1.4426950408889634
    A(f"v_mov_b32 v26, {hexf(cs)}"); A(f"v_mov_b32 v27, {hexf(cs)}"); A(f"v_mov_b32 v28, {hexf(-1e30)}")
    for b in range(4):
        for q in range(4): A(f"v_pk_mul_f32 {v(sc(b,0)+2*q,2)}, {v(sc(b,0)+2*q,2)}, {v(26,2)}")
    A("v_lshlrev_b32 v15, 2, v14"); A("v_sub_u32 v15, v13, v15"); A("v_add_u32 v15, 8, v15")
    A("s_and_b32 s34, s3, 1"); A(f"s_or_b32 s34, s34, s{S_RB}")
    A("v_min_u32 v16, 7, v13"); A("s_cmp_eq_u32 s34, 0"); A("s_cselect_b64 s[34:35], -1, 0")
    A("v_mov_b32 v17, 7"); A("v_cndmask_b32 v16, v17, v16, s[34:35]")
    MS = [24, 26, 28, 30, 64, 66, 32, 34]
    for (lim, bs) in ((17, (2, 3)), (16, (0, 1))):
        for q in range(8):
            A(f"v_subrev_u32 v18, {16*(q >> 2) + (q & 3)}, v15")
            A(f"v_cmp_le_u32 s[{MS[q]}:{MS[q]+1}], v18, v{lim}")
        for b in bs:
            for q in range(8):
                A(f"v_cndmask_b32 v{sc(b,0)+q}, v28, v{sc(b,0)+q}, s[{MS[q]}:{MS[q]+1}]")
    MX = 192; M2 = 196
    def xreduce(op):
        for swap in ("v_permlane16_swap_b32", "v_permlane32_swap_b32"):
            for b in range(4): A(f"v_mov_b32 v{M2+b}, v{MX+b}")
            for b in range(4): A(f"{swap} v{MX+b}, v{M2+b}")
            for b in range(4): A(f"{op} v{MX+b}, v{MX+b}, v{M2+b}")
    for b in range(4): s0 = sc(b,0); A(f"v_max3_f32 v{MX+b}, v{s0}, v{s0+1}, v{s0+2}")
    for b in range(4): s0 = sc(b,0); A(f"v_max3_f32 v{MX+b}, v{MX+b}, v{s0+3}, v{s0+4}")
    for b in range(4): s0 = sc(b,0); A(f"v_max3_f32 v{MX+b}, v{MX+b}, v{s0+5}, v{s0+6}")
    for b in range(4): s0 = sc(b,0); A(f"v_max_f32 v{MX+b}, v{MX+b}, v{s0+7}")
    xreduce("v_max_f32")
    for b in range(4):
        for q in range(8): A(f"v_sub_f32 v{sc(b,0)+q}, v{sc(b,0)+q}, v{MX+b}")
    for b in range(4):
        for q in range(8): A(f"v_exp_f32 v{sc(b,0)+q}, v{sc(b,0)+q}")
    svc.step()
    for b in range(4): s0 = sc(b,0); A(f"v_add_f32 v{MX+b}, v{s0}, v{s0+1}")
    for q in range(2, 8):
        for b in range(4): A(f"v_add_f32 v{MX+b}, v{MX+b}, v{sc(b,0)+q}")
    xreduce("v_add_f32")
    for b in range(4): A(f"v_rcp_f32 v{MX+b}, v{MX+b}")
    PB = 200
    for b in range(4):
        for q in range(8): A(f"v_mul_f32 v{sc(b,0)+q}, v{sc(b,0)+q}, v{MX+b}")
    for b in range(4):
        for q in range(4): A(f"v_cvt_pk_bf16_f32 v{PB+4*b+q}, v{sc(b,0)+2*q}, v{sc(b,0)+2*q+1}")
    OB = 160
    for b in range(4):
        for mt in range(2): A(f"v_mfma_f32_16x16x32_bf16 {v(OB+8*b+4*mt,4)}, {v(V_(b,mt),4)}, {v(PB+4*b,4)}, 0")
    ST(A, 5)
    svc.step()
    A("v_and_b32 v15, 1, v13"); A("v_lshlrev_b32 v15, 1, v15"); A("v_bfe_u32 v16, v13, 1, 1"); A("v_or_b32 v15, v15, v16")
    A("v_and_b32 v16, 12, v13"); A("v_or_b32 v15, v15, v16"); A("v_lshl_add_u32 v15, v14, 4, v15"); A("v_lshlrev_b32 v29, 4, v15")
    A(f"s_lshl_b32 s23, s{S_RB}, 1"); A("s_and_b32 s33, s3, 1"); A("s_add_u32 s23, s23, s33"); A("s_mul_i32 s23, s23, 44")
    A(f"s_lshl_b32 s33, s{S_CB}, 1"); A("s_add_u32 s23, s23, s33"); A("s_lshr_b32 s33, s3, 1"); A("s_add_u32 s23, s23, s33")
    A("s_lshl_b32 s23, s23, 12"); A(f"s_add_u32 s23, s23, {WS_AF}")
    srd_from(A, 16, S_WS, 23, 4096)
    A("v_and_b32 v15, 2, v13"); A("v_cmp_eq_u32 vcc, 0, v15"); A("v_cmp_ne_u32 s[24:25], 0, v15")
    for b in range(4):
        o = OB + 8*b
        for q in range(8): A(f"v_mul_f32 v{o+q}, v{o+q}, v{G_(b)}")
        for q in range(4): A(f"v_cvt_pk_bf16_f32 v{PB+4*b+q}, v{o+2*q}, v{o+2*q+1}")
    for bb in range(2):
        X0 = PB + 8*bb; X1 = X0 + 4; Y = 216 + 8*bb
        for q in range(4):
            A(f"v_mov_b32_dpp v{Y+q}, v{X1+q} quad_perm:[2,3,0,1] row_mask:0xf bank_mask:0xf")
            A(f"v_mov_b32_dpp v{Y+4+q}, v{X0+q} quad_perm:[2,3,0,1] row_mask:0xf bank_mask:0xf")
        for q in range(4):
            A(f"v_cndmask_b32 v{Y+q}, v{Y+q}, v{X0+q}, vcc")
            A(f"v_cndmask_b32 v{Y+4+q}, v{Y+4+q}, v{X1+q}, s[24:25]")
        for aa in range(2):
            A(f"buffer_store_dwordx4 {v(Y+4*aa,4)}, v29, s[16:19], 0 offen offset:{(2*bb+aa)*1024} sc1", tag='pubst')
    ST(A, 6)
    svc.step()
    wf_store(A)
    A.wait_vm('pubst'); tag_take(A, lambda x: L('q' + x)); A("s_barrier")
    A(f"s_lshl_b32 s27, s{S_RB}, 3"); A(f"s_add_u32 s27, s27, s{S_CB}"); A("s_add_u32 s27, s27, 128"); A("s_lshl_b32 s27, s27, 3"); A(f"s_add_u32 s27, s27, {WS_F1}")
    signal(A, L, 'sigqd', 27)
    ST(A, 7)
    svc.finish()
    A.wait_lg()
    ST(A, 8)

def phase2(A, L):
    ACC, BR = 32, 144
    acc = lambda j, tau: ACC + (j*4+tau)*4
    bfrag = lambda kk, j: BR + (kk % 4)*28 + j*4
    afrag = lambda kk, tau: ((kk >> 1)*8 + (kk & 1)*4 + tau)*4
    A("v_lshlrev_b32 v3, 4, v12")
    A(f"s_mul_i32 s23, s{S_CB}, {64*7168}"); srd_from(A, 12, S_WS, 23, 64*7168)
    A(f"s_mul_i32 s26, s3, {16*7168}")
    A("v_add_u32 v4, 4096, v3")
    A(f"s_lshl_b32 s27, s{S_CB}, 7"); A(f"s_add_u32 s27, s27, {WS_F1}"); A("v_lshl_add_u32 v17, v12, 3, s27")
    A.wait_lg()
    poll(A, L, 'pa', 17, 16)
    ST(A, 10)
    def issueB(kk, js):
        for j in js:
            if j == js[0]: A(f"s_add_u32 s27, s26, {kk*7168}")
            A(f"buffer_load_dwordx4 {v(bfrag(kk,j),4)}, v{3 if j < 4 else 4}, s[12:15], s27 offen offset:{(j % 4)*1024} sc1", tag=('B', kk))
    for kk in range(3): issueB(kk, list(range(7)))
    c3ok = None
    A(f"s_mul_i32 s23, s{S_CB}, {44*4096}"); A(f"s_add_u32 s23, s23, {WS_WF}"); srd_from(A, 8, S_WS, 23, 44*4096)
    A(f"s_cmp_eq_u32 s{S_CB}, 7"); A("s_cselect_b32 s10, 0, s10")
    A(f"s_mul_i32 s23, s{S_RB2}, {44*4096}"); A(f"s_add_u32 s23, s23, {WS_AF}"); srd_from(A, 16, S_WS, 23, 44*4096)
    for tau in range(4):
        A(f"s_xor_b32 s24, s3, {tau}"); A("s_lshl_b32 s24, s24, 10"); A(f"v_add_u32 v{5+tau}, s24, v3")
    A("s_lshl_b32 s28, s3, 14")
    A(f"s_mul_i32 s29, s3, {7*4096}"); A(f"s_add_u32 s29, s29, {16*4096}")
    wq = []
    for s_ in range(4):
        for uu in range(4): wq.append((f"buffer_load_dwordx4 {a((s_*4+uu)*4,4)}, v3, s[8:11], SOFF offen offset:{uu*1024} sc1", 28, s_, ('Wo', s_)))
    for s_ in range(7):
        for uu in range(4): wq.append((f"buffer_load_dwordx4 {a(64+(s_*4+uu)*4,4)}, v3, s[8:11], SOFF offen offset:{uu*1024} sc1", 29, s_, ('Wh', s_)))
    def issueW(n):
        for _ in range(n):
            if not wq: return
            t, base, s_, tg = wq.pop(0)
            if 'offset:0 ' in t: A(f"s_add_u32 s30, s{base}, {s_*4096}")
            A(t.replace('SOFF', 's30'), tag=tg)
    def epi_loads():
        A(f"s_lshl_b32 s30, s{S_RB2}, 2"); A("s_add_u32 s30, s30, s3")
        A("s_mul_i32 s31, s30, 56"); A(f"s_mul_i32 s32, s{S_CB}, 7"); A("s_add_u32 s31, s31, s32"); A("s_lshl_b32 s31, s31, 9"); A(f"s_add_u32 s31, s31, {WS_Z1F}")
        srd_from(A, 64, S_WS, 31, 7*512)
        A("v_lshlrev_b32 v2, 3, v12")
        for j in range(7): A(f"buffer_load_dwordx2 {v(16+2*j,2)}, v2, s[64:67], 0 offen offset:{j*512} sc1", tag='epi')
        A(f"s_lshl_b32 s31, s{S_RB2}, 6"); A("s_lshr_b32 s32, s3, 1"); A("s_lshl_b32 s32, s32, 5"); A("s_add_u32 s31, s31, s32")
        A("s_and_b32 s32, s3, 1"); A("s_lshl_b32 s32, s32, 2"); A("s_add_u32 s31, s31, s32")
        A("v_lshrrev_b32 v2, 2, v13"); A("v_lshlrev_b32 v2, 3, v2"); A("v_and_b32 v1, 3, v13"); A("v_add_u32 v2, v2, v1"); A("v_add_u32 v2, s31, v2")
        A("v_lshlrev_b32 v1, 1, v2"); srd_from(A, 64, S_BSP, None, S*2)
        A("buffer_load_ushort v30, v1, s[64:67], 0 offen", tag='epi')
        A(f"s_mov_b32 s31, {WS_GATE}"); srd_from(A, 64, S_WS, 31, S*4)
        A("v_lshlrev_b32 v1, 2, v2"); A("buffer_load_dword v31, v1, s[64:67], 0 offen sc1", tag='epi')
    for kk in range(16):
        A.wait_vm(('B', kk))
        pend = list(range(7)) if kk + 3 < 16 else []
        m = 0
        if kk == 9:
            A(f"s_mov_b32 s27, {WS_F1}"); A("v_lshl_add_u32 v2, v12, 5, s27")
            for q2 in range(2): A(f"global_load_dwordx4 {v(16+4*q2,4)}, v2, s[{S_WS}:{S_WS+1}] offset:{16*q2} sc1", tag='fl')
        if kk == 12:
            A.wait_vm('fl')
            def check():
                out = []
                for q in range(8): out.append(f"v_xor_b32 v{16+q}, s{S_TAG + (q & 1)}, v{16+q}")
                out += ["v_or3_b32 v16, v16, v17, v18", "v_or3_b32 v19, v19, v20, v21", "v_or3_b32 v16, v16, v22, v23", "v_or_b32 v16, v16, v19", "v_cmp_eq_u32 vcc, 0, v16"]
                return out
            for t in check(): A(t)
            A("s_nop 1"); A("s_cmp_eq_u64 vcc, exec"); A(f"s_cbranch_scc1 {L('allok')}")
            A.raw("  s_mov_b32 s33, 0")
            A.raw(f"{L('allloop')}:")
            for q2 in range(2): A.raw(f"  global_load_dwordx4 {v(16+4*q2,4)}, v2, s[{S_WS}:{S_WS+1}] offset:{16*q2} sc1")
            A.raw("  s_add_u32 s33, s33, 1"); A.raw("  s_waitcnt vmcnt(0)")
            for t in check(): A.raw("  " + t)
            A.raw("  s_nop 1"); A.raw("  s_cmp_eq_u64 vcc, exec"); A.raw(f"  s_cbranch_scc1 {L('allok')}")
            A.raw(f"  s_sleep {SLEEP}"); A.raw("  s_cmp_lt_u32 s33, 0x20000"); A.raw(f"  s_cbranch_scc1 {L('allloop')}")
            A.label(L('allok'))
        if kk == 13: epi_loads()
        for j in range(7):
            for tau in range(4):
                c = v(acc(j,tau),4)
                A(f"v_mfma_f32_16x16x32_bf16 {c}, {v(bfrag(kk,j),4)}, {a(afrag(kk,tau),4)}, {c if kk else 0}")
                m += 1
                if pend and m % 4 == 1:
                    jj = pend.pop(0)
                    A(f"s_add_u32 s27, s26, {(kk+3)*7168}") if jj == 0 else None
                    A(f"buffer_load_dwordx4 {v(bfrag(kk+3,jj),4)}, v{3 if jj < 4 else 4}, s[12:15], s27 offen offset:{(jj % 4)*1024} sc1", tag=('B', kk+3))
                if kk >= 13 and m % 2 == 0: issueW(1)
        A.check_vm()
    ST(A, 11)
    A("s_mul_i32 s23, s3, 21504"); A("v_add_u32 v9, s23, v3")
    for tau in (1,2,3):
        A(f"s_xor_b32 s24, s3, {tau}"); A("s_mul_i32 s24, s24, 21504"); A(f"s_add_u32 s24, s24, {(tau-1)*7168}"); A(f"v_add_u32 v{(10,11,15)[tau-1]}, s24, v3")
    for tau in (1,2,3):
        for j in range(7): A(f"ds_write_b128 v9, {v(acc(j,tau),4)} offset:{(tau-1)*7168+j*1024}", tag='w')
    issueW(64)
    A.wait_lg(); A("s_barrier")
    T0 = 144
    for tau in (1,2,3):
        for j in range(7): A(f"ds_read_b128 {v(T0+((tau-1)*7+j)*4,4)}, v{(10,11,15)[tau-1]} offset:{j*1024}", tag=('r',tau))
    A.wait_vm('epi')
    for s_ in range(4):
        A(f"s_add_u32 s30, s28, {s_*4096}")
        for tau in range(4): A(f"buffer_load_dwordx4 {a(176+(s_*4+tau)*4,4)}, v{5+tau}, s[16:19], s30 offen sc1", tag=('Ao', s_))
    A.check_vm()
    for tau in (1,2,3):
        A.wait_lg(('r',tau))
        for j in range(7):
            c = acc(j,0); t = T0+((tau-1)*7+j)*4
            A(f"v_pk_add_f32 {v(c,2)}, {v(c,2)}, {v(t,2)}"); A(f"v_pk_add_f32 {v(c+2,2)}, {v(c+2,2)}, {v(t+2,2)}")
    A.wait_vm('epi')
    A("v_lshlrev_b32 v30, 16, v30"); A("v_sub_f32 v31, 1.0, v31")
    H = 144
    for j in range(7):
        c = acc(j,0)
        for r in range(4):
            z = 16 + 2*j + (r >> 1); t = 1 + (r & 1)
            if r & 1: A(f"v_and_b32 v{t}, 0xffff0000, v{z}")
            else: A(f"v_lshlrev_b32 v{t}, 16, v{z}")
            A(f"v_add_f32 v{c+r}, v{c+r}, v30")
            A(f"v_mul_f32 v{t}, v{t}, v31")
            A(f"v_mul_f32 v{c+r}, v{c+r}, v{t}")
        A(f"v_cvt_pk_bf16_f32 v{H+2*j}, v{c}, v{c+1}"); A(f"v_cvt_pk_bf16_f32 v{H+2*j+1}, v{c+2}, v{c+3}")
    A(f"s_mul_i32 s30, s{S_CB}, 7"); A("s_lshr_b32 s31, s30, 1"); A("s_add_u32 s31, s31, 16"); A("s_lshl_b32 s31, s31, 12")
    A("s_lshl_b32 s32, s3, 10"); A("s_add_u32 s31, s31, s32")
    A("s_and_b32 s30, s30, 1"); A("s_cmp_eq_u32 s30, 0"); A(f"s_cbranch_scc0 {L('odd')}")
    vm0 = list(A.vm)
    for p in range(3):
        A(f"buffer_store_dwordx4 {v(H+4*p,4)}, v3, s[16:19], s31 offen sc1", tag='hst'); A("s_add_u32 s31, s31, 4096")
    A(f"buffer_store_dwordx2 {v(H+12,2)}, v3, s[16:19], s31 offen sc1", tag='hst')
    A(f"s_branch {L('hfin')}")
    A.label(L('odd')); A.vm = list(vm0)
    A(f"buffer_store_dwordx2 {v(H,2)}, v3, s[16:19], s31 offen offset:8 sc1", tag='hst')
    for p in range(3):
        A("s_add_u32 s31, s31, 4096"); A(f"buffer_store_dwordx4 {v(H+2+4*p,4)}, v3, s[16:19], s31 offen sc1", tag='hst')
    A.label(L('hfin'))
    ST(A, 12)

def phase3(A, L):
    ACC = 32; acc = lambda uu, tau: ACC + (uu*4+tau)*4
    HA = 96
    for s_ in range(4):
        A.wait_vm([('Wo', s_), ('Ao', s_)])
        for tau in range(4):
            for uu in range(4):
                c = v(acc(uu,tau),4)
                A(f"v_mfma_f32_16x16x32_bf16 {c}, {a((s_*4+uu)*4,4)}, {a(176+(s_*4+tau)*4,4)}, {c if s_ else 0}")
    A.wait_vm(); A("s_barrier")
    A(f"s_lshl_b32 s27, s{S_RB2}, 7"); A(f"s_lshl_b32 s26, s{S_CB}, 3"); A("s_add_u32 s27, s27, s26"); A(f"s_add_u32 s27, s27, {WS_F2}")
    signal(A, L, 'sighd', 27)
    A(f"s_cmp_eq_u32 s{S_CB}, 7"); A(f"s_cbranch_scc1 {L('fin')}")
    ST(A, 13)
    A("s_mul_i32 s26, s3, 12288"); A("v_add_u32 v20, s26, v3")
    for tau in (1,2,3):
        A(f"s_xor_b32 s26, s3, {tau}"); A("s_mul_i32 s26, s26, 12288"); A(f"s_add_u32 s26, s26, {(tau-1)*4096}"); A(f"v_add_u32 v{20+tau}, s26, v3")
    A("v_lshrrev_b32 v15, 2, v13"); A("v_lshlrev_b32 v15, 3, v15"); A("v_and_b32 v16, 3, v13"); A("v_add_u32 v15, v15, v16")
    A(f"s_lshl_b32 s26, s{S_RB2}, 6"); A("s_lshr_b32 s27, s3, 1"); A("s_lshl_b32 s27, s27, 5"); A("s_add_u32 s26, s26, s27")
    A("s_and_b32 s27, s3, 1"); A("s_lshl_b32 s27, s27, 2"); A("s_add_u32 s26, s26, s27")
    A("v_add_u32 v15, s26, v15"); A("v_mul_u32_u24 v15, 896, v15")
    A("v_lshlrev_b32 v16, 4, v14"); A(f"s_lshl_b32 s27, s{S_CB}, 7"); A("v_add_u32 v16, s27, v16"); A("v_add_u32 v1, v15, v16")
    srd_from(A, 12, S_OUT, None, S*D*2)
    A(f"s_lshl_b32 s27, s{S_RB2}, 7"); A(f"s_add_u32 s27, s27, {WS_F2}"); A("v_lshl_add_u32 v17, v12, 3, s27")
    poll(A, L, 'pb', 17, 8)
    ST(A, 14)
    for s_ in range(7):
        A(f"s_add_u32 s30, s29, {s_*4096}")
        for tau in range(4): A(f"buffer_load_dwordx4 {v(HA+(s_*4+tau)*4,4)}, v{5+tau}, s[16:19], s30 offen sc1", tag=('Ah', s_))
    for s_ in range(7):
        A.wait_vm(('Ah', s_))
        for tau in range(4):
            for uu in range(4):
                c = v(acc(uu,tau),4)
                A(f"v_mfma_f32_16x16x32_bf16 {c}, {a(64+(s_*4+uu)*4,4)}, {v(HA+(s_*4+tau)*4,4)}, {c}")
    ST(A, 15)
    for tau in (1,2,3):
        for uu in range(4): A(f"ds_write_b128 v20, {v(acc(uu,tau),4)} offset:{(tau-1)*4096+uu*1024}", tag='w')
    A.wait_lg(); A("s_barrier")
    T0 = 208
    for tau in (1,2,3):
        for uu in range(4): A(f"ds_read_b128 {v(T0+((tau-1)*4+uu)*4,4)}, v{20+tau} offset:{uu*1024}", tag=('r',tau))
    for tau in (1,2,3):
        A.wait_lg(('r',tau))
        for uu in range(4):
            c = acc(uu,0); t = T0+((tau-1)*4+uu)*4
            A(f"v_pk_add_f32 {v(c,2)}, {v(c,2)}, {v(t,2)}"); A(f"v_pk_add_f32 {v(c+2,2)}, {v(c+2,2)}, {v(t+2,2)}")
    for vv in range(2):
        o = 96 + 4*vv; c0 = acc(2*vv,0); c1 = acc(2*vv+1,0)
        A(f"v_cvt_pk_bf16_f32 v{o}, v{c0}, v{c0+1}"); A(f"v_cvt_pk_bf16_f32 v{o+1}, v{c0+2}, v{c0+3}")
        A(f"v_cvt_pk_bf16_f32 v{o+2}, v{c1}, v{c1+1}"); A(f"v_cvt_pk_bf16_f32 v{o+3}, v{c1+2}, v{c1+3}")
        A(f"buffer_store_dwordx4 {v(o,4)}, v1, s[12:15], 0 offen offset:{vv*64}")

def gen_mega(name="mega", code_bytes=0):
    Stamps.map = [78+2*k for k in range(11)] + [4, 6, 42, 0, 74+0*0]
    A = Asm(); L = lambda x: f"{name}_{x}"
    A("s_cmp_ge_u32 s2, 256"); A(f"s_cbranch_scc1 {L('end')}")
    ST(A, 0)
    A("s_load_dwordx16 s[36:51], s[0:1], 0")
    A("s_load_dwordx8 s[52:59], s[0:1], 64")
    A("v_lshrrev_b32 v6, 6, v0"); A("v_and_b32 v12, 63, v0"); A("v_readfirstlane_b32 s3, v6")
    A("s_lshr_b32 s24, s2, 3"); A("s_lshl_b32 s24, s24, 2"); A("s_add_u32 s24, s24, s3")
    if code_bytes:
        A("s_getpc_b64 s[22:23]"); A.raw(f"{name}_pc:")
        A("v_and_b32 v10, 3, v0"); A("s_lshl_b32 s25, s24, 2"); A("v_add_u32 v10, s25, v10"); A("v_lshlrev_b32 v10, 7, v10")
        assert code_bytes <= 512*128
        A(f"v_min_u32 v57, {L('end')}-{name}_pc, v10"); A("global_load_dword v56, v57, s[22:23]", tag='pf')
    A("v_and_b32 v13, 15, v12"); A("v_lshrrev_b32 v14, 4, v12")
    A("s_and_b32 s20, s2, 7"); A("s_lshr_b32 s21, s2, 3"); A("s_lshr_b32 s33, s21, 4"); A("s_and_b32 s21, s21, 15")
    A("s_lshr_b32 s22, s20, 1"); A("s_lshl_b32 s22, s22, 2"); A("s_lshr_b32 s23, s21, 2"); A("s_add_u32 s22, s22, s23")
    A("s_and_b32 s20, s20, 1"); A("s_lshl_b32 s20, s20, 2"); A("s_and_b32 s21, s21, 3"); A("s_add_u32 s21, s21, s20")
    A("s_mov_b32 s20, s22"); A("s_lshl_b32 s22, s20, 1"); A("s_add_u32 s22, s22, s33")
    A("v_lshrrev_b32 v15, 3, v12"); A("v_and_b32 v16, 7, v12"); A("v_min_u32 v16, 6, v16"); A("v_lshlrev_b32 v16, 7, v16")
    A("s_and_b32 s25, s2, 1"); A("s_mul_i32 s26, s25, 896")
    A("s_and_b32 s27, s20, 12"); A("s_lshl_b32 s27, s27, 7")
    A("s_lshl_b32 s28, s24, 3"); A("s_add_u32 s27, s27, s28"); A("s_mul_i32 s27, s27, 896")
    A("s_sub_u32 s28, s24, 64"); A("s_min_u32 s28, s28, 55"); A(f"s_mul_i32 s28, s28, {8*3584}"); A("s_add_u32 s28, s28, s26"); A("s_add_u32 s28, s28, 1792")
    A("s_cmp_lt_u32 s24, 64"); A("s_cselect_b32 s27, s27, s28"); A("s_cselect_b32 s28, 1, 4"); A("s_mul_i32 s28, s28, 896")
    A("v_mul_lo_u32 v15, v15, s28"); A("v_add3_u32 v57, v15, v16, s27")
    A("v_lshrrev_b32 v15, 4, v12"); A("s_min_u32 s29, s24, 111"); A("s_lshl_b32 s29, s29, 2"); A("v_add_u32 v15, s29, v15"); A("v_mul_u32_u24 v15, 2688, v15")
    A("v_bfe_u32 v16, v12, 2, 2"); A("v_min_u32 v16, 2, v16"); A("v_mul_u32_u24 v16, 896, v16"); A("v_and_b32 v17, 3, v12"); A("v_lshlrev_b32 v17, 7, v17")
    A("s_lshr_b32 s26, s26, 1"); A("v_add3_u32 v15, v15, v16, v17"); A("v_add_u32 v58, s26, v15")
    A.wait_lg()
    tag_publish(A, L)
    A("s_cmp_lt_u32 s24, 64"); A(f"s_cselect_b32 s28, s{S_X}, s{S_WIN}"); A(f"s_cselect_b32 s29, s{S_X+1}, s{S_WIN+1}")
    A("global_load_dword v56, v57, s[28:29]", tag='pf')
    A(f"global_load_dword v56, v58, s[{S_WQKV}:{S_WQKV+1}]", tag='pf')
    A("s_cmp_eq_u32 s33, 0"); A(f"s_cbranch_scc0 {L('qrole')}")
    vm0 = list(A.vm); lg0 = list(A.lg)
    role_z(A, L)
    A(f"s_branch {L('p2')}")
    A.label(L('qrole')); A.vm = list(vm0); A.lg = list(lg0)
    role_q(A, L)
    A.label(L('p2')); A.vm = []; A.lg = []
    ST(A, 9)
    phase2(A, L)
    phase3(A, L)
    if Stamps.enabled:
        A.raw("  s_waitcnt vmcnt(0)")
    A.label(L('fin'))
    if os.environ.get('DBGOUT'):
        A.raw("  s_waitcnt vmcnt(0) lgkmcnt(0)")
        A.raw(f"  s_cmp_lg_u32 s2, {os.environ['DBGOUT']}"); A.raw(f"  s_cbranch_scc1 {L('end')}"); A.raw("  s_cmp_lg_u32 s3, 0"); A.raw(f"  s_cbranch_scc1 {L('end')}")
        A.raw("  v_mov_b32 v250, 0")
        for k in range(1, 15):
            kk = k if k < 14 else 15
            A.raw(f"  s_sub_u32 s100, s{Stamps.reg(kk)}, s{Stamps.reg(0)}"); A.raw("  v_mov_b32 v251, s100")
            A.raw(f"  global_store_dword v250, v251, s[{S_DBG}:{S_DBG+1}] offset:{4*(k+1)}")
    else:
        Stamps.flush(A, 0, 16, S_WS)
    A.label(L('end'))
    A("s_endpgm")
    return A

if __name__ == "__main__":
    import sys, asmlib
    from build import assemble
    if len(sys.argv) > 2 and sys.argv[2].startswith('stamp'): asmlib.Stamps.enabled = True
    if len(sys.argv) > 2 and sys.argv[2] == 'stampcyc': asmlib.Stamps.op = 's_memtime'
    t = gen_mega().text(); sz = len([l for l in t.split('\n') if l.startswith('  ')])*8
    A = gen_mega(code_bytes=sz)
    if os.environ.get('FINAL'):
        from build import assemble_single
        open(sys.argv[1], 'w').write(assemble_single(dict(name="gated_mix__sliding_local_dilated__mixer_gmlp__prompt_kernel", text=A.text(), grid=256, block=256, lds=163840, vgpr=512, accum=256)))
    else:
        open(sys.argv[1], 'w').write(assemble([dict(name="mega_kernel", text=A.text(), grid=256, block=256, lds=163840, vgpr=512, accum=256)]))
    print("nops", A.nops_inserted, "est bytes", sz)
```

```python
from asmlib import *
from layout import *
from k1z import hexf, gelu_pairs, GELU_C1, GELU_C2
import os
PROFILE = os.environ.get('PROFILE', 'all')
SLEEP = int(os.environ.get('SLEEP', '2'))
def ST(A, k):
    if PROFILE == 'all':
        if isinstance(k, int): Stamps.mark(A, k)
    elif PROFILE == 'p1':
        if isinstance(k, str): return
        if isinstance(k, int) and k in (0, 1, 2): Stamps.mark(A, k)
        elif isinstance(k, int) and k == 3: Stamps.mark(A, 10)
        elif isinstance(k, int) and k == 4: Stamps.mark(A, 11)
        elif isinstance(k, tuple) and k[0] == 'g': Stamps.mark(A, 3 + k[1])
        elif isinstance(k, int) and k in (5, 6, 7, 8): Stamps.mark(A, 7 + k)
    elif PROFILE == 'p4':
        m = {0: 0, 3: 1, 5: 2, 7: 3, 'sig': 4, ('au', 8): 5, ('au', 9): 6, ('au', 10): 7, ('au', 11): 8, ('au', 12): 9, ('au', 13): 10, ('au', 14): 11, ('au', 15): 12, 8: 13, 'pubw': 14, 10: 15}
        if k in m: Stamps.mark(A, m[k])
    elif PROFILE == 'p3':
        m = {0: 0, 3: 1, 4: 2, 5: 3, 6: 4, 7: 5, 'lnq': 6, 'norm': 7, 'pubw': 8, 'sig': 9, 8: 10, 10: 11, 11: 12, 'w2': 13, 'st0': 14, 'st3': 15}
        if k in m: Stamps.mark(A, m[k])
    elif PROFILE == 'p2':
        m = {0: 0, 3: 1, 4: 2, 8: 13, 10: 14, 'z1in': 3, 'z1out': 11, 'z1epi': 12, 11: 15}
        if isinstance(k, tuple) and k[0] == 'z': Stamps.mark(A, 4 + k[1])
        elif k in m: Stamps.mark(A, m[k])

S_X, S_WQKV, S_WO, S_WIN, S_WSP, S_BSP, S_WOUT = 36, 38, 40, 44, 46, 48, 50
S_GW, S_OUT, S_DBG, S_WS = 52, 54, 56, 58
S_RB, S_CB, S_RB2 = 20, 21, 22
SRD_A = 60
OOB = 0x7fff0000
C_LN, C_ZD, C_QD, C_HD = 0, 16, 24, 32

def srd_from(A, d, ptr, off_sreg, nbytes):
    if off_sreg is None:
        A(f"s_mov_b32 s{d}, s{ptr}"); A(f"s_and_b32 s{d+1}, s{ptr+1}, 0xffff")
    else:
        A(f"s_add_u32 s{d}, s{ptr}, s{off_sreg}"); A(f"s_addc_u32 s{d+1}, s{ptr+1}, 0"); A(f"s_and_b32 s{d+1}, s{d+1}, 0xffff")
    A(f"s_mov_b32 s{d+2}, {nbytes}"); A(f"s_mov_b32 s{d+3}, 0x20000")

S_TAG = 76
def tag_publish(A, L):
    A("s_cmp_lg_u32 s2, 0"); A(f"s_cbranch_scc1 {L('notag')}")
    A.raw("  s_cmp_lg_u32 s3, 0"); A.raw(f"  s_cbranch_scc1 {L('notag')}")
    A.raw("  s_memrealtime s[30:31]"); A.raw("  s_waitcnt lgkmcnt(0)"); A.raw("  s_or_b32 s30, s30, 1")
    A.raw("  v_mov_b32 v16, s30"); A.raw("  v_mov_b32 v17, s31"); A.raw("  v_mov_b32 v18, 16")
    A.raw("  s_mov_b64 s[34:35], exec"); A.raw("  s_mov_b64 exec, 1")
    A.raw(f"  global_store_dwordx2 v18, v[16:17], s[{S_DBG}:{S_DBG+1}] sc1")
    A.raw("  s_mov_b64 exec, s[34:35]")
    A.label(L('notag'))
def tag_issue(A):
    A("v_mov_b32 v9, 16"); A(f"global_load_dwordx2 v[10:11], v9, s[{S_DBG}:{S_DBG+1}] sc1", tag='tagld')
def tag_take(A, L):
    A.wait_vm('tagld')
    A(f"v_readfirstlane_b32 s{S_TAG}, v10"); A(f"v_readfirstlane_b32 s{S_TAG+1}, v11")
    A(f"s_cmp_lg_u32 s{S_TAG}, 0"); A(f"s_cbranch_scc1 {L('tagd')}")
    A.raw("  s_mov_b32 s33, 0")
    A.raw(f"{L('tagl')}:")
    A.raw(f"  global_load_dwordx2 v[10:11], v9, s[{S_DBG}:{S_DBG+1}] sc1")
    A.raw("  s_add_u32 s33, s33, 1")
    A.raw("  s_waitcnt vmcnt(0)")
    A.raw(f"  v_readfirstlane_b32 s{S_TAG}, v10"); A.raw(f"  v_readfirstlane_b32 s{S_TAG+1}, v11")
    A.raw("  s_nop 1")
    A.raw(f"  s_cmp_lg_u32 s{S_TAG}, 0"); A.raw(f"  s_cbranch_scc1 {L('tagd')}")
    A.raw("  s_cmp_lt_u32 s33, 0x20000"); A.raw(f"  s_cbranch_scc1 {L('tagl')}")
    A.label(L('tagd'))

def signal(A, L, tag, off_sreg):
    A("s_cmp_lg_u32 s3, 0"); A(f"s_cbranch_scc1 {L(tag)}")
    A.raw(f"  v_mov_b32 v18, s{off_sreg}"); A.raw(f"  v_mov_b32 v16, s{S_TAG}"); A.raw(f"  v_mov_b32 v17, s{S_TAG+1}")
    A.raw("  s_mov_b64 s[34:35], exec"); A.raw("  s_mov_b64 exec, 1")
    A.raw(f"  global_store_dwordx2 v18, v[16:17], s[{S_WS}:{S_WS+1}] sc1")
    A.raw("  s_mov_b64 exec, s[34:35]")
    A.label(L(tag))

def poll(A, L, tag, vaddr, nlanes):
    A("s_cmp_lg_u32 s3, 0"); A(f"s_cbranch_scc1 {L(tag+'_done')}")
    A.raw("  s_mov_b32 s33, 0"); A.raw("  s_mov_b64 s[34:35], exec"); A.raw(f"  s_mov_b64 exec, {hex((1 << nlanes) - 1) if nlanes < 64 else -1}")
    A.label(L(tag+'_loop'))
    A.raw(f"  global_load_dwordx2 v[18:19], v{vaddr}, s[{S_WS}:{S_WS+1}] sc1")
    A.raw("  s_add_u32 s33, s33, 1")
    A.raw("  s_waitcnt vmcnt(0)")
    A.raw(f"  v_xor_b32 v18, s{S_TAG}, v18"); A.raw(f"  v_xor_b32 v19, s{S_TAG+1}, v19"); A.raw("  v_or_b32 v18, v18, v19")
    A.raw("  v_cmp_eq_u32 vcc, 0, v18")
    A.raw("  s_nop 1")
    A.raw("  s_cmp_eq_u64 vcc, exec")
    A.raw(f"  s_cbranch_scc1 {L(tag+'_out')}")
    A.raw(f"  s_sleep {SLEEP}")
    A.raw("  s_cmp_lt_u32 s33, 0x20000")
    A.raw(f"  s_cbranch_scc1 {L(tag+'_loop')}")
    A.label(L(tag+'_out'))
    A.raw("  s_mov_b64 exec, s[34:35]")
    A.label(L(tag+'_done'))
    A("s_barrier")

def poll_wave(A, L, tag, vaddr):
    A.raw("  s_mov_b32 s33, 0")
    A.label(L(tag+'_loop'))
    A.raw(f"  global_load_dwordx2 v[18:19], v{vaddr}, s[{S_WS}:{S_WS+1}] sc1")
    A.raw("  s_add_u32 s33, s33, 1")
    A.raw("  s_waitcnt vmcnt(0)")
    A.raw(f"  v_xor_b32 v18, s{S_TAG}, v18"); A.raw(f"  v_xor_b32 v19, s{S_TAG+1}, v19"); A.raw("  v_or_b32 v18, v18, v19")
    A.raw("  v_cmp_eq_u32 vcc, 0, v18")
    A.raw("  s_nop 1")
    A.raw("  s_cmp_eq_u64 vcc, exec")
    A.raw(f"  s_cbranch_scc1 {L(tag+'_out')}")
    A.raw(f"  s_sleep {SLEEP}")
    A.raw("  s_cmp_lt_u32 s33, 0x20000")
    A.raw(f"  s_cbranch_scc1 {L(tag+'_loop')}")
    A.label(L(tag+'_out')); A.vm = []

class AService:
    VD, VR = 232, 236
    def __init__(self, A, lds_sreg):
        self.A = A; self.n_dma = 0; self.n_rd = 0; self.sl = lds_sreg
    def setup(self):
        A = self.A
        A(f"s_lshl_b32 s23, s{S_RB2}, 18"); srd_from(A, SRD_A, S_WSP, 23, 64*4096)
        A("v_lshrrev_b32 v16, 3, v12"); A("v_and_b32 v17, 7, v12"); A("v_and_b32 v18, 3, v16"); A("v_xor_b32 v17, v17, v18")
        A("v_lshlrev_b32 v17, 4, v17"); A("v_lshl_add_u32 v17, v16, 12, v17")
        for uu in range(4):
            if uu & 1: A(f"v_xor_b32 v{self.VD+uu}, 64, v17")
            else: A(f"v_mov_b32 v{self.VD+uu}, v17")
            if uu: A(f"v_add_u32 v{self.VD+uu}, {uu*(32768-1024)}, v{self.VD+uu}")
        A("v_lshrrev_b32 v16, 2, v13"); A("v_lshlrev_b32 v16, 3, v16"); A("v_and_b32 v17, 3, v13"); A("v_add_u32 v16, v16, v17")
        A("v_and_b32 v17, 7, v13"); A("v_xor_b32 v17, v17, v14"); A("v_lshlrev_b32 v17, 4, v17"); A("v_lshl_add_u32 v17, v16, 7, v17")
        A(f"v_add_u32 v17, s{self.sl}, v17")
        A("s_and_b32 s23, s3, 1"); A("s_lshl_b32 s23, s23, 9")
        for b in range(2):
            if b: A("s_xor_b32 s23, s23, 512")
            A(f"v_add_u32 v{self.VR+2*b}, s23, v17"); A(f"v_xor_b32 v{self.VR+2*b+1}, 64, v{self.VR+2*b}")
        A("s_lshr_b32 s23, s3, 1"); A("s_lshl_b32 s68, s23, 17"); A("s_lshl_b32 s23, s3, 10"); A("s_add_u32 s68, s68, s23")
        A("s_xor_b32 s69, s68, 0x20000")
    def dma(self):
        A = self.A; n = self.n_dma
        if n >= 16: return
        ss, gt = n >> 1, n & 1
        A(f"s_add_u32 m0, s{self.sl}, {(n % 3)*4096}")
        A(f"s_add_u32 s70, s{68+gt}, {ss*128}")
        for uu in range(4):
            A(f"buffer_load_dwordx4 v{self.VD+uu}, s[{SRD_A}:{SRD_A+3}], s70 offen offset:{uu*1024} lds", tag=('Au', n))
        self.n_dma += 1
    def start(self):
        for _ in range(3): self.dma()
    def step(self):
        A = self.A; n = self.n_rd
        if n >= 16: return
        if n >= 1 and self.n_dma < 16:
            A.wait_lg(('Ar', n-1)); self.dma()
        A.wait_vm(('Au', n)); ST(A, ('au', n))
        ss, gt = n >> 1, n & 1
        for b in range(2):
            for h in range(2):
                tau = 2*gt + b
                A(f"ds_read_b128 {a((ss*8 + h*4 + tau)*4, 4)}, v{self.VR+2*b+h} offset:{(n % 3)*4096}", tag=('Ar', n))
        self.n_rd += 1
    def finish(self):
        while self.n_rd < 16: self.step()

def wf_issue(A):
    A("v_lshrrev_b32 v62, 2, v13"); A("v_lshlrev_b32 v62, 3, v62"); A("v_and_b32 v63, 3, v13"); A("v_add_u32 v62, v62, v63")
    A("v_lshlrev_b32 v62, 1, v62")
    A(f"v_mul_u32_u24 v63, {4*896}, v14"); A("v_add_u32 v62, v62, v63")
    for q in range(2):
        A("s_lshl_b32 s23, s2, 2"); A("s_add_u32 s23, s23, s3")
        if q: A("s_add_u32 s23, s23, 1024")
        A("s_and_b32 s24, s23, 3"); A("s_lshr_b32 s25, s23, 2")
        A("s_mul_i32 s26, s25, 1490"); A("s_lshr_b32 s26, s26, 16")
        A("s_mul_i32 s27, s26, 44"); A("s_sub_u32 s27, s25, s27")
        A("s_lshl_b32 s28, s26, 7"); A("s_lshr_b32 s29, s24, 1"); A("s_lshl_b32 s29, s29, 6"); A("s_add_u32 s28, s28, s29")
        A("s_and_b32 s29, s24, 1"); A("s_lshl_b32 s29, s29, 3"); A("s_add_u32 s28, s28, s29")
        A("s_cmp_lt_u32 s27, 16")
        A(f"s_cselect_b32 s64, s{S_WO}, s{S_WOUT}"); A(f"s_cselect_b32 s65, s{S_WO+1}, s{S_WOUT+1}")
        A("s_cselect_b32 s66, 1, 2"); A(f"s_mul_i32 s66, s66, {448*896}"); A("s_mov_b32 s67, 0x20000"); A("s_and_b32 s65, s65, 0xffff")
        A("s_mul_i32 s29, s27, 28"); A("s_mul_i32 s30, s27, 32"); A("s_sub_u32 s30, s30, 512")
        A("s_cmp_lt_u32 s27, 16"); A("s_cselect_b32 s29, s29, s30"); A("s_cselect_b64 s[30:31], -1, 0")
        A("s_mul_i32 s29, s29, 896"); A("s_add_u32 s29, s29, s28")
        A("s_cmp_ge_u32 s23, 1232"); A("s_cselect_b32 s66, 0, s66")
        A(f"v_add_u32 v58, 0, v62"); A(f"v_add_u32 v59, {16*896}, v62")
        A("v_cmp_eq_u32 vcc, 3, v14"); A("s_and_b64 s[30:31], s[30:31], vcc"); A(f"v_mov_b32 v63, {OOB}")
        A("v_cndmask_b32 v59, v59, v63, s[30:31]")
        for e in range(8):
            A(f"buffer_load_ushort v{40 + 8*q + e}, v{58 + (e >> 2)}, s[64:67], s29 offen offset:{(e & 3)*896}", tag='wfj')
def wf_store(A):
    A.wait_vm('wfj')
    for q in range(2):
        for p in range(4):
            A(f"v_lshl_or_b32 v{40 + 4*q + p}, v{40 + 8*q + 2*p + 1}, 16, v{40 + 8*q + 2*p}")
    A(f"s_mov_b32 s23, {WS_WF}"); srd_from(A, 64, S_WS, 23, 1232*1024)
    A("v_lshlrev_b32 v60, 4, v12")
    A("s_lshl_b32 s23, s2, 2"); A("s_add_u32 s23, s23, s3"); A("s_lshl_b32 s23, s23, 10")
    A("buffer_store_dwordx4 v[40:43], v60, s[64:67], s23 offen sc1", tag='pubst')
    A("s_add_u32 s23, s23, 0x100000")
    A("buffer_store_dwordx4 v[44:47], v60, s[64:67], s23 offen sc1", tag='pubst')

def touch_lines(A, ptr, vaddr, n, step, vdst=56):
    for k in range(n):
        A(f"global_load_dword v{vdst}, v{vaddr}, s[{ptr}:{ptr+1}]", tag='touch')
        if k + 1 < n: A(f"v_add_u32 v{vaddr}, {step}, v{vaddr}")

def touch_late(A):
    A(f"s_lshl_b32 s27, s{S_RB}, 3"); A(f"s_add_u32 s27, s27, s{S_CB}"); A("s_lshl_b32 s27, s27, 2"); A("s_add_u32 s27, s27, s3")
    A("s_lshl_b32 s28, s27, 14"); A("v_lshlrev_b32 v57, 7, v12"); A("v_add_u32 v57, s28, v57")
    touch_lines(A, S_WSP, 57, 2, 8192)
    A("s_min_u32 s27, s27, 447")
    A("s_mul_i32 s28, s27, 1792"); A("v_min_u32 v57, 13, v12"); A("v_lshlrev_b32 v57, 7, v57"); A("v_add_u32 v58, s28, v57")
    A(f"global_load_dword v56, v58, s[{S_WOUT}:{S_WOUT+1}]", tag='touch')
    A("s_mul_i32 s28, s27, 3584"); A("v_add_u32 v58, s28, v57")
    A(f"global_load_dword v56, v58, s[{S_WIN}:{S_WIN+1}]", tag='touch')
    A("s_mul_i32 s28, s27, 896"); A("v_min_u32 v57, 6, v12"); A("v_lshlrev_b32 v57, 7, v57"); A("v_add_u32 v58, s28, v57")
    A(f"global_load_dword v56, v58, s[{S_WO}:{S_WO+1}]", tag='touch')

def wdma_setup(A, V):
    A("v_lshrrev_b32 v15, 1, v13"); A("v_xor_b32 v15, v15, v14")
    A("v_and_b32 v16, 1, v13"); A("v_lshlrev_b32 v16, 4, v16")
    A("v_mul_u32_u24 v17, 3584, v14"); A("v_add_u32 v16, v16, v17"); A(f"v_mov_b32 v18, {OOB}")
    for uu in range(4):
        if uu == 2: A("v_xor_b32 v15, 4, v15")
        A(f"v_lshl_add_u32 v{V+uu}, v15, 5, v16")
        if uu: A(f"v_add_u32 v{V+uu}, {uu*(4*3584-1024)}, v{V+uu}")
        A("v_cmp_eq_u32 vcc, 7, v15"); A(f"v_cndmask_b32 v{V+uu}, v{V+uu}, v18, vcc")
def wread_setup(A, V, base):
    A("v_lshrrev_b32 v15, 2, v13"); A("v_lshl_add_u32 v16, v14, 3, v15"); A("v_lshlrev_b32 v16, 8, v16")
    A("v_and_b32 v17, 3, v13"); A("v_lshl_add_u32 v16, v17, 3, v16"); A(f"v_add_u32 v16, {base}, v16")
    A("v_and_b32 v17, 1, v14"); A("v_lshl_or_b32 v17, v17, 2, v15")
    for j in range(7):
        A(f"v_xor_b32 v18, {j}, v17"); A(f"v_lshl_add_u32 v{V+j}, v18, 5, v16")

GC = dict(VC1=32, VC2=34, VONE=36)
def gelu_consts(A):
    for r, val in ((32, GELU_C1), (34, GELU_C2), (36, 1.0)):
        A(f"v_mov_b32 v{r}, {hexf(val)}"); A(f"v_mov_b32 v{r+1}, {hexf(val)}")

class Z1Tile:
    WB, XB, ACC, GACC = 120, 176, 192, 220
    VW = 24
    def __init__(self, A, L, ring_base, vdma, sW):
        self.A, self.L, self.ring_base, self.vdma, self.sW = A, L, ring_base, vdma, sW
    def dma_w_list(self, c):
        st = (c + 1) % 3
        return [(f"s_add_u32 m0, s71, {self.ring_base + st*16384}", None), (f"s_add_u32 s23, s{self.sW}, {64*c*3584}", None)] + \
               [(f"buffer_load_dwordx4 v{self.vdma+uu}, s[12:15], s23 offen offset:{uu*1024} lds", ('w1', c)) for uu in range(4)]
    def dma_w(self, c):
        for t, tg in self.dma_w_list(c): self.A(t, tag=tg)
    def reads(self, c, h, buf, xoff):
        out = []
        st = (c + 1) % 3
        out.append((f"ds_read_b128 {v(self.XB+buf*8,4)}, v{20+h} offset:{xoff(c)}", ('zx', c, h)))
        out.append((f"ds_read_b128 {v(self.XB+buf*8+4,4)}, v31 offset:{(2*c+h)*64}", ('zx', c, h)))
        for j in range(7):
            for sec in range(2):
                out.append((f"ds_read_b64_tr_b16 {v(self.WB+buf*28+j*4+2*sec,2)}, v{self.VW+j} offset:{st*16384 + h*8192 + sec*1024}", ('zw', c, h, j)))
        return out
    def run(self, xoff, xwait, hooks):
        A = self.A
        ST(A, 'z1in')
        A.wait_vm([('w1', 0)] + xwait(0)); A.wait_lg(); A("s_barrier")
        if ('pre',) in hooks: hooks[('pre',)]()
        for t, tg in self.reads(0, 0, 0, xoff): A(t, tag=tg)
        for c in range(7):
            for h in range(2):
                kk = 2*c + h; buf = kk & 1
                todo = []
                if h == 0: todo = self.reads(c, 1, buf ^ 1, xoff)
                else:
                    if c < 6:
                        A.wait_vm([('w1', c+1)] + xwait(c+1))
                        A.wait_lg(); A("s_barrier"); ST(A, ('z', c))
                        if c + 3 <= 6: self.dma_w(c + 3)
                        todo = self.reads(c+1, 0, buf ^ 1, xoff)
                if (c, h) in hooks: hooks[(c, h)]()
                A.wait_lg([('zx', c, h)])
                d = v(self.GACC, 4)
                A(f"v_mfma_f32_16x16x32_bf16 {d}, {v(self.XB+buf*8+4,4)}, {v(self.XB+buf*8,4)}, {d if kk else 0}")
                for _ in range(2):
                    if todo: t, tg = todo.pop(0); A(t, tag=tg)
                for j in range(7):
                    A.wait_lg([('zw', c, h, j)])
                    d = v(self.ACC + 4*j, 4)
                    A(f"v_mfma_f32_16x16x32_bf16 {d}, {v(self.WB+buf*28+j*4,4)}, {v(self.XB+buf*8,4)}, {d if kk else 0}")
                    for _ in range(2):
                        if todo: t, tg = todo.pop(0); A(t, tag=tg)
    def epilogue(self, svc):
        A = self.A
        ST(A, 'z1out')
        G = self.GACC
        A(f"v_mul_f32 v{G}, {hexf(1.4426950408889634)}, v{G}")
        A(f"v_exp_f32 v{G}, v{G}"); A(f"v_add_f32 v{G}, 1.0, v{G}"); A(f"v_rcp_f32 v{G}, v{G}")
        A("v_lshlrev_b32 v16, 2, v13")
        A(f"ds_bpermute_b32 v{G+1}, v16, v{G}", tag='gb')
        regs = [self.ACC + 2*p for p in range(14)]
        for q in range(0, 14, 4):
            gelu_pairs(A, regs[q:q+4], 224, 32, 34, 36)
            svc.step()
        A.wait_lg('gb')
        for p in range(14):
            r = self.ACC + 2*p
            A(f"v_mul_f32 v{r}, v{r}, v{G+1}"); A(f"v_mul_f32 v{r+1}, v{r+1}, v{G+1}")
            A(f"v_cvt_pk_bf16_f32 v{240+p}, v{r}, v{r+1}")
        ST(A, 'z1epi')

L_TICKET = 163584
L_AST, L_GW, L_ZR, L_GL, L_RING = 58368, 107520, 108544, 110592, 114688
XH = 57344

def load_gw_tables(A, gwb, zrb, tag):
    A(f"s_mov_b32 s23, 896"); srd_from(A, 16, S_GW, None, 896)
    A("v_lshlrev_b32 v16, 4, v12"); A(f"v_mov_b32 v18, {OOB}")
    A(f"s_mov_b32 m0, {gwb}"); A("buffer_load_dwordx4 v16, s[16:19], 0 offen lds", tag=tag)
    A(f"s_mov_b32 m0, {zrb}"); A("buffer_load_dwordx4 v18, s[16:19], 0 offen lds", tag=tag)
def gw_addr(A, vreg, gwb, zrb):
    A("v_cmp_eq_u32 vcc, 0, v13"); A(f"v_mov_b32 v16, {zrb}"); A(f"v_mov_b32 v17, {gwb}"); A(f"v_cndmask_b32 v{vreg}, v16, v17, vcc")
    A(f"v_lshl_add_u32 v{vreg}, v14, 4, v{vreg}")
def z1_xaddr(A):
    A("v_lshrrev_b32 v15, 2, v13"); A("v_lshlrev_b32 v15, 3, v15"); A("v_and_b32 v16, 3, v13"); A("v_add_u32 v15, v15, v16")
    A("v_and_b32 v16, 7, v13"); A("v_xor_b32 v16, v16, v14"); A("v_lshlrev_b32 v16, 4, v16"); A("v_lshl_add_u32 v16, v15, 7, v16")
    A("s_lshr_b32 s23, s3, 1"); A("s_lshl_b32 s23, s23, 12"); A("s_and_b32 s24, s3, 1"); A("s_lshl_b32 s24, s24, 9"); A("s_add_u32 s23, s23, s24")
    A("v_add_u32 v20, s23, v16"); A("v_xor_b32 v21, 64, v20")
def load_bias(A):
    A(f"s_lshl_b32 s23, s{S_RB2}, 6"); A("s_lshr_b32 s24, s3, 1"); A("s_lshl_b32 s24, s24, 5"); A("s_add_u32 s23, s23, s24")
    A("s_and_b32 s24, s3, 1"); A("s_lshl_b32 s24, s24, 2"); A("s_add_u32 s23, s23, s24")
    A("v_lshrrev_b32 v15, 2, v13"); A("v_lshlrev_b32 v15, 3, v15"); A("v_and_b32 v16, 3, v13"); A("v_add_u32 v15, v15, v16")
    A("v_add_u32 v15, s23, v15"); A("v_lshlrev_b32 v15, 1, v15")
    srd_from(A, 16, S_BSP, None, S*2)
    A("buffer_load_ushort v254, v15, s[16:19], 0 offen", tag='bias')

def role_z(A, L):
    ACC1, ACC2 = 64, 120
    acc1 = lambda j, aa: ACC1 + (j*2+aa)*4
    acc2 = lambda j, aa: ACC2 + (j*2+aa)*4
    WB = 176
    wf = lambda buf, j: WB + buf*28 + j*4
    xf = lambda kk, aa: 144 + (kk*2+aa)*4
    A("v_lshrrev_b32 v15, 3, v12"); A("v_and_b32 v16, 7, v12"); A("v_and_b32 v17, 3, v15"); A("v_xor_b32 v16, v16, v17"); A("v_lshlrev_b32 v16, 4, v16")
    A("v_mul_u32_u24 v17, 896, v15")
    for uu in range(4):
        if uu & 1: A("v_xor_b32 v18, 64, v16"); A(f"v_add_u32 v{1+uu}, v18, v17")
        else: A(f"v_add_u32 v{1+uu}, v16, v17")
        if uu: A(f"v_add_u32 v{1+uu}, {uu*(8*896-1024)}, v{1+uu}")
    wdma_setup(A, 5)
    A(f"s_lshl_b32 s72, s{S_RB}, 2"); A("s_add_u32 s72, s72, s3")
    A(f"s_mul_i32 s23, s72, {32*896}"); srd_from(A, 8, S_X, 23, 32*896)
    srd_from(A, 12, S_WIN, None, 448*3584)
    A(f"s_mul_i32 s25, s3, {16*3584}"); A(f"s_mul_i32 s23, s{S_CB}, 224"); A("s_add_u32 s25, s25, s23"); A("s_add_u32 s24, s25, 1792")
    A("s_lshl_b32 s71, s3, 12")
    def dma_x(c):
        return [(f"s_add_u32 m0, s71, {c*16384}", None), (f"s_mov_b32 s23, {c*128}", None)] + \
               [(f"buffer_load_dwordx4 v{1+uu}, s[8:11], s23 offen offset:{uu*1024} lds", ('x', c)) for uu in range(4)]
    def dma_w(c, which=1):
        base = (L_RING + (c % 3)*16384) if which == 1 else c*16384
        return [(f"s_add_u32 m0, s71, {base}", None), (f"s_add_u32 s23, s{24 if which == 1 else 25}, {64*c*3584}", None)] + \
               [(f"buffer_load_dwordx4 v{5+uu}, s[12:15], s23 offen offset:{uu*1024} lds", ('w', which, c)) for uu in range(4)]
    def emit(lst):
        for t, tg in lst: A(t, tag=tg)
    for c in range(2): emit(dma_w(c)); emit(dma_x(c))
    ST(A, 1)
    A("v_lshrrev_b32 v15, 2, v13"); A("v_lshlrev_b32 v15, 3, v15"); A("v_and_b32 v16, 3, v13"); A("v_add_u32 v15, v15, v16")
    A("v_and_b32 v16, 7, v13"); A("v_xor_b32 v16, v16, v14"); A("v_lshlrev_b32 v16, 4, v16"); A("v_lshl_add_u32 v16, v15, 7, v16")
    A("v_add_u32 v20, s71, v16"); A("v_xor_b32 v21, 64, v20"); A("v_add_u32 v22, 0x10000, v20"); A("v_add_u32 v23, 0x10000, v21")
    wread_setup(A, 24, L_RING)
    gelu_consts(A)
    A(f"s_mul_i32 s74, s3, 12288"); A(f"s_add_u32 s74, s74, {L_RING}")
    svc = AService(A, 74)
    def reads_w(which, c, h, buf):
        out = []
        off = ((c % 3) if which == 1 else (c % 4))*16384 + h*8192
        for j in range(7):
            for sec in range(2):
                out.append((f"ds_read_b64_tr_b16 {v(wf(buf,j)+2*sec,2)}, v{24+j} offset:{off + sec*1024}", ('wf', which, c, h, j)))
        return out
    def reads_x(c):
        return [(f"ds_read_b128 {a(xf(2*c+h,aa),4)}, v{20 + h + (2 if c >= 4 else 0)} offset:{(c % 4)*16384 + aa*512}", ('xf', c, h)) for h in range(2) for aa in range(2)]
    A.wait_vm([('w', 1, 0), ('x', 0)]); A("s_barrier")
    ST(A, 2)
    emit(reads_x(0)); emit(reads_w(1, 0, 0, 0))
    for c in range(7):
        for h in range(2):
            kk = 2*c + h; buf = kk & 1
            todo = []; vq = []
            if h == 0:
                todo = reads_w(1, c, 1, buf ^ 1)
                if c == 0: vq += dma_w(2)
                if c + 2 <= 6: vq += dma_x(c + 2)
            else:
                if c < 6: A.wait_vm([('w', 1, c+1), ('x', c+1)])
                A.wait_lg(); A("s_barrier"); ST(A, ('g', c))
                if c + 3 <= 6: vq += dma_w(c + 3)
                for cc in {3: (0,), 4: (1, 2), 5: (3, 4), 6: (5, 6)}.get(c, ()): vq += dma_w(cc, 2)
                if c < 6: todo = reads_w(1, c+1, 0, buf ^ 1)[:2] + reads_x(c+1) + reads_w(1, c+1, 0, buf ^ 1)[2:]
            A.wait_lg([('xf', c, h)])
            for j in range(7):
                A.wait_lg([('wf', 1, c, h, j)])
                for aa in range(2):
                    d = v(acc1(j,aa), 4)
                    A(f"v_mfma_f32_16x16x32_bf16 {d}, {a(xf(kk,aa),4)}, {v(wf(buf,j),4)}, {d if kk else 0}")
                    for _ in range(2):
                        if todo: t, tg = todo.pop(0); A(t, tag=tg)
                    if vq: t, tg = vq.pop(0); A(t, tag=tg)
            emit(todo); emit(vq)
            if c == 4 and h == 1: touch_late(A)
    ST(A, 3)
    tag_issue(A)
    svc.setup(); svc.start()
    TMP = 232 - 8 - 0
    TMP = 176
    regs = [ACC1 + 2*p for p in range(28)]
    for q in range(0, 28, 4): gelu_pairs(A, regs[q:q+4], TMP, 32, 34, 36)
    SUM, M2, PUB = 192, 200, 208
    for aa in range(2):
        for rp in range(2):
            d = SUM + aa*4 + rp*2
            A(f"v_pk_add_f32 {v(d,2)}, {v(acc1(0,aa)+2*rp,2)}, {v(acc1(1,aa)+2*rp,2)}")
            for j in range(2, 7): A(f"v_pk_add_f32 {v(d,2)}, {v(d,2)}, {v(acc1(j,aa)+2*rp,2)}")
    def dpp16(rs):
        for sh in (8, 4, 2, 1):
            for r in rs: A(f"v_add_f32_dpp v{r}, v{r}, v{r} row_ror:{sh} row_mask:0xf bank_mask:0xf")
    dpp16(range(SUM, SUM+8))
    A(f"v_mov_b32 v38, {hexf(1.0/112)}"); A(f"v_mov_b32 v39, {hexf(1.0/112)}")
    for p in range(4): A(f"v_pk_mul_f32 {v(SUM+2*p,2)}, {v(SUM+2*p,2)}, {v(38,2)}")
    for aa in range(2):
        for rp in range(2):
            d = M2 + aa*4 + rp*2; mreg = SUM + aa*4 + rp*2
            for j in range(7):
                t = TMP + 2*(j & 1)
                A(f"v_pk_add_f32 {v(t,2)}, {v(acc1(j,aa)+2*rp,2)}, {v(mreg,2)} neg_lo:[0,1] neg_hi:[0,1]")
                if j == 0: A(f"v_pk_mul_f32 {v(d,2)}, {v(t,2)}, {v(t,2)}")
                else: A(f"v_pk_fma_f32 {v(d,2)}, {v(t,2)}, {v(t,2)}, {v(d,2)}")
    dpp16(range(M2, M2+8))
    A("v_and_b32 v16, 3, v13")
    for q in range(3): A(f"v_cmp_eq_u32 s[{26+2*q}:{27+2*q}], {q+1}, v16")
    for e, (base, odd) in enumerate(((SUM, 0), (M2, 0), (SUM, 1), (M2, 1))):
        A(f"v_mov_b32 v{PUB+e}, v{base+odd}")
        for q in range(3): A(f"v_cndmask_b32 v{PUB+e}, v{PUB+e}, v{base+2*(q+1)+odd}, s[{26+2*q}:{27+2*q}]")
    A(f"s_lshl_b32 s23, s{S_RB}, 3"); A(f"s_add_u32 s23, s23, s{S_CB}"); A("s_lshl_b32 s23, s23, 7")
    A("s_lshl_b32 s27, s3, 5"); A("s_add_u32 s23, s23, s27"); A("s_lshl_b32 s23, s23, 3")
    A(f"s_mov_b32 s27, {WS_LNP}"); srd_from(A, 16, S_WS, 27, 16*8*128*8)
    A("v_lshlrev_b32 v19, 6, v14"); A("v_lshl_add_u32 v19, v16, 4, v19")
    A("s_mov_b64 s[34:35], exec"); A("s_mov_b32 exec_lo, 0x000f000f"); A("s_mov_b32 exec_hi, 0x000f000f")
    A(f"buffer_store_dwordx4 {v(PUB,4)}, v19, s[16:19], s23 offen sc1", tag='lnp')
    A("s_mov_b64 exec, s[34:35]")
    ST(A, 4)
    A.wait_vm([('w', 2, c) for c in range(7)]); A("s_barrier"); ST(A, 'w2')
    for j in range(7): A(f"v_subrev_u32 v{24+j}, {L_RING}, v{24+j}")
    emit(reads_w(2, 0, 0, 0))
    for c in range(7):
        for h in range(2):
            kk = 2*c + h; buf = kk & 1
            nxt = (c, 1) if h == 0 else ((c+1, 0) if c < 6 else None)
            if h == 0 and c in (0, 1, 2, 4, 5, 6): svc.step()
            if h == 1 and c in (1, 5): svc.step()
            if c == 3 and h == 0:
                A.wait_vm('lnp'); tag_take(A, lambda x: L('z' + x)); A("s_barrier")
                A(f"s_lshl_b32 s27, s{S_RB}, 7"); A(f"s_lshl_b32 s28, s{S_CB}, 3"); A("s_add_u32 s27, s27, s28"); A(f"s_add_u32 s27, s27, {WS_F0}")
                signal(A, L, 'sigln', 27)
            todo = []
            if nxt:
                if nxt == (4, 0):
                    for j in range(7): A(f"v_add_u32 v{24+j}, 0x10000, v{24+j}")
                todo = reads_w(2, nxt[0], nxt[1], buf ^ 1)
            for j in range(7):
                A.wait_lg([('wf', 2, c, h, j)])
                for aa in range(2):
                    d = v(acc2(j,aa), 4)
                    A(f"v_mfma_f32_16x16x32_bf16 {d}, {v(wf(buf,j),4)}, {a(xf(kk,aa),4)}, {d if kk else 0}")
                    if todo: t, tg = todo.pop(0); A(t, tag=tg)
            emit(todo)
    ST(A, 5)
    wf_issue(A)
    TMP = 176
    regs = [ACC2 + 2*p for p in range(28)]
    for q in range(0, 28, 4):
        gelu_pairs(A, regs[q:q+4], TMP, 32, 34, 36)
        if q in (0, 4, 8, 12, 16, 20): svc.step()
    A("s_lshl_b32 s23, s72, 1"); A("s_mul_i32 s23, s23, 56"); A(f"s_mul_i32 s27, s{S_CB}, 7"); A("s_add_u32 s23, s23, s27"); A("s_lshl_b32 s23, s23, 9")
    A(f"s_add_u32 s23, s23, {WS_Z1F}"); srd_from(A, 16, S_WS, 23, 56*512 + 7*512)
    A("v_lshlrev_b32 v18, 3, v12")
    P = 192
    for aa in range(2):
        if aa: A(f"s_mov_b32 s23, {56*512}")
        for j in range(7):
            c = acc2(j,aa); p = P + 2*(j & 3)
            A(f"v_cvt_pk_bf16_f32 v{p}, v{c}, v{c+1}"); A(f"v_cvt_pk_bf16_f32 v{p+1}, v{c+2}, v{c+3}")
            A(f"buffer_store_dwordx2 {v(p,2)}, v18, s[16:19], {'s23' if aa else 0} offen offset:{j*512} sc1", tag='pubst')
    ST(A, 6)
    A(f"s_lshl_b32 s27, s{S_RB}, 7"); A(f"s_add_u32 s27, s27, {WS_F0}"); A("v_lshl_add_u32 v17, v12, 3, s27")
    poll(A, L, 'pln', 17, 8)
    ST(A, 7)
    A(f"s_lshl_b32 s23, s{S_RB}, 10"); A("s_lshl_b32 s27, s3, 5"); A("s_add_u32 s23, s23, s27"); A("s_lshl_b32 s23, s23, 3")
    A(f"s_mov_b32 s27, {WS_LNP}"); srd_from(A, 16, S_WS, 27, 16*8*128*8)
    A("v_and_b32 v18, 7, v12"); A("v_lshlrev_b32 v18, 10, v18"); A("v_lshl_add_u32 v18, v14, 6, v18")
    Q, MB = 192, 208
    for q in range(4): A(f"buffer_load_dwordx4 {v(Q+4*q,4)}, v18, s[16:19], s23 offen offset:{16*q} sc1", tag='lnq')
    svc.step()
    wf_store(A)
    A.wait_vm('lnq')
    ST(A, 'lnq')
    def red8(rs):
        for pat in ("quad_perm:[1,0,3,2]", "quad_perm:[2,3,0,1]", "row_half_mirror"):
            for r in rs: A(f"v_add_f32_dpp v{r}, v{r}, v{r} {pat} row_mask:0xf bank_mask:0xf")
    for q in range(8): A(f"v_mov_b32 v{MB+q}, v{Q+2*q}")
    red8(range(MB, MB+8))
    for q in range(8): A(f"v_mul_f32 v{MB+q}, 0.125, v{MB+q}")
    A(f"v_mov_b32 v38, {hexf(112.0)}")
    for q in range(8):
        A(f"v_sub_f32 v{Q+2*q}, v{Q+2*q}, v{MB+q}"); A(f"v_mul_f32 v{Q+2*q}, v{Q+2*q}, v{Q+2*q}")
        A(f"v_fma_f32 v{MB+8+q}, v{Q+2*q}, v38, v{Q+2*q+1}")
    red8(range(MB+8, MB+16))
    svc.step()
    A(f"v_mov_b32 v38, {hexf(1.0/896)}"); A(f"v_mov_b32 v39, {hexf(1e-5)}")
    for q in range(8): A(f"v_fma_f32 v{MB+8+q}, v{MB+8+q}, v38, v39")
    for q in range(8): A(f"v_rsq_f32 v{MB+8+q}, v{MB+8+q}")
    for q in range(8): A(f"v_mul_f32 v{MB+q}, v{MB+q}, v{MB+8+q}")
    A(f"s_mul_i32 s23, s{S_CB}, {64*7168}"); A("s_mul_i32 s27, s72, 7168"); A("s_add_u32 s23, s23, s27")
    srd_from(A, 16, S_WS, 23, 7168)
    A("v_lshlrev_b32 v18, 4, v12"); A("v_add_u32 v19, 4096, v18")
    for j in range(7):
        p = Q + 4*(j & 3)
        for aa in range(2):
            c = acc1(j,aa)
            for rp in range(2):
                A(f"v_pk_fma_f32 {v(c+2*rp,2)}, {v(c+2*rp,2)}, {v(MB+8+aa*4+2*rp,2)}, {v(MB+aa*4+2*rp,2)} neg_lo:[0,0,1] neg_hi:[0,0,1]")
            A(f"v_cvt_pk_bf16_f32 v{p+2*aa}, v{c}, v{c+1}"); A(f"v_cvt_pk_bf16_f32 v{p+2*aa+1}, v{c+2}, v{c+3}")
        A(f"buffer_store_dwordx4 {v(p,4)}, v{18 if j < 4 else 19}, s[16:19], 0 offen offset:{(j%4)*1024} sc1", tag='pubst')
    ST(A, 'norm')
    if PROFILE == 'p3':
        A.raw("  s_waitcnt vmcnt(6)"); ST(A, 'st0'); A.raw("  s_waitcnt vmcnt(3)"); ST(A, 'st3')
    A.wait_vm('pubst'); ST(A, 'pubw'); A("s_barrier")
    A(f"s_lshl_b32 s27, s{S_CB}, 4"); A(f"s_add_u32 s27, s27, s{S_RB}"); A("s_lshl_b32 s27, s27, 3"); A(f"s_add_u32 s27, s27, {WS_F1}")
    signal(A, L, 'sigzd', 27)
    ST(A, 'sig')
    svc.finish()
    A.wait_lg()
    ST(A, 8)

QSTG = 45056; QGW = 3*QSTG; QZR = QGW + 1024; QP = 400
def role_q(A, L):
    A("v_lshrrev_b32 v15, 3, v12"); A("v_and_b32 v16, 7, v12")
    A("v_and_b32 v17, 3, v15"); A("v_xor_b32 v17, v16, v17"); A("v_lshlrev_b32 v17, 4, v17")
    A(f"s_lshl_b32 s24, s{S_RB}, 7"); A("s_sub_u32 s24, s24, 16"); A("s_mul_i32 s25, s3, 5")
    for uu in range(5):
        A(f"s_add_u32 s26, s25, {uu}")
        A("s_lshl_b32 s27, s26, 3"); A("s_add_u32 s27, s27, s24")
        A("v_add_u32 v18, s27, v15"); A("v_max_i32 v18, 0, v18"); A("v_mul_u32_u24 v18, 896, v18")
        A("s_and_b32 s27, s26, 1"); A("s_lshl_b32 s27, s27, 6"); A("v_xor_b32 v19, s27, v17")
        A("s_cmp_ge_u32 s26, 18"); A(f"s_cselect_b32 s27, {OOB}, 0")
        A(f"v_add3_u32 v{1+uu}, v18, v19, s27")
        if uu in (1, 2, 3): A(f"v_subrev_u32 v{1+uu}, {uu*1024}, v{1+uu}")
    A("v_and_b32 v18, 2, v15"); A("v_xor_b32 v18, v16, v18"); A("v_mul_u32_u24 v19, 2688, v15")
    for uu in range(2):
        if uu: A("v_xor_b32 v18, 4, v18")
        A(f"v_lshl_add_u32 v{6+uu}, v18, 4, v19")
        if uu: A(f"v_add_u32 v{6+uu}, {8*2688-1024}, v{6+uu}")
        A("v_cmp_eq_u32 vcc, 7, v18"); A(f"v_mov_b32 v16, {OOB}"); A(f"v_cndmask_b32 v{6+uu}, v{6+uu}, v16, vcc")
    A.wait_lg()
    A(f"s_sub_u32 s8, s{S_X}, 4096"); A(f"s_subb_u32 s9, s{S_X+1}, 0"); A("s_and_b32 s9, s9, 0xffff"); A(f"s_mov_b32 s10, {S*896 + 4096}"); A("s_mov_b32 s11, 0x20000")
    for uu in range(5): A(f"v_add_u32 v{1+uu}, 4096, v{1+uu}")
    srd_from(A, 12, S_WQKV, None, 448*2688)
    A(f"s_mul_i32 s24, s3, {16*2688}"); A(f"s_mul_i32 s25, s{S_CB}, 112"); A("s_add_u32 s24, s24, s25")
    A("s_mul_i32 s25, s3, 5120"); A("s_lshl_b32 s26, s3, 11"); A("s_add_u32 s26, s26, 20480")
    def dma(c):
        st = (c % 3)*QSTG; out = []
        for seg in range(3):
            out += [(f"s_add_u32 m0, s26, {st + seg*8192}", None), (f"s_add_u32 s23, s24, {64*c*2688 + seg*896}", None)]
            out += [(f"buffer_load_dwordx4 v{6+uu}, s[12:15], s23 offen offset:{uu*1024} lds", ('c', c)) for uu in range(2)]
        out += [(f"s_add_u32 m0, s25, {st}", None), (f"s_mov_b32 s23, {c*128}", None)]
        out += [(f"buffer_load_dwordx4 v{1+uu}, s[8:11], s23 offen offset:{uu*1024} lds", ('c', c)) for uu in range(4)]
        out += [(f"s_add_u32 m0, s25, {st + 4096}", None), (f"buffer_load_dwordx4 v5, s[8:11], s23 offen lds", ('c', c))]
        return out
    def emit(lst):
        for t, tg in lst: A(t, tag=tg)
    load_gw_tables(A, QGW, QZR, ('c', 0))
    for c in range(2): emit(dma(c))
    ST(A, 1)
    A("v_lshrrev_b32 v15, 3, v13"); A("v_lshlrev_b32 v15, 2, v15"); A("v_and_b32 v16, 3, v13"); A("v_or_b32 v15, v15, v16")
    A("v_xor_b32 v15, v15, v14"); A("v_lshlrev_b32 v15, 4, v15"); A("v_lshl_add_u32 v20, v13, 7, v15"); A("v_xor_b32 v21, 64, v20")
    A("s_lshl_b32 s23, s3, 12"); A("s_add_u32 s23, s23, 2048"); A("v_add_u32 v22, s23, v20"); A("v_add_u32 v23, s23, v21")
    A("s_lshr_b32 s23, s3, 1"); A("s_mul_i32 s23, s23, 56"); A("s_and_b32 s33, s3, 1"); A("s_lshl_b32 s34, s33, 5"); A("s_add_u32 s23, s23, s34")
    A("v_and_b32 v15, 3, v13"); A("v_lshlrev_b32 v16, 3, v15"); A("v_add_u32 v16, s23, v16")
    A("v_cmp_eq_u32 vcc, 3, v15"); A("s_cmp_eq_u32 s33, 1"); A("s_cselect_b64 s[34:35], vcc, 0")
    A("v_mov_b32 v17, 112"); A("v_cndmask_b32 v16, v16, v17, s[34:35]")
    A("v_lshrrev_b32 v17, 3, v13"); A("v_lshlrev_b32 v17, 1, v17"); A("v_and_b32 v18, 1, v14"); A("v_lshl_or_b32 v17, v18, 2, v17")
    A("v_lshrrev_b32 v18, 4, v16"); A("v_xor_b32 v18, v18, v17"); A("v_and_b32 v16, 8, v16"); A("v_lshl_or_b32 v16, v18, 4, v16")
    A("v_lshrrev_b32 v17, 2, v13"); A("v_lshl_add_u32 v17, v14, 3, v17"); A("v_lshl_add_u32 v24, v17, 7, v16"); A("v_add_u32 v24, 20480, v24")
    gw_addr(A, 25, QGW, QZR)
    XB = 256; xf = lambda buf, t: XB + buf*44 + t*4
    WB = 256 + 88; wf = lambda buf, t: WB + buf*16 + t*4
    ACC = 64
    def acc(t, RT):
        if t == 0: return ACC + (RT-1)*4
        if t == 3: return ACC + (26 + RT)*4
        return ACC + (8 + (t-1)*9 + RT)*4
    def reads(c, h, buf):
        out = []
        for t in range(3):
            for sec in range(2):
                out.append((f"ds_read_b64_tr_b16 {u(wf(buf,t)+2*sec,2)}, v24 offset:{t*8192 + h*4096 + sec*512}", ('w', c, h)))
        out.append((f"ds_read_b128 {u(wf(buf,3),4)}, v25 offset:{(2*c+h)*64}", ('w', c, h)))
        for RT in range(9): out.append((f"ds_read_b128 {u(xf(buf,RT),4)}, v{20+h} offset:{RT*2048}", ('x', c, h, RT)))
        for q in range(2): out.append((f"ds_read_b128 {u(xf(buf,9+q),4)}, v{22+h} offset:{q*2048}", ('x', c, h, 9+q)))
        return out
    def bump(c):
        d = QSTG if (c % 3) < 2 else -2*QSTG
        for r in (20, 21, 22, 23, 24):
            if d > 0: A(f"v_add_u32 v{r}, {d}, v{r}")
            else: A(f"v_subrev_u32 v{r}, {-d}, v{r}")
    A.wait_vm(('c', 0)); A("s_barrier")
    ST(A, 2)
    for t, tg in reads(0, 0, 0): A(t, tag=tg)
    for c in range(7):
        for h in range(2):
            kk = 2*c + h; buf = kk & 1
            todo = []; vq = []
            if h == 0:
                todo = reads(c, 1, buf ^ 1)
                if c == 0: vq = dma(2)
            else:
                if c < 6: A.wait_vm(('c', c+1))
                A.wait_lg(); A("s_barrier"); ST(A, ('g', c))
                if c + 3 <= 6: vq = dma(c+3)
                if c < 6:
                    bump(c); todo = reads(c+1, 0, buf ^ 1)
            order = [(1,0),(2,0)] + [(t, RT) for RT in range(1, 9) for t in range(3)] + [(3,0),(3,1)]
            n = 0
            for (t, RT) in order:
                xt = RT if t < 3 else 9 + RT
                A.wait_lg([('w', c, h), ('x', c, h, xt)])
                d = v(acc(t, RT), 4)
                A(f"v_mfma_f32_16x16x32_bf16 {d}, {u(wf(buf,t),4)}, {u(xf(buf,xt),4)}, {d if kk else 0}")
                n += 1
                if todo: tt, tg = todo.pop(0); A(tt, tag=tg)
                if vq: tt, tg = vq.pop(0); A(tt, tag=tg)
            while todo: tt, tg = todo.pop(0); A(tt, tag=tg)
            emit(vq)
    ST(A, 3)
    tag_issue(A)
    A(f"s_mul_i32 s74, s3, 12288"); A(f"s_add_u32 s74, s74, {L_AST}")
    svc = AService(A, 74); svc.setup()
    A(f"v_mul_u32_u24 v15, {QP}, v13")
    A("s_lshr_b32 s23, s3, 1"); A("s_lshl_b32 s23, s23, 6"); A("s_and_b32 s33, s3, 1"); A("s_lshl_b32 s33, s33, 5"); A("s_add_u32 s23, s23, s33")
    A("v_lshl_add_u32 v15, v14, 3, v15"); A("v_add_u32 v26, s23, v15")
    P = 176; n = 0
    for t in range(3):
        for RT in range(0 if t else 1, 9):
            c = acc(t, RT); p = P + 2*(n & 7); n += 1
            A(f"v_cvt_pk_bf16_f32 v{p}, v{c}, v{c+1}"); A(f"v_cvt_pk_bf16_f32 v{p+1}, v{c+2}, v{c+3}")
            A(f"ds_write_b64 v26, {v(p,2)} offset:{RT*16*QP + t*128}", tag='qkv')
    for q in range(2):
        c = acc(3, q)
        A(f"v_mul_f32 v{c}, {hexf(-1.4426950408889634)}, v{c}")
        A(f"v_exp_f32 v{c}, v{c}"); A(f"v_add_f32 v{c}, 1.0, v{c}"); A(f"v_rcp_f32 v{c}, v{c}")
    A("s_lshl_b32 s23, s3, 7"); A(f"s_add_u32 s23, s23, {L_GL}")
    A("v_lshlrev_b32 v15, 2, v13"); A("v_add_u32 v16, s23, v15")
    A("s_mov_b64 s[34:35], exec"); A("s_mov_b64 exec, 0xffff")
    for q in range(2): A(f"ds_write_b32 v16, v{acc(3,q)} offset:{q*64}", tag='qkv')
    A(f"s_mov_b32 s23, {WS_GATE}"); srd_from(A, 16, S_WS, 23, S*4)
    A(f"s_cmp_eq_u32 s{S_CB}, 0"); A("s_cselect_b32 s18, s18, 0")
    A(f"s_lshl_b32 s23, s{S_RB}, 9"); A("s_lshl_b32 s33, s3, 7"); A("s_add_u32 s23, s23, s33")
    for q in range(2): A(f"buffer_store_dword v{acc(3,q)}, v15, s[16:19], s23 offen offset:{q*64} sc1", tag='pubst')
    A("s_mov_b64 exec, s[34:35]")
    svc.start()
    A.wait_lg(); A("s_barrier")
    ST(A, 4)
    A("s_lshr_b32 s33, s3, 1"); A("s_and_b32 s34, s3, 1"); A("s_lshl_b32 s35, s33, 6")
    A(f"s_mul_i32 s32, s34, {64*QP}"); A("s_add_u32 s35, s35, s32")
    A("v_lshlrev_b32 v15, 1, v13")
    A(f"v_mul_u32_u24 v16, {QP}, v15"); A("v_lshl_add_u32 v16, v14, 4, v16"); A("v_add_u32 v16, s35, v16")
    A(f"v_add_u32 v20, {16*QP}, v16"); A(f"v_add_u32 v21, 128, v16")
    A("v_lshlrev_b32 v17, 2, v15"); A("s_lshl_b32 s32, s34, 8"); A(f"s_add_u32 s32, s32, {L_GL}"); A("v_add_u32 v22, s32, v17")
    A("v_lshrrev_b32 v17, 2, v13"); A("v_and_b32 v18, 3, v13"); A("v_lshlrev_b32 v18, 3, v18"); A("v_add_u32 v18, s35, v18"); A("v_add_u32 v18, 256, v18")
    for T in range(2):
        if T == 0: A("v_lshl_add_u32 v19, v14, 2, v17")
        else: A("v_and_b32 v19, 1, v14"); A("v_lshl_add_u32 v19, v19, 2, v17"); A("v_add_u32 v19, 16, v19")
        A("v_lshlrev_b32 v19, 1, v19"); A(f"v_mul_u32_u24 v19, {QP}, v19"); A(f"v_add_u32 v{23+T}, v19, v18")
    UB = 64
    rowoff = lambda b: (32*(b >> 1) + (b & 1))
    Q_ = lambda b: UB + b*24; K_ = lambda b, T: UB + b*24 + 4 + 4*T; V_ = lambda b, mt: UB + b*24 + 12 + 4*mt; G_ = lambda b: UB + b*24 + 20
    for b in range(4):
        A(f"ds_read_b128 {v(Q_(b),4)}, v20 offset:{rowoff(b)*QP}", tag=('u', b))
        for T in range(2): A(f"ds_read_b128 {v(K_(b,T),4)}, v21 offset:{(rowoff(b)+32*T)*QP}", tag=('u', b))
    for b in range(4):
        for mt in range(2):
            for T in range(2): A(f"ds_read_b64_tr_b16 {v(V_(b,mt)+2*T,2)}, v{23+T} offset:{rowoff(b)*QP + mt*32}", tag=('vv', b))
        A(f"ds_read_b32 v{G_(b)}, v22 offset:{rowoff(b)*4}", tag=('vv', b))
    SC = 160; sc = lambda b, T: SC + b*8 + 4*T
    for b in range(4):
        A.wait_lg(('u', b))
        for T in range(2): A(f"v_mfma_f32_16x16x32_bf16 {v(sc(b,T),4)}, {v(K_(b,T),4)}, {v(Q_(b),4)}, 0")
    wf_issue(A)
    svc.step()
    cs = (28 ** -0.5) * 1.4426950408889634
    A(f"v_mov_b32 v26, {hexf(cs)}"); A(f"v_mov_b32 v27, {hexf(cs)}"); A(f"v_mov_b32 v28, {hexf(-1e30)}")
    for b in range(4):
        for q in range(4): A(f"v_pk_mul_f32 {v(sc(b,0)+2*q,2)}, {v(sc(b,0)+2*q,2)}, {v(26,2)}")
    A("v_lshlrev_b32 v15, 2, v14"); A("v_sub_u32 v15, v13, v15"); A("v_add_u32 v15, 8, v15")
    A("s_and_b32 s34, s3, 1"); A(f"s_or_b32 s34, s34, s{S_RB}")
    A("v_min_u32 v16, 7, v13"); A("s_cmp_eq_u32 s34, 0"); A("s_cselect_b64 s[34:35], -1, 0")
    A("v_mov_b32 v17, 7"); A("v_cndmask_b32 v16, v17, v16, s[34:35]")
    MS = [24, 26, 28, 30, 64, 66, 32, 34]
    for (lim, bs) in ((17, (2, 3)), (16, (0, 1))):
        for q in range(8):
            A(f"v_subrev_u32 v18, {16*(q >> 2) + (q & 3)}, v15")
            A(f"v_cmp_le_u32 s[{MS[q]}:{MS[q]+1}], v18, v{lim}")
        for b in bs:
            for q in range(8):
                A(f"v_cndmask_b32 v{sc(b,0)+q}, v28, v{sc(b,0)+q}, s[{MS[q]}:{MS[q]+1}]")
    MX = 192; M2 = 196
    def xreduce(op):
        for swap in ("v_permlane16_swap_b32", "v_permlane32_swap_b32"):
            for b in range(4): A(f"v_mov_b32 v{M2+b}, v{MX+b}")
            for b in range(4): A(f"{swap} v{MX+b}, v{M2+b}")
            for b in range(4): A(f"{op} v{MX+b}, v{MX+b}, v{M2+b}")
    for b in range(4): s0 = sc(b,0); A(f"v_max3_f32 v{MX+b}, v{s0}, v{s0+1}, v{s0+2}")
    for b in range(4): s0 = sc(b,0); A(f"v_max3_f32 v{MX+b}, v{MX+b}, v{s0+3}, v{s0+4}")
    for b in range(4): s0 = sc(b,0); A(f"v_max3_f32 v{MX+b}, v{MX+b}, v{s0+5}, v{s0+6}")
    for b in range(4): s0 = sc(b,0); A(f"v_max_f32 v{MX+b}, v{MX+b}, v{s0+7}")
    xreduce("v_max_f32")
    for b in range(4):
        for q in range(8): A(f"v_sub_f32 v{sc(b,0)+q}, v{sc(b,0)+q}, v{MX+b}")
    for b in range(4):
        for q in range(8): A(f"v_exp_f32 v{sc(b,0)+q}, v{sc(b,0)+q}")
    svc.step()
    for b in range(4): s0 = sc(b,0); A(f"v_add_f32 v{MX+b}, v{s0}, v{s0+1}")
    for q in range(2, 8):
        for b in range(4): A(f"v_add_f32 v{MX+b}, v{MX+b}, v{sc(b,0)+q}")
    xreduce("v_add_f32")
    for b in range(4): A(f"v_rcp_f32 v{MX+b}, v{MX+b}")
    PB = 200
    for b in range(4):
        for q in range(8): A(f"v_mul_f32 v{sc(b,0)+q}, v{sc(b,0)+q}, v{MX+b}")
    for b in range(4):
        for q in range(4): A(f"v_cvt_pk_bf16_f32 v{PB+4*b+q}, v{sc(b,0)+2*q}, v{sc(b,0)+2*q+1}")
    OB = 160
    for b in range(4):
        for mt in range(2): A(f"v_mfma_f32_16x16x32_bf16 {v(OB+8*b+4*mt,4)}, {v(V_(b,mt),4)}, {v(PB+4*b,4)}, 0")
    ST(A, 5)
    svc.step()
    A("v_and_b32 v15, 1, v13"); A("v_lshlrev_b32 v15, 1, v15"); A("v_bfe_u32 v16, v13, 1, 1"); A("v_or_b32 v15, v15, v16")
    A("v_and_b32 v16, 12, v13"); A("v_or_b32 v15, v15, v16"); A("v_lshl_add_u32 v15, v14, 4, v15"); A("v_lshlrev_b32 v29, 4, v15")
    A(f"s_lshl_b32 s23, s{S_RB}, 1"); A("s_and_b32 s33, s3, 1"); A("s_add_u32 s23, s23, s33"); A("s_mul_i32 s23, s23, 44")
    A(f"s_lshl_b32 s33, s{S_CB}, 1"); A("s_add_u32 s23, s23, s33"); A("s_lshr_b32 s33, s3, 1"); A("s_add_u32 s23, s23, s33")
    A("s_lshl_b32 s23, s23, 12"); A(f"s_add_u32 s23, s23, {WS_AF}")
    srd_from(A, 16, S_WS, 23, 4096)
    A("v_and_b32 v15, 2, v13"); A("v_cmp_eq_u32 vcc, 0, v15"); A("v_cmp_ne_u32 s[24:25], 0, v15")
    for b in range(4):
        o = OB + 8*b
        for q in range(8): A(f"v_mul_f32 v{o+q}, v{o+q}, v{G_(b)}")
        for q in range(4): A(f"v_cvt_pk_bf16_f32 v{PB+4*b+q}, v{o+2*q}, v{o+2*q+1}")
    for bb in range(2):
        X0 = PB + 8*bb; X1 = X0 + 4; Y = 216 + 8*bb
        for q in range(4):
            A(f"v_mov_b32_dpp v{Y+q}, v{X1+q} quad_perm:[2,3,0,1] row_mask:0xf bank_mask:0xf")
            A(f"v_mov_b32_dpp v{Y+4+q}, v{X0+q} quad_perm:[2,3,0,1] row_mask:0xf bank_mask:0xf")
        for q in range(4):
            A(f"v_cndmask_b32 v{Y+q}, v{Y+q}, v{X0+q}, vcc")
            A(f"v_cndmask_b32 v{Y+4+q}, v{Y+4+q}, v{X1+q}, s[24:25]")
        for aa in range(2):
            A(f"buffer_store_dwordx4 {v(Y+4*aa,4)}, v29, s[16:19], 0 offen offset:{(2*bb+aa)*1024} sc1", tag='pubst')
    ST(A, 6)
    svc.step()
    wf_store(A)
    A.wait_vm('pubst'); tag_take(A, lambda x: L('q' + x)); A("s_barrier")
    A(f"s_lshl_b32 s27, s{S_RB}, 3"); A(f"s_add_u32 s27, s27, s{S_CB}"); A("s_add_u32 s27, s27, 128"); A("s_lshl_b32 s27, s27, 3"); A(f"s_add_u32 s27, s27, {WS_F1}")
    signal(A, L, 'sigqd', 27)
    ST(A, 7)
    svc.finish()
    A.wait_lg()
    ST(A, 8)

def phase2(A, L):
    ACC, BR = 32, 144
    acc = lambda j, tau: ACC + (j*4+tau)*4
    bfrag = lambda kk, j: BR + (kk % 4)*28 + j*4
    afrag = lambda kk, tau: ((kk >> 1)*8 + (kk & 1)*4 + tau)*4
    A("v_lshlrev_b32 v3, 4, v12")
    A(f"s_mul_i32 s23, s{S_CB}, {64*7168}"); srd_from(A, 12, S_WS, 23, 64*7168)
    A(f"s_mul_i32 s26, s3, {16*7168}")
    A("v_add_u32 v4, 4096, v3")
    A(f"s_lshl_b32 s27, s{S_CB}, 7"); A(f"s_add_u32 s27, s27, {WS_F1}"); A("v_lshl_add_u32 v17, v12, 3, s27")
    A.wait_lg()
    poll(A, L, 'pa', 17, 16)
    ST(A, 10)
    def issueB(kk, js):
        for j in js:
            if j == js[0]: A(f"s_add_u32 s27, s26, {kk*7168}")
            A(f"buffer_load_dwordx4 {v(bfrag(kk,j),4)}, v{3 if j < 4 else 4}, s[12:15], s27 offen offset:{(j % 4)*1024} sc1", tag=('B', kk))
    for kk in range(3): issueB(kk, list(range(7)))
    c3ok = None
    A(f"s_mul_i32 s23, s{S_CB}, {44*4096}"); A(f"s_add_u32 s23, s23, {WS_WF}"); srd_from(A, 8, S_WS, 23, 44*4096)
    A(f"s_cmp_eq_u32 s{S_CB}, 7"); A("s_cselect_b32 s10, 0, s10")
    A(f"s_mul_i32 s23, s{S_RB2}, {44*4096}"); A(f"s_add_u32 s23, s23, {WS_AF}"); srd_from(A, 16, S_WS, 23, 44*4096)
    for tau in range(4):
        A(f"s_xor_b32 s24, s3, {tau}"); A("s_lshl_b32 s24, s24, 10"); A(f"v_add_u32 v{5+tau}, s24, v3")
    A("s_lshl_b32 s28, s3, 14")
    A(f"s_mul_i32 s29, s3, {7*4096}"); A(f"s_add_u32 s29, s29, {16*4096}")
    wq = []
    for s_ in range(4):
        for uu in range(4): wq.append((f"buffer_load_dwordx4 {a((s_*4+uu)*4,4)}, v3, s[8:11], SOFF offen offset:{uu*1024} sc1", 28, s_, ('Wo', s_)))
    for s_ in range(7):
        for uu in range(4): wq.append((f"buffer_load_dwordx4 {a(64+(s_*4+uu)*4,4)}, v3, s[8:11], SOFF offen offset:{uu*1024} sc1", 29, s_, ('Wh', s_)))
    def issueW(n):
        for _ in range(n):
            if not wq: return
            t, base, s_, tg = wq.pop(0)
            if 'offset:0 ' in t: A(f"s_add_u32 s30, s{base}, {s_*4096}")
            A(t.replace('SOFF', 's30'), tag=tg)
    def epi_loads():
        A(f"s_lshl_b32 s30, s{S_RB2}, 2"); A("s_add_u32 s30, s30, s3")
        A("s_mul_i32 s31, s30, 56"); A(f"s_mul_i32 s32, s{S_CB}, 7"); A("s_add_u32 s31, s31, s32"); A("s_lshl_b32 s31, s31, 9"); A(f"s_add_u32 s31, s31, {WS_Z1F}")
        srd_from(A, 64, S_WS, 31, 7*512)
        A("v_lshlrev_b32 v2, 3, v12")
        for j in range(7): A(f"buffer_load_dwordx2 {v(16+2*j,2)}, v2, s[64:67], 0 offen offset:{j*512} sc1", tag='epi')
        A(f"s_lshl_b32 s31, s{S_RB2}, 6"); A("s_lshr_b32 s32, s3, 1"); A("s_lshl_b32 s32, s32, 5"); A("s_add_u32 s31, s31, s32")
        A("s_and_b32 s32, s3, 1"); A("s_lshl_b32 s32, s32, 2"); A("s_add_u32 s31, s31, s32")
        A("v_lshrrev_b32 v2, 2, v13"); A("v_lshlrev_b32 v2, 3, v2"); A("v_and_b32 v1, 3, v13"); A("v_add_u32 v2, v2, v1"); A("v_add_u32 v2, s31, v2")
        A("v_lshlrev_b32 v1, 1, v2"); srd_from(A, 64, S_BSP, None, S*2)
        A("buffer_load_ushort v30, v1, s[64:67], 0 offen", tag='epi')
        A(f"s_mov_b32 s31, {WS_GATE}"); srd_from(A, 64, S_WS, 31, S*4)
        A("v_lshlrev_b32 v1, 2, v2"); A("buffer_load_dword v31, v1, s[64:67], 0 offen sc1", tag='epi')
    for kk in range(16):
        A.wait_vm(('B', kk))
        pend = list(range(7)) if kk + 3 < 16 else []
        m = 0
        if kk == 9:
            A(f"s_mov_b32 s27, {WS_F1}"); A("v_lshl_add_u32 v2, v12, 5, s27")
            for q2 in range(2): A(f"global_load_dwordx4 {v(16+4*q2,4)}, v2, s[{S_WS}:{S_WS+1}] offset:{16*q2} sc1", tag='fl')
        if kk == 12:
            A.wait_vm('fl')
            def check():
                out = []
                for q in range(8): out.append(f"v_xor_b32 v{16+q}, s{S_TAG + (q & 1)}, v{16+q}")
                out += ["v_or3_b32 v16, v16, v17, v18", "v_or3_b32 v19, v19, v20, v21", "v_or3_b32 v16, v16, v22, v23", "v_or_b32 v16, v16, v19", "v_cmp_eq_u32 vcc, 0, v16"]
                return out
            for t in check(): A(t)
            A("s_nop 1"); A("s_cmp_eq_u64 vcc, exec"); A(f"s_cbranch_scc1 {L('allok')}")
            A.raw("  s_mov_b32 s33, 0")
            A.raw(f"{L('allloop')}:")
            for q2 in range(2): A.raw(f"  global_load_dwordx4 {v(16+4*q2,4)}, v2, s[{S_WS}:{S_WS+1}] offset:{16*q2} sc1")
            A.raw("  s_add_u32 s33, s33, 1"); A.raw("  s_waitcnt vmcnt(0)")
            for t in check(): A.raw("  " + t)
            A.raw("  s_nop 1"); A.raw("  s_cmp_eq_u64 vcc, exec"); A.raw(f"  s_cbranch_scc1 {L('allok')}")
            A.raw(f"  s_sleep {SLEEP}"); A.raw("  s_cmp_lt_u32 s33, 0x20000"); A.raw(f"  s_cbranch_scc1 {L('allloop')}")
            A.label(L('allok'))
        if kk == 13: epi_loads()
        for j in range(7):
            for tau in range(4):
                c = v(acc(j,tau),4)
                A(f"v_mfma_f32_16x16x32_bf16 {c}, {v(bfrag(kk,j),4)}, {a(afrag(kk,tau),4)}, {c if kk else 0}")
                m += 1
                if pend and m % 4 == 1:
                    jj = pend.pop(0)
                    A(f"s_add_u32 s27, s26, {(kk+3)*7168}") if jj == 0 else None
                    A(f"buffer_load_dwordx4 {v(bfrag(kk+3,jj),4)}, v{3 if jj < 4 else 4}, s[12:15], s27 offen offset:{(jj % 4)*1024} sc1", tag=('B', kk+3))
                if kk >= 13 and m % 2 == 0: issueW(1)
        A.check_vm()
    ST(A, 11)
    A("s_mul_i32 s23, s3, 21504"); A("v_add_u32 v9, s23, v3")
    for tau in (1,2,3):
        A(f"s_xor_b32 s24, s3, {tau}"); A("s_mul_i32 s24, s24, 21504"); A(f"s_add_u32 s24, s24, {(tau-1)*7168}"); A(f"v_add_u32 v{(10,11,15)[tau-1]}, s24, v3")
    for tau in (1,2,3):
        for j in range(7): A(f"ds_write_b128 v9, {v(acc(j,tau),4)} offset:{(tau-1)*7168+j*1024}", tag='w')
    issueW(64)
    A.wait_lg(); A("s_barrier")
    T0 = 144
    for tau in (1,2,3):
        for j in range(7): A(f"ds_read_b128 {v(T0+((tau-1)*7+j)*4,4)}, v{(10,11,15)[tau-1]} offset:{j*1024}", tag=('r',tau))
    A.wait_vm('epi')
    for s_ in range(4):
        A(f"s_add_u32 s30, s28, {s_*4096}")
        for tau in range(4): A(f"buffer_load_dwordx4 {a(176+(s_*4+tau)*4,4)}, v{5+tau}, s[16:19], s30 offen sc1", tag=('Ao', s_))
    A.check_vm()
    for tau in (1,2,3):
        A.wait_lg(('r',tau))
        for j in range(7):
            c = acc(j,0); t = T0+((tau-1)*7+j)*4
            A(f"v_pk_add_f32 {v(c,2)}, {v(c,2)}, {v(t,2)}"); A(f"v_pk_add_f32 {v(c+2,2)}, {v(c+2,2)}, {v(t+2,2)}")
    A.wait_vm('epi')
    A("v_lshlrev_b32 v30, 16, v30"); A("v_sub_f32 v31, 1.0, v31")
    H = 144
    for j in range(7):
        c = acc(j,0)
        for r in range(4):
            z = 16 + 2*j + (r >> 1); t = 1 + (r & 1)
            if r & 1: A(f"v_and_b32 v{t}, 0xffff0000, v{z}")
            else: A(f"v_lshlrev_b32 v{t}, 16, v{z}")
            A(f"v_add_f32 v{c+r}, v{c+r}, v30")
            A(f"v_mul_f32 v{t}, v{t}, v31")
            A(f"v_mul_f32 v{c+r}, v{c+r}, v{t}")
        A(f"v_cvt_pk_bf16_f32 v{H+2*j}, v{c}, v{c+1}"); A(f"v_cvt_pk_bf16_f32 v{H+2*j+1}, v{c+2}, v{c+3}")
    A(f"s_mul_i32 s30, s{S_CB}, 7"); A("s_lshr_b32 s31, s30, 1"); A("s_add_u32 s31, s31, 16"); A("s_lshl_b32 s31, s31, 12")
    A("s_lshl_b32 s32, s3, 10"); A("s_add_u32 s31, s31, s32")
    A("s_and_b32 s30, s30, 1"); A("s_cmp_eq_u32 s30, 0"); A(f"s_cbranch_scc0 {L('odd')}")
    vm0 = list(A.vm)
    for p in range(3):
        A(f"buffer_store_dwordx4 {v(H+4*p,4)}, v3, s[16:19], s31 offen sc1", tag='hst'); A("s_add_u32 s31, s31, 4096")
    A(f"buffer_store_dwordx2 {v(H+12,2)}, v3, s[16:19], s31 offen sc1", tag='hst')
    A(f"s_branch {L('hfin')}")
    A.label(L('odd')); A.vm = list(vm0)
    A(f"buffer_store_dwordx2 {v(H,2)}, v3, s[16:19], s31 offen offset:8 sc1", tag='hst')
    for p in range(3):
        A("s_add_u32 s31, s31, 4096"); A(f"buffer_store_dwordx4 {v(H+2+4*p,4)}, v3, s[16:19], s31 offen sc1", tag='hst')
    A.label(L('hfin'))
    ST(A, 12)

def phase3(A, L):
    ACC = 32; acc = lambda uu, tau: ACC + (uu*4+tau)*4
    HA = 96
    for s_ in range(4):
        A.wait_vm([('Wo', s_), ('Ao', s_)])
        for tau in range(4):
            for uu in range(4):
                c = v(acc(uu,tau),4)
                A(f"v_mfma_f32_16x16x32_bf16 {c}, {a((s_*4+uu)*4,4)}, {a(176+(s_*4+tau)*4,4)}, {c if s_ else 0}")
    A.wait_vm(); A("s_barrier")
    A(f"s_lshl_b32 s27, s{S_RB2}, 7"); A(f"s_lshl_b32 s26, s{S_CB}, 3"); A("s_add_u32 s27, s27, s26"); A(f"s_add_u32 s27, s27, {WS_F2}")
    signal(A, L, 'sighd', 27)
    A(f"s_cmp_eq_u32 s{S_CB}, 7"); A(f"s_cbranch_scc1 {L('fin')}")
    ST(A, 13)
    A("s_mul_i32 s26, s3, 12288"); A("v_add_u32 v20, s26, v3")
    for tau in (1,2,3):
        A(f"s_xor_b32 s26, s3, {tau}"); A("s_mul_i32 s26, s26, 12288"); A(f"s_add_u32 s26, s26, {(tau-1)*4096}"); A(f"v_add_u32 v{20+tau}, s26, v3")
    A("v_lshrrev_b32 v15, 2, v13"); A("v_lshlrev_b32 v15, 3, v15"); A("v_and_b32 v16, 3, v13"); A("v_add_u32 v15, v15, v16")
    A(f"s_lshl_b32 s26, s{S_RB2}, 6"); A("s_lshr_b32 s27, s3, 1"); A("s_lshl_b32 s27, s27, 5"); A("s_add_u32 s26, s26, s27")
    A("s_and_b32 s27, s3, 1"); A("s_lshl_b32 s27, s27, 2"); A("s_add_u32 s26, s26, s27")
    A("v_add_u32 v15, s26, v15"); A("v_mul_u32_u24 v15, 896, v15")
    A("v_lshlrev_b32 v16, 4, v14"); A(f"s_lshl_b32 s27, s{S_CB}, 7"); A("v_add_u32 v16, s27, v16"); A("v_add_u32 v1, v15, v16")
    srd_from(A, 12, S_OUT, None, S*D*2)
    A(f"s_lshl_b32 s27, s{S_RB2}, 7"); A(f"s_add_u32 s27, s27, {WS_F2}"); A("v_lshl_add_u32 v17, v12, 3, s27")
    poll(A, L, 'pb', 17, 8)
    ST(A, 14)
    for s_ in range(7):
        A(f"s_add_u32 s30, s29, {s_*4096}")
        for tau in range(4): A(f"buffer_load_dwordx4 {v(HA+(s_*4+tau)*4,4)}, v{5+tau}, s[16:19], s30 offen sc1", tag=('Ah', s_))
    for s_ in range(7):
        A.wait_vm(('Ah', s_))
        for tau in range(4):
            for uu in range(4):
                c = v(acc(uu,tau),4)
                A(f"v_mfma_f32_16x16x32_bf16 {c}, {a(64+(s_*4+uu)*4,4)}, {v(HA+(s_*4+tau)*4,4)}, {c}")
    ST(A, 15)
    for tau in (1,2,3):
        for uu in range(4): A(f"ds_write_b128 v20, {v(acc(uu,tau),4)} offset:{(tau-1)*4096+uu*1024}", tag='w')
    A.wait_lg(); A("s_barrier")
    T0 = 208
    for tau in (1,2,3):
        for uu in range(4): A(f"ds_read_b128 {v(T0+((tau-1)*4+uu)*4,4)}, v{20+tau} offset:{uu*1024}", tag=('r',tau))
    for tau in (1,2,3):
        A.wait_lg(('r',tau))
        for uu in range(4):
            c = acc(uu,0); t = T0+((tau-1)*4+uu)*4
            A(f"v_pk_add_f32 {v(c,2)}, {v(c,2)}, {v(t,2)}"); A(f"v_pk_add_f32 {v(c+2,2)}, {v(c+2,2)}, {v(t+2,2)}")
    for vv in range(2):
        o = 96 + 4*vv; c0 = acc(2*vv,0); c1 = acc(2*vv+1,0)
        A(f"v_cvt_pk_bf16_f32 v{o}, v{c0}, v{c0+1}"); A(f"v_cvt_pk_bf16_f32 v{o+1}, v{c0+2}, v{c0+3}")
        A(f"v_cvt_pk_bf16_f32 v{o+2}, v{c1}, v{c1+1}"); A(f"v_cvt_pk_bf16_f32 v{o+3}, v{c1+2}, v{c1+3}")
        A(f"buffer_store_dwordx4 {v(o,4)}, v1, s[12:15], 0 offen offset:{vv*64}")

def gen_mega(name="mega", code_bytes=0):
    Stamps.map = [78+2*k for k in range(11)] + [4, 6, 42, 0, 74+0*0]
    A = Asm(); L = lambda x: f"{name}_{x}"
    A("s_cmp_ge_u32 s2, 256"); A(f"s_cbranch_scc1 {L('end')}")
    ST(A, 0)
    A("s_load_dwordx16 s[36:51], s[0:1], 0")
    A("s_load_dwordx8 s[52:59], s[0:1], 64")
    A("s_getreg_b32 s20, hwreg(HW_REG_XCC_ID)"); A("s_getreg_b32 s21, hwreg(HW_REG_HW_ID)")
    A("v_lshrrev_b32 v6, 6, v0"); A("v_and_b32 v12, 63, v0"); A("v_readfirstlane_b32 s3, v6")
    A("s_and_b32 s20, s20, 7")
    A("s_bfe_u32 s24, s21, 0x3000d"); A("s_and_b32 s24, s24, 3"); A("s_lshl_b32 s24, s24, 3")
    A("s_bfe_u32 s25, s21, 0x40008"); A("s_mul_i32 s25, s25, 13"); A("s_lshr_b32 s25, s25, 4"); A("s_min_u32 s25, s25, 7"); A("s_add_u32 s24, s24, s25")
    A("s_lshl_b32 s24, s24, 2"); A("s_add_u32 s24, s24, s3")
    A("v_and_b32 v13, 15, v12"); A("v_lshrrev_b32 v14, 4, v12")
    if code_bytes:
        A("s_getpc_b64 s[22:23]"); A.raw(f"{name}_pc:")
        A("v_and_b32 v10, 3, v0"); A("s_lshl_b32 s25, s24, 2"); A("v_add_u32 v10, s25, v10"); A("v_lshlrev_b32 v10, 7, v10")
        assert code_bytes <= 512*128
        A(f"v_min_u32 v10, {L('end')}-{name}_pc, v10")
    A("v_lshrrev_b32 v15, 3, v12"); A("v_and_b32 v16, 7, v12"); A("v_min_u32 v16, 6, v16"); A("v_lshlrev_b32 v16, 7, v16")
    A("s_and_b32 s25, s20, 1"); A("s_mul_i32 s26, s25, 896")
    A("s_lshr_b32 s27, s20, 1"); A("s_lshl_b32 s27, s27, 9")
    A("s_lshl_b32 s28, s24, 3"); A("s_add_u32 s27, s27, s28"); A("s_mul_i32 s27, s27, 896")
    A("s_sub_u32 s28, s24, 64"); A("s_min_u32 s28, s28, 55"); A(f"s_mul_i32 s28, s28, {8*3584}"); A("s_add_u32 s28, s28, s26"); A("s_add_u32 s28, s28, 1792")
    A("s_cmp_lt_u32 s24, 64"); A("s_cselect_b32 s27, s27, s28"); A("s_cselect_b32 s28, 1, 4"); A("s_mul_i32 s28, s28, 896")
    A("v_mul_lo_u32 v15, v15, s28"); A("v_add3_u32 v57, v15, v16, s27")
    A("v_lshrrev_b32 v15, 4, v12"); A("s_min_u32 s29, s24, 111"); A("s_lshl_b32 s29, s29, 2"); A("v_add_u32 v15, s29, v15"); A("v_mul_u32_u24 v15, 2688, v15")
    A("v_bfe_u32 v16, v12, 2, 2"); A("v_min_u32 v16, 2, v16"); A("v_mul_u32_u24 v16, 896, v16"); A("v_and_b32 v17, 3, v12"); A("v_lshlrev_b32 v17, 7, v17")
    A("s_lshr_b32 s26, s26, 1"); A("v_add3_u32 v15, v15, v16, v17"); A("v_add_u32 v58, s26, v15")
    A.wait_lg()
    tag_publish(A, L)
    A("s_cmp_lg_u32 s3, 0"); A(f"s_cbranch_scc1 {L('notick')}")
    A.raw("  s_lshl_b32 s30, s20, 5"); A.raw("  v_mov_b32 v18, s30"); A.raw("  v_mov_b32 v19, 1")
    A.raw("  s_mov_b64 s[34:35], exec"); A.raw("  s_mov_b64 exec, 1")
    A.raw(f"  global_atomic_add v59, v18, v19, s[{S_DBG}:{S_DBG+1}] sc0 sc1")
    A.raw("  s_mov_b64 exec, s[34:35]")
    A.label(L('notick'))
    if code_bytes: A("global_load_dword v56, v10, s[22:23]", tag='pf')
    A("s_cmp_lt_u32 s24, 64"); A(f"s_cselect_b32 s28, s{S_X}, s{S_WIN}"); A(f"s_cselect_b32 s29, s{S_X+1}, s{S_WIN+1}")
    A("global_load_dword v56, v57, s[28:29]", tag='pf')
    A(f"global_load_dword v56, v58, s[{S_WQKV}:{S_WQKV+1}]", tag='pf')
    A(f"v_mov_b32 v18, {L_TICKET}")
    A("s_cmp_lg_u32 s3, 0"); A(f"s_cbranch_scc1 {L('notick2')}")
    A.raw(f"  s_waitcnt vmcnt({3 if code_bytes else 2})")
    A.raw("  v_readfirstlane_b32 s30, v59"); A.raw("  s_nop 1"); A.raw("  v_mov_b32 v59, s30")
    A.raw("  ds_write_b32 v18, v59"); A.raw("  s_waitcnt lgkmcnt(0)")
    A.label(L('notick2'))
    A("s_barrier")
    A("ds_read_b32 v19, v18", tag='tk'); A.wait_lg()
    A("v_readfirstlane_b32 s21, v19")
    A("s_cmp_ge_u32 s21, 32"); A(f"s_cbranch_scc1 {L('end')}")
    A("s_lshl_b32 s2, s21, 3"); A("s_or_b32 s2, s2, s20")
    A("s_lshr_b32 s33, s21, 4"); A("s_and_b32 s21, s21, 15")
    A("s_lshr_b32 s22, s20, 1"); A("s_lshl_b32 s22, s22, 2"); A("s_lshr_b32 s23, s21, 2"); A("s_add_u32 s22, s22, s23")
    A("s_and_b32 s20, s20, 1"); A("s_lshl_b32 s20, s20, 2"); A("s_and_b32 s21, s21, 3"); A("s_add_u32 s21, s21, s20")
    A("s_mov_b32 s20, s22"); A("s_lshl_b32 s22, s20, 1"); A("s_add_u32 s22, s22, s33")
    ST(A, 'tick')
    A("s_cmp_eq_u32 s33, 0"); A(f"s_cbranch_scc0 {L('qrole')}")
    vm0 = list(A.vm); lg0 = list(A.lg)
    role_z(A, L)
    A(f"s_branch {L('p2')}")
    A.label(L('qrole')); A.vm = list(vm0); A.lg = list(lg0)
    role_q(A, L)
    A.label(L('p2')); A.vm = []; A.lg = []
    ST(A, 9)
    phase2(A, L)
    phase3(A, L)
    if Stamps.enabled:
        A.raw("  s_waitcnt vmcnt(0)")
    A.label(L('fin'))
    if os.environ.get('DBGOUT'):
        A.raw("  s_waitcnt vmcnt(0) lgkmcnt(0)")
        A.raw(f"  s_cmp_lg_u32 s2, {os.environ['DBGOUT']}"); A.raw(f"  s_cbranch_scc1 {L('end')}"); A.raw("  s_cmp_lg_u32 s3, 0"); A.raw(f"  s_cbranch_scc1 {L('end')}")
        A.raw("  v_mov_b32 v250, 0")
        for k in range(1, 15):
            kk = k if k < 14 else 15
            A.raw(f"  s_sub_u32 s100, s{Stamps.reg(kk)}, s{Stamps.reg(0)}"); A.raw("  v_mov_b32 v251, s100")
            A.raw(f"  global_store_dword v250, v251, s[{S_DBG}:{S_DBG+1}] offset:{4*(k+1)}")
    else:
        Stamps.flush(A, 0, 16, S_WS)
    A.label(L('end'))
    A("s_endpgm")
    return A

if __name__ == "__main__":
    import sys, asmlib
    from build import assemble
    if len(sys.argv) > 2 and sys.argv[2].startswith('stamp'): asmlib.Stamps.enabled = True
    if len(sys.argv) > 2 and sys.argv[2] == 'stampcyc': asmlib.Stamps.op = 's_memtime'
    t = gen_mega().text(); sz = len([l for l in t.split('\n') if l.startswith('  ')])*8
    A = gen_mega(code_bytes=sz)
    if os.environ.get('FINAL'):
        from build import assemble_single
        open(sys.argv[1], 'w').write(assemble_single(dict(name="gated_mix__sliding_local_dilated__mixer_gmlp__prompt_kernel", text=A.text(), grid=256, block=256, lds=163840, vgpr=512, accum=256)))
    else:
        open(sys.argv[1], 'w').write(assemble([dict(name="mega_kernel", text=A.text(), grid=256, block=256, lds=163840, vgpr=512, accum=256)]))
    print("nops", A.nops_inserted, "est bytes", sz)
```

```python
from asmlib import *
from layout import *
from k1z import hexf, gelu_pairs, GELU_C1, GELU_C2
import os
PROFILE = os.environ.get('PROFILE', 'all')
SLEEP = int(os.environ.get('SLEEP', '2'))
def ST(A, k):
    if PROFILE == 'all':
        if isinstance(k, int): Stamps.mark(A, k)
    elif PROFILE == 'p1':
        if isinstance(k, str): return
        if isinstance(k, int) and k in (0, 1, 2): Stamps.mark(A, k)
        elif isinstance(k, int) and k == 3: Stamps.mark(A, 10)
        elif isinstance(k, int) and k == 4: Stamps.mark(A, 11)
        elif isinstance(k, tuple) and k[0] == 'g': Stamps.mark(A, 3 + k[1])
        elif isinstance(k, int) and k in (5, 6, 7, 8): Stamps.mark(A, 7 + k)
    elif PROFILE == 'p4':
        m = {0: 0, 3: 1, 5: 2, 7: 3, 'sig': 4, ('au', 8): 5, ('au', 9): 6, ('au', 10): 7, ('au', 11): 8, ('au', 12): 9, ('au', 13): 10, ('au', 14): 11, ('au', 15): 12, 8: 13, 'pubw': 14, 10: 15}
        if k in m: Stamps.mark(A, m[k])
    elif PROFILE == 'p3':
        m = {0: 0, 3: 1, 4: 2, 5: 3, 6: 4, 7: 5, 'lnq': 6, 'norm': 7, 'pubw': 8, 'sig': 9, 8: 10, 10: 11, 11: 12, 'w2': 13, 'st0': 14, 'st3': 15}
        if k in m: Stamps.mark(A, m[k])
    elif PROFILE == 'p2':
        m = {0: 0, 3: 1, 4: 2, 8: 13, 10: 14, 'z1in': 3, 'z1out': 11, 'z1epi': 12, 11: 15}
        if isinstance(k, tuple) and k[0] == 'z': Stamps.mark(A, 4 + k[1])
        elif k in m: Stamps.mark(A, m[k])

S_X, S_WQKV, S_WO, S_WIN, S_WSP, S_BSP, S_WOUT = 36, 38, 40, 44, 46, 48, 50
S_GW, S_OUT, S_DBG, S_WS = 52, 54, 56, 58
S_RB, S_CB, S_RB2 = 20, 21, 22
SRD_A = 60
OOB = 0x7fff0000
C_LN, C_ZD, C_QD, C_HD = 0, 16, 24, 32

def srd_from(A, d, ptr, off_sreg, nbytes):
    if off_sreg is None:
        A(f"s_mov_b32 s{d}, s{ptr}"); A(f"s_and_b32 s{d+1}, s{ptr+1}, 0xffff")
    else:
        A(f"s_add_u32 s{d}, s{ptr}, s{off_sreg}"); A(f"s_addc_u32 s{d+1}, s{ptr+1}, 0"); A(f"s_and_b32 s{d+1}, s{d+1}, 0xffff")
    A(f"s_mov_b32 s{d+2}, {nbytes}"); A(f"s_mov_b32 s{d+3}, 0x20000")

S_TAG = 76
def tag_publish(A, L):
    A("s_cmp_lg_u32 s2, 0"); A(f"s_cbranch_scc1 {L('notag')}")
    A.raw("  s_cmp_lg_u32 s3, 0"); A.raw(f"  s_cbranch_scc1 {L('notag')}")
    A.raw("  s_memrealtime s[30:31]"); A.raw("  s_waitcnt lgkmcnt(0)"); A.raw("  s_or_b32 s30, s30, 1")
    A.raw("  v_mov_b32 v16, s30"); A.raw("  v_mov_b32 v17, s31"); A.raw("  v_mov_b32 v18, 16")
    A.raw("  s_mov_b64 s[34:35], exec"); A.raw("  s_mov_b64 exec, 1")
    A.raw(f"  global_store_dwordx2 v18, v[16:17], s[{S_DBG}:{S_DBG+1}] sc1")
    A.raw("  s_mov_b64 exec, s[34:35]")
    A.label(L('notag'))
def tag_issue(A):
    A("v_mov_b32 v9, 16"); A(f"global_load_dwordx2 v[10:11], v9, s[{S_DBG}:{S_DBG+1}] sc1", tag='tagld')
def tag_take(A, L):
    A.wait_vm('tagld')
    A(f"v_readfirstlane_b32 s{S_TAG}, v10"); A(f"v_readfirstlane_b32 s{S_TAG+1}, v11")
    A(f"s_cmp_lg_u32 s{S_TAG}, 0"); A(f"s_cbranch_scc1 {L('tagd')}")
    A.raw("  s_mov_b32 s33, 0")
    A.raw(f"{L('tagl')}:")
    A.raw(f"  global_load_dwordx2 v[10:11], v9, s[{S_DBG}:{S_DBG+1}] sc1")
    A.raw("  s_add_u32 s33, s33, 1")
    A.raw("  s_waitcnt vmcnt(0)")
    A.raw(f"  v_readfirstlane_b32 s{S_TAG}, v10"); A.raw(f"  v_readfirstlane_b32 s{S_TAG+1}, v11")
    A.raw("  s_nop 1")
    A.raw(f"  s_cmp_lg_u32 s{S_TAG}, 0"); A.raw(f"  s_cbranch_scc1 {L('tagd')}")
    A.raw("  s_cmp_lt_u32 s33, 0x20000"); A.raw(f"  s_cbranch_scc1 {L('tagl')}")
    A.label(L('tagd'))

def signal(A, L, tag, off_sreg):
    A("s_cmp_lg_u32 s3, 0"); A(f"s_cbranch_scc1 {L(tag)}")
    A.raw(f"  v_mov_b32 v18, s{off_sreg}"); A.raw(f"  v_mov_b32 v16, s{S_TAG}"); A.raw(f"  v_mov_b32 v17, s{S_TAG+1}")
    A.raw("  s_mov_b64 s[34:35], exec"); A.raw("  s_mov_b64 exec, 1")
    A.raw(f"  global_store_dwordx2 v18, v[16:17], s[{S_WS}:{S_WS+1}] sc1")
    A.raw("  s_mov_b64 exec, s[34:35]")
    A.label(L(tag))

def poll(A, L, tag, vaddr, nlanes):
    A("s_cmp_lg_u32 s3, 0"); A(f"s_cbranch_scc1 {L(tag+'_done')}")
    A.raw("  s_mov_b32 s33, 0"); A.raw("  s_mov_b64 s[34:35], exec"); A.raw(f"  s_mov_b64 exec, {hex((1 << nlanes) - 1) if nlanes < 64 else -1}")
    A.label(L(tag+'_loop'))
    A.raw(f"  global_load_dwordx2 v[18:19], v{vaddr}, s[{S_WS}:{S_WS+1}] sc1")
    A.raw("  s_add_u32 s33, s33, 1")
    A.raw("  s_waitcnt vmcnt(0)")
    A.raw(f"  v_xor_b32 v18, s{S_TAG}, v18"); A.raw(f"  v_xor_b32 v19, s{S_TAG+1}, v19"); A.raw("  v_or_b32 v18, v18, v19")
    A.raw("  v_cmp_eq_u32 vcc, 0, v18")
    A.raw("  s_nop 1")
    A.raw("  s_cmp_eq_u64 vcc, exec")
    A.raw(f"  s_cbranch_scc1 {L(tag+'_out')}")
    A.raw(f"  s_sleep {SLEEP}")
    A.raw("  s_cmp_lt_u32 s33, 0x20000")
    A.raw(f"  s_cbranch_scc1 {L(tag+'_loop')}")
    A.label(L(tag+'_out'))
    A.raw("  s_mov_b64 exec, s[34:35]")
    A.label(L(tag+'_done'))
    A("s_barrier")

def poll_wave(A, L, tag, vaddr):
    A.raw("  s_mov_b32 s33, 0")
    A.label(L(tag+'_loop'))
    A.raw(f"  global_load_dwordx2 v[18:19], v{vaddr}, s[{S_WS}:{S_WS+1}] sc1")
    A.raw("  s_add_u32 s33, s33, 1")
    A.raw("  s_waitcnt vmcnt(0)")
    A.raw(f"  v_xor_b32 v18, s{S_TAG}, v18"); A.raw(f"  v_xor_b32 v19, s{S_TAG+1}, v19"); A.raw("  v_or_b32 v18, v18, v19")
    A.raw("  v_cmp_eq_u32 vcc, 0, v18")
    A.raw("  s_nop 1")
    A.raw("  s_cmp_eq_u64 vcc, exec")
    A.raw(f"  s_cbranch_scc1 {L(tag+'_out')}")
    A.raw(f"  s_sleep {SLEEP}")
    A.raw("  s_cmp_lt_u32 s33, 0x20000")
    A.raw(f"  s_cbranch_scc1 {L(tag+'_loop')}")
    A.label(L(tag+'_out')); A.vm = []

class AService:
    VD, VR = 232, 236
    def __init__(self, A, lds_sreg):
        self.A = A; self.n_dma = 0; self.n_rd = 0; self.sl = lds_sreg
    def setup(self):
        A = self.A
        A(f"s_lshl_b32 s23, s{S_RB2}, 18"); srd_from(A, SRD_A, S_WSP, 23, 64*4096)
        A("v_lshrrev_b32 v16, 3, v12"); A("v_and_b32 v17, 7, v12"); A("v_and_b32 v18, 3, v16"); A("v_xor_b32 v17, v17, v18")
        A("v_lshlrev_b32 v17, 4, v17"); A("v_lshl_add_u32 v17, v16, 12, v17")
        for uu in range(4):
            if uu & 1: A(f"v_xor_b32 v{self.VD+uu}, 64, v17")
            else: A(f"v_mov_b32 v{self.VD+uu}, v17")
            if uu: A(f"v_add_u32 v{self.VD+uu}, {uu*(32768-1024)}, v{self.VD+uu}")
        A("v_lshrrev_b32 v16, 2, v13"); A("v_lshlrev_b32 v16, 3, v16"); A("v_and_b32 v17, 3, v13"); A("v_add_u32 v16, v16, v17")
        A("v_and_b32 v17, 7, v13"); A("v_xor_b32 v17, v17, v14"); A("v_lshlrev_b32 v17, 4, v17"); A("v_lshl_add_u32 v17, v16, 7, v17")
        A(f"v_add_u32 v17, s{self.sl}, v17")
        A("s_and_b32 s23, s3, 1"); A("s_lshl_b32 s23, s23, 9")
        for b in range(2):
            if b: A("s_xor_b32 s23, s23, 512")
            A(f"v_add_u32 v{self.VR+2*b}, s23, v17"); A(f"v_xor_b32 v{self.VR+2*b+1}, 64, v{self.VR+2*b}")
        A("s_lshr_b32 s23, s3, 1"); A("s_lshl_b32 s68, s23, 17"); A("s_lshl_b32 s23, s3, 10"); A("s_add_u32 s68, s68, s23")
        A("s_xor_b32 s69, s68, 0x20000")
    def dma(self):
        A = self.A; n = self.n_dma
        if n >= 16: return
        ss, gt = n >> 1, n & 1
        A(f"s_add_u32 m0, s{self.sl}, {(n % 3)*4096}")
        A(f"s_add_u32 s70, s{68+gt}, {ss*128}")
        for uu in range(4):
            A(f"buffer_load_dwordx4 v{self.VD+uu}, s[{SRD_A}:{SRD_A+3}], s70 offen offset:{uu*1024} lds", tag=('Au', n))
        self.n_dma += 1
    def start(self):
        for _ in range(3): self.dma()
    def step(self):
        A = self.A; n = self.n_rd
        if n >= 16: return
        if n >= 1 and self.n_dma < 16:
            A.wait_lg(('Ar', n-1)); self.dma()
        A.wait_vm(('Au', n)); ST(A, ('au', n))
        ss, gt = n >> 1, n & 1
        for b in range(2):
            for h in range(2):
                tau = 2*gt + b
                A(f"ds_read_b128 {a((ss*8 + h*4 + tau)*4, 4)}, v{self.VR+2*b+h} offset:{(n % 3)*4096}", tag=('Ar', n))
        self.n_rd += 1
    def finish(self):
        while self.n_rd < 16: self.step()

def wf_issue(A):
    A("v_lshrrev_b32 v62, 2, v13"); A("v_lshlrev_b32 v62, 3, v62"); A("v_and_b32 v63, 3, v13"); A("v_add_u32 v62, v62, v63")
    A("v_lshlrev_b32 v62, 1, v62")
    A(f"v_mul_u32_u24 v63, {4*896}, v14"); A("v_add_u32 v62, v62, v63")
    for q in range(2):
        A("s_lshl_b32 s23, s2, 2"); A("s_add_u32 s23, s23, s3")
        if q: A("s_add_u32 s23, s23, 1024")
        A("s_and_b32 s24, s23, 3"); A("s_lshr_b32 s25, s23, 2")
        A("s_mul_i32 s26, s25, 1490"); A("s_lshr_b32 s26, s26, 16")
        A("s_mul_i32 s27, s26, 44"); A("s_sub_u32 s27, s25, s27")
        A("s_lshl_b32 s28, s26, 7"); A("s_lshr_b32 s29, s24, 1"); A("s_lshl_b32 s29, s29, 6"); A("s_add_u32 s28, s28, s29")
        A("s_and_b32 s29, s24, 1"); A("s_lshl_b32 s29, s29, 3"); A("s_add_u32 s28, s28, s29")
        A("s_cmp_lt_u32 s27, 16")
        A(f"s_cselect_b32 s64, s{S_WO}, s{S_WOUT}"); A(f"s_cselect_b32 s65, s{S_WO+1}, s{S_WOUT+1}")
        A("s_cselect_b32 s66, 1, 2"); A(f"s_mul_i32 s66, s66, {448*896}"); A("s_mov_b32 s67, 0x20000"); A("s_and_b32 s65, s65, 0xffff")
        A("s_mul_i32 s29, s27, 28"); A("s_mul_i32 s30, s27, 32"); A("s_sub_u32 s30, s30, 512")
        A("s_cmp_lt_u32 s27, 16"); A("s_cselect_b32 s29, s29, s30"); A("s_cselect_b64 s[30:31], -1, 0")
        A("s_mul_i32 s29, s29, 896"); A("s_add_u32 s29, s29, s28")
        A("s_cmp_ge_u32 s23, 1232"); A("s_cselect_b32 s66, 0, s66")
        A(f"v_add_u32 v58, 0, v62"); A(f"v_add_u32 v59, {16*896}, v62")
        A("v_cmp_eq_u32 vcc, 3, v14"); A("s_and_b64 s[30:31], s[30:31], vcc"); A(f"v_mov_b32 v63, {OOB}")
        A("v_cndmask_b32 v59, v59, v63, s[30:31]")
        for e in range(8):
            A(f"buffer_load_ushort v{40 + 8*q + e}, v{58 + (e >> 2)}, s[64:67], s29 offen offset:{(e & 3)*896}", tag='wfj')
def wf_store(A):
    A.wait_vm('wfj')
    for q in range(2):
        for p in range(4):
            A(f"v_lshl_or_b32 v{40 + 4*q + p}, v{40 + 8*q + 2*p + 1}, 16, v{40 + 8*q + 2*p}")
    A(f"s_mov_b32 s23, {WS_WF}"); srd_from(A, 64, S_WS, 23, 1232*1024)
    A("v_lshlrev_b32 v60, 4, v12")
    A("s_lshl_b32 s23, s2, 2"); A("s_add_u32 s23, s23, s3"); A("s_lshl_b32 s23, s23, 10")
    A("buffer_store_dwordx4 v[40:43], v60, s[64:67], s23 offen sc1", tag='pubst')
    A("s_add_u32 s23, s23, 0x100000")
    A("buffer_store_dwordx4 v[44:47], v60, s[64:67], s23 offen sc1", tag='pubst')

def touch_lines(A, ptr, vaddr, n, step, vdst=56):
    for k in range(n):
        A(f"global_load_dword v{vdst}, v{vaddr}, s[{ptr}:{ptr+1}]", tag='touch')
        if k + 1 < n: A(f"v_add_u32 v{vaddr}, {step}, v{vaddr}")

def touch_late(A):
    A(f"s_lshl_b32 s27, s{S_RB}, 3"); A(f"s_add_u32 s27, s27, s{S_CB}"); A("s_lshl_b32 s27, s27, 2"); A("s_add_u32 s27, s27, s3")
    A("s_lshl_b32 s28, s27, 14"); A("v_lshlrev_b32 v57, 7, v12"); A("v_add_u32 v57, s28, v57")
    touch_lines(A, S_WSP, 57, 2, 8192)
    A("s_min_u32 s27, s27, 447")
    A("s_mul_i32 s28, s27, 1792"); A("v_min_u32 v57, 13, v12"); A("v_lshlrev_b32 v57, 7, v57"); A("v_add_u32 v58, s28, v57")
    A(f"global_load_dword v56, v58, s[{S_WOUT}:{S_WOUT+1}]", tag='touch')
    A("s_mul_i32 s28, s27, 3584"); A("v_add_u32 v58, s28, v57")
    A(f"global_load_dword v56, v58, s[{S_WIN}:{S_WIN+1}]", tag='touch')
    A("s_mul_i32 s28, s27, 896"); A("v_min_u32 v57, 6, v12"); A("v_lshlrev_b32 v57, 7, v57"); A("v_add_u32 v58, s28, v57")
    A(f"global_load_dword v56, v58, s[{S_WO}:{S_WO+1}]", tag='touch')

def wdma_setup(A, V):
    A("v_lshrrev_b32 v15, 1, v13"); A("v_xor_b32 v15, v15, v14")
    A("v_and_b32 v16, 1, v13"); A("v_lshlrev_b32 v16, 4, v16")
    A("v_mul_u32_u24 v17, 3584, v14"); A("v_add_u32 v16, v16, v17"); A(f"v_mov_b32 v18, {OOB}")
    for uu in range(4):
        if uu == 2: A("v_xor_b32 v15, 4, v15")
        A(f"v_lshl_add_u32 v{V+uu}, v15, 5, v16")
        if uu: A(f"v_add_u32 v{V+uu}, {uu*(4*3584-1024)}, v{V+uu}")
        A("v_cmp_eq_u32 vcc, 7, v15"); A(f"v_cndmask_b32 v{V+uu}, v{V+uu}, v18, vcc")
def wread_setup(A, V, base):
    A("v_lshrrev_b32 v15, 2, v13"); A("v_lshl_add_u32 v16, v14, 3, v15"); A("v_lshlrev_b32 v16, 8, v16")
    A("v_and_b32 v17, 3, v13"); A("v_lshl_add_u32 v16, v17, 3, v16"); A(f"v_add_u32 v16, {base}, v16")
    A("v_and_b32 v17, 1, v14"); A("v_lshl_or_b32 v17, v17, 2, v15")
    for j in range(7):
        A(f"v_xor_b32 v18, {j}, v17"); A(f"v_lshl_add_u32 v{V+j}, v18, 5, v16")

GC = dict(VC1=32, VC2=34, VONE=36)
def gelu_consts(A):
    for r, val in ((32, GELU_C1), (34, GELU_C2), (36, 1.0)):
        A(f"v_mov_b32 v{r}, {hexf(val)}"); A(f"v_mov_b32 v{r+1}, {hexf(val)}")

class Z1Tile:
    WB, XB, ACC, GACC = 120, 176, 192, 220
    VW = 24
    def __init__(self, A, L, ring_base, vdma, sW):
        self.A, self.L, self.ring_base, self.vdma, self.sW = A, L, ring_base, vdma, sW
    def dma_w_list(self, c):
        st = (c + 1) % 3
        return [(f"s_add_u32 m0, s71, {self.ring_base + st*16384}", None), (f"s_add_u32 s23, s{self.sW}, {64*c*3584}", None)] + \
               [(f"buffer_load_dwordx4 v{self.vdma+uu}, s[12:15], s23 offen offset:{uu*1024} lds", ('w1', c)) for uu in range(4)]
    def dma_w(self, c):
        for t, tg in self.dma_w_list(c): self.A(t, tag=tg)
    def reads(self, c, h, buf, xoff):
        out = []
        st = (c + 1) % 3
        out.append((f"ds_read_b128 {v(self.XB+buf*8,4)}, v{20+h} offset:{xoff(c)}", ('zx', c, h)))
        out.append((f"ds_read_b128 {v(self.XB+buf*8+4,4)}, v31 offset:{(2*c+h)*64}", ('zx', c, h)))
        for j in range(7):
            for sec in range(2):
                out.append((f"ds_read_b64_tr_b16 {v(self.WB+buf*28+j*4+2*sec,2)}, v{self.VW+j} offset:{st*16384 + h*8192 + sec*1024}", ('zw', c, h, j)))
        return out
    def run(self, xoff, xwait, hooks):
        A = self.A
        ST(A, 'z1in')
        A.wait_vm([('w1', 0)] + xwait(0)); A.wait_lg(); A("s_barrier")
        if ('pre',) in hooks: hooks[('pre',)]()
        for t, tg in self.reads(0, 0, 0, xoff): A(t, tag=tg)
        for c in range(7):
            for h in range(2):
                kk = 2*c + h; buf = kk & 1
                todo = []
                if h == 0: todo = self.reads(c, 1, buf ^ 1, xoff)
                else:
                    if c < 6:
                        A.wait_vm([('w1', c+1)] + xwait(c+1))
                        A.wait_lg(); A("s_barrier"); ST(A, ('z', c))
                        if c + 3 <= 6: self.dma_w(c + 3)
                        todo = self.reads(c+1, 0, buf ^ 1, xoff)
                if (c, h) in hooks: hooks[(c, h)]()
                A.wait_lg([('zx', c, h)])
                d = v(self.GACC, 4)
                A(f"v_mfma_f32_16x16x32_bf16 {d}, {v(self.XB+buf*8+4,4)}, {v(self.XB+buf*8,4)}, {d if kk else 0}")
                for _ in range(2):
                    if todo: t, tg = todo.pop(0); A(t, tag=tg)
                for j in range(7):
                    A.wait_lg([('zw', c, h, j)])
                    d = v(self.ACC + 4*j, 4)
                    A(f"v_mfma_f32_16x16x32_bf16 {d}, {v(self.WB+buf*28+j*4,4)}, {v(self.XB+buf*8,4)}, {d if kk else 0}")
                    for _ in range(2):
                        if todo: t, tg = todo.pop(0); A(t, tag=tg)
    def epilogue(self, svc):
        A = self.A
        ST(A, 'z1out')
        G = self.GACC
        A(f"v_mul_f32 v{G}, {hexf(1.4426950408889634)}, v{G}")
        A(f"v_exp_f32 v{G}, v{G}"); A(f"v_add_f32 v{G}, 1.0, v{G}"); A(f"v_rcp_f32 v{G}, v{G}")
        A("v_lshlrev_b32 v16, 2, v13")
        A(f"ds_bpermute_b32 v{G+1}, v16, v{G}", tag='gb')
        regs = [self.ACC + 2*p for p in range(14)]
        for q in range(0, 14, 4):
            gelu_pairs(A, regs[q:q+4], 224, 32, 34, 36)
            svc.step()
        A.wait_lg('gb')
        for p in range(14):
            r = self.ACC + 2*p
            A(f"v_mul_f32 v{r}, v{r}, v{G+1}"); A(f"v_mul_f32 v{r+1}, v{r+1}, v{G+1}")
            A(f"v_cvt_pk_bf16_f32 v{240+p}, v{r}, v{r+1}")
        ST(A, 'z1epi')

L_TICKET = 163584
L_AST, L_GW, L_ZR, L_GL, L_RING = 58368, 107520, 108544, 110592, 114688
XH = 57344

def load_gw_tables(A, gwb, zrb, tag):
    A(f"s_mov_b32 s23, 896"); srd_from(A, 16, S_GW, None, 896)
    A("v_lshlrev_b32 v16, 4, v12"); A(f"v_mov_b32 v18, {OOB}")
    A(f"s_mov_b32 m0, {gwb}"); A("buffer_load_dwordx4 v16, s[16:19], 0 offen lds", tag=tag)
    A(f"s_mov_b32 m0, {zrb}"); A("buffer_load_dwordx4 v18, s[16:19], 0 offen lds", tag=tag)
def gw_addr(A, vreg, gwb, zrb):
    A("v_cmp_eq_u32 vcc, 0, v13"); A(f"v_mov_b32 v16, {zrb}"); A(f"v_mov_b32 v17, {gwb}"); A(f"v_cndmask_b32 v{vreg}, v16, v17, vcc")
    A(f"v_lshl_add_u32 v{vreg}, v14, 4, v{vreg}")
def z1_xaddr(A):
    A("v_lshrrev_b32 v15, 2, v13"); A("v_lshlrev_b32 v15, 3, v15"); A("v_and_b32 v16, 3, v13"); A("v_add_u32 v15, v15, v16")
    A("v_and_b32 v16, 7, v13"); A("v_xor_b32 v16, v16, v14"); A("v_lshlrev_b32 v16, 4, v16"); A("v_lshl_add_u32 v16, v15, 7, v16")
    A("s_lshr_b32 s23, s3, 1"); A("s_lshl_b32 s23, s23, 12"); A("s_and_b32 s24, s3, 1"); A("s_lshl_b32 s24, s24, 9"); A("s_add_u32 s23, s23, s24")
    A("v_add_u32 v20, s23, v16"); A("v_xor_b32 v21, 64, v20")
def load_bias(A):
    A(f"s_lshl_b32 s23, s{S_RB2}, 6"); A("s_lshr_b32 s24, s3, 1"); A("s_lshl_b32 s24, s24, 5"); A("s_add_u32 s23, s23, s24")
    A("s_and_b32 s24, s3, 1"); A("s_lshl_b32 s24, s24, 2"); A("s_add_u32 s23, s23, s24")
    A("v_lshrrev_b32 v15, 2, v13"); A("v_lshlrev_b32 v15, 3, v15"); A("v_and_b32 v16, 3, v13"); A("v_add_u32 v15, v15, v16")
    A("v_add_u32 v15, s23, v15"); A("v_lshlrev_b32 v15, 1, v15")
    srd_from(A, 16, S_BSP, None, S*2)
    A("buffer_load_ushort v254, v15, s[16:19], 0 offen", tag='bias')

def role_z(A, L):
    ACC1, ACC2 = 64, 120
    acc1 = lambda j, aa: ACC1 + (j*2+aa)*4
    acc2 = lambda j, aa: ACC2 + (j*2+aa)*4
    WB = 176
    wf = lambda buf, j: WB + buf*28 + j*4
    xf = lambda kk, aa: 144 + (kk*2+aa)*4
    A("v_lshrrev_b32 v15, 3, v12"); A("v_and_b32 v16, 7, v12"); A("v_and_b32 v17, 3, v15"); A("v_xor_b32 v16, v16, v17"); A("v_lshlrev_b32 v16, 4, v16")
    A("v_mul_u32_u24 v17, 896, v15")
    for uu in range(4):
        if uu & 1: A("v_xor_b32 v18, 64, v16"); A(f"v_add_u32 v{1+uu}, v18, v17")
        else: A(f"v_add_u32 v{1+uu}, v16, v17")
        if uu: A(f"v_add_u32 v{1+uu}, {uu*(8*896-1024)}, v{1+uu}")
    wdma_setup(A, 5)
    A(f"s_lshl_b32 s72, s{S_RB}, 2"); A("s_add_u32 s72, s72, s3")
    A(f"s_mul_i32 s23, s72, {32*896}"); srd_from(A, 8, S_X, 23, 32*896)
    srd_from(A, 12, S_WIN, None, 448*3584)
    A(f"s_mul_i32 s25, s3, {16*3584}"); A(f"s_mul_i32 s23, s{S_CB}, 224"); A("s_add_u32 s25, s25, s23"); A("s_add_u32 s24, s25, 1792")
    A("s_lshl_b32 s71, s3, 12")
    def dma_x(c):
        return [(f"s_add_u32 m0, s71, {c*16384}", None), (f"s_mov_b32 s23, {c*128}", None)] + \
               [(f"buffer_load_dwordx4 v{1+uu}, s[8:11], s23 offen offset:{uu*1024} lds", ('x', c)) for uu in range(4)]
    def dma_w(c, which=1):
        base = (L_RING + (c % 3)*16384) if which == 1 else c*16384
        return [(f"s_add_u32 m0, s71, {base}", None), (f"s_add_u32 s23, s{24 if which == 1 else 25}, {64*c*3584}", None)] + \
               [(f"buffer_load_dwordx4 v{5+uu}, s[12:15], s23 offen offset:{uu*1024} lds", ('w', which, c)) for uu in range(4)]
    def emit(lst):
        for t, tg in lst: A(t, tag=tg)
    for c in range(2): emit(dma_w(c)); emit(dma_x(c))
    ST(A, 1)
    A("v_lshrrev_b32 v15, 2, v13"); A("v_lshlrev_b32 v15, 3, v15"); A("v_and_b32 v16, 3, v13"); A("v_add_u32 v15, v15, v16")
    A("v_and_b32 v16, 7, v13"); A("v_xor_b32 v16, v16, v14"); A("v_lshlrev_b32 v16, 4, v16"); A("v_lshl_add_u32 v16, v15, 7, v16")
    A("v_add_u32 v20, s71, v16"); A("v_xor_b32 v21, 64, v20"); A("v_add_u32 v22, 0x10000, v20"); A("v_add_u32 v23, 0x10000, v21")
    wread_setup(A, 24, L_RING)
    gelu_consts(A)
    A(f"s_mul_i32 s74, s3, 12288"); A(f"s_add_u32 s74, s74, {L_RING}")
    svc = AService(A, 74)
    def reads_w(which, c, h, buf):
        out = []
        off = ((c % 3) if which == 1 else (c % 4))*16384 + h*8192
        for j in range(7):
            for sec in range(2):
                out.append((f"ds_read_b64_tr_b16 {v(wf(buf,j)+2*sec,2)}, v{24+j} offset:{off + sec*1024}", ('wf', which, c, h, j)))
        return out
    def reads_x(c):
        return [(f"ds_read_b128 {a(xf(2*c+h,aa),4)}, v{20 + h + (2 if c >= 4 else 0)} offset:{(c % 4)*16384 + aa*512}", ('xf', c, h)) for h in range(2) for aa in range(2)]
    A.wait_vm([('w', 1, 0), ('x', 0)]); A("s_barrier")
    ST(A, 2)
    emit(reads_x(0)); emit(reads_w(1, 0, 0, 0))
    for c in range(7):
        for h in range(2):
            kk = 2*c + h; buf = kk & 1
            todo = []; vq = []
            if h == 0:
                todo = reads_w(1, c, 1, buf ^ 1)
                if c == 0: vq += dma_w(2)
                if c + 2 <= 6: vq += dma_x(c + 2)
            else:
                if c < 6: A.wait_vm([('w', 1, c+1), ('x', c+1)])
                A.wait_lg(); A("s_barrier"); ST(A, ('g', c))
                if c + 3 <= 6: vq += dma_w(c + 3)
                for cc in {3: (0,), 4: (1, 2), 5: (3, 4), 6: (5, 6)}.get(c, ()): vq += dma_w(cc, 2)
                if c < 6: todo = reads_w(1, c+1, 0, buf ^ 1)[:2] + reads_x(c+1) + reads_w(1, c+1, 0, buf ^ 1)[2:]
            A.wait_lg([('xf', c, h)])
            for j in range(7):
                A.wait_lg([('wf', 1, c, h, j)])
                for aa in range(2):
                    d = v(acc1(j,aa), 4)
                    A(f"v_mfma_f32_16x16x32_bf16 {d}, {a(xf(kk,aa),4)}, {v(wf(buf,j),4)}, {d if kk else 0}")
                    for _ in range(2):
                        if todo: t, tg = todo.pop(0); A(t, tag=tg)
                    if vq: t, tg = vq.pop(0); A(t, tag=tg)
            emit(todo); emit(vq)
            if c == 4 and h == 1: touch_late(A)
    ST(A, 3)
    tag_issue(A)
    svc.setup(); svc.start()
    TMP = 232 - 8 - 0
    TMP = 176
    regs = [ACC1 + 2*p for p in range(28)]
    for q in range(0, 28, 4): gelu_pairs(A, regs[q:q+4], TMP, 32, 34, 36)
    SUM, M2, PUB = 192, 200, 208
    for aa in range(2):
        for rp in range(2):
            d = SUM + aa*4 + rp*2
            A(f"v_pk_add_f32 {v(d,2)}, {v(acc1(0,aa)+2*rp,2)}, {v(acc1(1,aa)+2*rp,2)}")
            for j in range(2, 7): A(f"v_pk_add_f32 {v(d,2)}, {v(d,2)}, {v(acc1(j,aa)+2*rp,2)}")
    def dpp16(rs):
        for sh in (8, 4, 2, 1):
            for r in rs: A(f"v_add_f32_dpp v{r}, v{r}, v{r} row_ror:{sh} row_mask:0xf bank_mask:0xf")
    dpp16(range(SUM, SUM+8))
    A(f"v_mov_b32 v38, {hexf(1.0/112)}"); A(f"v_mov_b32 v39, {hexf(1.0/112)}")
    for p in range(4): A(f"v_pk_mul_f32 {v(SUM+2*p,2)}, {v(SUM+2*p,2)}, {v(38,2)}")
    for aa in range(2):
        for rp in range(2):
            d = M2 + aa*4 + rp*2; mreg = SUM + aa*4 + rp*2
            for j in range(7):
                t = TMP + 2*(j & 1)
                A(f"v_pk_add_f32 {v(t,2)}, {v(acc1(j,aa)+2*rp,2)}, {v(mreg,2)} neg_lo:[0,1] neg_hi:[0,1]")
                if j == 0: A(f"v_pk_mul_f32 {v(d,2)}, {v(t,2)}, {v(t,2)}")
                else: A(f"v_pk_fma_f32 {v(d,2)}, {v(t,2)}, {v(t,2)}, {v(d,2)}")
    dpp16(range(M2, M2+8))
    A("v_and_b32 v16, 3, v13")
    for q in range(3): A(f"v_cmp_eq_u32 s[{26+2*q}:{27+2*q}], {q+1}, v16")
    for e, (base, odd) in enumerate(((SUM, 0), (M2, 0), (SUM, 1), (M2, 1))):
        A(f"v_mov_b32 v{PUB+e}, v{base+odd}")
        for q in range(3): A(f"v_cndmask_b32 v{PUB+e}, v{PUB+e}, v{base+2*(q+1)+odd}, s[{26+2*q}:{27+2*q}]")
    A(f"s_lshl_b32 s23, s{S_RB}, 3"); A(f"s_add_u32 s23, s23, s{S_CB}"); A("s_lshl_b32 s23, s23, 7")
    A("s_lshl_b32 s27, s3, 5"); A("s_add_u32 s23, s23, s27"); A("s_lshl_b32 s23, s23, 3")
    A(f"s_mov_b32 s27, {WS_LNP}"); srd_from(A, 16, S_WS, 27, 16*8*128*8)
    A("v_lshlrev_b32 v19, 6, v14"); A("v_lshl_add_u32 v19, v16, 4, v19")
    A("s_mov_b64 s[34:35], exec"); A("s_mov_b32 exec_lo, 0x000f000f"); A("s_mov_b32 exec_hi, 0x000f000f")
    A(f"buffer_store_dwordx4 {v(PUB,4)}, v19, s[16:19], s23 offen sc1", tag='lnp')
    A("s_mov_b64 exec, s[34:35]")
    ST(A, 4)
    A.wait_vm([('w', 2, c) for c in range(7)]); A("s_barrier"); ST(A, 'w2')
    for j in range(7): A(f"v_subrev_u32 v{24+j}, {L_RING}, v{24+j}")
    emit(reads_w(2, 0, 0, 0))
    for c in range(7):
        for h in range(2):
            kk = 2*c + h; buf = kk & 1
            nxt = (c, 1) if h == 0 else ((c+1, 0) if c < 6 else None)
            if h == 0 and c in (0, 1, 2, 4, 5, 6): svc.step()
            if h == 1 and c in (1, 5): svc.step()
            if c == 3 and h == 0:
                A.wait_vm('lnp'); tag_take(A, lambda x: L('z' + x)); A("s_barrier")
                A(f"s_lshl_b32 s27, s{S_RB}, 7"); A(f"s_lshl_b32 s28, s{S_CB}, 3"); A("s_add_u32 s27, s27, s28"); A(f"s_add_u32 s27, s27, {WS_F0}")
                signal(A, L, 'sigln', 27)
            todo = []
            if nxt:
                if nxt == (4, 0):
                    for j in range(7): A(f"v_add_u32 v{24+j}, 0x10000, v{24+j}")
                todo = reads_w(2, nxt[0], nxt[1], buf ^ 1)
            for j in range(7):
                A.wait_lg([('wf', 2, c, h, j)])
                for aa in range(2):
                    d = v(acc2(j,aa), 4)
                    A(f"v_mfma_f32_16x16x32_bf16 {d}, {v(wf(buf,j),4)}, {a(xf(kk,aa),4)}, {d if kk else 0}")
                    if todo: t, tg = todo.pop(0); A(t, tag=tg)
            emit(todo)
    ST(A, 5)
    wf_issue(A)
    TMP = 176
    regs = [ACC2 + 2*p for p in range(28)]
    for q in range(0, 28, 4):
        gelu_pairs(A, regs[q:q+4], TMP, 32, 34, 36)
        if q in (0, 4, 8, 12, 16, 20): svc.step()
    A("s_lshl_b32 s23, s72, 1"); A("s_mul_i32 s23, s23, 56"); A(f"s_mul_i32 s27, s{S_CB}, 7"); A("s_add_u32 s23, s23, s27"); A("s_lshl_b32 s23, s23, 9")
    A(f"s_add_u32 s23, s23, {WS_Z1F}"); srd_from(A, 16, S_WS, 23, 56*512 + 7*512)
    A("v_lshlrev_b32 v18, 3, v12")
    P = 192
    for aa in range(2):
        if aa: A(f"s_mov_b32 s23, {56*512}")
        for j in range(7):
            c = acc2(j,aa); p = P + 2*(j & 3)
            A(f"v_cvt_pk_bf16_f32 v{p}, v{c}, v{c+1}"); A(f"v_cvt_pk_bf16_f32 v{p+1}, v{c+2}, v{c+3}")
            A(f"buffer_store_dwordx2 {v(p,2)}, v18, s[16:19], {'s23' if aa else 0} offen offset:{j*512} sc1", tag='pubst')
    ST(A, 6)
    A(f"s_lshl_b32 s27, s{S_RB}, 7"); A(f"s_add_u32 s27, s27, {WS_F0}"); A("v_lshl_add_u32 v17, v12, 3, s27")
    poll(A, L, 'pln', 17, 8)
    ST(A, 7)
    A(f"s_lshl_b32 s23, s{S_RB}, 10"); A("s_lshl_b32 s27, s3, 5"); A("s_add_u32 s23, s23, s27"); A("s_lshl_b32 s23, s23, 3")
    A(f"s_mov_b32 s27, {WS_LNP}"); srd_from(A, 16, S_WS, 27, 16*8*128*8)
    A("v_and_b32 v18, 7, v12"); A("v_lshlrev_b32 v18, 10, v18"); A("v_lshl_add_u32 v18, v14, 6, v18")
    Q, MB = 192, 208
    for q in range(4): A(f"buffer_load_dwordx4 {v(Q+4*q,4)}, v18, s[16:19], s23 offen offset:{16*q} sc1", tag='lnq')
    svc.step()
    wf_store(A)
    A.wait_vm('lnq')
    ST(A, 'lnq')
    def red8(rs):
        for pat in ("quad_perm:[1,0,3,2]", "quad_perm:[2,3,0,1]", "row_half_mirror"):
            for r in rs: A(f"v_add_f32_dpp v{r}, v{r}, v{r} {pat} row_mask:0xf bank_mask:0xf")
    for q in range(8): A(f"v_mov_b32 v{MB+q}, v{Q+2*q}")
    red8(range(MB, MB+8))
    for q in range(8): A(f"v_mul_f32 v{MB+q}, 0.125, v{MB+q}")
    A(f"v_mov_b32 v38, {hexf(112.0)}")
    for q in range(8):
        A(f"v_sub_f32 v{Q+2*q}, v{Q+2*q}, v{MB+q}"); A(f"v_mul_f32 v{Q+2*q}, v{Q+2*q}, v{Q+2*q}")
        A(f"v_fma_f32 v{MB+8+q}, v{Q+2*q}, v38, v{Q+2*q+1}")
    red8(range(MB+8, MB+16))
    svc.step()
    A(f"v_mov_b32 v38, {hexf(1.0/896)}"); A(f"v_mov_b32 v39, {hexf(1e-5)}")
    for q in range(8): A(f"v_fma_f32 v{MB+8+q}, v{MB+8+q}, v38, v39")
    for q in range(8): A(f"v_rsq_f32 v{MB+8+q}, v{MB+8+q}")
    for q in range(8): A(f"v_mul_f32 v{MB+q}, v{MB+q}, v{MB+8+q}")
    A(f"s_mul_i32 s23, s{S_CB}, {64*7168}"); A("s_mul_i32 s27, s72, 7168"); A("s_add_u32 s23, s23, s27")
    srd_from(A, 16, S_WS, 23, 7168)
    A("v_lshlrev_b32 v18, 4, v12"); A("v_add_u32 v19, 4096, v18")
    for j in range(7):
        p = Q + 4*(j & 3)
        for aa in range(2):
            c = acc1(j,aa)
            for rp in range(2):
                A(f"v_pk_fma_f32 {v(c+2*rp,2)}, {v(c+2*rp,2)}, {v(MB+8+aa*4+2*rp,2)}, {v(MB+aa*4+2*rp,2)} neg_lo:[0,0,1] neg_hi:[0,0,1]")
            A(f"v_cvt_pk_bf16_f32 v{p+2*aa}, v{c}, v{c+1}"); A(f"v_cvt_pk_bf16_f32 v{p+2*aa+1}, v{c+2}, v{c+3}")
        A(f"buffer_store_dwordx4 {v(p,4)}, v{18 if j < 4 else 19}, s[16:19], 0 offen offset:{(j%4)*1024} sc1", tag='pubst')
    ST(A, 'norm')
    if PROFILE == 'p3':
        A.raw("  s_waitcnt vmcnt(6)"); ST(A, 'st0'); A.raw("  s_waitcnt vmcnt(3)"); ST(A, 'st3')
    A.wait_vm('pubst'); ST(A, 'pubw'); A("s_barrier")
    A(f"s_lshl_b32 s27, s{S_CB}, 4"); A(f"s_add_u32 s27, s27, s{S_RB}"); A("s_lshl_b32 s27, s27, 3"); A(f"s_add_u32 s27, s27, {WS_F1}")
    signal(A, L, 'sigzd', 27)
    ST(A, 'sig')
    svc.finish()
    A.wait_lg()
    ST(A, 8)

QSTG = 45056; QGW = 3*QSTG; QZR = QGW + 1024; QP = 400
def role_q(A, L):
    A("v_lshrrev_b32 v15, 3, v12"); A("v_and_b32 v16, 7, v12")
    A("v_and_b32 v17, 3, v15"); A("v_xor_b32 v17, v16, v17"); A("v_lshlrev_b32 v17, 4, v17")
    A(f"s_lshl_b32 s24, s{S_RB}, 7"); A("s_sub_u32 s24, s24, 16"); A("s_mul_i32 s25, s3, 5")
    for uu in range(5):
        A(f"s_add_u32 s26, s25, {uu}")
        A("s_lshl_b32 s27, s26, 3"); A("s_add_u32 s27, s27, s24")
        A("v_add_u32 v18, s27, v15"); A("v_max_i32 v18, 0, v18"); A("v_mul_u32_u24 v18, 896, v18")
        A("s_and_b32 s27, s26, 1"); A("s_lshl_b32 s27, s27, 6"); A("v_xor_b32 v19, s27, v17")
        A("s_cmp_ge_u32 s26, 18"); A(f"s_cselect_b32 s27, {OOB}, 0")
        A(f"v_add3_u32 v{1+uu}, v18, v19, s27")
        if uu in (1, 2, 3): A(f"v_subrev_u32 v{1+uu}, {uu*1024}, v{1+uu}")
    A("v_and_b32 v18, 2, v15"); A("v_xor_b32 v18, v16, v18"); A("v_mul_u32_u24 v19, 2688, v15")
    for uu in range(2):
        if uu: A("v_xor_b32 v18, 4, v18")
        A(f"v_lshl_add_u32 v{6+uu}, v18, 4, v19")
        if uu: A(f"v_add_u32 v{6+uu}, {8*2688-1024}, v{6+uu}")
        A("v_cmp_eq_u32 vcc, 7, v18"); A(f"v_mov_b32 v16, {OOB}"); A(f"v_cndmask_b32 v{6+uu}, v{6+uu}, v16, vcc")
    A.wait_lg()
    A(f"s_sub_u32 s8, s{S_X}, 4096"); A(f"s_subb_u32 s9, s{S_X+1}, 0"); A("s_and_b32 s9, s9, 0xffff"); A(f"s_mov_b32 s10, {S*896 + 4096}"); A("s_mov_b32 s11, 0x20000")
    for uu in range(5): A(f"v_add_u32 v{1+uu}, 4096, v{1+uu}")
    srd_from(A, 12, S_WQKV, None, 448*2688)
    A(f"s_mul_i32 s24, s3, {16*2688}"); A(f"s_mul_i32 s25, s{S_CB}, 112"); A("s_add_u32 s24, s24, s25")
    A("s_mul_i32 s25, s3, 5120"); A("s_lshl_b32 s26, s3, 11"); A("s_add_u32 s26, s26, 20480")
    def dma(c):
        st = (c % 3)*QSTG; out = []
        for seg in range(3):
            out += [(f"s_add_u32 m0, s26, {st + seg*8192}", None), (f"s_add_u32 s23, s24, {64*c*2688 + seg*896}", None)]
            out += [(f"buffer_load_dwordx4 v{6+uu}, s[12:15], s23 offen offset:{uu*1024} lds", ('c', c)) for uu in range(2)]
        out += [(f"s_add_u32 m0, s25, {st}", None), (f"s_mov_b32 s23, {c*128}", None)]
        out += [(f"buffer_load_dwordx4 v{1+uu}, s[8:11], s23 offen offset:{uu*1024} lds", ('c', c)) for uu in range(4)]
        out += [(f"s_add_u32 m0, s25, {st + 4096}", None), (f"buffer_load_dwordx4 v5, s[8:11], s23 offen lds", ('c', c))]
        return out
    def emit(lst):
        for t, tg in lst: A(t, tag=tg)
    load_gw_tables(A, QGW, QZR, ('c', 0))
    for c in range(2): emit(dma(c))
    ST(A, 1)
    A("v_lshrrev_b32 v15, 3, v13"); A("v_lshlrev_b32 v15, 2, v15"); A("v_and_b32 v16, 3, v13"); A("v_or_b32 v15, v15, v16")
    A("v_xor_b32 v15, v15, v14"); A("v_lshlrev_b32 v15, 4, v15"); A("v_lshl_add_u32 v20, v13, 7, v15"); A("v_xor_b32 v21, 64, v20")
    A("s_lshl_b32 s23, s3, 12"); A("s_add_u32 s23, s23, 2048"); A("v_add_u32 v22, s23, v20"); A("v_add_u32 v23, s23, v21")
    A("s_lshr_b32 s23, s3, 1"); A("s_mul_i32 s23, s23, 56"); A("s_and_b32 s33, s3, 1"); A("s_lshl_b32 s34, s33, 5"); A("s_add_u32 s23, s23, s34")
    A("v_and_b32 v15, 3, v13"); A("v_lshlrev_b32 v16, 3, v15"); A("v_add_u32 v16, s23, v16")
    A("v_cmp_eq_u32 vcc, 3, v15"); A("s_cmp_eq_u32 s33, 1"); A("s_cselect_b64 s[34:35], vcc, 0")
    A("v_mov_b32 v17, 112"); A("v_cndmask_b32 v16, v16, v17, s[34:35]")
    A("v_lshrrev_b32 v17, 3, v13"); A("v_lshlrev_b32 v17, 1, v17"); A("v_and_b32 v18, 1, v14"); A("v_lshl_or_b32 v17, v18, 2, v17")
    A("v_lshrrev_b32 v18, 4, v16"); A("v_xor_b32 v18, v18, v17"); A("v_and_b32 v16, 8, v16"); A("v_lshl_or_b32 v16, v18, 4, v16")
    A("v_lshrrev_b32 v17, 2, v13"); A("v_lshl_add_u32 v17, v14, 3, v17"); A("v_lshl_add_u32 v24, v17, 7, v16"); A("v_add_u32 v24, 20480, v24")
    gw_addr(A, 25, QGW, QZR)
    XB = 256; xf = lambda buf, t: XB + buf*44 + t*4
    WB = 256 + 88; wf = lambda buf, t: WB + buf*16 + t*4
    ACC = 64
    def acc(t, RT):
        if t == 0: return ACC + (RT-1)*4
        if t == 3: return ACC + (26 + RT)*4
        return ACC + (8 + (t-1)*9 + RT)*4
    def reads(c, h, buf):
        out = []
        for t in range(3):
            for sec in range(2):
                out.append((f"ds_read_b64_tr_b16 {u(wf(buf,t)+2*sec,2)}, v24 offset:{t*8192 + h*4096 + sec*512}", ('w', c, h)))
        out.append((f"ds_read_b128 {u(wf(buf,3),4)}, v25 offset:{(2*c+h)*64}", ('w', c, h)))
        for RT in range(9): out.append((f"ds_read_b128 {u(xf(buf,RT),4)}, v{20+h} offset:{RT*2048}", ('x', c, h, RT)))
        for q in range(2): out.append((f"ds_read_b128 {u(xf(buf,9+q),4)}, v{22+h} offset:{q*2048}", ('x', c, h, 9+q)))
        return out
    def bump(c):
        d = QSTG if (c % 3) < 2 else -2*QSTG
        for r in (20, 21, 22, 23, 24):
            if d > 0: A(f"v_add_u32 v{r}, {d}, v{r}")
            else: A(f"v_subrev_u32 v{r}, {-d}, v{r}")
    A.wait_vm(('c', 0)); A("s_barrier")
    ST(A, 2)
    for t, tg in reads(0, 0, 0): A(t, tag=tg)
    for c in range(7):
        for h in range(2):
            kk = 2*c + h; buf = kk & 1
            todo = []; vq = []
            if h == 0:
                todo = reads(c, 1, buf ^ 1)
                if c == 0: vq = dma(2)
            else:
                if c < 6: A.wait_vm(('c', c+1))
                A.wait_lg(); A("s_barrier"); ST(A, ('g', c))
                if c + 3 <= 6: vq = dma(c+3)
                if c < 6:
                    bump(c); todo = reads(c+1, 0, buf ^ 1)
            order = [(1,0),(2,0)] + [(t, RT) for RT in range(1, 9) for t in range(3)] + [(3,0),(3,1)]
            n = 0
            for (t, RT) in order:
                xt = RT if t < 3 else 9 + RT
                A.wait_lg([('w', c, h), ('x', c, h, xt)])
                d = v(acc(t, RT), 4)
                A(f"v_mfma_f32_16x16x32_bf16 {d}, {u(wf(buf,t),4)}, {u(xf(buf,xt),4)}, {d if kk else 0}")
                n += 1
                if todo: tt, tg = todo.pop(0); A(tt, tag=tg)
                if vq: tt, tg = vq.pop(0); A(tt, tag=tg)
            while todo: tt, tg = todo.pop(0); A(tt, tag=tg)
            emit(vq)
    ST(A, 3)
    tag_issue(A)
    A(f"s_mul_i32 s74, s3, 12288"); A(f"s_add_u32 s74, s74, {L_AST}")
    svc = AService(A, 74); svc.setup()
    A(f"v_mul_u32_u24 v15, {QP}, v13")
    A("s_lshr_b32 s23, s3, 1"); A("s_lshl_b32 s23, s23, 6"); A("s_and_b32 s33, s3, 1"); A("s_lshl_b32 s33, s33, 5"); A("s_add_u32 s23, s23, s33")
    A("v_lshl_add_u32 v15, v14, 3, v15"); A("v_add_u32 v26, s23, v15")
    P = 176; n = 0
    for t in range(3):
        for RT in range(0 if t else 1, 9):
            c = acc(t, RT); p = P + 2*(n & 7); n += 1
            A(f"v_cvt_pk_bf16_f32 v{p}, v{c}, v{c+1}"); A(f"v_cvt_pk_bf16_f32 v{p+1}, v{c+2}, v{c+3}")
            A(f"ds_write_b64 v26, {v(p,2)} offset:{RT*16*QP + t*128}", tag='qkv')
    for q in range(2):
        c = acc(3, q)
        A(f"v_mul_f32 v{c}, {hexf(-1.4426950408889634)}, v{c}")
        A(f"v_exp_f32 v{c}, v{c}"); A(f"v_add_f32 v{c}, 1.0, v{c}"); A(f"v_rcp_f32 v{c}, v{c}")
    A("s_lshl_b32 s23, s3, 7"); A(f"s_add_u32 s23, s23, {L_GL}")
    A("v_lshlrev_b32 v15, 2, v13"); A("v_add_u32 v16, s23, v15")
    A("s_mov_b64 s[34:35], exec"); A("s_mov_b64 exec, 0xffff")
    for q in range(2): A(f"ds_write_b32 v16, v{acc(3,q)} offset:{q*64}", tag='qkv')
    A(f"s_mov_b32 s23, {WS_GATE}"); srd_from(A, 16, S_WS, 23, S*4)
    A(f"s_cmp_eq_u32 s{S_CB}, 0"); A("s_cselect_b32 s18, s18, 0")
    A(f"s_lshl_b32 s23, s{S_RB}, 9"); A("s_lshl_b32 s33, s3, 7"); A("s_add_u32 s23, s23, s33")
    for q in range(2): A(f"buffer_store_dword v{acc(3,q)}, v15, s[16:19], s23 offen offset:{q*64} sc1", tag='pubst')
    A("s_mov_b64 exec, s[34:35]")
    svc.start()
    A.wait_lg(); A("s_barrier")
    ST(A, 4)
    A("s_lshr_b32 s33, s3, 1"); A("s_and_b32 s34, s3, 1"); A("s_lshl_b32 s35, s33, 6")
    A(f"s_mul_i32 s32, s34, {64*QP}"); A("s_add_u32 s35, s35, s32")
    A("v_lshlrev_b32 v15, 1, v13")
    A(f"v_mul_u32_u24 v16, {QP}, v15"); A("v_lshl_add_u32 v16, v14, 4, v16"); A("v_add_u32 v16, s35, v16")
    A(f"v_add_u32 v20, {16*QP}, v16"); A(f"v_add_u32 v21, 128, v16")
    A("v_lshlrev_b32 v17, 2, v15"); A("s_lshl_b32 s32, s34, 8"); A(f"s_add_u32 s32, s32, {L_GL}"); A("v_add_u32 v22, s32, v17")
    A("v_lshrrev_b32 v17, 2, v13"); A("v_and_b32 v18, 3, v13"); A("v_lshlrev_b32 v18, 3, v18"); A("v_add_u32 v18, s35, v18"); A("v_add_u32 v18, 256, v18")
    for T in range(2):
        if T == 0: A("v_lshl_add_u32 v19, v14, 2, v17")
        else: A("v_and_b32 v19, 1, v14"); A("v_lshl_add_u32 v19, v19, 2, v17"); A("v_add_u32 v19, 16, v19")
        A("v_lshlrev_b32 v19, 1, v19"); A(f"v_mul_u32_u24 v19, {QP}, v19"); A(f"v_add_u32 v{23+T}, v19, v18")
    UB = 64
    rowoff = lambda b: (32*(b >> 1) + (b & 1))
    Q_ = lambda b: UB + b*24; K_ = lambda b, T: UB + b*24 + 4 + 4*T; V_ = lambda b, mt: UB + b*24 + 12 + 4*mt; G_ = lambda b: UB + b*24 + 20
    for b in range(4):
        A(f"ds_read_b128 {v(Q_(b),4)}, v20 offset:{rowoff(b)*QP}", tag=('u', b))
        for T in range(2): A(f"ds_read_b128 {v(K_(b,T),4)}, v21 offset:{(rowoff(b)+32*T)*QP}", tag=('u', b))
    for b in range(4):
        for mt in range(2):
            for T in range(2): A(f"ds_read_b64_tr_b16 {v(V_(b,mt)+2*T,2)}, v{23+T} offset:{rowoff(b)*QP + mt*32}", tag=('vv', b))
        A(f"ds_read_b32 v{G_(b)}, v22 offset:{rowoff(b)*4}", tag=('vv', b))
    SC = 160; sc = lambda b, T: SC + b*8 + 4*T
    for b in range(4):
        A.wait_lg(('u', b))
        for T in range(2): A(f"v_mfma_f32_16x16x32_bf16 {v(sc(b,T),4)}, {v(K_(b,T),4)}, {v(Q_(b),4)}, 0")
    wf_issue(A)
    svc.step()
    cs = (28 ** -0.5) * 1.4426950408889634
    A(f"v_mov_b32 v26, {hexf(cs)}"); A(f"v_mov_b32 v27, {hexf(cs)}"); A(f"v_mov_b32 v28, {hexf(-1e30)}")
    for b in range(4):
        for q in range(4): A(f"v_pk_mul_f32 {v(sc(b,0)+2*q,2)}, {v(sc(b,0)+2*q,2)}, {v(26,2)}")
    A("v_lshlrev_b32 v15, 2, v14"); A("v_sub_u32 v15, v13, v15"); A("v_add_u32 v15, 8, v15")
    A("s_and_b32 s34, s3, 1"); A(f"s_or_b32 s34, s34, s{S_RB}")
    A("v_min_u32 v16, 7, v13"); A("s_cmp_eq_u32 s34, 0"); A("s_cselect_b64 s[34:35], -1, 0")
    A("v_mov_b32 v17, 7"); A("v_cndmask_b32 v16, v17, v16, s[34:35]")
    MS = [24, 26, 28, 30, 64, 66, 32, 34]
    for (lim, bs) in ((17, (2, 3)), (16, (0, 1))):
        for q in range(8):
            A(f"v_subrev_u32 v18, {16*(q >> 2) + (q & 3)}, v15")
            A(f"v_cmp_le_u32 s[{MS[q]}:{MS[q]+1}], v18, v{lim}")
        for b in bs:
            for q in range(8):
                A(f"v_cndmask_b32 v{sc(b,0)+q}, v28, v{sc(b,0)+q}, s[{MS[q]}:{MS[q]+1}]")
    MX = 192; M2 = 196
    def xreduce(op):
        for swap in ("v_permlane16_swap_b32", "v_permlane32_swap_b32"):
            for b in range(4): A(f"v_mov_b32 v{M2+b}, v{MX+b}")
            for b in range(4): A(f"{swap} v{MX+b}, v{M2+b}")
            for b in range(4): A(f"{op} v{MX+b}, v{MX+b}, v{M2+b}")
    for b in range(4): s0 = sc(b,0); A(f"v_max3_f32 v{MX+b}, v{s0}, v{s0+1}, v{s0+2}")
    for b in range(4): s0 = sc(b,0); A(f"v_max3_f32 v{MX+b}, v{MX+b}, v{s0+3}, v{s0+4}")
    for b in range(4): s0 = sc(b,0); A(f"v_max3_f32 v{MX+b}, v{MX+b}, v{s0+5}, v{s0+6}")
    for b in range(4): s0 = sc(b,0); A(f"v_max_f32 v{MX+b}, v{MX+b}, v{s0+7}")
    xreduce("v_max_f32")
    for b in range(4):
        for q in range(8): A(f"v_sub_f32 v{sc(b,0)+q}, v{sc(b,0)+q}, v{MX+b}")
    for b in range(4):
        for q in range(8): A(f"v_exp_f32 v{sc(b,0)+q}, v{sc(b,0)+q}")
    svc.step()
    for b in range(4): s0 = sc(b,0); A(f"v_add_f32 v{MX+b}, v{s0}, v{s0+1}")
    for q in range(2, 8):
        for b in range(4): A(f"v_add_f32 v{MX+b}, v{MX+b}, v{sc(b,0)+q}")
    xreduce("v_add_f32")
    for b in range(4): A(f"v_rcp_f32 v{MX+b}, v{MX+b}")
    PB = 200
    for b in range(4):
        for q in range(8): A(f"v_mul_f32 v{sc(b,0)+q}, v{sc(b,0)+q}, v{MX+b}")
    for b in range(4):
        for q in range(4): A(f"v_cvt_pk_bf16_f32 v{PB+4*b+q}, v{sc(b,0)+2*q}, v{sc(b,0)+2*q+1}")
    OB = 160
    for b in range(4):
        for mt in range(2): A(f"v_mfma_f32_16x16x32_bf16 {v(OB+8*b+4*mt,4)}, {v(V_(b,mt),4)}, {v(PB+4*b,4)}, 0")
    ST(A, 5)
    svc.step()
    A("v_and_b32 v15, 1, v13"); A("v_lshlrev_b32 v15, 1, v15"); A("v_bfe_u32 v16, v13, 1, 1"); A("v_or_b32 v15, v15, v16")
    A("v_and_b32 v16, 12, v13"); A("v_or_b32 v15, v15, v16"); A("v_lshl_add_u32 v15, v14, 4, v15"); A("v_lshlrev_b32 v29, 4, v15")
    A(f"s_lshl_b32 s23, s{S_RB}, 1"); A("s_and_b32 s33, s3, 1"); A("s_add_u32 s23, s23, s33"); A("s_mul_i32 s23, s23, 44")
    A(f"s_lshl_b32 s33, s{S_CB}, 1"); A("s_add_u32 s23, s23, s33"); A("s_lshr_b32 s33, s3, 1"); A("s_add_u32 s23, s23, s33")
    A("s_lshl_b32 s23, s23, 12"); A(f"s_add_u32 s23, s23, {WS_AF}")
    srd_from(A, 16, S_WS, 23, 4096)
    A("v_and_b32 v15, 2, v13"); A("v_cmp_eq_u32 vcc, 0, v15"); A("v_cmp_ne_u32 s[24:25], 0, v15")
    for b in range(4):
        o = OB + 8*b
        for q in range(8): A(f"v_mul_f32 v{o+q}, v{o+q}, v{G_(b)}")
        for q in range(4): A(f"v_cvt_pk_bf16_f32 v{PB+4*b+q}, v{o+2*q}, v{o+2*q+1}")
    for bb in range(2):
        X0 = PB + 8*bb; X1 = X0 + 4; Y = 216 + 8*bb
        for q in range(4):
            A(f"v_mov_b32_dpp v{Y+q}, v{X1+q} quad_perm:[2,3,0,1] row_mask:0xf bank_mask:0xf")
            A(f"v_mov_b32_dpp v{Y+4+q}, v{X0+q} quad_perm:[2,3,0,1] row_mask:0xf bank_mask:0xf")
        for q in range(4):
            A(f"v_cndmask_b32 v{Y+q}, v{Y+q}, v{X0+q}, vcc")
            A(f"v_cndmask_b32 v{Y+4+q}, v{Y+4+q}, v{X1+q}, s[24:25]")
        for aa in range(2):
            A(f"buffer_store_dwordx4 {v(Y+4*aa,4)}, v29, s[16:19], 0 offen offset:{(2*bb+aa)*1024} sc1", tag='pubst')
    ST(A, 6)
    svc.step()
    wf_store(A)
    A.wait_vm('pubst'); tag_take(A, lambda x: L('q' + x)); A("s_barrier")
    A(f"s_lshl_b32 s27, s{S_RB}, 3"); A(f"s_add_u32 s27, s27, s{S_CB}"); A("s_add_u32 s27, s27, 128"); A("s_lshl_b32 s27, s27, 3"); A(f"s_add_u32 s27, s27, {WS_F1}")
    signal(A, L, 'sigqd', 27)
    ST(A, 7)
    svc.finish()
    A.wait_lg()
    ST(A, 8)

def phase2(A, L):
    ACC, BR = 32, 144
    acc = lambda j, tau: ACC + (j*4+tau)*4
    bfrag = lambda kk, j: BR + (kk % 4)*28 + j*4
    afrag = lambda kk, tau: ((kk >> 1)*8 + (kk & 1)*4 + tau)*4
    A("v_lshlrev_b32 v3, 4, v12")
    A(f"s_mul_i32 s23, s{S_CB}, {64*7168}"); srd_from(A, 12, S_WS, 23, 64*7168)
    A(f"s_mul_i32 s26, s3, {16*7168}")
    A("v_add_u32 v4, 4096, v3")
    A(f"s_lshl_b32 s27, s{S_CB}, 7"); A(f"s_add_u32 s27, s27, {WS_F1}"); A("v_lshl_add_u32 v17, v12, 3, s27")
    A.wait_lg()
    poll(A, L, 'pa', 17, 16)
    ST(A, 10)
    def issueB(kk, js):
        for j in js:
            if j == js[0]: A(f"s_add_u32 s27, s26, {kk*7168}")
            A(f"buffer_load_dwordx4 {v(bfrag(kk,j),4)}, v{3 if j < 4 else 4}, s[12:15], s27 offen offset:{(j % 4)*1024} sc1", tag=('B', kk))
    for kk in range(3): issueB(kk, list(range(7)))
    c3ok = None
    A(f"s_mul_i32 s23, s{S_CB}, {44*4096}"); A(f"s_add_u32 s23, s23, {WS_WF}"); srd_from(A, 8, S_WS, 23, 44*4096)
    A(f"s_cmp_eq_u32 s{S_CB}, 7"); A("s_cselect_b32 s10, 0, s10")
    A(f"s_mul_i32 s23, s{S_RB2}, {44*4096}"); A(f"s_add_u32 s23, s23, {WS_AF}"); srd_from(A, 16, S_WS, 23, 44*4096)
    for tau in range(4):
        A(f"s_xor_b32 s24, s3, {tau}"); A("s_lshl_b32 s24, s24, 10"); A(f"v_add_u32 v{5+tau}, s24, v3")
    A("s_lshl_b32 s28, s3, 14")
    A(f"s_mul_i32 s29, s3, {7*4096}"); A(f"s_add_u32 s29, s29, {16*4096}")
    wq = []
    for s_ in range(4):
        for uu in range(4): wq.append((f"buffer_load_dwordx4 {a((s_*4+uu)*4,4)}, v3, s[8:11], SOFF offen offset:{uu*1024} sc1", 28, s_, ('Wo', s_)))
    for s_ in range(7):
        for uu in range(4): wq.append((f"buffer_load_dwordx4 {a(64+(s_*4+uu)*4,4)}, v3, s[8:11], SOFF offen offset:{uu*1024} sc1", 29, s_, ('Wh', s_)))
    def issueW(n):
        for _ in range(n):
            if not wq: return
            t, base, s_, tg = wq.pop(0)
            if 'offset:0 ' in t: A(f"s_add_u32 s30, s{base}, {s_*4096}")
            A(t.replace('SOFF', 's30'), tag=tg)
    def epi_loads():
        A(f"s_lshl_b32 s30, s{S_RB2}, 2"); A("s_add_u32 s30, s30, s3")
        A("s_mul_i32 s31, s30, 56"); A(f"s_mul_i32 s32, s{S_CB}, 7"); A("s_add_u32 s31, s31, s32"); A("s_lshl_b32 s31, s31, 9"); A(f"s_add_u32 s31, s31, {WS_Z1F}")
        srd_from(A, 64, S_WS, 31, 7*512)
        A("v_lshlrev_b32 v2, 3, v12")
        for j in range(7): A(f"buffer_load_dwordx2 {v(16+2*j,2)}, v2, s[64:67], 0 offen offset:{j*512} sc1", tag='epi')
        A(f"s_lshl_b32 s31, s{S_RB2}, 6"); A("s_lshr_b32 s32, s3, 1"); A("s_lshl_b32 s32, s32, 5"); A("s_add_u32 s31, s31, s32")
        A("s_and_b32 s32, s3, 1"); A("s_lshl_b32 s32, s32, 2"); A("s_add_u32 s31, s31, s32")
        A("v_lshrrev_b32 v2, 2, v13"); A("v_lshlrev_b32 v2, 3, v2"); A("v_and_b32 v1, 3, v13"); A("v_add_u32 v2, v2, v1"); A("v_add_u32 v2, s31, v2")
        A("v_lshlrev_b32 v1, 1, v2"); srd_from(A, 64, S_BSP, None, S*2)
        A("buffer_load_ushort v30, v1, s[64:67], 0 offen", tag='epi')
        A(f"s_mov_b32 s31, {WS_GATE}"); srd_from(A, 64, S_WS, 31, S*4)
        A("v_lshlrev_b32 v1, 2, v2"); A("buffer_load_dword v31, v1, s[64:67], 0 offen sc1", tag='epi')
    for kk in range(16):
        A.wait_vm(('B', kk))
        pend = list(range(7)) if kk + 3 < 16 else []
        m = 0
        if kk == 9:
            A(f"s_mov_b32 s27, {WS_F1}"); A("v_lshl_add_u32 v2, v12, 5, s27")
            for q2 in range(2): A(f"global_load_dwordx4 {v(16+4*q2,4)}, v2, s[{S_WS}:{S_WS+1}] offset:{16*q2} sc1", tag='fl')
        if kk == 12:
            A.wait_vm('fl')
            def check():
                out = []
                for q in range(8): out.append(f"v_xor_b32 v{16+q}, s{S_TAG + (q & 1)}, v{16+q}")
                out += ["v_or3_b32 v16, v16, v17, v18", "v_or3_b32 v19, v19, v20, v21", "v_or3_b32 v16, v16, v22, v23", "v_or_b32 v16, v16, v19", "v_cmp_eq_u32 vcc, 0, v16"]
                return out
            for t in check(): A(t)
            A("s_nop 1"); A("s_cmp_eq_u64 vcc, exec"); A(f"s_cbranch_scc1 {L('allok')}")
            A.raw("  s_mov_b32 s33, 0")
            A.raw(f"{L('allloop')}:")
            for q2 in range(2): A.raw(f"  global_load_dwordx4 {v(16+4*q2,4)}, v2, s[{S_WS}:{S_WS+1}] offset:{16*q2} sc1")
            A.raw("  s_add_u32 s33, s33, 1"); A.raw("  s_waitcnt vmcnt(0)")
            for t in check(): A.raw("  " + t)
            A.raw("  s_nop 1"); A.raw("  s_cmp_eq_u64 vcc, exec"); A.raw(f"  s_cbranch_scc1 {L('allok')}")
            A.raw(f"  s_sleep {SLEEP}"); A.raw("  s_cmp_lt_u32 s33, 0x20000"); A.raw(f"  s_cbranch_scc1 {L('allloop')}")
            A.label(L('allok'))
        if kk == 13: epi_loads()
        for j in range(7):
            for tau in range(4):
                c = v(acc(j,tau),4)
                A(f"v_mfma_f32_16x16x32_bf16 {c}, {v(bfrag(kk,j),4)}, {a(afrag(kk,tau),4)}, {c if kk else 0}")
                m += 1
                if pend and m % 4 == 1:
                    jj = pend.pop(0)
                    A(f"s_add_u32 s27, s26, {(kk+3)*7168}") if jj == 0 else None
                    A(f"buffer_load_dwordx4 {v(bfrag(kk+3,jj),4)}, v{3 if jj < 4 else 4}, s[12:15], s27 offen offset:{(jj % 4)*1024} sc1", tag=('B', kk+3))
                if kk >= 13 and m % 2 == 0: issueW(1)
        A.check_vm()
    ST(A, 11)
    A("s_mul_i32 s23, s3, 21504"); A("v_add_u32 v9, s23, v3")
    for tau in (1,2,3):
        A(f"s_xor_b32 s24, s3, {tau}"); A("s_mul_i32 s24, s24, 21504"); A(f"s_add_u32 s24, s24, {(tau-1)*7168}"); A(f"v_add_u32 v{(10,11,15)[tau-1]}, s24, v3")
    for tau in (1,2,3):
        for j in range(7): A(f"ds_write_b128 v9, {v(acc(j,tau),4)} offset:{(tau-1)*7168+j*1024}", tag='w')
    issueW(64)
    A.wait_lg(); A("s_barrier")
    T0 = 144
    for tau in (1,2,3):
        for j in range(7): A(f"ds_read_b128 {v(T0+((tau-1)*7+j)*4,4)}, v{(10,11,15)[tau-1]} offset:{j*1024}", tag=('r',tau))
    A.wait_vm('epi')
    for s_ in range(4):
        A(f"s_add_u32 s30, s28, {s_*4096}")
        for tau in range(4): A(f"buffer_load_dwordx4 {a(176+(s_*4+tau)*4,4)}, v{5+tau}, s[16:19], s30 offen sc1", tag=('Ao', s_))
    A.check_vm()
    for tau in (1,2,3):
        A.wait_lg(('r',tau))
        for j in range(7):
            c = acc(j,0); t = T0+((tau-1)*7+j)*4
            A(f"v_pk_add_f32 {v(c,2)}, {v(c,2)}, {v(t,2)}"); A(f"v_pk_add_f32 {v(c+2,2)}, {v(c+2,2)}, {v(t+2,2)}")
    A.wait_vm('epi')
    A("v_lshlrev_b32 v30, 16, v30"); A("v_sub_f32 v31, 1.0, v31")
    H = 144
    for j in range(7):
        c = acc(j,0)
        for r in range(4):
            z = 16 + 2*j + (r >> 1); t = 1 + (r & 1)
            if r & 1: A(f"v_and_b32 v{t}, 0xffff0000, v{z}")
            else: A(f"v_lshlrev_b32 v{t}, 16, v{z}")
            A(f"v_add_f32 v{c+r}, v{c+r}, v30")
            A(f"v_mul_f32 v{t}, v{t}, v31")
            A(f"v_mul_f32 v{c+r}, v{c+r}, v{t}")
        A(f"v_cvt_pk_bf16_f32 v{H+2*j}, v{c}, v{c+1}"); A(f"v_cvt_pk_bf16_f32 v{H+2*j+1}, v{c+2}, v{c+3}")
    A(f"s_mul_i32 s30, s{S_CB}, 7"); A("s_lshr_b32 s31, s30, 1"); A("s_add_u32 s31, s31, 16"); A("s_lshl_b32 s31, s31, 12")
    A("s_lshl_b32 s32, s3, 10"); A("s_add_u32 s31, s31, s32")
    A("s_and_b32 s30, s30, 1"); A("s_cmp_eq_u32 s30, 0"); A(f"s_cbranch_scc0 {L('odd')}")
    vm0 = list(A.vm)
    for p in range(3):
        A(f"buffer_store_dwordx4 {v(H+4*p,4)}, v3, s[16:19], s31 offen sc1", tag='hst'); A("s_add_u32 s31, s31, 4096")
    A(f"buffer_store_dwordx2 {v(H+12,2)}, v3, s[16:19], s31 offen sc1", tag='hst')
    A(f"s_branch {L('hfin')}")
    A.label(L('odd')); A.vm = list(vm0)
    A(f"buffer_store_dwordx2 {v(H,2)}, v3, s[16:19], s31 offen offset:8 sc1", tag='hst')
    for p in range(3):
        A("s_add_u32 s31, s31, 4096"); A(f"buffer_store_dwordx4 {v(H+2+4*p,4)}, v3, s[16:19], s31 offen sc1", tag='hst')
    A.label(L('hfin'))
    ST(A, 12)

def phase3(A, L):
    ACC = 32; acc = lambda uu, tau: ACC + (uu*4+tau)*4
    HA = 96
    for s_ in range(4):
        A.wait_vm([('Wo', s_), ('Ao', s_)])
        for tau in range(4):
            for uu in range(4):
                c = v(acc(uu,tau),4)
                A(f"v_mfma_f32_16x16x32_bf16 {c}, {a((s_*4+uu)*4,4)}, {a(176+(s_*4+tau)*4,4)}, {c if s_ else 0}")
    A.wait_vm(); A("s_barrier")
    A(f"s_lshl_b32 s27, s{S_RB2}, 7"); A(f"s_lshl_b32 s26, s{S_CB}, 3"); A("s_add_u32 s27, s27, s26"); A(f"s_add_u32 s27, s27, {WS_F2}")
    signal(A, L, 'sighd', 27)
    A(f"s_cmp_eq_u32 s{S_CB}, 7"); A(f"s_cbranch_scc1 {L('fin')}")
    ST(A, 13)
    A("s_mul_i32 s26, s3, 12288"); A("v_add_u32 v20, s26, v3")
    for tau in (1,2,3):
        A(f"s_xor_b32 s26, s3, {tau}"); A("s_mul_i32 s26, s26, 12288"); A(f"s_add_u32 s26, s26, {(tau-1)*4096}"); A(f"v_add_u32 v{20+tau}, s26, v3")
    A("v_lshrrev_b32 v15, 2, v13"); A("v_lshlrev_b32 v15, 3, v15"); A("v_and_b32 v16, 3, v13"); A("v_add_u32 v15, v15, v16")
    A(f"s_lshl_b32 s26, s{S_RB2}, 6"); A("s_lshr_b32 s27, s3, 1"); A("s_lshl_b32 s27, s27, 5"); A("s_add_u32 s26, s26, s27")
    A("s_and_b32 s27, s3, 1"); A("s_lshl_b32 s27, s27, 2"); A("s_add_u32 s26, s26, s27")
    A("v_add_u32 v15, s26, v15"); A("v_mul_u32_u24 v15, 896, v15")
    A("v_lshlrev_b32 v16, 4, v14"); A(f"s_lshl_b32 s27, s{S_CB}, 7"); A("v_add_u32 v16, s27, v16"); A("v_add_u32 v1, v15, v16")
    srd_from(A, 12, S_OUT, None, S*D*2)
    A(f"s_lshl_b32 s27, s{S_RB2}, 7"); A(f"s_add_u32 s27, s27, {WS_F2}"); A("v_lshl_add_u32 v17, v12, 3, s27")
    poll(A, L, 'pb', 17, 8)
    ST(A, 14)
    for s_ in range(7):
        A(f"s_add_u32 s30, s29, {s_*4096}")
        for tau in range(4): A(f"buffer_load_dwordx4 {v(HA+(s_*4+tau)*4,4)}, v{5+tau}, s[16:19], s30 offen sc1", tag=('Ah', s_))
    for s_ in range(7):
        A.wait_vm(('Ah', s_))
        for tau in range(4):
            for uu in range(4):
                c = v(acc(uu,tau),4)
                A(f"v_mfma_f32_16x16x32_bf16 {c}, {a(64+(s_*4+uu)*4,4)}, {v(HA+(s_*4+tau)*4,4)}, {c}")
    ST(A, 15)
    for tau in (1,2,3):
        for uu in range(4): A(f"ds_write_b128 v20, {v(acc(uu,tau),4)} offset:{(tau-1)*4096+uu*1024}", tag='w')
    A.wait_lg(); A("s_barrier")
    T0 = 208
    for tau in (1,2,3):
        for uu in range(4): A(f"ds_read_b128 {v(T0+((tau-1)*4+uu)*4,4)}, v{20+tau} offset:{uu*1024}", tag=('r',tau))
    for tau in (1,2,3):
        A.wait_lg(('r',tau))
        for uu in range(4):
            c = acc(uu,0); t = T0+((tau-1)*4+uu)*4
            A(f"v_pk_add_f32 {v(c,2)}, {v(c,2)}, {v(t,2)}"); A(f"v_pk_add_f32 {v(c+2,2)}, {v(c+2,2)}, {v(t+2,2)}")
    for vv in range(2):
        o = 96 + 4*vv; c0 = acc(2*vv,0); c1 = acc(2*vv+1,0)
        A(f"v_cvt_pk_bf16_f32 v{o}, v{c0}, v{c0+1}"); A(f"v_cvt_pk_bf16_f32 v{o+1}, v{c0+2}, v{c0+3}")
        A(f"v_cvt_pk_bf16_f32 v{o+2}, v{c1}, v{c1+1}"); A(f"v_cvt_pk_bf16_f32 v{o+3}, v{c1+2}, v{c1+3}")
        A(f"buffer_store_dwordx4 {v(o,4)}, v1, s[12:15], 0 offen offset:{vv*64}")

def gen_mega(name="mega", code_bytes=0):
    Stamps.map = [78+2*k for k in range(11)] + [4, 6, 42, 0, 74+0*0]
    A = Asm(); L = lambda x: f"{name}_{x}"
    A("s_cmp_ge_u32 s2, 256"); A(f"s_cbranch_scc1 {L('end')}")
    if os.environ.get('DELAY'):
        A.raw(f"  s_mov_b32 s30, {os.environ['DELAY']}")
        A.raw(f"{L('dly')}:")
        for q in range(16): A.raw(f"  v_add_u32 v{100+q}, v{100+q}, v0")
        A.raw("  s_sub_u32 s30, s30, 1"); A.raw("  s_cmp_lg_u32 s30, 0"); A.raw(f"  s_cbranch_scc1 {L('dly')}")
    ST(A, 0)
    A("s_load_dwordx16 s[36:51], s[0:1], 0")
    A("s_load_dwordx8 s[52:59], s[0:1], 64")
    A("s_getreg_b32 s20, hwreg(HW_REG_XCC_ID)"); A("s_getreg_b32 s21, hwreg(HW_REG_HW_ID)")
    A("v_lshrrev_b32 v6, 6, v0"); A("v_and_b32 v12, 63, v0"); A("v_readfirstlane_b32 s3, v6")
    A("s_and_b32 s20, s20, 7")
    A("s_bfe_u32 s24, s21, 0x3000d"); A("s_and_b32 s24, s24, 3"); A("s_lshl_b32 s24, s24, 3")
    A("s_bfe_u32 s25, s21, 0x40008"); A("s_mul_i32 s25, s25, 13"); A("s_lshr_b32 s25, s25, 4"); A("s_min_u32 s25, s25, 7"); A("s_add_u32 s24, s24, s25")
    A("s_lshl_b32 s24, s24, 2"); A("s_add_u32 s24, s24, s3")
    A("v_and_b32 v13, 15, v12"); A("v_lshrrev_b32 v14, 4, v12")
    if code_bytes:
        A("s_getpc_b64 s[22:23]"); A.raw(f"{name}_pc:")
        A("v_and_b32 v10, 3, v0"); A("s_lshl_b32 s25, s24, 2"); A("v_add_u32 v10, s25, v10"); A("v_lshlrev_b32 v10, 7, v10")
        assert code_bytes <= 512*128
        A(f"v_min_u32 v10, {L('end')}-{name}_pc, v10")
    A("v_lshrrev_b32 v15, 3, v12"); A("v_and_b32 v16, 7, v12"); A("v_min_u32 v16, 6, v16"); A("v_lshlrev_b32 v16, 7, v16")
    A("s_and_b32 s25, s20, 1"); A("s_mul_i32 s26, s25, 896")
    A("s_lshr_b32 s27, s20, 1"); A("s_lshl_b32 s27, s27, 9")
    A("s_lshl_b32 s28, s24, 3"); A("s_add_u32 s27, s27, s28"); A("s_mul_i32 s27, s27, 896")
    A("s_sub_u32 s28, s24, 64"); A("s_min_u32 s28, s28, 55"); A(f"s_mul_i32 s28, s28, {8*3584}"); A("s_add_u32 s28, s28, s26"); A("s_add_u32 s28, s28, 1792")
    A("s_cmp_lt_u32 s24, 64"); A("s_cselect_b32 s27, s27, s28"); A("s_cselect_b32 s28, 1, 4"); A("s_mul_i32 s28, s28, 896")
    A("v_mul_lo_u32 v15, v15, s28"); A("v_add3_u32 v57, v15, v16, s27")
    A("v_lshrrev_b32 v15, 4, v12"); A("s_min_u32 s29, s24, 111"); A("s_lshl_b32 s29, s29, 2"); A("v_add_u32 v15, s29, v15"); A("v_mul_u32_u24 v15, 2688, v15")
    A("v_bfe_u32 v16, v12, 2, 2"); A("v_min_u32 v16, 2, v16"); A("v_mul_u32_u24 v16, 896, v16"); A("v_and_b32 v17, 3, v12"); A("v_lshlrev_b32 v17, 7, v17")
    A("s_lshr_b32 s26, s26, 1"); A("v_add3_u32 v15, v15, v16, v17"); A("v_add_u32 v58, s26, v15")
    A.wait_lg()
    tag_publish(A, L)
    A("s_cmp_lg_u32 s3, 0"); A(f"s_cbranch_scc1 {L('notick')}")
    A.raw("  s_lshl_b32 s30, s20, 5"); A.raw("  v_mov_b32 v18, s30"); A.raw("  v_mov_b32 v19, 1")
    A.raw("  s_mov_b64 s[34:35], exec"); A.raw("  s_mov_b64 exec, 1")
    A.raw(f"  global_atomic_add v59, v18, v19, s[{S_DBG}:{S_DBG+1}] sc0 sc1")
    A.raw("  s_mov_b64 exec, s[34:35]")
    A.label(L('notick'))
    if code_bytes: A("global_load_dword v56, v10, s[22:23]", tag='pf')
    A("s_cmp_lt_u32 s24, 64"); A(f"s_cselect_b32 s28, s{S_X}, s{S_WIN}"); A(f"s_cselect_b32 s29, s{S_X+1}, s{S_WIN+1}")
    A("global_load_dword v56, v57, s[28:29]", tag='pf')
    A(f"global_load_dword v56, v58, s[{S_WQKV}:{S_WQKV+1}]", tag='pf')
    A(f"v_mov_b32 v18, {L_TICKET}")
    A("s_cmp_lg_u32 s3, 0"); A(f"s_cbranch_scc1 {L('notick2')}")
    A.raw(f"  s_waitcnt vmcnt({3 if code_bytes else 2})")
    A.raw("  v_readfirstlane_b32 s30, v59"); A.raw("  s_nop 1"); A.raw("  v_mov_b32 v59, s30")
    A.raw("  ds_write_b32 v18, v59"); A.raw("  s_waitcnt lgkmcnt(0)")
    A.label(L('notick2'))
    A("s_barrier")
    A("ds_read_b32 v19, v18", tag='tk'); A.wait_lg()
    A("v_readfirstlane_b32 s21, v19")
    A("s_cmp_ge_u32 s21, 32"); A(f"s_cbranch_scc1 {L('end')}")
    A("s_lshl_b32 s2, s21, 3"); A("s_or_b32 s2, s2, s20")
    A("s_lshr_b32 s33, s21, 4"); A("s_and_b32 s21, s21, 15")
    A("s_lshr_b32 s22, s20, 1"); A("s_lshl_b32 s22, s22, 2"); A("s_lshr_b32 s23, s21, 2"); A("s_add_u32 s22, s22, s23")
    A("s_and_b32 s20, s20, 1"); A("s_lshl_b32 s20, s20, 2"); A("s_and_b32 s21, s21, 3"); A("s_add_u32 s21, s21, s20")
    A("s_mov_b32 s20, s22"); A("s_lshl_b32 s22, s20, 1"); A("s_add_u32 s22, s22, s33")
    ST(A, 'tick')
    A("s_cmp_eq_u32 s33, 0"); A(f"s_cbranch_scc0 {L('qrole')}")
    vm0 = list(A.vm); lg0 = list(A.lg)
    role_z(A, L)
    A(f"s_branch {L('p2')}")
    A.label(L('qrole')); A.vm = list(vm0); A.lg = list(lg0)
    role_q(A, L)
    A.label(L('p2')); A.vm = []; A.lg = []
    ST(A, 9)
    phase2(A, L)
    phase3(A, L)
    if Stamps.enabled:
        A.raw("  s_waitcnt vmcnt(0)")
    A.label(L('fin'))
    if os.environ.get('DBGOUT'):
        A.raw("  s_waitcnt vmcnt(0) lgkmcnt(0)")
        A.raw(f"  s_cmp_lg_u32 s2, {os.environ['DBGOUT']}"); A.raw(f"  s_cbranch_scc1 {L('end')}"); A.raw("  s_cmp_lg_u32 s3, 0"); A.raw(f"  s_cbranch_scc1 {L('end')}")
        A.raw("  v_mov_b32 v250, 0")
        for k in range(1, 15):
            kk = k if k < 14 else 15
            A.raw(f"  s_sub_u32 s100, s{Stamps.reg(kk)}, s{Stamps.reg(0)}"); A.raw("  v_mov_b32 v251, s100")
            A.raw(f"  global_store_dword v250, v251, s[{S_DBG}:{S_DBG+1}] offset:{4*(k+1)}")
    else:
        Stamps.flush(A, 0, 16, S_WS)
    A.label(L('end'))
    A("s_endpgm")
    return A

if __name__ == "__main__":
    import sys, asmlib
    from build import assemble
    if len(sys.argv) > 2 and sys.argv[2].startswith('stamp'): asmlib.Stamps.enabled = True
    if len(sys.argv) > 2 and sys.argv[2] == 'stampcyc': asmlib.Stamps.op = 's_memtime'
    t = gen_mega().text(); sz = len([l for l in t.split('\n') if l.startswith('  ')])*8
    A = gen_mega(code_bytes=sz)
    if os.environ.get('FINAL'):
        from build import assemble_single
        open(sys.argv[1], 'w').write(assemble_single(dict(name="gated_mix__sliding_local_dilated__mixer_gmlp__prompt_kernel", text=A.text(), grid=256, block=256, lds=163840, vgpr=512, accum=256)))
    else:
        open(sys.argv[1], 'w').write(assemble([dict(name="mega_kernel", text=A.text(), grid=256, block=256, lds=163840, vgpr=512, accum=256)]))
    print("nops", A.nops_inserted, "est bytes", sz)
```

```python
import re

def R(kind, idx, n=1):
    return f"{kind}{idx}" if n == 1 else f"{kind}[{idx}:{idx+n-1}]"
def v(i, n=1): return R('v', i, n)
def a(i, n=1): return R('a', i, n)
def s(i, n=1): return R('s', i, n)
def u(i, n=1): return v(i, n) if i < 256 else a(i-256, n)

REG_RE = re.compile(r'^(-|abs\()?([vas])(\d+)\)?$')
RNG_RE = re.compile(r'^(-)?([vas])\[(\d+):(\d+)\]$')
def regs_of(op):
    op = op.strip()
    m = REG_RE.match(op)
    if m: return {(m.group(2), int(m.group(3)))}
    m = RNG_RE.match(op)
    if m: return {(m.group(2), i) for i in range(int(m.group(3)), int(m.group(4))+1)}
    if op == 'vcc': return {('s', 106), ('s', 107)}
    if op == 'exec': return {('s', 126), ('s', 127)}
    if op == 'm0': return {('s', 124)}
    return set()

TRANS = ('v_exp_f32', 'v_log_f32', 'v_rcp_f32', 'v_rsq_f32', 'v_sqrt_f32', 'v_sin_f32', 'v_cos_f32', 'v_rcp_iflag_f32')

class Ins:
    __slots__ = ('text', 'op', 'dst', 'src', 'cls', 'dpp', 'storedata', 'srcC')
    def __init__(self, text):
        self.text = text
        t = text.split(';')[0].strip()
        self.op = t.split()[0] if t else ''
        rest = t[len(self.op):].strip()
        ops = [o.strip() for o in rest.split(',')] if rest else []
        mods = ''
        if ops:
            parts = ops[-1].split(None, 1)
            ops[-1] = parts[0]
            mods = parts[1] if len(parts) > 1 else ''
        op = self.op
        self.dst = set(); self.src = set(); self.storedata = set(); self.srcC = set()
        self.dpp = ('row_' in mods or 'quad_perm' in mods or 'wave_' in mods or '_dpp' in op)
        rr = [regs_of(o) for o in ops]
        if op.startswith('v_mfma'):
            self.cls = 'mfma'; self.dst = rr[0]; self.src = rr[1] | rr[2] | rr[3]; self.srcC = rr[3]
        elif op.startswith('v_cmp'):
            self.cls = 'valu'; self.dst = rr[0]; self.src = set().union(*rr[1:])
        elif op.startswith('v_readfirstlane') or op.startswith('v_readlane'):
            self.cls = 'valu'; self.dst = rr[0]; self.src = set().union(*rr[1:])
        elif op.startswith('v_permlane'):
            self.cls = 'valu'; self.dst = rr[0] | rr[1]; self.src = rr[0] | rr[1]
        elif op.startswith('v_'):
            self.cls = 'valu'; self.dst = rr[0]; self.src = set().union(*rr[1:]) if len(rr) > 1 else set()
            if op.startswith(('v_fmac', 'v_dot2c', 'v_pk_fmac')): self.src |= rr[0]
            if op.startswith(('v_add_co', 'v_sub_co', 'v_addc_co', 'v_subb_co')): self.dst |= rr[1]
            if op.startswith('v_cndmask') and len(ops) == 3: self.src |= regs_of('vcc')
            if self.dpp: self.src |= rr[0]
        elif op.startswith(('buffer_load', 'global_load')):
            self.cls = 'vmem'
            if 'lds' in mods.split():
                self.src = set().union(*rr) | regs_of('m0')
            else:
                self.dst = rr[0]; self.src = set().union(*rr[1:])
                if 'd16' in op: self.src |= rr[0]
        elif op.startswith(('buffer_store', 'global_store')):
            self.cls = 'vmem'; self.src = set().union(*rr)
            self.storedata = rr[0] if op.startswith('buffer') else rr[1]
        elif op.startswith(('buffer_atomic', 'global_atomic')):
            self.cls = 'vmem'; self.src = set().union(*rr)
            if 'sc0' in mods.split(): self.dst = rr[0]
        elif op.startswith('ds_read'):
            self.cls = 'ds'; self.dst = rr[0]; self.src = rr[1]
        elif op.startswith('ds_'):
            self.cls = 'ds'; self.src = set().union(*rr)
        elif op.startswith(('s_load', 's_memtime', 's_memrealtime')):
            self.cls = 'smem'; self.dst = rr[0]; self.src = set().union(*rr[1:]) if len(rr) > 1 else set()
        elif op.startswith(('s_cmp', 's_waitcnt', 's_nop', 's_barrier', 's_branch', 's_cbranch', 's_endpgm', 's_sleep', 's_setprio')):
            self.cls = 'salu'; self.src = set().union(*rr) if rr else set()
        elif op.startswith('s_'):
            self.cls = 'salu'; self.dst = rr[0] if rr else set(); self.src = set().union(*rr[1:]) if len(rr) > 1 else set()
            if 'saveexec' in op: self.dst |= regs_of('exec'); self.src |= regs_of('exec')
        else:
            self.cls = 'other'
    def states(self):
        if self.op == 's_nop':
            return int(self.text.split()[1], 0) + 1
        return 1

def is_vreg(r): return r[0] in 'va'

def required_wait(p, c):
    w = 0
    pv = {r for r in p.dst if is_vreg(r)}; ps = {r for r in p.dst if r[0] == 's'}
    if p.cls == 'valu':
        if c.cls == 'mfma' and pv & c.src: w = max(w, 2)
        if c.cls == 'valu':
            if c.dpp and pv & c.src: w = max(w, 2)
            if c.op.startswith('v_permlane') and pv & c.src: w = max(w, 2)
            if c.op.startswith(('v_readfirstlane', 'v_readlane')) and pv & c.src: w = max(w, 1)
            if ps & c.src: w = max(w, 4 if c.op.startswith(('v_readlane', 'v_writelane')) else 2)
            if p.op.startswith(TRANS) and not c.op.startswith(TRANS) and pv & (c.src | c.dst): w = max(w, 1)
            if p.op.startswith(TRANS) and c.op.startswith(TRANS) and pv & c.src: w = max(w, 1)
        if c.cls == 'vmem' and ps & c.src: w = max(w, 5)
        if c.cls in ('salu', 'smem') and ps & c.src: w = max(w, 1)
        if c.cls in ('vmem', 'ds') and p.op.startswith(TRANS) and pv & c.src: w = max(w, 1)
    if p.cls == 'mfma':
        if c.cls == 'mfma':
            if pv & c.srcC and not (c.srcC == p.dst): w = max(w, 6)
            ab = c.src - c.srcC if c.srcC != c.src else set()
            if pv & (c.src - c.srcC): w = max(w, 8)
        elif c.cls == 'valu':
            if pv & (c.src | c.dst): w = max(w, 8)
            if p.srcC & c.dst: w = max(w, 3)
        elif c.cls in ('vmem', 'ds'):
            if pv & (c.src | c.dst): w = max(w, 8)
    if p.cls == 'salu' and ('s', 124) in p.dst and c.cls == 'vmem' and ('s', 124) in c.src: w = max(w, 1)
    if p.cls == 'vmem' and p.storedata and len(p.storedata) >= 3:
        if c.cls == 'valu' and p.storedata & c.dst: w = max(w, 2)
        elif p.storedata & c.dst: w = max(w, 1)
    return w

class Asm:
    def __init__(self):
        self.lines = []
        self.vm = []
        self.lg = []
        self.nops_inserted = 0
        self.window = []
        self.bg = []
        self.bg_every = 0; self._bgc = 0; self._inbg = False; self.bg_classes = ('valu', 'mfma')
    def raw(self, text):
        self.lines.append(text)
    def label(self, name):
        self.lines.append(f"{name}:")
        self.window = []
    def comment(self, t): self.lines.append(f"; {t}")
    def __call__(self, text, tag=None):
        ins = Ins(text)
        need = 0
        dist = 0
        for p in reversed(self.window):
            w = required_wait(p, ins)
            if w > dist: need = max(need, w - dist)
            dist += p.states()
            if dist >= 12: break
        while need > 0:
            k = min(need, 16)
            nop = Ins(f"s_nop {k-1}")
            self.lines.append(f"  s_nop {k-1}")
            self.window.append(nop); self.nops_inserted += k
            need -= k
        self.lines.append("  " + text)
        self.window.append(ins)
        if len(self.window) > 24: self.window = self.window[-24:]
        if ins.cls == 'vmem':
            self.vm.append(tag)
            assert len(self.vm) <= 63, f'more than 63 vector memory operations in flight at: {text}'
        elif ins.cls == 'ds': self.lg.append(tag)
        elif ins.cls == 'smem': self.lg.append('smem')
        if self.bg and self.bg_every and not self._inbg and ins.cls in self.bg_classes:
            self._bgc += 1
            if self._bgc >= self.bg_every:
                self._bgc = 0; self._inbg = True
                while self.bg:
                    t, tg = self.bg.pop(0); i2 = self(t, tag=tg)
                    if i2.cls == 'vmem': break
                self._inbg = False
        return ins
    def bg_flush(self):
        self._inbg = True
        while self.bg:
            t, tg = self.bg.pop(0); self(t, tag=tg)
        self._inbg = False
    def wait_vm(self, tag=None, extra=0):
        if tag is None: n = 0
        else:
            tags = tag if isinstance(tag, (list, set)) else [tag]
            idx = [i for i, t in enumerate(self.vm) if t in tags]
            if not idx: return
            n = len(self.vm) - 1 - idx[-1]
        assert n <= 63, f"vmcnt {n} > 63"
        self(f"s_waitcnt vmcnt({n})")
        self.vm = self.vm[len(self.vm)-n:] if n else []
    def wait_lg(self, tag=None):
        if tag is None or 'smem' in self.lg: n = 0
        else:
            tags = tag if isinstance(tag, (list, set)) else [tag]
            idx = [i for i, t in enumerate(self.lg) if t in tags]
            if not idx: return
            n = len(self.lg) - 1 - idx[-1]
        n = min(n, 15)
        self(f"s_waitcnt lgkmcnt({n})")
        self.lg = self.lg[len(self.lg)-n:] if n else []
    def check_vm(self):
        assert len(self.vm) <= 63, f"too many outstanding vmem ops: {len(self.vm)}"
    def text(self): return "\n".join(self.lines)


WS_STAMP = 0xE00000
class Stamps:
    enabled = False
    op = 's_memrealtime'
    @staticmethod
    def reg(k): return Stamps.map[k]
    map = [80+2*k for k in range(10)] + [70, 72, 74, 76]
    @staticmethod
    def mark(A, k):
        if Stamps.enabled:
            A.raw(f"  {Stamps.op} s[{Stamps.reg(k)}:{Stamps.reg(k)+1}]")
    @staticmethod
    def flush(A, kidx, n, ws_lo=4):
        if not Stamps.enabled: return
        A.raw("  s_waitcnt lgkmcnt(0)")
        A.raw("  s_lshl_b32 s100, s2, 2"); A.raw("  s_add_u32 s100, s100, s3"); A.raw("  s_lshl_b32 s100, s100, 6")
        A.raw(f"  s_add_u32 s100, s100, {WS_STAMP + kidx*256*4*64}")
        A.raw("  v_mov_b32 v250, s100")
        for k in range(n):
            A.raw(f"  v_mov_b32 v251, s{Stamps.reg(k)}")
            A.raw(f"  global_store_dword v250, v251, s[{ws_lo}:{ws_lo+1}] offset:{4*k}")
```

```python
from asmlib import *
from layout import *
from k1z import hexf, gelu_pairs, GELU_C1, GELU_C2
import os
PROFILE = os.environ.get('PROFILE', 'all')
SLEEP = int(os.environ.get('SLEEP', '2'))
def ST(A, k):
    if PROFILE == 'all':
        if isinstance(k, int): Stamps.mark(A, k)
    elif PROFILE == 'p1':
        if isinstance(k, str): return
        if isinstance(k, int) and k in (0, 1, 2): Stamps.mark(A, k)
        elif isinstance(k, int) and k == 3: Stamps.mark(A, 10)
        elif isinstance(k, int) and k == 4: Stamps.mark(A, 11)
        elif isinstance(k, tuple) and k[0] == 'g': Stamps.mark(A, 3 + k[1])
        elif isinstance(k, int) and k in (5, 6, 7, 8): Stamps.mark(A, 7 + k)
    elif PROFILE == 'p7':
        m = {0: 0, 11: 1, 'red_w': 2, 'red_b': 3, 'red_r': 4, 'hcomp': 5, 12: 6, 'hack': 7, 13: 8, 'opart': 9, 14: 10, 'ah0': 11, 'ahN': 12, 'p3red': 13, 'p3st': 14}
        if k in m: Stamps.mark(A, m[k])
    elif PROFILE == 'p6':
        m = {0: 0, 'karg': 1, 'tkb': 2, 'tick': 3, 'rsetup': 4, 1: 5, 2: 6, ('g', 0): 7, ('g', 1): 8, ('g', 2): 9, ('g', 3): 10, 3: 11}
        if k in m: Stamps.mark(A, m[k])
    elif PROFILE == 'p5':
        if k == 0: Stamps.mark(A, 0)
        elif k == 10: Stamps.mark(A, 1)
        elif isinstance(k, tuple) and k[0] == 'kk' and k[1] in (0,1,2,3,4,5,6,8,10,12,14,15): Stamps.mark(A, 2 + (0,1,2,3,4,5,6,8,10,12,14,15).index(k[1]))
        elif k == 11: Stamps.mark(A, 14)
    elif PROFILE == 'p4':
        m = {0: 0, 3: 1, 4: 2, 'w2': 3, ('au', 0): 4, ('au', 1): 5, ('au', 2): 6, ('au', 3): 7, ('au', 4): 8, ('au', 5): 9, ('au', 6): 10, ('au', 7): 11, 5: 12, 7: 13, 6: 14}
        if k in m: Stamps.mark(A, m[k])
    elif PROFILE == 'p3':
        m = {0: 0, 3: 1, 4: 2, 5: 3, 6: 4, 7: 5, 'lnq': 6, 'norm': 7, 'pubw': 8, 'sig': 9, 8: 10, 10: 11, 11: 12, 'w2': 13, 'st0': 14, 'st3': 15}
        if k in m: Stamps.mark(A, m[k])
    elif PROFILE == 'p2':
        m = {0: 0, 3: 1, 4: 2, 8: 13, 10: 14, 'z1in': 3, 'z1out': 11, 'z1epi': 12, 11: 15}
        if isinstance(k, tuple) and k[0] == 'z': Stamps.mark(A, 4 + k[1])
        elif k in m: Stamps.mark(A, m[k])

S_X, S_WQKV, S_WO, S_WIN, S_WSP, S_BSP, S_WOUT = 36, 38, 40, 44, 46, 48, 50
S_GW, S_OUT, S_DBG, S_WS = 52, 54, 56, 58
S_RB, S_CB, S_RB2 = 20, 21, 22
SRD_A = 60
OOB = 0x7fff0000
C_LN, C_ZD, C_QD, C_HD = 0, 16, 24, 32

def srd_from(A, d, ptr, off_sreg, nbytes):
    if off_sreg is None:
        A(f"s_mov_b32 s{d}, s{ptr}"); A(f"s_and_b32 s{d+1}, s{ptr+1}, 0xffff")
    else:
        A(f"s_add_u32 s{d}, s{ptr}, s{off_sreg}"); A(f"s_addc_u32 s{d+1}, s{ptr+1}, 0"); A(f"s_and_b32 s{d+1}, s{d+1}, 0xffff")
    A(f"s_mov_b32 s{d+2}, {nbytes}"); A(f"s_mov_b32 s{d+3}, 0x20000")

S_TAG = 76
def tag_publish(A, L):
    A.raw("  s_cmp_lg_u32 s2, 0"); A.raw(f"  s_cbranch_scc1 {L('notag')}")
    A.raw("  s_memrealtime s[30:31]"); A.raw("  s_waitcnt lgkmcnt(0)"); A.raw("  s_or_b32 s30, s30, 1")
    A.raw("  v_mov_b32 v60, s30"); A.raw("  v_mov_b32 v61, s31"); A.raw("  v_mov_b32 v62, 16")
    A.raw("  s_mov_b64 s[34:35], exec"); A.raw("  s_mov_b64 exec, 1")
    A.raw(f"  global_store_dwordx2 v62, v[60:61], s[{S_DBG}:{S_DBG+1}] sc1")
    A.raw("  s_mov_b64 exec, s[34:35]")
    A.raw(f"{L('notag')}:")
def tag_issue(A):
    A("v_mov_b32 v9, 16"); A(f"global_load_dwordx2 v[10:11], v9, s[{S_DBG}:{S_DBG+1}] sc1", tag='tagld')
def tag_take(A, L):
    A.wait_vm('tagld')
    A(f"v_readfirstlane_b32 s{S_TAG}, v10"); A(f"v_readfirstlane_b32 s{S_TAG+1}, v11")
    A(f"s_cmp_lg_u32 s{S_TAG}, 0"); A(f"s_cbranch_scc1 {L('tagd')}")
    A.raw("  s_mov_b32 s33, 0")
    A.raw(f"{L('tagl')}:")
    A.raw(f"  global_load_dwordx2 v[10:11], v9, s[{S_DBG}:{S_DBG+1}] sc1")
    A.raw("  s_add_u32 s33, s33, 1")
    A.raw("  s_waitcnt vmcnt(0)")
    A.raw(f"  v_readfirstlane_b32 s{S_TAG}, v10"); A.raw(f"  v_readfirstlane_b32 s{S_TAG+1}, v11")
    A.raw("  s_nop 1")
    A.raw(f"  s_cmp_lg_u32 s{S_TAG}, 0"); A.raw(f"  s_cbranch_scc1 {L('tagd')}")
    A.raw("  s_cmp_lt_u32 s33, 0x20000"); A.raw(f"  s_cbranch_scc1 {L('tagl')}")
    A.label(L('tagd'))

def signal(A, L, tag, off_sreg):
    A("s_cmp_lg_u32 s3, 0"); A(f"s_cbranch_scc1 {L(tag)}")
    A.raw(f"  v_mov_b32 v18, s{off_sreg}"); A.raw(f"  v_mov_b32 v16, s{S_TAG}"); A.raw(f"  v_mov_b32 v17, s{S_TAG+1}")
    A.raw("  s_mov_b64 s[34:35], exec"); A.raw("  s_mov_b64 exec, 1")
    A.raw(f"  global_store_dwordx2 v18, v[16:17], s[{S_WS}:{S_WS+1}] sc1")
    A.raw("  s_mov_b64 exec, s[34:35]")
    A.label(L(tag))

def poll(A, L, tag, vaddr, nlanes):
    A("s_cmp_lg_u32 s3, 0"); A(f"s_cbranch_scc1 {L(tag+'_done')}")
    A.raw("  s_mov_b32 s33, 0"); A.raw("  s_mov_b64 s[34:35], exec"); A.raw(f"  s_mov_b64 exec, {hex((1 << nlanes) - 1) if nlanes < 64 else -1}")
    A.label(L(tag+'_loop'))
    A.raw(f"  global_load_dwordx2 v[18:19], v{vaddr}, s[{S_WS}:{S_WS+1}] sc1")
    A.raw("  s_add_u32 s33, s33, 1")
    A.raw("  s_waitcnt vmcnt(0)")
    A.raw(f"  v_xor_b32 v18, s{S_TAG}, v18"); A.raw(f"  v_xor_b32 v19, s{S_TAG+1}, v19"); A.raw("  v_or_b32 v18, v18, v19")
    A.raw("  v_cmp_eq_u32 vcc, 0, v18")
    A.raw("  s_nop 1")
    A.raw("  s_cmp_eq_u64 vcc, exec")
    A.raw(f"  s_cbranch_scc1 {L(tag+'_out')}")
    A.raw(f"  s_sleep {SLEEP}")
    A.raw("  s_cmp_lt_u32 s33, 0x20000")
    A.raw(f"  s_cbranch_scc1 {L(tag+'_loop')}")
    A.label(L(tag+'_out'))
    A.raw("  s_mov_b64 exec, s[34:35]")
    A.label(L(tag+'_done'))
    A("s_barrier")

def poll_wave(A, L, tag, vaddr, reset=True):
    A.raw("  s_mov_b32 s33, 0")
    A.label(L(tag+'_loop'))
    A.raw(f"  global_load_dwordx2 v[18:19], v{vaddr}, s[{S_WS}:{S_WS+1}] sc1")
    A.raw("  s_add_u32 s33, s33, 1")
    A.raw("  s_waitcnt vmcnt(0)")
    A.raw(f"  v_xor_b32 v18, s{S_TAG}, v18"); A.raw(f"  v_xor_b32 v19, s{S_TAG+1}, v19"); A.raw("  v_or_b32 v18, v18, v19")
    A.raw("  v_cmp_eq_u32 vcc, 0, v18")
    A.raw("  s_nop 1")
    A.raw("  s_cmp_eq_u64 vcc, exec")
    A.raw(f"  s_cbranch_scc1 {L(tag+'_out')}")
    A.raw(f"  s_sleep {SLEEP}")
    A.raw("  s_cmp_lt_u32 s33, 0x20000")
    A.raw(f"  s_cbranch_scc1 {L(tag+'_loop')}")
    A.label(L(tag+'_out'))
    if reset: A.vm = []

class AService:
    VD, VR, VL = 232, 236, 240
    def __init__(self, A): self.A = A
    def setup(self):
        A = self.A
        A(f"s_lshl_b32 s23, s{S_RB2}, 18"); srd_from(A, SRD_A, S_WSP, 23, 64*4096)
        A("v_lshrrev_b32 v16, 3, v12"); A("v_and_b32 v17, 7, v12"); A("v_and_b32 v18, 3, v16"); A("v_xor_b32 v17, v17, v18")
        A("v_lshlrev_b32 v17, 4, v17"); A("v_lshl_add_u32 v17, v16, 12, v17")
        for uu in range(4):
            if uu & 1: A(f"v_xor_b32 v{self.VD+uu}, 64, v17")
            else: A(f"v_mov_b32 v{self.VD+uu}, v17")
            if uu: A(f"v_add_u32 v{self.VD+uu}, {uu*(32768-1024)}, v{self.VD+uu}")
        A("v_lshrrev_b32 v16, 2, v13"); A("v_lshlrev_b32 v16, 3, v16"); A("v_and_b32 v17, 3, v13"); A("v_add_u32 v16, v16, v17")
        A("v_and_b32 v17, 7, v13"); A("v_xor_b32 v17, v17, v14"); A("v_lshlrev_b32 v17, 4, v17"); A(f"v_lshl_add_u32 v{self.VL}, v16, 7, v17")
        A("s_lshr_b32 s23, s3, 1"); A("s_lshl_b32 s68, s23, 17"); A("s_lshl_b32 s23, s3, 10"); A("s_add_u32 s68, s68, s23")
        A("s_xor_b32 s69, s68, 0x20000")
    BASES = {'A': (74, 236), 'B': (75, 241)}
    def base(self, name, per_wave, start):
        A = self.A; sr, vr = self.BASES[name]
        A(f"s_mul_i32 s{sr}, s3, {per_wave}"); A(f"s_add_u32 s{sr}, s{sr}, {start}")
        A("s_and_b32 s23, s3, 1"); A("s_lshl_b32 s23, s23, 9"); A(f"s_add_u32 s23, s23, s{sr}")
        for b in range(2):
            if b: A("s_xor_b32 s23, s23, 512")
            A(f"v_add_u32 v{vr+2*b}, s23, v{self.VL}"); A(f"v_xor_b32 v{vr+2*b+1}, 64, v{vr+2*b}")
    def dma(self, n, slot):
        ss, gt = n >> 1, n & 1; sr, vr = self.BASES[slot[0]]
        return [(f"s_add_u32 m0, s{sr}, {slot[1]*4096}", None), (f"s_add_u32 s70, s{S_RB2}, {ss}", None), ("s_and_b32 s70, s70, 7", None),
                ("s_lshl_b32 s70, s70, 7", None), (f"s_add_u32 s70, s70, s{68+gt}", None)] + \
               [(f"buffer_load_dwordx4 v{self.VD+uu}, s[{SRD_A}:{SRD_A+3}], s70 offen offset:{uu*1024} lds", ('Au', n)) for uu in range(4)]
    def read(self, n, slot):
        ss, gt = n >> 1, n & 1; sr, vr = self.BASES[slot[0]]
        for b in range(2):
            for h in range(2):
                tau = 2*gt + b
                self.A(f"ds_read_b128 {a((ss*8 + h*4 + tau)*4, 4)}, v{vr+2*b+h} offset:{slot[1]*4096}", tag=('Ar', n))
    def emit_dma(self, units, slots):
        for n, sl in zip(units, slots):
            for t, tg in self.dma(n, sl): self.A(t, tag=tg)
    def bg_dma(self, units, slots):
        for n, sl in zip(units, slots): self.A.bg += self.dma(n, sl)
    def wait_read(self, units, slots):
        self.A.wait_vm(('Au', units[-1]))
        for n, sl in zip(units, slots): self.read(n, sl)

def wf_issue(A, rounds):
    A("v_lshrrev_b32 v62, 2, v13"); A("v_lshlrev_b32 v62, 3, v62"); A("v_and_b32 v63, 3, v13"); A("v_add_u32 v62, v62, v63")
    A("v_lshlrev_b32 v62, 1, v62")
    A(f"v_mul_u32_u24 v63, {4*896}, v14"); A("v_add_u32 v62, v62, v63")
    for q, r in enumerate(rounds):
        A(f"s_lshl_b32 s23, s{S_RB}, 3"); A(f"s_add_u32 s23, s23, s{S_CB}"); A("s_lshl_b32 s23, s23, 2"); A("s_add_u32 s23, s23, s3")
        if r: A(f"s_add_u32 s23, s23, {512*r}")
        A("s_and_b32 s24, s23, 3"); A("s_lshr_b32 s25, s23, 2")
        A("s_mul_i32 s26, s25, 1490"); A("s_lshr_b32 s26, s26, 16")
        A("s_mul_i32 s27, s26, 44"); A("s_sub_u32 s27, s25, s27")
        A("s_lshl_b32 s28, s26, 7"); A("s_lshr_b32 s29, s24, 1"); A("s_lshl_b32 s29, s29, 6"); A("s_add_u32 s28, s28, s29")
        A("s_and_b32 s29, s24, 1"); A("s_lshl_b32 s29, s29, 3"); A("s_add_u32 s28, s28, s29")
        A("s_cmp_lt_u32 s27, 16")
        A(f"s_cselect_b32 s64, s{S_WO}, s{S_WOUT}"); A(f"s_cselect_b32 s65, s{S_WO+1}, s{S_WOUT+1}")
        A("s_cselect_b32 s66, 1, 2"); A(f"s_mul_i32 s66, s66, {448*896}"); A("s_mov_b32 s67, 0x20000"); A("s_and_b32 s65, s65, 0xffff")
        A("s_mul_i32 s29, s27, 28"); A("s_mul_i32 s30, s27, 32"); A("s_sub_u32 s30, s30, 512")
        A("s_cmp_lt_u32 s27, 16"); A("s_cselect_b32 s29, s29, s30"); A("s_cselect_b64 s[30:31], -1, 0")
        A("s_mul_i32 s29, s29, 896"); A("s_add_u32 s29, s29, s28")
        A("s_cmp_ge_u32 s23, 1232"); A("s_cselect_b32 s66, 0, s66")
        A(f"v_add_u32 v58, 0, v62"); A(f"v_add_u32 v59, {16*896}, v62")
        A("v_cmp_eq_u32 vcc, 3, v14"); A("s_and_b64 s[30:31], s[30:31], vcc"); A(f"v_mov_b32 v63, {OOB}")
        A("v_cndmask_b32 v59, v59, v63, s[30:31]")
        for e in range(8):
            A(f"buffer_load_ushort v{WFR[r] + e}, v{58 + (e >> 2)}, s[64:67], s29 offen offset:{(e & 3)*896}", tag='wfj')
WFR = {0: 40, 1: 48, 2: 246}
def wf_store(A, rounds):
    A.wait_vm('wfj')
    for r in rounds:
        for p in range(4):
            A(f"v_lshl_or_b32 v{WFR[r] + p}, v{WFR[r] + 2*p + 1}, 16, v{WFR[r] + 2*p}")
    A(f"s_mov_b32 s23, {WS_WF}"); srd_from(A, 64, S_WS, 23, 1232*1024)
    A("v_lshlrev_b32 v60, 4, v12")
    A(f"s_lshl_b32 s23, s{S_RB}, 3"); A(f"s_add_u32 s23, s23, s{S_CB}"); A("s_lshl_b32 s23, s23, 2"); A("s_add_u32 s23, s23, s3"); A("s_lshl_b32 s23, s23, 10")
    for q, r in enumerate(rounds):
        A(f"s_add_u32 s27, s23, {512*1024*r}")
        A(f"buffer_store_dwordx4 {v(WFR[r],4)}, v60, s[64:67], s27 offen sc1", tag='pubst')

def touch_lines(A, ptr, vaddr, n, step, vdst=56):
    for k in range(n):
        A(f"global_load_dword v{vdst}, v{vaddr}, s[{ptr}:{ptr+1}]", tag='touch')
        if k + 1 < n: A(f"v_add_u32 v{vaddr}, {step}, v{vaddr}")

def touch_z1w(A):
    A(f"s_and_b32 s27, s{S_RB}, 3"); A("s_lshl_b32 s27, s27, 2"); A(f"s_and_b32 s28, s{S_CB}, 3"); A("s_add_u32 s27, s27, s28"); A("s_lshl_b32 s27, s27, 2"); A("s_add_u32 s27, s27, s3")
    A(f"s_mul_i32 s27, s27, {7*3584}"); A(f"s_lshr_b32 s28, s{S_CB}, 2"); A("s_mul_i32 s28, s28, 896"); A("s_add_u32 s27, s27, s28")
    A("v_lshrrev_b32 v57, 3, v12"); A("v_min_u32 v57, 6, v57"); A("v_mul_u32_u24 v57, 3584, v57"); A("v_and_b32 v58, 7, v12"); A("v_min_u32 v58, 6, v58")
    A("v_lshl_add_u32 v57, v58, 7, v57"); A("v_add_u32 v57, s27, v57")
    A(f"global_load_dword v56, v57, s[{S_WIN}:{S_WIN+1}]", tag='touch')

def prefetch_wsp_list():
    return [(f"s_lshl_b32 s75, s{S_RB2}, 18", None), (f"s_lshl_b32 s100, s{S_CB}, 15", None), ("s_add_u32 s75, s75, s100", None),
            ("s_lshl_b32 s100, s3, 13", None), ("s_add_u32 s75, s75, s100", None),
            ("v_lshlrev_b32 v60, 7, v12", None), ("v_add_u32 v60, s75, v60", None),
            (f"global_load_dword v56, v60, s[{S_WSP}:{S_WSP+1}]", 'touch')]
def touch_small(A):
    A(f"s_lshl_b32 s27, s{S_RB}, 3"); A(f"s_add_u32 s27, s27, s{S_CB}"); A("s_lshl_b32 s27, s27, 2"); A("s_add_u32 s27, s27, s3"); A("s_min_u32 s27, s27, 447")
    A("s_mul_i32 s28, s27, 1792"); A("v_min_u32 v57, 13, v12"); A("v_lshlrev_b32 v57, 7, v57"); A("v_add_u32 v58, s28, v57")
    A(f"global_load_dword v56, v58, s[{S_WOUT}:{S_WOUT+1}]", tag='touch')
    A("s_mul_i32 s28, s27, 896"); A("v_min_u32 v57, 6, v12"); A("v_lshlrev_b32 v57, 7, v57"); A("v_add_u32 v58, s28, v57")
    A(f"global_load_dword v56, v58, s[{S_WO}:{S_WO+1}]", tag='touch')

def wdma_setup(A, V):
    A("v_lshrrev_b32 v15, 1, v13"); A("v_xor_b32 v15, v15, v14")
    A("v_and_b32 v16, 1, v13"); A("v_lshlrev_b32 v16, 4, v16")
    A("v_mul_u32_u24 v17, 3584, v14"); A("v_add_u32 v16, v16, v17"); A(f"v_mov_b32 v18, {OOB}")
    for uu in range(4):
        if uu == 2: A("v_xor_b32 v15, 4, v15")
        A(f"v_lshl_add_u32 v{V+uu}, v15, 5, v16")
        if uu: A(f"v_add_u32 v{V+uu}, {uu*(4*3584-1024)}, v{V+uu}")
        A("v_cmp_eq_u32 vcc, 7, v15"); A(f"v_cndmask_b32 v{V+uu}, v{V+uu}, v18, vcc")
def wread_setup(A, V, base):
    A("v_lshrrev_b32 v15, 2, v13"); A("v_lshl_add_u32 v16, v14, 3, v15"); A("v_lshlrev_b32 v16, 8, v16")
    A("v_and_b32 v17, 3, v13"); A("v_lshl_add_u32 v16, v17, 3, v16"); A(f"v_add_u32 v16, {base}, v16")
    A("v_and_b32 v17, 1, v14"); A("v_lshl_or_b32 v17, v17, 2, v15")
    for j in range(7):
        A(f"v_xor_b32 v18, {j}, v17"); A(f"v_lshl_add_u32 v{V+j}, v18, 5, v16")

GC = dict(VC1=32, VC2=34, VONE=36)
def gelu_consts(A):
    for r, val in ((32, GELU_C1), (34, GELU_C2), (36, 1.0)):
        A(f"v_mov_b32 v{r}, {hexf(val)}"); A(f"v_mov_b32 v{r+1}, {hexf(val)}")

class Z1Tile:
    WB, XB, ACC, GACC = 120, 176, 192, 220
    VW = 24
    def __init__(self, A, L, ring_base, vdma, sW):
        self.A, self.L, self.ring_base, self.vdma, self.sW = A, L, ring_base, vdma, sW
    def dma_w_list(self, c):
        st = (c + 1) % 3
        return [(f"s_add_u32 m0, s71, {self.ring_base + st*16384}", None), (f"s_add_u32 s23, s{self.sW}, {64*c*3584}", None)] + \
               [(f"buffer_load_dwordx4 v{self.vdma+uu}, s[12:15], s23 offen offset:{uu*1024} lds", ('w1', c)) for uu in range(4)]
    def dma_w(self, c):
        for t, tg in self.dma_w_list(c): self.A(t, tag=tg)
    def reads(self, c, h, buf, xoff):
        out = []
        st = (c + 1) % 3
        out.append((f"ds_read_b128 {v(self.XB+buf*8,4)}, v{20+h} offset:{xoff(c)}", ('zx', c, h)))
        out.append((f"ds_read_b128 {v(self.XB+buf*8+4,4)}, v31 offset:{(2*c+h)*64}", ('zx', c, h)))
        for j in range(7):
            for sec in range(2):
                out.append((f"ds_read_b64_tr_b16 {v(self.WB+buf*28+j*4+2*sec,2)}, v{self.VW+j} offset:{st*16384 + h*8192 + sec*1024}", ('zw', c, h, j)))
        return out
    def run(self, xoff, xwait, hooks):
        A = self.A
        ST(A, 'z1in')
        A.wait_vm([('w1', 0)] + xwait(0)); A.wait_lg(); A("s_barrier")
        if ('pre',) in hooks: hooks[('pre',)]()
        for t, tg in self.reads(0, 0, 0, xoff): A(t, tag=tg)
        for c in range(7):
            for h in range(2):
                kk = 2*c + h; buf = kk & 1
                todo = []
                if h == 0: todo = self.reads(c, 1, buf ^ 1, xoff)
                else:
                    if c < 6:
                        A.wait_vm([('w1', c+1)] + xwait(c+1))
                        A.wait_lg(); A("s_barrier"); ST(A, ('z', c))
                        if c + 3 <= 6: self.dma_w(c + 3)
                        todo = self.reads(c+1, 0, buf ^ 1, xoff)
                if (c, h) in hooks: hooks[(c, h)]()
                A.wait_lg([('zx', c, h)])
                d = v(self.GACC, 4)
                A(f"v_mfma_f32_16x16x32_bf16 {d}, {v(self.XB+buf*8+4,4)}, {v(self.XB+buf*8,4)}, {d if kk else 0}")
                for _ in range(2):
                    if todo: t, tg = todo.pop(0); A(t, tag=tg)
                for j in range(7):
                    A.wait_lg([('zw', c, h, j)])
                    d = v(self.ACC + 4*j, 4)
                    A(f"v_mfma_f32_16x16x32_bf16 {d}, {v(self.WB+buf*28+j*4,4)}, {v(self.XB+buf*8,4)}, {d if kk else 0}")
                    for _ in range(2):
                        if todo: t, tg = todo.pop(0); A(t, tag=tg)
    def epilogue(self, svc):
        A = self.A
        ST(A, 'z1out')
        G = self.GACC
        A(f"v_mul_f32 v{G}, {hexf(1.4426950408889634)}, v{G}")
        A(f"v_exp_f32 v{G}, v{G}"); A(f"v_add_f32 v{G}, 1.0, v{G}"); A(f"v_rcp_f32 v{G}, v{G}")
        A("v_lshlrev_b32 v16, 2, v13")
        A(f"ds_bpermute_b32 v{G+1}, v16, v{G}", tag='gb')
        regs = [self.ACC + 2*p for p in range(14)]
        for q in range(0, 14, 4):
            gelu_pairs(A, regs[q:q+4], 224, 32, 34, 36)
            svc.step()
        A.wait_lg('gb')
        for p in range(14):
            r = self.ACC + 2*p
            A(f"v_mul_f32 v{r}, v{r}, v{G+1}"); A(f"v_mul_f32 v{r+1}, v{r+1}, v{G+1}")
            A(f"v_cvt_pk_bf16_f32 v{240+p}, v{r}, v{r+1}")
        ST(A, 'z1epi')

L_TICKET = 163584
L_AST, L_GW, L_ZR, L_GL, L_RING = 58368, 107520, 108544, 160768, 114688
XH = 57344

def load_gw_tables(A, gwb, zrb, tag):
    A(f"s_mov_b32 s23, 896"); srd_from(A, 16, S_GW, None, 896)
    A("v_lshlrev_b32 v16, 4, v12"); A(f"v_mov_b32 v18, {OOB}")
    A(f"s_mov_b32 m0, {gwb}"); A("buffer_load_dwordx4 v16, s[16:19], 0 offen lds", tag=tag)
    A(f"s_mov_b32 m0, {zrb}"); A("buffer_load_dwordx4 v18, s[16:19], 0 offen lds", tag=tag)
def gw_addr(A, vreg, gwb, zrb):
    A("v_cmp_eq_u32 vcc, 0, v13"); A(f"v_mov_b32 v16, {zrb}"); A(f"v_mov_b32 v17, {gwb}"); A(f"v_cndmask_b32 v{vreg}, v16, v17, vcc")
    A(f"v_lshl_add_u32 v{vreg}, v14, 4, v{vreg}")
def z1_xaddr(A):
    A("v_lshrrev_b32 v15, 2, v13"); A("v_lshlrev_b32 v15, 3, v15"); A("v_and_b32 v16, 3, v13"); A("v_add_u32 v15, v15, v16")
    A("v_and_b32 v16, 7, v13"); A("v_xor_b32 v16, v16, v14"); A("v_lshlrev_b32 v16, 4, v16"); A("v_lshl_add_u32 v16, v15, 7, v16")
    A("s_lshr_b32 s23, s3, 1"); A("s_lshl_b32 s23, s23, 12"); A("s_and_b32 s24, s3, 1"); A("s_lshl_b32 s24, s24, 9"); A("s_add_u32 s23, s23, s24")
    A("v_add_u32 v20, s23, v16"); A("v_xor_b32 v21, 64, v20")
def load_bias(A):
    A(f"s_lshl_b32 s23, s{S_RB2}, 6"); A("s_lshr_b32 s24, s3, 1"); A("s_lshl_b32 s24, s24, 5"); A("s_add_u32 s23, s23, s24")
    A("s_and_b32 s24, s3, 1"); A("s_lshl_b32 s24, s24, 2"); A("s_add_u32 s23, s23, s24")
    A("v_lshrrev_b32 v15, 2, v13"); A("v_lshlrev_b32 v15, 3, v15"); A("v_and_b32 v16, 3, v13"); A("v_add_u32 v15, v15, v16")
    A("v_add_u32 v15, s23, v15"); A("v_lshlrev_b32 v15, 1, v15")
    srd_from(A, 16, S_BSP, None, S*2)
    A("buffer_load_ushort v254, v15, s[16:19], 0 offen", tag='bias')

def role_z(A, L):
    ACC1, ACC2 = 64, 120
    acc1 = lambda j, aa: ACC1 + (j*2+aa)*4
    acc2 = lambda j, aa: ACC2 + (j*2+aa)*4
    WB = 176
    wf = lambda buf, j: WB + buf*28 + j*4
    xf = lambda kk, aa: 144 + (kk*2+aa)*4
    A("v_lshrrev_b32 v15, 3, v12"); A("v_and_b32 v16, 7, v12"); A("v_and_b32 v17, 3, v15"); A("v_xor_b32 v16, v16, v17"); A("v_lshlrev_b32 v16, 4, v16")
    A("v_mul_u32_u24 v17, 896, v15")
    for uu in range(4):
        if uu & 1: A("v_xor_b32 v18, 64, v16"); A(f"v_add_u32 v{1+uu}, v18, v17")
        else: A(f"v_add_u32 v{1+uu}, v16, v17")
        if uu: A(f"v_add_u32 v{1+uu}, {uu*(8*896-1024)}, v{1+uu}")
    wdma_setup(A, 5)
    A(f"s_lshl_b32 s72, s{S_RB}, 2"); A("s_add_u32 s72, s72, s3")
    A(f"s_mul_i32 s23, s72, {32*896}"); srd_from(A, 8, S_X, 23, 32*896)
    srd_from(A, 12, S_WIN, None, 448*3584)
    A(f"s_mul_i32 s25, s3, {16*3584}"); A(f"s_mul_i32 s23, s{S_CB}, 224"); A("s_add_u32 s25, s25, s23"); A("s_add_u32 s24, s25, 1792")
    A("s_lshl_b32 s71, s3, 12")
    def dma_x(c):
        return [(f"s_add_u32 m0, s71, {c*16384}", None), (f"s_mov_b32 s23, {c*128}", None)] + \
               [(f"buffer_load_dwordx4 v{1+uu}, s[8:11], s23 offen offset:{uu*1024} lds", ('x', c)) for uu in range(4)]
    def dma_w(c, which=1, sreg=23):
        base = (L_RING + (c % 3)*16384) if which == 1 else c*16384
        return [(f"s_add_u32 m0, s71, {base}", None), (f"s_add_u32 s{sreg}, s{24 if which == 1 else 25}, {64*c*3584}", None)] + \
               [(f"buffer_load_dwordx4 v{5+uu}, s[12:15], s{sreg} offen offset:{uu*1024} lds", ('w', which, c)) for uu in range(4)]
    def emit(lst):
        for t, tg in lst: A(t, tag=tg)
    ST(A, 'rsetup')
    for c in range(2): emit(dma_w(c)); emit(dma_x(c))
    ST(A, 1)
    A("v_lshrrev_b32 v15, 2, v13"); A("v_lshlrev_b32 v15, 3, v15"); A("v_and_b32 v16, 3, v13"); A("v_add_u32 v15, v15, v16")
    A("v_and_b32 v16, 7, v13"); A("v_xor_b32 v16, v16, v14"); A("v_lshlrev_b32 v16, 4, v16"); A("v_lshl_add_u32 v16, v15, 7, v16")
    A("v_add_u32 v20, s71, v16"); A("v_xor_b32 v21, 64, v20"); A("v_add_u32 v22, 0x10000, v20"); A("v_add_u32 v23, 0x10000, v21")
    wread_setup(A, 24, L_RING)
    gelu_consts(A)
    svc = AService(A)
    def reads_w(which, c, h, buf):
        out = []
        off = ((c % 3) if which == 1 else (c % 4))*16384 + h*8192
        for j in range(7):
            for sec in range(2):
                out.append((f"ds_read_b64_tr_b16 {v(wf(buf,j)+2*sec,2)}, v{24+j} offset:{off + sec*1024}", ('wf', which, c, h, j)))
        return out
    def reads_x(c):
        return [(f"ds_read_b128 {a(xf(2*c+h,aa),4)}, v{20 + h + (2 if c >= 4 else 0)} offset:{(c % 4)*16384 + aa*512}", ('xf', c, h)) for h in range(2) for aa in range(2)]
    A.wait_vm([('w', 1, 0), ('x', 0)]); A("s_barrier")
    ST(A, 2)
    emit(reads_x(0)); emit(reads_w(1, 0, 0, 0))
    for c in range(7):
        for h in range(2):
            kk = 2*c + h; buf = kk & 1
            todo = []; vq = []
            if h == 0:
                todo = reads_w(1, c, 1, buf ^ 1)
                if c == 0: vq += dma_w(2)
                if c + 2 <= 6: vq += dma_x(c + 2)
            else:
                if c < 6: A.wait_vm([('w', 1, c+1), ('x', c+1)])
                A.wait_lg(); A("s_barrier"); ST(A, ('g', c))
                if c + 3 <= 6: vq += dma_w(c + 3)
                MODE = os.environ.get('W2MODE', 'epi')
                if MODE == 'loop':
                    for cc in {5: (0, 1, 2, 3), 6: (4, 5, 6)}.get(c, ()): vq += dma_w(cc, 2)
                elif c == 6:
                    for cc in range(7): A.bg += dma_w(cc, 2, 75)
                    A.bg_every = int(os.environ.get('BGW2', '12'))
                if c < 6: todo = reads_w(1, c+1, 0, buf ^ 1)[:2] + reads_x(c+1) + reads_w(1, c+1, 0, buf ^ 1)[2:]
            A.wait_lg([('xf', c, h)])
            for j in range(7):
                A.wait_lg([('wf', 1, c, h, j)])
                for aa in range(2):
                    d = v(acc1(j,aa), 4)
                    A(f"v_mfma_f32_16x16x32_bf16 {d}, {a(xf(kk,aa),4)}, {v(wf(buf,j),4)}, {d if kk else 0}")
                    for _ in range(2):
                        if todo: t, tg = todo.pop(0); A(t, tag=tg)
                    if vq: t, tg = vq.pop(0); A(t, tag=tg)
            emit(todo); emit(vq)
            if c == 0 and h == 0: A("global_load_dword v56, v61, s[30:31]", tag='touch'); A("global_load_dword v56, v62, s[30:31]", tag='touch')
            if c == 2 and h == 1: touch_z1w(A)
            if (c, h) == (int(os.environ.get('WSPC', '4')), 1):
                for t, tg in prefetch_wsp_list(): A(t, tag=tg)
    ST(A, 3)
    svc.setup(); svc.base('A', 12288, L_RING)
    TMP = 232 - 8 - 0
    TMP = 176
    regs = [ACC1 + 2*p for p in range(28)]
    for q in range(0, 28, 4): gelu_pairs(A, regs[q:q+4], TMP, 32, 34, 36)
    SUM, M2, PUB = 192, 200, 208
    for aa in range(2):
        for rp in range(2):
            d = SUM + aa*4 + rp*2
            A(f"v_pk_add_f32 {v(d,2)}, {v(acc1(0,aa)+2*rp,2)}, {v(acc1(1,aa)+2*rp,2)}")
            for j in range(2, 7): A(f"v_pk_add_f32 {v(d,2)}, {v(d,2)}, {v(acc1(j,aa)+2*rp,2)}")
    def dpp16(rs):
        for sh in (8, 4, 2, 1):
            for r in rs: A(f"v_add_f32_dpp v{r}, v{r}, v{r} row_ror:{sh} row_mask:0xf bank_mask:0xf")
    dpp16(range(SUM, SUM+8))
    A(f"v_mov_b32 v38, {hexf(1.0/112)}"); A(f"v_mov_b32 v39, {hexf(1.0/112)}")
    for p in range(4): A(f"v_pk_mul_f32 {v(SUM+2*p,2)}, {v(SUM+2*p,2)}, {v(38,2)}")
    for aa in range(2):
        for rp in range(2):
            d = M2 + aa*4 + rp*2; mreg = SUM + aa*4 + rp*2
            for j in range(7):
                t = TMP + 2*(j & 1)
                A(f"v_pk_add_f32 {v(t,2)}, {v(acc1(j,aa)+2*rp,2)}, {v(mreg,2)} neg_lo:[0,1] neg_hi:[0,1]")
                if j == 0: A(f"v_pk_mul_f32 {v(d,2)}, {v(t,2)}, {v(t,2)}")
                else: A(f"v_pk_fma_f32 {v(d,2)}, {v(t,2)}, {v(t,2)}, {v(d,2)}")
    dpp16(range(M2, M2+8))
    A("v_and_b32 v16, 3, v13")
    for q in range(3): A(f"v_cmp_eq_u32 s[{26+2*q}:{27+2*q}], {q+1}, v16")
    for e, (base, odd) in enumerate(((SUM, 0), (M2, 0), (SUM, 1), (M2, 1))):
        A(f"v_mov_b32 v{PUB+e}, v{base+odd}")
        for q in range(3): A(f"v_cndmask_b32 v{PUB+e}, v{PUB+e}, v{base+2*(q+1)+odd}, s[{26+2*q}:{27+2*q}]")
    A(f"s_lshl_b32 s23, s{S_RB}, 3"); A(f"s_add_u32 s23, s23, s{S_CB}"); A("s_lshl_b32 s23, s23, 7")
    A("s_lshl_b32 s27, s3, 5"); A("s_add_u32 s23, s23, s27"); A("s_lshl_b32 s23, s23, 3")
    A(f"s_mov_b32 s27, {WS_LNP}"); srd_from(A, 16, S_WS, 27, 16*8*128*8)
    A("v_lshlrev_b32 v19, 6, v14"); A("v_lshl_add_u32 v19, v16, 4, v19")
    A("s_mov_b64 s[34:35], exec"); A("s_mov_b32 exec_lo, 0x000f000f"); A("s_mov_b32 exec_hi, 0x000f000f")
    A(f"buffer_store_dwordx4 {v(PUB,4)}, v19, s[16:19], s23 offen sc1", tag='lnp')
    A("s_mov_b64 exec, s[34:35]")
    A.bg_flush(); A.bg_every = 0
    tag_issue(A)
    ST(A, 4)
    A.wait_vm([('w', 2, c) for c in range(7)]); A("s_barrier"); ST(A, 'w2')
    for j in range(7): A(f"v_subrev_u32 v{24+j}, {L_RING}, v{24+j}")
    emit(reads_w(2, 0, 0, 0))
    for c in range(7):
        for h in range(2):
            kk = 2*c + h; buf = kk & 1
            nxt = (c, 1) if h == 0 else ((c+1, 0) if c < 6 else None)
            if kk in (0, 2, 4): svc.bg_dma([kk // 2], [('A', kk // 2)]); A.bg_every = 3
            if kk in (7, 9, 11):
                n = (kk - 7) // 2
                svc.wait_read([n], [('A', n)])
            if kk in (8, 10, 12):
                n = (kk - 8) // 2
                A.wait_lg(('Ar', n)); svc.bg_dma([n + 3], [('A', n)])
            if kk == 12:
                A(f"s_lshl_b32 s27, s{S_RB}, 7"); A(f"s_add_u32 s27, s27, {WS_F0}"); A("v_and_b32 v17, 7, v12"); A("v_lshl_add_u32 v17, v17, 3, s27")
                A(f"global_load_dwordx2 v[18:19], v17, s[{S_WS}:{S_WS+1}] sc1", tag='lnf')
            if c == 3 and h == 0:
                A.wait_vm('lnp'); tag_take(A, lambda x: L('z' + x)); A("s_barrier")
                A(f"s_lshl_b32 s27, s{S_RB}, 7"); A(f"s_lshl_b32 s28, s{S_CB}, 3"); A("s_add_u32 s27, s27, s28"); A(f"s_add_u32 s27, s27, {WS_F0}")
                signal(A, L, 'sigln', 27)
            todo = []
            if nxt:
                if nxt == (4, 0):
                    for j in range(7): A(f"v_add_u32 v{24+j}, 0x10000, v{24+j}")
                todo = reads_w(2, nxt[0], nxt[1], buf ^ 1)
            for j in range(7):
                A.wait_lg([('wf', 2, c, h, j)])
                for aa in range(2):
                    d = v(acc2(j,aa), 4)
                    A(f"v_mfma_f32_16x16x32_bf16 {d}, {v(wf(buf,j),4)}, {a(xf(kk,aa),4)}, {d if kk else 0}")
                    if todo: t, tg = todo.pop(0); A(t, tag=tg)
            emit(todo)
    ST(A, 5)
    A.bg_flush(); A.bg_every = 0
    A.wait_vm('lnf')
    A(f"v_xor_b32 v18, s{S_TAG}, v18"); A(f"v_xor_b32 v19, s{S_TAG+1}, v19"); A("v_or_b32 v18, v18, v19"); A("v_cmp_eq_u32 vcc, 0, v18")
    A("s_nop 1"); A("s_cmp_eq_u64 vcc, exec"); A(f"s_cbranch_scc1 {L('lnok')}")
    poll_wave(A, L, 'plnw', 17, reset=False)
    A.label(L('lnok'))
    A(f"s_lshl_b32 s23, s{S_RB}, 10"); A("s_lshl_b32 s27, s3, 5"); A("s_add_u32 s23, s23, s27"); A("s_lshl_b32 s23, s23, 3")
    A(f"s_mov_b32 s27, {WS_LNP}"); srd_from(A, 16, S_WS, 27, 16*8*128*8)
    A("v_and_b32 v18, 7, v12"); A("v_lshlrev_b32 v18, 10, v18"); A("v_lshl_add_u32 v18, v14, 6, v18")
    Q, MB = 208, 240 - 16
    Q = 200; MB = 216
    for q in range(4): A(f"buffer_load_dwordx4 {v(Q+4*q,4)}, v18, s[16:19], s23 offen offset:{16*q} sc1", tag='lnq')
    svc.wait_read([3, 4], [('A', 0), ('A', 1)]); svc.base('B', 28672, 0); A.wait_lg(); A("s_barrier")
    svc.bg_dma([13, 14], [('A', 0), ('A', 1)]); svc.bg_dma(list(range(6, 13)), [('B', k) for k in range(7)]); A.bg_every = 9
    ST(A, 7)
    TMP = 176
    regs = [ACC2 + 2*p for p in range(28)]
    for q in range(0, 28, 4):
        gelu_pairs(A, regs[q:q+4], TMP, 32, 34, 36)
    A("s_lshl_b32 s23, s72, 1"); A("s_mul_i32 s23, s23, 56"); A(f"s_mul_i32 s27, s{S_CB}, 7"); A("s_add_u32 s23, s23, s27"); A("s_lshl_b32 s23, s23, 9")
    A(f"s_add_u32 s23, s23, {WS_Z1F}"); srd_from(A, 16, S_WS, 23, 56*512 + 7*512)
    A("v_lshlrev_b32 v18, 3, v12")
    P = 192
    for aa in range(2):
        if aa: A(f"s_mov_b32 s23, {56*512}")
        for j in range(7):
            c = acc2(j,aa); p = P + 2*(j & 3)
            A(f"v_cvt_pk_bf16_f32 v{p}, v{c}, v{c+1}"); A(f"v_cvt_pk_bf16_f32 v{p+1}, v{c+2}, v{c+3}")
            A(f"buffer_store_dwordx2 {v(p,2)}, v18, s[16:19], {'s23' if aa else 0} offen offset:{j*512} sc1", tag='pubst')
    ST(A, 6)
    svc.wait_read([5], [('A', 2)]); A.wait_lg(('Ar', 5)); svc.bg_dma([15], [('A', 2)])
    A.wait_vm('lnq')
    ST(A, 'lnq')
    def red8(rs):
        for pat in ("quad_perm:[1,0,3,2]", "quad_perm:[2,3,0,1]", "row_half_mirror"):
            for r in rs: A(f"v_add_f32_dpp v{r}, v{r}, v{r} {pat} row_mask:0xf bank_mask:0xf")
    for q in range(8): A(f"v_mov_b32 v{MB+q}, v{Q+2*q}")
    red8(range(MB, MB+8))
    for q in range(8): A(f"v_mul_f32 v{MB+q}, 0.125, v{MB+q}")
    A(f"v_mov_b32 v38, {hexf(112.0)}")
    for q in range(8):
        A(f"v_sub_f32 v{Q+2*q}, v{Q+2*q}, v{MB+q}"); A(f"v_mul_f32 v{Q+2*q}, v{Q+2*q}, v{Q+2*q}")
        A(f"v_fma_f32 v{MB+8+q}, v{Q+2*q}, v38, v{Q+2*q+1}")
    red8(range(MB+8, MB+16))
    A(f"v_mov_b32 v38, {hexf(1.0/896)}"); A(f"v_mov_b32 v39, {hexf(1e-5)}")
    for q in range(8): A(f"v_fma_f32 v{MB+8+q}, v{MB+8+q}, v38, v39")
    for q in range(8): A(f"v_rsq_f32 v{MB+8+q}, v{MB+8+q}")
    for q in range(8): A(f"v_mul_f32 v{MB+q}, v{MB+q}, v{MB+8+q}")
    A(f"s_mul_i32 s23, s{S_CB}, {64*7168}"); A("s_mul_i32 s27, s72, 7168"); A("s_add_u32 s23, s23, s27")
    srd_from(A, 16, S_WS, 23, 7168)
    A("v_lshlrev_b32 v18, 4, v12"); A("v_add_u32 v19, 4096, v18")
    for j in range(7):
        p = Q + 4*(j & 3)
        for aa in range(2):
            c = acc1(j,aa)
            for rp in range(2):
                A(f"v_pk_fma_f32 {v(c+2*rp,2)}, {v(c+2*rp,2)}, {v(MB+8+aa*4+2*rp,2)}, {v(MB+aa*4+2*rp,2)} neg_lo:[0,0,1] neg_hi:[0,0,1]")
            A(f"v_cvt_pk_bf16_f32 v{p+2*aa}, v{c}, v{c+1}"); A(f"v_cvt_pk_bf16_f32 v{p+2*aa+1}, v{c+2}, v{c+3}")
        A(f"buffer_store_dwordx4 {v(p,4)}, v{18 if j < 4 else 19}, s[16:19], 0 offen offset:{(j%4)*1024} sc1", tag='pubst')
    A.bg_flush(); A.bg_every = 0
    ST(A, 'norm')
    if PROFILE == 'p3':
        A.raw("  s_waitcnt vmcnt(6)"); ST(A, 'st0'); A.raw("  s_waitcnt vmcnt(3)"); ST(A, 'st3')
    A.wait_vm('pubst'); ST(A, 'pubw'); A("s_barrier")
    A(f"s_lshl_b32 s27, s{S_CB}, 4"); A(f"s_add_u32 s27, s27, s{S_RB}"); A("s_lshl_b32 s27, s27, 3"); A(f"s_add_u32 s27, s27, {WS_F1}")
    signal(A, L, 'sigzd', 27)
    ST(A, 'sig')
    A.wait_vm(('Au', 15))
    for n, sl in [(13, ('A', 0)), (14, ('A', 1)), (15, ('A', 2))] + [(6 + k, ('B', k)) for k in range(7)]: svc.read(n, sl)
    A.wait_lg()
    ST(A, 8)

QSTG = 45056; QGW = 3*QSTG; QZR = QGW + 1024; QP = 400
def role_q(A, L):
    A("v_lshrrev_b32 v15, 3, v12"); A("v_and_b32 v16, 7, v12")
    A("v_and_b32 v17, 3, v15"); A("v_xor_b32 v17, v16, v17"); A("v_lshlrev_b32 v17, 4, v17")
    A(f"s_lshl_b32 s24, s{S_RB}, 7"); A("s_sub_u32 s24, s24, 16"); A("s_mul_i32 s25, s3, 5")
    for uu in range(5):
        A(f"s_add_u32 s26, s25, {uu}")
        A("s_lshl_b32 s27, s26, 3"); A("s_add_u32 s27, s27, s24")
        A("v_add_u32 v18, s27, v15"); A("v_max_i32 v18, 0, v18"); A("v_mul_u32_u24 v18, 896, v18")
        A("s_and_b32 s27, s26, 1"); A("s_lshl_b32 s27, s27, 6"); A("v_xor_b32 v19, s27, v17")
        A("s_cmp_ge_u32 s26, 18"); A(f"s_cselect_b32 s27, {OOB}, 0")
        A(f"v_add3_u32 v{1+uu}, v18, v19, s27")
        if uu in (1, 2, 3): A(f"v_subrev_u32 v{1+uu}, {uu*1024}, v{1+uu}")
    A("v_and_b32 v18, 2, v15"); A("v_xor_b32 v18, v16, v18"); A("v_mul_u32_u24 v19, 2688, v15")
    for uu in range(2):
        if uu: A("v_xor_b32 v18, 4, v18")
        A(f"v_lshl_add_u32 v{6+uu}, v18, 4, v19")
        if uu: A(f"v_add_u32 v{6+uu}, {8*2688-1024}, v{6+uu}")
        A("v_cmp_eq_u32 vcc, 7, v18"); A(f"v_mov_b32 v16, {OOB}"); A(f"v_cndmask_b32 v{6+uu}, v{6+uu}, v16, vcc")
    A.wait_lg()
    A(f"s_sub_u32 s8, s{S_X}, 4096"); A(f"s_subb_u32 s9, s{S_X+1}, 0"); A("s_and_b32 s9, s9, 0xffff"); A(f"s_mov_b32 s10, {S*896 + 4096}"); A("s_mov_b32 s11, 0x20000")
    for uu in range(5): A(f"v_add_u32 v{1+uu}, 4096, v{1+uu}")
    srd_from(A, 12, S_WQKV, None, 448*2688)
    A(f"s_mul_i32 s24, s3, {16*2688}"); A(f"s_mul_i32 s25, s{S_CB}, 112"); A("s_add_u32 s24, s24, s25")
    A("s_mul_i32 s25, s3, 5120"); A("s_lshl_b32 s26, s3, 11"); A("s_add_u32 s26, s26, 20480")
    def dma(c):
        st = (c % 3)*QSTG; out = []
        for seg in range(3):
            out += [(f"s_add_u32 m0, s26, {st + seg*8192}", None), (f"s_add_u32 s23, s24, {64*c*2688 + seg*896}", None)]
            out += [(f"buffer_load_dwordx4 v{6+uu}, s[12:15], s23 offen offset:{uu*1024} lds", ('c', c)) for uu in range(2)]
        out += [(f"s_add_u32 m0, s25, {st}", None), (f"s_mov_b32 s23, {c*128}", None)]
        out += [(f"buffer_load_dwordx4 v{1+uu}, s[8:11], s23 offen offset:{uu*1024} lds", ('c', c)) for uu in range(4)]
        out += [(f"s_add_u32 m0, s25, {st + 4096}", None), (f"buffer_load_dwordx4 v5, s[8:11], s23 offen lds", ('c', c))]
        return out
    def emit(lst):
        for t, tg in lst: A(t, tag=tg)
    ST(A, 'rsetup')
    load_gw_tables(A, QGW, QZR, ('c', 0))
    for c in range(2): emit(dma(c))
    ST(A, 1)
    A("v_lshrrev_b32 v15, 3, v13"); A("v_lshlrev_b32 v15, 2, v15"); A("v_and_b32 v16, 3, v13"); A("v_or_b32 v15, v15, v16")
    A("v_xor_b32 v15, v15, v14"); A("v_lshlrev_b32 v15, 4, v15"); A("v_lshl_add_u32 v20, v13, 7, v15"); A("v_xor_b32 v21, 64, v20")
    A("s_lshl_b32 s23, s3, 12"); A("s_add_u32 s23, s23, 2048"); A("v_add_u32 v22, s23, v20"); A("v_add_u32 v23, s23, v21")
    A("s_lshr_b32 s23, s3, 1"); A("s_mul_i32 s23, s23, 56"); A("s_and_b32 s33, s3, 1"); A("s_lshl_b32 s34, s33, 5"); A("s_add_u32 s23, s23, s34")
    A("v_and_b32 v15, 3, v13"); A("v_lshlrev_b32 v16, 3, v15"); A("v_add_u32 v16, s23, v16")
    A("v_cmp_eq_u32 vcc, 3, v15"); A("s_cmp_eq_u32 s33, 1"); A("s_cselect_b64 s[34:35], vcc, 0")
    A("v_mov_b32 v17, 112"); A("v_cndmask_b32 v16, v16, v17, s[34:35]")
    A("v_lshrrev_b32 v17, 3, v13"); A("v_lshlrev_b32 v17, 1, v17"); A("v_and_b32 v18, 1, v14"); A("v_lshl_or_b32 v17, v18, 2, v17")
    A("v_lshrrev_b32 v18, 4, v16"); A("v_xor_b32 v18, v18, v17"); A("v_and_b32 v16, 8, v16"); A("v_lshl_or_b32 v16, v18, 4, v16")
    A("v_lshrrev_b32 v17, 2, v13"); A("v_lshl_add_u32 v17, v14, 3, v17"); A("v_lshl_add_u32 v24, v17, 7, v16"); A("v_add_u32 v24, 20480, v24")
    gw_addr(A, 25, QGW, QZR)
    XB = 256; xf = lambda buf, t: XB + buf*44 + t*4
    WB = 256 + 88; wf = lambda buf, t: WB + buf*16 + t*4
    ACC = 64
    def acc(t, RT):
        if t == 0: return ACC + (RT-1)*4
        if t == 3: return ACC + (26 + RT)*4
        return ACC + (8 + (t-1)*9 + RT)*4
    def reads(c, h, buf):
        out = []
        for t in range(3):
            for sec in range(2):
                out.append((f"ds_read_b64_tr_b16 {u(wf(buf,t)+2*sec,2)}, v24 offset:{t*8192 + h*4096 + sec*512}", ('w', c, h)))
        out.append((f"ds_read_b128 {u(wf(buf,3),4)}, v25 offset:{(2*c+h)*64}", ('w', c, h)))
        for RT in range(9): out.append((f"ds_read_b128 {u(xf(buf,RT),4)}, v{20+h} offset:{RT*2048}", ('x', c, h, RT)))
        for q in range(2): out.append((f"ds_read_b128 {u(xf(buf,9+q),4)}, v{22+h} offset:{q*2048}", ('x', c, h, 9+q)))
        return out
    def bump(c):
        d = QSTG if (c % 3) < 2 else -2*QSTG
        for r in (20, 21, 22, 23, 24):
            if d > 0: A(f"v_add_u32 v{r}, {d}, v{r}")
            else: A(f"v_subrev_u32 v{r}, {-d}, v{r}")
    A.wait_vm(('c', 0)); A("s_barrier")
    ST(A, 2)
    for t, tg in reads(0, 0, 0): A(t, tag=tg)
    for c in range(7):
        for h in range(2):
            kk = 2*c + h; buf = kk & 1
            todo = []; vq = []
            if h == 0:
                todo = reads(c, 1, buf ^ 1)
                if c == 0: vq = dma(2)
            else:
                if c < 6: A.wait_vm(('c', c+1))
                A.wait_lg(); A("s_barrier"); ST(A, ('g', c))
                if c + 3 <= 6: vq = dma(c+3)
                if c < 6:
                    bump(c); todo = reads(c+1, 0, buf ^ 1)
            order = [(1,0),(2,0)] + [(t, RT) for RT in range(1, 9) for t in range(3)] + [(3,0),(3,1)]
            n = 0
            for (t, RT) in order:
                xt = RT if t < 3 else 9 + RT
                A.wait_lg([('w', c, h), ('x', c, h, xt)])
                d = v(acc(t, RT), 4)
                A(f"v_mfma_f32_16x16x32_bf16 {d}, {u(wf(buf,t),4)}, {u(xf(buf,xt),4)}, {d if kk else 0}")
                n += 1
                if todo: tt, tg = todo.pop(0); A(tt, tag=tg)
                if vq: tt, tg = vq.pop(0); A(tt, tag=tg)
            while todo: tt, tg = todo.pop(0); A(tt, tag=tg)
            emit(vq)
            if c == 0 and h == 0: A("global_load_dword v56, v61, s[30:31]", tag='touch'); A("global_load_dword v56, v62, s[30:31]", tag='touch')
            if c == 4 and h == 1:
                for t, tg in prefetch_wsp_list(): A(t, tag=tg)
                touch_small(A)
    ST(A, 3)
    tag_issue(A)
    svc = AService(A); svc.setup(); svc.base('A', 24576, L_AST); svc.base('B', 14336, 0)
    svc.bg_dma(list(range(6)), [('A', k) for k in range(6)]); A.bg_every = 6
    A(f"v_mul_u32_u24 v15, {QP}, v13")
    A("s_lshr_b32 s23, s3, 1"); A("s_lshl_b32 s23, s23, 6"); A("s_and_b32 s33, s3, 1"); A("s_lshl_b32 s33, s33, 5"); A("s_add_u32 s23, s23, s33")
    A("v_lshl_add_u32 v15, v14, 3, v15"); A("v_add_u32 v26, s23, v15")
    P = 176; n = 0
    for t in range(3):
        for RT in range(0 if t else 1, 9):
            c = acc(t, RT); p = P + 2*(n & 7); n += 1
            A(f"v_cvt_pk_bf16_f32 v{p}, v{c}, v{c+1}"); A(f"v_cvt_pk_bf16_f32 v{p+1}, v{c+2}, v{c+3}")
            A(f"ds_write_b64 v26, {v(p,2)} offset:{RT*16*QP + t*128}", tag='qkv')
    for q in range(2):
        c = acc(3, q)
        A(f"v_mul_f32 v{c}, {hexf(-1.4426950408889634)}, v{c}")
        A(f"v_exp_f32 v{c}, v{c}"); A(f"v_add_f32 v{c}, 1.0, v{c}"); A(f"v_rcp_f32 v{c}, v{c}")
    A("s_lshl_b32 s23, s3, 7"); A(f"s_add_u32 s23, s23, {L_GL}")
    A("v_lshlrev_b32 v15, 2, v13"); A("v_add_u32 v16, s23, v15")
    A("s_mov_b64 s[34:35], exec"); A("s_mov_b64 exec, 0xffff")
    for q in range(2): A(f"ds_write_b32 v16, v{acc(3,q)} offset:{q*64}", tag='qkv')
    A(f"s_mov_b32 s23, {WS_GATE}"); srd_from(A, 16, S_WS, 23, S*4)
    A(f"s_cmp_eq_u32 s{S_CB}, 0"); A("s_cselect_b32 s18, s18, 0")
    A(f"s_lshl_b32 s23, s{S_RB}, 9"); A("s_lshl_b32 s33, s3, 7"); A("s_add_u32 s23, s23, s33")
    for q in range(2): A(f"buffer_store_dword v{acc(3,q)}, v15, s[16:19], s23 offen offset:{q*64} sc1", tag='pubst')
    A("s_mov_b64 exec, s[34:35]")
    A.wait_lg(); A("s_barrier")
    ST(A, 4)
    A("s_lshr_b32 s33, s3, 1"); A("s_and_b32 s34, s3, 1"); A("s_lshl_b32 s35, s33, 6")
    A(f"s_mul_i32 s32, s34, {64*QP}"); A("s_add_u32 s35, s35, s32")
    A("v_lshlrev_b32 v15, 1, v13")
    A(f"v_mul_u32_u24 v16, {QP}, v15"); A("v_lshl_add_u32 v16, v14, 4, v16"); A("v_add_u32 v16, s35, v16")
    A(f"v_add_u32 v20, {16*QP}, v16"); A(f"v_add_u32 v21, 128, v16")
    A("v_lshlrev_b32 v17, 2, v15"); A("s_lshl_b32 s32, s34, 8"); A(f"s_add_u32 s32, s32, {L_GL}"); A("v_add_u32 v22, s32, v17")
    A("v_lshrrev_b32 v17, 2, v13"); A("v_and_b32 v18, 3, v13"); A("v_lshlrev_b32 v18, 3, v18"); A("v_add_u32 v18, s35, v18"); A("v_add_u32 v18, 256, v18")
    for T in range(2):
        if T == 0: A("v_lshl_add_u32 v19, v14, 2, v17")
        else: A("v_and_b32 v19, 1, v14"); A("v_lshl_add_u32 v19, v19, 2, v17"); A("v_add_u32 v19, 16, v19")
        A("v_lshlrev_b32 v19, 1, v19"); A(f"v_mul_u32_u24 v19, {QP}, v19"); A(f"v_add_u32 v{23+T}, v19, v18")
    UB = 64
    rowoff = lambda b: (32*(b >> 1) + (b & 1))
    Q_ = lambda b: UB + b*24; K_ = lambda b, T: UB + b*24 + 4 + 4*T; V_ = lambda b, mt: UB + b*24 + 12 + 4*mt; G_ = lambda b: UB + b*24 + 20
    for b in range(4):
        A(f"ds_read_b128 {v(Q_(b),4)}, v20 offset:{rowoff(b)*QP}", tag=('u', b))
        for T in range(2): A(f"ds_read_b128 {v(K_(b,T),4)}, v21 offset:{(rowoff(b)+32*T)*QP}", tag=('u', b))
    for b in range(4):
        for mt in range(2):
            for T in range(2): A(f"ds_read_b64_tr_b16 {v(V_(b,mt)+2*T,2)}, v{23+T} offset:{rowoff(b)*QP + mt*32}", tag=('vv', b))
        A(f"ds_read_b32 v{G_(b)}, v22 offset:{rowoff(b)*4}", tag=('vv', b))
    SC = 160; sc = lambda b, T: SC + b*8 + 4*T
    for b in range(4):
        A.wait_lg(('u', b))
        for T in range(2): A(f"v_mfma_f32_16x16x32_bf16 {v(sc(b,T),4)}, {v(K_(b,T),4)}, {v(Q_(b),4)}, 0")
    A.wait_lg(); A("s_barrier")
    A.bg_flush()
    svc.wait_read(list(range(6)), [('A', k) for k in range(6)])
    wf_issue(A, [0, 1, 2])
    A.wait_lg()
    svc.bg_dma([6, 7, 8], [('B', k) for k in range(3)]); svc.bg_dma(list(range(9, 15)), [('A', k) for k in range(6)]); A.bg_every = 6
    cs = (28 ** -0.5) * 1.4426950408889634
    A(f"v_mov_b32 v26, {hexf(cs)}"); A(f"v_mov_b32 v27, {hexf(cs)}"); A(f"v_mov_b32 v28, {hexf(-1e30)}")
    for b in range(4):
        for q in range(4): A(f"v_pk_mul_f32 {v(sc(b,0)+2*q,2)}, {v(sc(b,0)+2*q,2)}, {v(26,2)}")
    A("v_lshlrev_b32 v15, 2, v14"); A("v_sub_u32 v15, v13, v15"); A("v_add_u32 v15, 8, v15")
    A("s_and_b32 s34, s3, 1"); A(f"s_or_b32 s34, s34, s{S_RB}")
    A("v_min_u32 v16, 7, v13"); A("s_cmp_eq_u32 s34, 0"); A("s_cselect_b64 s[34:35], -1, 0")
    A("v_mov_b32 v17, 7"); A("v_cndmask_b32 v16, v17, v16, s[34:35]")
    MS = [24, 26, 28, 30, 64, 66, 32, 34]
    for (lim, bs) in ((17, (2, 3)), (16, (0, 1))):
        for q in range(8):
            A(f"v_subrev_u32 v18, {16*(q >> 2) + (q & 3)}, v15")
            A(f"v_cmp_le_u32 s[{MS[q]}:{MS[q]+1}], v18, v{lim}")
        for b in bs:
            for q in range(8):
                A(f"v_cndmask_b32 v{sc(b,0)+q}, v28, v{sc(b,0)+q}, s[{MS[q]}:{MS[q]+1}]")
    MX = 192; M2 = 196
    def xreduce(op):
        for swap in ("v_permlane16_swap_b32", "v_permlane32_swap_b32"):
            for b in range(4): A(f"v_mov_b32 v{M2+b}, v{MX+b}")
            for b in range(4): A(f"{swap} v{MX+b}, v{M2+b}")
            for b in range(4): A(f"{op} v{MX+b}, v{MX+b}, v{M2+b}")
    for b in range(4): s0 = sc(b,0); A(f"v_max3_f32 v{MX+b}, v{s0}, v{s0+1}, v{s0+2}")
    for b in range(4): s0 = sc(b,0); A(f"v_max3_f32 v{MX+b}, v{MX+b}, v{s0+3}, v{s0+4}")
    for b in range(4): s0 = sc(b,0); A(f"v_max3_f32 v{MX+b}, v{MX+b}, v{s0+5}, v{s0+6}")
    for b in range(4): s0 = sc(b,0); A(f"v_max_f32 v{MX+b}, v{MX+b}, v{s0+7}")
    xreduce("v_max_f32")
    for b in range(4):
        for q in range(8): A(f"v_sub_f32 v{sc(b,0)+q}, v{sc(b,0)+q}, v{MX+b}")
    for b in range(4):
        for q in range(8): A(f"v_exp_f32 v{sc(b,0)+q}, v{sc(b,0)+q}")

    for b in range(4): s0 = sc(b,0); A(f"v_add_f32 v{MX+b}, v{s0}, v{s0+1}")
    for q in range(2, 8):
        for b in range(4): A(f"v_add_f32 v{MX+b}, v{MX+b}, v{sc(b,0)+q}")
    xreduce("v_add_f32")
    for b in range(4): A(f"v_rcp_f32 v{MX+b}, v{MX+b}")
    PB = 200
    for b in range(4):
        for q in range(8): A(f"v_mul_f32 v{sc(b,0)+q}, v{sc(b,0)+q}, v{MX+b}")
    for b in range(4):
        for q in range(4): A(f"v_cvt_pk_bf16_f32 v{PB+4*b+q}, v{sc(b,0)+2*q}, v{sc(b,0)+2*q+1}")
    OB = 160
    for b in range(4):
        for mt in range(2): A(f"v_mfma_f32_16x16x32_bf16 {v(OB+8*b+4*mt,4)}, {v(V_(b,mt),4)}, {v(PB+4*b,4)}, 0")
    ST(A, 5)
    wf_store(A, [0, 1, 2])
    A("v_and_b32 v15, 1, v13"); A("v_lshlrev_b32 v15, 1, v15"); A("v_bfe_u32 v16, v13, 1, 1"); A("v_or_b32 v15, v15, v16")
    A("v_and_b32 v16, 12, v13"); A("v_or_b32 v15, v15, v16"); A("v_lshl_add_u32 v15, v14, 4, v15"); A("v_lshlrev_b32 v29, 4, v15")
    A(f"s_lshl_b32 s23, s{S_RB}, 1"); A("s_and_b32 s33, s3, 1"); A("s_add_u32 s23, s23, s33"); A("s_mul_i32 s23, s23, 44")
    A(f"s_lshl_b32 s33, s{S_CB}, 1"); A("s_add_u32 s23, s23, s33"); A("s_lshr_b32 s33, s3, 1"); A("s_add_u32 s23, s23, s33")
    A("s_lshl_b32 s23, s23, 12"); A(f"s_add_u32 s23, s23, {WS_AF}")
    srd_from(A, 16, S_WS, 23, 4096)
    A("v_and_b32 v15, 2, v13"); A("v_cmp_eq_u32 vcc, 0, v15"); A("v_cmp_ne_u32 s[24:25], 0, v15")
    for b in range(4):
        o = OB + 8*b
        for q in range(8): A(f"v_mul_f32 v{o+q}, v{o+q}, v{G_(b)}")
        for q in range(4): A(f"v_cvt_pk_bf16_f32 v{PB+4*b+q}, v{o+2*q}, v{o+2*q+1}")
    for bb in range(2):
        X0 = PB + 8*bb; X1 = X0 + 4; Y = 216 + 8*bb
        for q in range(4):
            A(f"v_mov_b32_dpp v{Y+q}, v{X1+q} quad_perm:[2,3,0,1] row_mask:0xf bank_mask:0xf")
            A(f"v_mov_b32_dpp v{Y+4+q}, v{X0+q} quad_perm:[2,3,0,1] row_mask:0xf bank_mask:0xf")
        for q in range(4):
            A(f"v_cndmask_b32 v{Y+q}, v{Y+q}, v{X0+q}, vcc")
            A(f"v_cndmask_b32 v{Y+4+q}, v{Y+4+q}, v{X1+q}, s[24:25]")
        for aa in range(2):
            A(f"buffer_store_dwordx4 {v(Y+4*aa,4)}, v29, s[16:19], 0 offen offset:{(2*bb+aa)*1024} sc1", tag='pubst')
    A.bg_flush(); A.bg_every = 0
    ST(A, 6)
    A.wait_vm('pubst'); tag_take(A, lambda x: L('q' + x)); A("s_barrier")
    A(f"s_lshl_b32 s27, s{S_RB}, 3"); A(f"s_add_u32 s27, s27, s{S_CB}"); A("s_add_u32 s27, s27, 128"); A("s_lshl_b32 s27, s27, 3"); A(f"s_add_u32 s27, s27, {WS_F1}")
    signal(A, L, 'sigqd', 27)
    ST(A, 7)
    svc.wait_read([6, 7, 8], [('B', k) for k in range(3)]); A.wait_lg(); svc.emit_dma([15], [('B', 0)])
    svc.wait_read(list(range(9, 15)), [('A', k) for k in range(6)])
    svc.wait_read([15], [('B', 0)])
    A.wait_lg()
    ST(A, 8)

def rot7(s_):
    if s_ == 6: return [f"s_add_u32 s30, s29, {3*4096}"]
    return [f"s_add_u32 s30, s{S_CB}, {s_}", "s_cmp_ge_u32 s30, 6", "s_cselect_b32 s31, 6, 0", "s_sub_u32 s30, s30, s31",
            "s_cmp_ge_u32 s30, 6", "s_cselect_b32 s31, 6, 0", "s_sub_u32 s30, s30, s31",
            "s_cmp_ge_u32 s30, 3", "s_addc_u32 s30, s30, 0", "s_lshl_b32 s30, s30, 12", "s_add_u32 s30, s30, s29"]

def poll_p2(A, L):
    tag = 'pa'
    A("s_cmp_lg_u32 s3, 0"); A(f"s_cbranch_scc1 {L(tag+'_done')}")
    A.raw("  s_mov_b32 s33, 0"); A.raw(f"  s_lshl_b32 s30, s{S_CB}, 2"); A.raw("  s_lshl_b64 s[30:31], 15, s30")
    A.label(L(tag+'_loop'))
    for q2 in range(2): A.raw(f"  global_load_dwordx4 {v(16+4*q2,4)}, v2, s[{S_WS}:{S_WS+1}] offset:{16*q2} sc1")
    A.raw("  s_add_u32 s33, s33, 1"); A.raw("  s_waitcnt vmcnt(0)")
    for q in range(8): A.raw(f"  v_xor_b32 v{16+q}, s{S_TAG + (q & 1)}, v{16+q}")
    for t in ("v_or3_b32 v16, v16, v17, v18", "v_or3_b32 v19, v19, v20, v21", "v_or3_b32 v16, v16, v22, v23", "v_or_b32 v16, v16, v19", "v_cmp_eq_u32 vcc, 0, v16"): A.raw("  " + t)
    A.raw("  s_nop 1")
    A.raw("  s_and_b64 s[34:35], vcc, s[30:31]"); A.raw("  s_cmp_eq_u64 s[34:35], s[30:31]")
    A.raw(f"  s_cbranch_scc1 {L(tag+'_out')}")
    A.raw(f"  s_sleep {SLEEP}"); A.raw("  s_cmp_lt_u32 s33, 0x20000"); A.raw(f"  s_cbranch_scc1 {L(tag+'_loop')}")
    A.label(L(tag+'_out'))
    A.raw("  s_cmp_eq_u64 vcc, exec"); A.raw("  s_cselect_b32 s30, 1, 0"); A.raw("  v_mov_b32 v16, s30"); A.raw("  ds_write_b32 v9, v16"); A.raw("  s_waitcnt lgkmcnt(0)")
    A.label(L(tag+'_done'))
    A("s_barrier")

def phase2(A, L):
    ACC, BR = 32, 144
    acc = lambda j, tau: ACC + (j*4+tau)*4
    bfrag = lambda kk, j: BR + (kk % 4)*28 + j*4
    afrag = lambda kk, tau: ((kk >> 1)*8 + (kk & 1)*4 + tau)*4
    A("v_lshlrev_b32 v3, 4, v12")
    def epi_addr():
        A(f"s_lshl_b32 s30, s{S_RB2}, 2"); A("s_add_u32 s30, s30, s3")
        A("s_mul_i32 s31, s30, 56"); A(f"s_mul_i32 s32, s{S_CB}, 7"); A("s_add_u32 s31, s31, s32"); A("s_lshl_b32 s31, s31, 9"); A(f"s_add_u32 s31, s31, {WS_Z1F}")
        srd_from(A, 64, S_WS, 31, 7*512)
        A("v_lshlrev_b32 v10, 3, v12")
        A(f"s_lshl_b32 s31, s{S_RB2}, 6"); A("s_lshr_b32 s32, s3, 1"); A("s_lshl_b32 s32, s32, 5"); A("s_add_u32 s31, s31, s32")
        A("s_and_b32 s32, s3, 1"); A("s_lshl_b32 s32, s32, 2"); A("s_add_u32 s31, s31, s32")
        A("v_lshrrev_b32 v11, 2, v13"); A("v_lshlrev_b32 v11, 3, v11"); A("v_and_b32 v1, 3, v13"); A("v_add_u32 v11, v11, v1"); A("v_add_u32 v11, s31, v11")
        A("v_lshlrev_b32 v15, 2, v11"); A(f"v_add_u32 v15, {WS_GATE}, v15"); A("v_lshlrev_b32 v11, 1, v11")
    def epi_list():
        out = [(f"buffer_load_dwordx2 {v(16+2*j,2)}, v10, s[64:67], 0 offen offset:{j*512} sc1", 'epi') for j in range(7)]
        out += [(f"global_load_ushort v30, v11, s[{S_BSP}:{S_BSP+1}]", 'epi'), (f"global_load_dword v31, v15, s[{S_WS}:{S_WS+1}] sc1", 'epi')]
        return out
    A(f"s_mul_i32 s23, s{S_CB}, {64*7168}"); srd_from(A, 12, S_WS, 23, 64*7168)
    A(f"s_mul_i32 s26, s3, {16*7168}")
    A("v_add_u32 v4, 4096, v3")
    A(f"s_mul_i32 s23, s{S_CB}, {44*4096}"); A(f"s_add_u32 s23, s23, {WS_WF}"); srd_from(A, 8, S_WS, 23, 44*4096)
    A(f"s_cmp_eq_u32 s{S_CB}, 7"); A("s_cselect_b32 s10, 0, s10")
    A(f"s_mul_i32 s23, s{S_RB2}, {44*4096}"); A(f"s_add_u32 s23, s23, {WS_AF}"); srd_from(A, 16, S_WS, 23, 44*4096)
    for tau in range(4):
        A(f"s_xor_b32 s24, s3, {tau}"); A("s_lshl_b32 s24, s24, 10"); A(f"v_add_u32 v{5+tau}, s24, v3")
    A("s_lshl_b32 s28, s3, 14")
    A(f"s_mul_i32 s29, s3, {7*4096}"); A(f"s_add_u32 s29, s29, {16*4096}")
    A(f"s_and_b32 s25, s{S_RB2}, 7"); A("s_lshl_b32 s25, s25, 1")
    epi_addr()
    A(f"s_lshl_b32 s27, s{S_CB}, 7"); A(f"s_add_u32 s27, s27, {WS_F1}"); A("v_lshl_add_u32 v17, v12, 3, s27")
    A(f"s_mov_b32 s27, {WS_F1 + 1024}"); A("v_lshl_add_u32 v2, v12, 4, s27")
    A.wait_lg()
    poll(A, L, 'pa', 17, 16)
    ST(A, 10)
    def soffB(kk):
        return [f"s_add_u32 s27, s25, {kk}", "s_and_b32 s27, s27, 15", "s_mul_i32 s27, s27, 7168", "s_add_u32 s27, s27, s26"]
    def issueB(kk, js):
        for j in js:
            if j == js[0]:
                for t in soffB(kk): A(t)
            A(f"buffer_load_dwordx4 {v(bfrag(kk,j),4)}, v{3 if j < 4 else 4}, s[12:15], s27 offen offset:{(j % 4)*1024} sc1", tag=('B', kk))
    for kk in range(2): issueB(kk, list(range(7)))
    A(f"global_load_dwordx4 v[16:19], v2, s[{S_WS}:{S_WS+1}] sc1", tag='fl')
    def wlist(kind):
        out = []
        if kind == 'Wo':
            for s_ in range(4):
                out.append((f"s_add_u32 s30, s28, {s_*4096}", None))
                out += [(f"buffer_load_dwordx4 {a((s_*4+uu)*4,4)}, v3, s[8:11], s30 offen offset:{uu*1024} sc1", ('Wo', s_)) for uu in range(4)]
        if kind == 'Wh':
            for s_ in range(7):
                out += [(t, None) for t in rot7(s_)]
                out += [(f"buffer_load_dwordx4 {a(64+(s_*4+uu)*4,4)}, v3, s[8:11], s30 offen offset:{uu*1024} sc1", ('Wh', s_)) for uu in range(4)]
        if kind == 'Ao':
            for s_ in range(4):
                out.append((f"s_add_u32 s32, s28, {s_*4096}", None))
                out += [(f"buffer_load_dwordx4 {a(176+(s_*4+tau)*4,4)}, v{5+tau}, s[16:19], s32 offen sc1", ('Ao', s_)) for tau in range(4)]
        return out
    for kk in range(16):
        A.wait_vm(('B', kk)); ST(A, ('kk', kk))
        pend = [(kk+3, j) for j in range(7)] if kk + 3 < 16 else []
        if kk == 0: pend = [(2, j) for j in range(7)] + pend
        m = 0
        if kk == 12:
            def check():
                return [f"v_xor_b32 v{16+q}, s{S_TAG + (q & 1)}, v{16+q}" for q in range(4)] + ["v_or3_b32 v16, v16, v17, v18", "v_or_b32 v16, v16, v19", "v_cmp_eq_u32 vcc, 0, v16"]
            A.wait_vm('fl')
            for t in check(): A(t)
            A("s_nop 1"); A("s_cmp_eq_u64 vcc, exec"); A(f"s_cbranch_scc1 {L('allok')}")
            A.raw("  s_mov_b32 s33, 0")
            A.raw(f"{L('allloop')}:")
            A.raw(f"  global_load_dwordx4 v[16:19], v2, s[{S_WS}:{S_WS+1}] sc1")
            A.raw("  s_add_u32 s33, s33, 1"); A.raw("  s_waitcnt vmcnt(0)")
            for t in check(): A.raw("  " + t)
            A.raw("  s_nop 1"); A.raw("  s_cmp_eq_u64 vcc, exec"); A.raw(f"  s_cbranch_scc1 {L('allok')}")
            A.raw(f"  s_sleep {SLEEP}"); A.raw("  s_cmp_lt_u32 s33, 0x20000"); A.raw(f"  s_cbranch_scc1 {L('allloop')}")
            A.label(L('allok'))
        if kk == 13:
            A.bg += epi_list() + wlist('Wo')[:15]; A.bg_every = 4
        for j in range(7):
            for tau in range(4):
                c = v(acc(j,tau),4)
                A(f"v_mfma_f32_16x16x32_bf16 {c}, {v(bfrag(kk,j),4)}, {a(afrag(kk,tau),4)}, {c if kk else 0}")
                m += 1
                if pend and (m % 4 == 1 or (kk == 0 and m % 2 == 1)):
                    k3, jj = pend.pop(0)
                    if jj == 0:
                        for t in soffB(k3): A(t)
                    A(f"buffer_load_dwordx4 {v(bfrag(k3,jj),4)}, v{3 if jj < 4 else 4}, s[12:15], s27 offen offset:{(jj % 4)*1024} sc1", tag=('B', k3))
        A.check_vm()
    A.bg_flush()
    rest = wlist('Wo')[15:] + wlist('Ao') + wlist('Wh')
    nA = len(wlist('Wo')[15:]) + 10
    A.bg += rest[:nA]; bg_late = rest[nA:]; A.bg_every = 7; A.bg_classes = ('valu', 'ds')
    ST(A, 11)
    A("s_mul_i32 s23, s3, 21504"); A("v_add_u32 v9, s23, v3")
    for tau in (1,2,3):
        A(f"s_xor_b32 s24, s3, {tau}"); A("s_mul_i32 s24, s24, 21504"); A(f"s_add_u32 s24, s24, {(tau-1)*7168}"); A(f"v_add_u32 v{(10,11,15)[tau-1]}, s24, v3")
    for tau in (1,2,3):
        for j in range(7): A(f"ds_write_b128 v9, {v(acc(j,tau),4)} offset:{(tau-1)*7168+j*1024}", tag='w')
    A.wait_lg(); ST(A, 'red_w'); A("s_barrier"); ST(A, 'red_b')
    T0 = 144
    for tau in (1,2,3):
        for j in range(7): A(f"ds_read_b128 {v(T0+((tau-1)*7+j)*4,4)}, v{(10,11,15)[tau-1]} offset:{j*1024}", tag=('r',tau))
    for tau in (1,2,3):
        A.wait_lg(('r',tau))
        for j in range(7):
            c = acc(j,0); t = T0+((tau-1)*7+j)*4
            A(f"v_pk_add_f32 {v(c,2)}, {v(c,2)}, {v(t,2)}"); A(f"v_pk_add_f32 {v(c+2,2)}, {v(c+2,2)}, {v(t+2,2)}")
    A.bg_flush(); A.bg_every = 0
    ST(A, 'red_r')
    A.wait_vm('epi')
    A("v_lshlrev_b32 v30, 16, v30"); A("v_sub_f32 v31, 1.0, v31")
    H = 144
    for j in range(7):
        c = acc(j,0)
        for r in range(4):
            z = 16 + 2*j + (r >> 1); t = 1 + (r & 1)
            if r & 1: A(f"v_and_b32 v{t}, 0xffff0000, v{z}")
            else: A(f"v_lshlrev_b32 v{t}, 16, v{z}")
            A(f"v_add_f32 v{c+r}, v{c+r}, v30")
            A(f"v_mul_f32 v{t}, v{t}, v31")
            A(f"v_mul_f32 v{c+r}, v{c+r}, v{t}")
        A(f"v_cvt_pk_bf16_f32 v{H+2*j}, v{c}, v{c+1}"); A(f"v_cvt_pk_bf16_f32 v{H+2*j+1}, v{c+2}, v{c+3}")
    ST(A, 'hcomp')
    A.bg_classes = ('valu', 'mfma')
    A.wait_vm(('Wo', 2))
    A("v_lshlrev_b32 v2, 3, v12")
    A(f"s_mul_i32 s24, s{S_CB}, 7"); A("s_lshr_b32 s33, s24, 1"); A("s_add_u32 s33, s33, 16"); A("s_lshl_b32 s33, s33, 12")
    A("s_lshl_b32 s23, s3, 10"); A("s_add_u32 s33, s33, s23")
    A("s_and_b32 s24, s24, 1"); A("s_cmp_eq_u32 s24, 0"); A(f"s_cbranch_scc0 {L('odd')}")
    vm0 = list(A.vm)
    for p in range(3):
        A(f"buffer_store_dwordx4 {v(H+4*p,4)}, v3, s[16:19], s33 offen sc1", tag='hst'); A("s_add_u32 s33, s33, 4096")
    A(f"buffer_store_dwordx2 {v(H+12,2)}, v2, s[16:19], s33 offen sc1", tag='hst')
    A(f"s_branch {L('hfin')}")
    A.label(L('odd')); A.vm = list(vm0)
    A(f"buffer_store_dwordx2 {v(H,2)}, v2, s[16:19], s33 offen offset:512 sc1", tag='hst')
    for p in range(3):
        A("s_add_u32 s33, s33, 4096"); A(f"buffer_store_dwordx4 {v(H+2+4*p,4)}, v3, s[16:19], s33 offen sc1", tag='hst')
    A.label(L('hfin'))
    ST(A, 12)
    for t, tg in bg_late[:10]: A(t, tag=tg)
    return bg_late[10:]

def phase3(A, L, late):
    ACC = 32; acc = lambda uu, tau: ACC + (uu*4+tau)*4
    HA = 96
    A.wait_vm('hst'); ST(A, 'hack'); A("s_barrier")
    A(f"s_lshl_b32 s27, s{S_RB2}, 7"); A(f"s_lshl_b32 s26, s{S_CB}, 3"); A("s_add_u32 s27, s27, s26"); A(f"s_add_u32 s27, s27, {WS_F2}")
    signal(A, L, 'sighd', 27)
    A(f"s_cmp_eq_u32 s{S_CB}, 7"); A(f"s_cbranch_scc1 {L('fin')}")
    ST(A, 13)
    A.bg += late; A.bg_every = 2
    for s_ in range(4):
        A.wait_vm([('Wo', s_), ('Ao', s_)])
        for tau in range(4):
            for uu in range(4):
                c = v(acc(uu,tau),4)
                A(f"v_mfma_f32_16x16x32_bf16 {c}, {a((s_*4+uu)*4,4)}, {a(176+(s_*4+tau)*4,4)}, {c if s_ else 0}")
    A.bg_flush(); A.bg_every = 0
    ST(A, 'opart')
    A("s_mul_i32 s26, s3, 12288"); A("v_add_u32 v20, s26, v3")
    for tau in (1,2,3):
        A(f"s_xor_b32 s26, s3, {tau}"); A("s_mul_i32 s26, s26, 12288"); A(f"s_add_u32 s26, s26, {(tau-1)*4096}"); A(f"v_add_u32 v{20+tau}, s26, v3")
    A("v_bfe_u32 v15, v13, 2, 1"); A("v_lshlrev_b32 v15, 3, v15"); A("v_and_b32 v16, 3, v13"); A("v_add_u32 v15, v15, v16")
    A(f"s_lshl_b32 s26, s{S_RB2}, 6"); A("s_lshr_b32 s27, s3, 1"); A("s_lshl_b32 s27, s27, 5"); A("s_add_u32 s26, s26, s27")
    A("s_and_b32 s27, s3, 1"); A("s_lshl_b32 s27, s27, 2"); A("s_add_u32 s26, s26, s27")
    A("v_add_u32 v15, s26, v15"); A("v_mul_u32_u24 v15, 896, v15")
    A("v_lshrrev_b32 v16, 3, v13"); A("v_lshl_add_u32 v16, v16, 2, v14"); A("v_lshlrev_b32 v16, 4, v16")
    A(f"s_lshl_b32 s27, s{S_CB}, 7"); A("v_add_u32 v16, s27, v16"); A("v_add_u32 v1, v15, v16")
    A(f"s_mov_b32 s26, {16*896}")
    srd_from(A, 12, S_OUT, None, S*D*2)
    for tau in range(4):
        A(f"s_xor_b32 s24, s3, {tau}"); A("s_lshl_b32 s24, s24, 10"); A(f"v_lshl_add_u32 v{24+tau}, v12, 3, s24")
    A(f"s_lshl_b32 s27, s{S_RB2}, 7"); A(f"s_add_u32 s27, s27, {WS_F2}"); A("v_lshl_add_u32 v17, v12, 3, s27")
    poll(A, L, 'pb', 17, 8)
    ST(A, 14)
    def hload(s_):
        out = [(t, None) for t in rot7(s_)]
        for tau in range(4):
            r = HA + (s_*4+tau)*4
            if s_ < 6: out.append((f"buffer_load_dwordx4 {v(r,4)}, v{5+tau}, s[16:19], s30 offen sc1", ('Ah', s_)))
            else:
                out.append((f"buffer_load_dwordx2 {v(r,2)}, v{24+tau}, s[16:19], s30 offen sc1", ('Ah', s_)))
                out.append((f"buffer_load_dwordx2 {v(r+2,2)}, v{24+tau}, s[16:19], s30 offen offset:512 sc1", ('Ah', s_)))
        return out
    for s_ in range(3):
        for t, tg in hload(s_): A(t, tag=tg)
    for s_ in range(7):
        A.wait_vm(('Ah', s_))
        if s_ == 0: ST(A, 'ah0')
        if s_ == 6: ST(A, 'ahN')
        if s_ + 3 < 7: A.bg += hload(s_ + 3); A.bg_every = 3
        for tau in range(4):
            for uu in range(4):
                c = v(acc(uu,tau),4)
                A(f"v_mfma_f32_16x16x32_bf16 {c}, {a(64+(s_*4+uu)*4,4)}, {v(HA+(s_*4+tau)*4,4)}, {c}")
        A.bg_flush(); A.bg_every = 0
    if not os.environ.get('ENDST'): ST(A, 15)
    for tau in (1,2,3):
        for uu in range(4): A(f"ds_write_b128 v20, {v(acc(uu,tau),4)} offset:{(tau-1)*4096+uu*1024}", tag='w')
    A.wait_lg(); A("s_barrier")
    ST(A, 'p3red')
    T0 = 208
    for tau in (1,2,3):
        for uu in range(4): A(f"ds_read_b128 {v(T0+((tau-1)*4+uu)*4,4)}, v{20+tau} offset:{uu*1024}", tag=('r',tau))
    for tau in (1,2,3):
        A.wait_lg(('r',tau))
        for uu in range(4):
            c = acc(uu,0); t = T0+((tau-1)*4+uu)*4
            A(f"v_pk_add_f32 {v(c,2)}, {v(c,2)}, {v(t,2)}"); A(f"v_pk_add_f32 {v(c+2,2)}, {v(c+2,2)}, {v(t+2,2)}")
    for vv in range(2):
        o = 96 + 4*vv; c0 = acc(2*vv,0); c1 = acc(2*vv+1,0)
        A(f"v_cvt_pk_bf16_f32 v{o}, v{c0}, v{c0+1}"); A(f"v_cvt_pk_bf16_f32 v{o+1}, v{c0+2}, v{c0+3}")
        A(f"v_cvt_pk_bf16_f32 v{o+2}, v{c1}, v{c1+1}"); A(f"v_cvt_pk_bf16_f32 v{o+3}, v{c1+2}, v{c1+3}")
    A("v_cmp_gt_u32 vcc, 8, v13"); A("v_cmp_le_u32 s[24:25], 8, v13")
    for q in range(4):
        A(f"v_mov_b32_dpp v{104+q}, v{100+q} row_ror:8 row_mask:0xf bank_mask:0xf")
        A(f"v_mov_b32_dpp v{108+q}, v{96+q} row_ror:8 row_mask:0xf bank_mask:0xf")
    for q in range(4):
        A(f"v_cndmask_b32 v{104+q}, v{104+q}, v{96+q}, vcc")
        A(f"v_cndmask_b32 v{108+q}, v{108+q}, v{100+q}, s[24:25]")
    ST(A, 'p3st')
    A(f"buffer_store_dwordx4 v[104:107], v1, s[12:15], 0 offen {os.environ.get('OUTSC', 'sc1')}")
    A(f"buffer_store_dwordx4 v[108:111], v1, s[12:15], s26 offen {os.environ.get('OUTSC', 'sc1')}")

def gen_mega(name="mega", code_bytes=0):
    Stamps.map = [78+2*k for k in range(11)] + [4, 6, 42, 0, 74+0*0]
    A = Asm(); L = lambda x: f"{name}_{x}"
    A("s_cmp_ge_u32 s2, 256"); A(f"s_cbranch_scc1 {L('end')}")
    if os.environ.get('DELAY'):
        A.raw(f"  s_mov_b32 s30, {os.environ['DELAY']}")
        A.raw(f"{L('dly')}:")
        for q in range(16): A.raw(f"  v_add_u32 v{100+q}, v{100+q}, v0")
        A.raw("  s_sub_u32 s30, s30, 1"); A.raw("  s_cmp_lg_u32 s30, 0"); A.raw(f"  s_cbranch_scc1 {L('dly')}")
    ST(A, 0)
    A("s_load_dwordx16 s[36:51], s[0:1], 0")
    A("s_load_dwordx8 s[52:59], s[0:1], 64")
    A("v_lshrrev_b32 v6, 6, v0"); A("s_getreg_b32 s20, hwreg(HW_REG_XCC_ID)"); A("v_readfirstlane_b32 s3, v6")
    if code_bytes and os.environ.get('ECP', '1') == '1':
        A("s_cmp_lg_u32 s3, 1"); A(f"s_cbranch_scc1 {L('noecp')}")
        A.raw("  s_getpc_b64 s[22:23]"); A.raw(f"{name}_pc0:")
        A.raw("  v_and_b32 v10, 31, v0"); A.raw("  v_lshlrev_b32 v10, 7, v10"); A.raw("  v_bfe_u32 v11, v0, 5, 1")
        A.raw(f"  v_mul_u32_u24 v11, {L('qrole')}-{name}_pc0, v11"); A.raw("  v_add_u32 v10, v10, v11")
        A.raw("  global_load_dword v56, v10, s[22:23]")
        A.label(L('noecp'))
    A("v_and_b32 v12, 63, v0")
    A("s_and_b32 s20, s20, 7")
    A("v_and_b32 v13, 15, v12"); A("v_lshrrev_b32 v14, 4, v12")
    A(f"v_mov_b32 v18, {L_TICKET}"); A("v_mov_b32 v17, 0")
    A.wait_lg(); ST(A, 'karg')
    A("s_cmp_lg_u32 s3, 0"); A(f"s_cbranch_scc1 {L('notick')}")
    A.raw("  s_lshl_b32 s30, s20, 5"); A.raw("  v_mov_b32 v10, s30"); A.raw("  v_mov_b32 v19, 1")
    A.raw("  s_mov_b64 s[34:35], exec"); A.raw("  s_mov_b64 exec, 1")
    A.raw(f"  global_atomic_add v59, v10, v19, s[{S_DBG}:{S_DBG+1}] sc0 sc1")
    A.raw("  s_mov_b64 exec, s[34:35]")
    A.raw("  s_waitcnt vmcnt(0)")
    A.raw("  v_readfirstlane_b32 s30, v59"); A.raw("  s_nop 1"); A.raw("  v_mov_b32 v59, s30")
    A.raw("  ds_write_b32 v18, v59"); A.raw("  s_waitcnt lgkmcnt(0)")
    A.raw(f"  s_branch {L('tickd')}")
    A.label(L('notick'))
    if os.environ.get('TLBW', '1') == '1':
        for ptr in (S_X, S_WQKV, S_WIN, S_GW, S_WSP, S_WS): A.raw(f"  global_load_dword v56, v17, s[{ptr}:{ptr+1}]")
    A.label(L('tickd'))
    A("s_barrier"); ST(A, 'tkb')
    A("ds_read_b32 v19, v18", tag='tk')
    A("s_cmp_lg_u32 s3, 0"); A(f"s_cbranch_scc1 {L('notag')}")
    tag_publish(A, L)
    A.wait_lg()
    A("v_readfirstlane_b32 s21, v19")
    A("s_cmp_ge_u32 s21, 32"); A(f"s_cbranch_scc1 {L('end')}")
    A("s_lshl_b32 s24, s21, 2"); A("s_add_u32 s24, s24, s3")
    A("s_and_b32 s25, s20, 1"); A("s_mul_i32 s26, s25, 896")
    A("s_cmp_lt_u32 s24, 43"); A(f"s_cbranch_scc1 {L('tx')}")
    A.raw("  s_cmp_lt_u32 s24, 83"); A.raw(f"  s_cbranch_scc1 {L('tw')}")
    A.raw("  s_sub_u32 s27, s24, 83"); A.raw("  s_mul_i32 s27, s27, 8"); A.raw("  v_lshrrev_b32 v57, 3, v12"); A.raw("  v_add_u32 v57, s27, v57"); A.raw("  v_min_u32 v57, 319, v57")
    A.raw("  v_and_b32 v15, 7, v12"); A.raw("  v_min_u32 v15, 5, v15")
    A.raw("  v_lshrrev_b32 v16, 1, v15"); A.raw("  v_mul_u32_u24 v16, 896, v16"); A.raw("  v_and_b32 v15, 1, v15"); A.raw("  v_lshl_add_u32 v15, v15, 8, v16")
    A.raw("  s_lshr_b32 s26, s26, 1"); A.raw("  v_add_u32 v15, s26, v15")
    A.raw("  v_lshrrev_b32 v61, 3, v12"); A.raw("  s_sub_u32 s27, s24, 83"); A.raw("  s_mul_i32 s27, s27, 3"); A.raw("  v_min_u32 v61, 2, v61"); A.raw("  v_add_u32 v61, s27, v61"); A.raw("  v_add_u32 v61, 320, v61"); A.raw("  v_min_u32 v61, 447, v61")
    A.raw("  v_mul_u32_u24 v61, 2688, v61"); A.raw("  v_add_u32 v61, v61, v15")
    A.raw("  v_mul_u32_u24 v57, 2688, v57"); A.raw("  v_add_u32 v57, v57, v15")
    A.raw("  v_add_u32 v60, 128, v57"); A.raw("  v_add_u32 v62, 128, v61")
    A.raw(f"  global_load_dword v56, v60, s[{S_WQKV}:{S_WQKV+1}]")
    A.raw(f"  s_mov_b32 s28, s{S_WQKV}"); A.raw(f"  s_mov_b32 s29, s{S_WQKV+1}"); A.raw(f"  s_branch {L('tgo')}")
    A.raw(f"{L('tw')}:")
    A.raw("  s_sub_u32 s27, s24, 43"); A.raw("  s_lshl_b32 s27, s27, 3"); A.raw("  v_lshrrev_b32 v57, 3, v12"); A.raw("  v_add_u32 v57, s27, v57")
    A.raw("  v_and_b32 v15, 7, v12"); A.raw("  v_min_u32 v15, 6, v15"); A.raw("  v_lshlrev_b32 v15, 7, v15"); A.raw("  s_add_u32 s26, s26, 1792"); A.raw("  v_add_u32 v15, s26, v15")
    A.raw("  s_sub_u32 s27, s24, 43"); A.raw("  s_lshl_b32 s27, s27, 2"); A.raw("  v_lshrrev_b32 v61, 3, v12"); A.raw("  v_min_u32 v61, 3, v61"); A.raw("  v_add_u32 v61, s27, v61"); A.raw("  v_add_u32 v61, 320, v61"); A.raw("  v_min_u32 v61, 447, v61")
    A.raw("  v_mul_u32_u24 v61, 3584, v61"); A.raw("  v_add_u32 v61, v61, v15"); A.raw("  v_mov_b32 v62, v61")
    A.raw("  v_mul_u32_u24 v57, 3584, v57"); A.raw("  v_add_u32 v57, v57, v15")
    A.raw(f"  s_mov_b32 s28, s{S_WIN}"); A.raw(f"  s_mov_b32 s29, s{S_WIN+1}"); A.raw(f"  s_branch {L('tgo')}")
    A.raw(f"{L('tx')}:")
    A.raw("  s_lshr_b32 s27, s20, 1"); A.raw("  s_lshl_b32 s27, s27, 9"); A.raw("  s_mul_i32 s28, s24, 12")
    A.raw("  v_mul_u32_u24 v57, 13108, v12"); A.raw("  v_lshrrev_b32 v57, 16, v57")
    A.raw("  v_mul_u32_u24 v15, 5, v57"); A.raw("  v_sub_u32 v15, v12, v15")
    A.raw("  v_min_u32 v57, 11, v57"); A.raw("  v_add_u32 v57, s28, v57"); A.raw("  v_min_u32 v57, 511, v57"); A.raw("  v_add_u32 v57, s27, v57"); A.raw("  v_mul_u32_u24 v57, 896, v57")
    A.raw("  v_and_b32 v16, 1, v15"); A.raw("  v_add_u32 v16, 5, v16"); A.raw("  v_lshl_add_u32 v61, v16, 7, v57"); A.raw("  v_mov_b32 v62, v61"); A.raw("  v_lshl_add_u32 v57, v15, 7, v57")
    A.raw(f"  s_mov_b32 s28, s{S_X}"); A.raw(f"  s_mov_b32 s29, s{S_X+1}")
    A.label(L('tgo'))
    A("global_load_dword v56, v57, s[28:29]", tag='pf')
    A("s_mov_b32 s30, s28"); A("s_mov_b32 s31, s29")
    if code_bytes:
        assert code_bytes <= 512*128
        A("s_getpc_b64 s[22:23]"); A.raw(f"{name}_pc:")
        A("v_and_b32 v10, 3, v0"); A("s_lshl_b32 s25, s24, 2"); A("v_add_u32 v10, s25, v10"); A("v_lshlrev_b32 v10, 7, v10")
        A(f"v_min_u32 v10, {L('end')}-{name}_pc, v10"); A("global_load_dword v56, v10, s[22:23]", tag='pf')
    A("s_lshl_b32 s2, s21, 3"); A("s_or_b32 s2, s2, s20")
    A("s_lshr_b32 s33, s21, 4"); A("s_and_b32 s21, s21, 15")
    A("s_lshr_b32 s22, s20, 1"); A("s_lshl_b32 s22, s22, 2"); A("s_lshr_b32 s23, s21, 2"); A("s_add_u32 s22, s22, s23")
    A("s_and_b32 s20, s20, 1"); A("s_lshl_b32 s20, s20, 2"); A("s_and_b32 s21, s21, 3"); A("s_add_u32 s21, s21, s20")
    A("s_mov_b32 s20, s22"); A("s_lshl_b32 s22, s20, 1"); A("s_add_u32 s22, s22, s33")
    ST(A, 'tick')
    A("s_cmp_eq_u32 s33, 0"); A(f"s_cbranch_scc0 {L('qrole')}")
    vm0 = list(A.vm); lg0 = list(A.lg)
    role_z(A, L)
    A(f"s_branch {L('p2')}")
    A.label(L('qrole')); A.vm = list(vm0); A.lg = list(lg0)
    role_q(A, L)
    A.label(L('p2')); A.vm = []; A.lg = []
    ST(A, 9)
    wl = phase2(A, L)
    phase3(A, L, wl)
    if Stamps.enabled:
        A.raw("  s_waitcnt vmcnt(0)")
        if os.environ.get('ENDST'): Stamps.mark(A, 15)
    A.label(L('fin'))
    if os.environ.get('DBGOUT'):
        A.raw("  s_waitcnt vmcnt(0) lgkmcnt(0)")
        A.raw(f"  s_cmp_lg_u32 s2, {os.environ['DBGOUT']}"); A.raw(f"  s_cbranch_scc1 {L('end')}"); A.raw("  s_cmp_lg_u32 s3, 0"); A.raw(f"  s_cbranch_scc1 {L('end')}")
        A.raw("  v_mov_b32 v250, 0")
        for k in range(1, 15):
            kk = k if k < 14 else 15
            A.raw(f"  s_sub_u32 s100, s{Stamps.reg(kk)}, s{Stamps.reg(0)}"); A.raw("  v_mov_b32 v251, s100")
            A.raw(f"  global_store_dword v250, v251, s[{S_DBG}:{S_DBG+1}] offset:{4*(k+1)}")
    else:
        Stamps.flush(A, 0, 16, S_WS)
    A.label(L('end'))
    A("s_endpgm")
    return A

if __name__ == "__main__":
    import sys, asmlib
    from build import assemble
    if len(sys.argv) > 2 and sys.argv[2].startswith('stamp'): asmlib.Stamps.enabled = True
    if len(sys.argv) > 2 and sys.argv[2] == 'stampcyc': asmlib.Stamps.op = 's_memtime'
    t = gen_mega().text(); sz = len([l for l in t.split('\n') if l.startswith('  ')])*8
    A = gen_mega(code_bytes=sz)
    if os.environ.get('FINAL'):
        from build import assemble_single
        open(sys.argv[1], 'w').write(assemble_single(dict(name="gated_mix__sliding_local_dilated__mixer_gmlp__prompt_kernel", text=A.text(), grid=256, block=256, lds=163840, vgpr=512, accum=256)))
    else:
        open(sys.argv[1], 'w').write(assemble([dict(name="mega_kernel", text=A.text(), grid=256, block=256, lds=163840, vgpr=512, accum=256)]))
    print("nops", A.nops_inserted, "est bytes", sz)
```

```python
from asmlib import *
from layout import *
from k1z import hexf, gelu_pairs, GELU_C1, GELU_C2
import os
PROFILE = os.environ.get('PROFILE', 'all')
SLEEP = int(os.environ.get('SLEEP', '2'))
def ST(A, k):
    if PROFILE == 'all':
        if isinstance(k, int): Stamps.mark(A, k)
    elif PROFILE == 'p1':
        if isinstance(k, str): return
        if isinstance(k, int) and k in (0, 1, 2): Stamps.mark(A, k)
        elif isinstance(k, int) and k == 3: Stamps.mark(A, 10)
        elif isinstance(k, int) and k == 4: Stamps.mark(A, 11)
        elif isinstance(k, tuple) and k[0] == 'g': Stamps.mark(A, 3 + k[1])
        elif isinstance(k, int) and k in (5, 6, 7, 8): Stamps.mark(A, 7 + k)
    elif PROFILE == 'p8':
        if k == 0: Stamps.mark(A, 0)
        elif isinstance(k, tuple) and k[0] == 'gs' and k[1] in (2, 3): Stamps.mark(A, 1 + (k[1]-2)*6 + k[2])
    elif PROFILE == 'p7':
        m = {0: 0, 11: 1, 'red_w': 2, 'red_b': 3, 'red_r': 4, 'hcomp': 5, 12: 6, 'hack': 7, 13: 8, 'opart': 9, 14: 10, 'ah0': 11, 'ahN': 12, 'p3red': 13, 'p3st': 14}
        if k in m: Stamps.mark(A, m[k])
    elif PROFILE == 'p6':
        m = {0: 0, 'karg': 1, 'tkb': 2, 'tick': 3, 'rsetup': 4, 1: 5, 2: 6, ('g', 0): 7, ('g', 1): 8, ('g', 2): 9, ('g', 3): 10, 3: 11}
        if k in m: Stamps.mark(A, m[k])
    elif PROFILE == 'p5':
        if k == 0: Stamps.mark(A, 0)
        elif k == 10: Stamps.mark(A, 1)
        elif isinstance(k, tuple) and k[0] == 'kk' and k[1] in (0,1,2,3,4,5,6,8,10,12,14,15): Stamps.mark(A, 2 + (0,1,2,3,4,5,6,8,10,12,14,15).index(k[1]))
        elif k == 11: Stamps.mark(A, 14)
    elif PROFILE == 'p4':
        m = {0: 0, 3: 1, 4: 2, 'w2': 3, ('au', 0): 4, ('au', 1): 5, ('au', 2): 6, ('au', 3): 7, ('au', 4): 8, ('au', 5): 9, ('au', 6): 10, ('au', 7): 11, 5: 12, 7: 13, 6: 14}
        if k in m: Stamps.mark(A, m[k])
    elif PROFILE == 'p3':
        m = {0: 0, 3: 1, 4: 2, 5: 3, 6: 4, 7: 5, 'lnq': 6, 'norm': 7, 'pubw': 8, 'sig': 9, 8: 10, 10: 11, 11: 12, 'w2': 13, 'st0': 14, 'st3': 15}
        if k in m: Stamps.mark(A, m[k])
    elif PROFILE == 'p2':
        m = {0: 0, 3: 1, 4: 2, 8: 13, 10: 14, 'z1in': 3, 'z1out': 11, 'z1epi': 12, 11: 15}
        if isinstance(k, tuple) and k[0] == 'z': Stamps.mark(A, 4 + k[1])
        elif k in m: Stamps.mark(A, m[k])

S_X, S_WQKV, S_WO, S_WIN, S_WSP, S_BSP, S_WOUT = 36, 38, 40, 44, 46, 48, 50
S_GW, S_OUT, S_DBG, S_WS = 52, 54, 56, 58
S_RB, S_CB, S_RB2 = 20, 21, 22
SRD_A = 60
OOB = 0x7fff0000
C_LN, C_ZD, C_QD, C_HD = 0, 16, 24, 32

def srd_from(A, d, ptr, off_sreg, nbytes):
    if off_sreg is None:
        A(f"s_mov_b32 s{d}, s{ptr}"); A(f"s_and_b32 s{d+1}, s{ptr+1}, 0xffff")
    else:
        A(f"s_add_u32 s{d}, s{ptr}, s{off_sreg}"); A(f"s_addc_u32 s{d+1}, s{ptr+1}, 0"); A(f"s_and_b32 s{d+1}, s{d+1}, 0xffff")
    A(f"s_mov_b32 s{d+2}, {nbytes}"); A(f"s_mov_b32 s{d+3}, 0x20000")

S_TAG = 76
def tag_publish(A, L):
    A.raw("  s_cmp_lg_u32 s2, 0"); A.raw(f"  s_cbranch_scc1 {L('notag')}")
    A.raw("  s_memrealtime s[30:31]"); A.raw("  s_waitcnt lgkmcnt(0)"); A.raw("  s_or_b32 s30, s30, 1")
    A.raw("  v_mov_b32 v60, s30"); A.raw("  v_mov_b32 v61, s31"); A.raw("  v_mov_b32 v62, 16")
    A.raw("  s_mov_b64 s[34:35], exec"); A.raw("  s_mov_b64 exec, 1")
    A.raw(f"  global_store_dwordx2 v62, v[60:61], s[{S_DBG}:{S_DBG+1}] sc1")
    A.raw("  s_mov_b64 exec, s[34:35]")
    A.raw(f"{L('notag')}:")
def tag_issue(A):
    A("v_mov_b32 v9, 16"); A(f"global_load_dwordx2 v[10:11], v9, s[{S_DBG}:{S_DBG+1}] sc1", tag='tagld')
def tag_take(A, L):
    A.wait_vm('tagld')
    A(f"v_readfirstlane_b32 s{S_TAG}, v10"); A(f"v_readfirstlane_b32 s{S_TAG+1}, v11")
    A(f"s_cmp_lg_u32 s{S_TAG}, 0"); A(f"s_cbranch_scc1 {L('tagd')}")
    A.raw("  s_mov_b32 s33, 0")
    A.raw(f"{L('tagl')}:")
    A.raw(f"  global_load_dwordx2 v[10:11], v9, s[{S_DBG}:{S_DBG+1}] sc1")
    A.raw("  s_add_u32 s33, s33, 1")
    A.raw("  s_waitcnt vmcnt(0)")
    A.raw(f"  v_readfirstlane_b32 s{S_TAG}, v10"); A.raw(f"  v_readfirstlane_b32 s{S_TAG+1}, v11")
    A.raw("  s_nop 1")
    A.raw(f"  s_cmp_lg_u32 s{S_TAG}, 0"); A.raw(f"  s_cbranch_scc1 {L('tagd')}")
    A.raw("  s_cmp_lt_u32 s33, 0x20000"); A.raw(f"  s_cbranch_scc1 {L('tagl')}")
    A.label(L('tagd'))

def signal(A, L, tag, off_sreg, vtmp=16):
    A("s_cmp_lg_u32 s3, 0"); A(f"s_cbranch_scc1 {L(tag)}")
    A.raw(f"  v_mov_b32 v{vtmp+2}, s{off_sreg}"); A.raw(f"  v_mov_b32 v{vtmp}, s{S_TAG}"); A.raw(f"  v_mov_b32 v{vtmp+1}, s{S_TAG+1}")
    A.raw("  s_mov_b64 s[34:35], exec"); A.raw("  s_mov_b64 exec, 1")
    A.raw(f"  global_store_dwordx2 v{vtmp+2}, v[{vtmp}:{vtmp+1}], s[{S_WS}:{S_WS+1}] sc1")
    A.raw("  s_mov_b64 exec, s[34:35]")
    A.label(L(tag))

def poll(A, L, tag, vaddr, nlanes):
    A("s_cmp_lg_u32 s3, 0"); A(f"s_cbranch_scc1 {L(tag+'_done')}")
    A.raw("  s_mov_b32 s33, 0"); A.raw("  s_mov_b64 s[34:35], exec"); A.raw(f"  s_mov_b64 exec, {hex((1 << nlanes) - 1) if nlanes < 64 else -1}")
    A.label(L(tag+'_loop'))
    A.raw(f"  global_load_dwordx2 v[18:19], v{vaddr}, s[{S_WS}:{S_WS+1}] sc1")
    A.raw("  s_add_u32 s33, s33, 1")
    A.raw("  s_waitcnt vmcnt(0)")
    A.raw(f"  v_xor_b32 v18, s{S_TAG}, v18"); A.raw(f"  v_xor_b32 v19, s{S_TAG+1}, v19"); A.raw("  v_or_b32 v18, v18, v19")
    A.raw("  v_cmp_eq_u32 vcc, 0, v18")
    A.raw("  s_nop 1")
    A.raw("  s_cmp_eq_u64 vcc, exec")
    A.raw(f"  s_cbranch_scc1 {L(tag+'_out')}")
    A.raw(f"  s_sleep {SLEEP}")
    A.raw("  s_cmp_lt_u32 s33, 0x20000")
    A.raw(f"  s_cbranch_scc1 {L(tag+'_loop')}")
    A.label(L(tag+'_out'))
    A.raw("  s_mov_b64 exec, s[34:35]")
    A.label(L(tag+'_done'))
    A("s_barrier")

def poll_wave(A, L, tag, vaddr, reset=True):
    A.raw("  s_mov_b32 s33, 0")
    A.label(L(tag+'_loop'))
    A.raw(f"  global_load_dwordx2 v[18:19], v{vaddr}, s[{S_WS}:{S_WS+1}] sc1")
    A.raw("  s_add_u32 s33, s33, 1")
    A.raw("  s_waitcnt vmcnt(0)")
    A.raw(f"  v_xor_b32 v18, s{S_TAG}, v18"); A.raw(f"  v_xor_b32 v19, s{S_TAG+1}, v19"); A.raw("  v_or_b32 v18, v18, v19")
    A.raw("  v_cmp_eq_u32 vcc, 0, v18")
    A.raw("  s_nop 1")
    A.raw("  s_cmp_eq_u64 vcc, exec")
    A.raw(f"  s_cbranch_scc1 {L(tag+'_out')}")
    A.raw(f"  s_sleep {SLEEP}")
    A.raw("  s_cmp_lt_u32 s33, 0x20000")
    A.raw(f"  s_cbranch_scc1 {L(tag+'_loop')}")
    A.label(L(tag+'_out'))
    if reset: A.vm = []

class AService:
    VD, VR, VL = 232, 236, 240
    def __init__(self, A): self.A = A
    def setup(self):
        A = self.A
        A(f"s_lshl_b32 s23, s{S_RB2}, 18"); srd_from(A, SRD_A, S_WSP, 23, 64*4096)
        A("v_lshrrev_b32 v16, 3, v12"); A("v_and_b32 v17, 7, v12"); A("v_and_b32 v18, 3, v16"); A("v_xor_b32 v17, v17, v18")
        A("v_lshlrev_b32 v17, 4, v17"); A("v_lshl_add_u32 v17, v16, 12, v17")
        for uu in range(4):
            if uu & 1: A(f"v_xor_b32 v{self.VD+uu}, 64, v17")
            else: A(f"v_mov_b32 v{self.VD+uu}, v17")
            if uu: A(f"v_add_u32 v{self.VD+uu}, {uu*(32768-1024)}, v{self.VD+uu}")
        A("v_lshrrev_b32 v16, 2, v13"); A("v_lshlrev_b32 v16, 3, v16"); A("v_and_b32 v17, 3, v13"); A("v_add_u32 v16, v16, v17")
        A("v_and_b32 v17, 7, v13"); A("v_xor_b32 v17, v17, v14"); A("v_lshlrev_b32 v17, 4, v17"); A(f"v_lshl_add_u32 v{self.VL}, v16, 7, v17")
        A("s_lshr_b32 s23, s3, 1"); A("s_lshl_b32 s68, s23, 17"); A("s_lshl_b32 s23, s3, 10"); A("s_add_u32 s68, s68, s23")
        A("s_xor_b32 s69, s68, 0x20000")
    BASES = {'A': (74, 236), 'B': (75, 241)}
    def base(self, name, per_wave, start):
        A = self.A; sr, vr = self.BASES[name]
        A(f"s_mul_i32 s{sr}, s3, {per_wave}"); A(f"s_add_u32 s{sr}, s{sr}, {start}")
        A("s_and_b32 s23, s3, 1"); A("s_lshl_b32 s23, s23, 9"); A(f"s_add_u32 s23, s23, s{sr}")
        for b in range(2):
            if b: A("s_xor_b32 s23, s23, 512")
            A(f"v_add_u32 v{vr+2*b}, s23, v{self.VL}"); A(f"v_xor_b32 v{vr+2*b+1}, 64, v{vr+2*b}")
    def dma(self, n, slot):
        ss, gt = n >> 1, n & 1; sr, vr = self.BASES[slot[0]]
        if os.environ.get('ROT', '0') == '1':
            so = [(f"s_add_u32 s70, s{S_RB2}, {ss}", None), ("s_and_b32 s70, s70, 7", None), ("s_lshl_b32 s70, s70, 7", None), (f"s_add_u32 s70, s70, s{68+gt}", None)]
        else: so = [(f"s_add_u32 s70, s{68+gt}, {ss*128}", None)]
        return [(f"s_add_u32 m0, s{sr}, {slot[1]*4096}", None)] + so + \
               [(f"buffer_load_dwordx4 v{self.VD+uu}, s[{SRD_A}:{SRD_A+3}], s70 offen offset:{uu*1024} lds", ('Au', n)) for uu in range(4)]
    def read(self, n, slot):
        ss, gt = n >> 1, n & 1; sr, vr = self.BASES[slot[0]]
        for b in range(2):
            for h in range(2):
                tau = 2*gt + b
                self.A(f"ds_read_b128 {a((ss*8 + h*4 + tau)*4, 4)}, v{vr+2*b+h} offset:{slot[1]*4096}", tag=('Ar', n))
    def emit_dma(self, units, slots):
        for n, sl in zip(units, slots):
            for t, tg in self.dma(n, sl): self.A(t, tag=tg)
    def bg_dma(self, units, slots):
        for n, sl in zip(units, slots): self.A.bg += self.dma(n, sl)
    def wait_read(self, units, slots):
        self.A.wait_vm(('Au', units[-1]))
        for n, sl in zip(units, slots): self.read(n, sl)

def wf_issue(A, rounds):
    A("v_lshrrev_b32 v62, 2, v13"); A("v_lshlrev_b32 v62, 3, v62"); A("v_and_b32 v63, 3, v13"); A("v_add_u32 v62, v62, v63")
    A("v_lshlrev_b32 v62, 1, v62")
    A(f"v_mul_u32_u24 v63, {4*896}, v14"); A("v_add_u32 v62, v62, v63")
    for q, r in enumerate(rounds):
        A(f"s_lshl_b32 s23, s{S_RB}, 3"); A(f"s_add_u32 s23, s23, s{S_CB}"); A("s_lshl_b32 s23, s23, 2"); A("s_add_u32 s23, s23, s3")
        if r: A(f"s_add_u32 s23, s23, {512*r}")
        A("s_and_b32 s24, s23, 3"); A("s_lshr_b32 s25, s23, 2")
        A("s_mul_i32 s26, s25, 1490"); A("s_lshr_b32 s26, s26, 16")
        A("s_mul_i32 s27, s26, 44"); A("s_sub_u32 s27, s25, s27")
        A("s_lshl_b32 s28, s26, 7"); A("s_lshr_b32 s29, s24, 1"); A("s_lshl_b32 s29, s29, 6"); A("s_add_u32 s28, s28, s29")
        A("s_and_b32 s29, s24, 1"); A("s_lshl_b32 s29, s29, 3"); A("s_add_u32 s28, s28, s29")
        A("s_cmp_lt_u32 s27, 16")
        A(f"s_cselect_b32 s64, s{S_WO}, s{S_WOUT}"); A(f"s_cselect_b32 s65, s{S_WO+1}, s{S_WOUT+1}")
        A("s_cselect_b32 s66, 1, 2"); A(f"s_mul_i32 s66, s66, {448*896}"); A("s_mov_b32 s67, 0x20000"); A("s_and_b32 s65, s65, 0xffff")
        A("s_mul_i32 s29, s27, 28"); A("s_mul_i32 s30, s27, 32"); A("s_sub_u32 s30, s30, 512")
        A("s_cmp_lt_u32 s27, 16"); A("s_cselect_b32 s29, s29, s30"); A("s_cselect_b64 s[30:31], -1, 0")
        A("s_mul_i32 s29, s29, 896"); A("s_add_u32 s29, s29, s28")
        A("s_cmp_ge_u32 s23, 1232"); A("s_cselect_b32 s66, 0, s66")
        A(f"v_add_u32 v58, 0, v62"); A(f"v_add_u32 v59, {16*896}, v62")
        A("v_cmp_eq_u32 vcc, 3, v14"); A("s_and_b64 s[30:31], s[30:31], vcc"); A(f"v_mov_b32 v63, {OOB}")
        A("v_cndmask_b32 v59, v59, v63, s[30:31]")
        for e in range(8):
            A(f"buffer_load_ushort v{WFR[r] + e}, v{58 + (e >> 2)}, s[64:67], s29 offen offset:{(e & 3)*896}", tag='wfj')
WFR = {0: 40, 1: 48, 2: 246}
def wf_store(A, rounds):
    A.wait_vm('wfj')
    for r in rounds:
        for p in range(4):
            A(f"v_lshl_or_b32 v{WFR[r] + p}, v{WFR[r] + 2*p + 1}, 16, v{WFR[r] + 2*p}")
    A(f"s_mov_b32 s23, {WS_WF}"); srd_from(A, 64, S_WS, 23, 1232*1024)
    A("v_lshlrev_b32 v60, 4, v12")
    A(f"s_lshl_b32 s23, s{S_RB}, 3"); A(f"s_add_u32 s23, s23, s{S_CB}"); A("s_lshl_b32 s23, s23, 2"); A("s_add_u32 s23, s23, s3"); A("s_lshl_b32 s23, s23, 10")
    for q, r in enumerate(rounds):
        A(f"s_add_u32 s27, s23, {512*1024*r}")
        A(f"buffer_store_dwordx4 {v(WFR[r],4)}, v60, s[64:67], s27 offen sc1", tag='pubst')

def touch_lines(A, ptr, vaddr, n, step, vdst=56):
    for k in range(n):
        A(f"global_load_dword v{vdst}, v{vaddr}, s[{ptr}:{ptr+1}]", tag='touch')
        if k + 1 < n: A(f"v_add_u32 v{vaddr}, {step}, v{vaddr}")

def touch_z1w(A):
    A(f"s_and_b32 s27, s{S_RB}, 3"); A("s_lshl_b32 s27, s27, 2"); A(f"s_and_b32 s28, s{S_CB}, 3"); A("s_add_u32 s27, s27, s28"); A("s_lshl_b32 s27, s27, 2"); A("s_add_u32 s27, s27, s3")
    A(f"s_mul_i32 s27, s27, {7*3584}"); A(f"s_lshr_b32 s28, s{S_CB}, 2"); A("s_mul_i32 s28, s28, 896"); A("s_add_u32 s27, s27, s28")
    A("v_lshrrev_b32 v57, 3, v12"); A("v_min_u32 v57, 6, v57"); A("v_mul_u32_u24 v57, 3584, v57"); A("v_and_b32 v58, 7, v12"); A("v_min_u32 v58, 6, v58")
    A("v_lshl_add_u32 v57, v58, 7, v57"); A("v_add_u32 v57, s27, v57")
    A(f"global_load_dword v56, v57, s[{S_WIN}:{S_WIN+1}]", tag='touch')

def prefetch_wsp_list():
    return [(f"s_lshl_b32 s75, s{S_RB2}, 18", None), (f"s_lshl_b32 s100, s{S_CB}, 15", None), ("s_add_u32 s75, s75, s100", None),
            ("s_lshl_b32 s100, s3, 13", None), ("s_add_u32 s75, s75, s100", None),
            ("v_lshlrev_b32 v60, 7, v12", None), ("v_add_u32 v60, s75, v60", None),
            (f"global_load_dword v56, v60, s[{S_WSP}:{S_WSP+1}]", 'touch')]
def touch_small(A):
    A(f"s_lshl_b32 s27, s{S_RB}, 3"); A(f"s_add_u32 s27, s27, s{S_CB}"); A("s_lshl_b32 s27, s27, 2"); A("s_add_u32 s27, s27, s3"); A("s_min_u32 s27, s27, 447")
    A("s_mul_i32 s28, s27, 1792"); A("v_min_u32 v57, 13, v12"); A("v_lshlrev_b32 v57, 7, v57"); A("v_add_u32 v58, s28, v57")
    A(f"global_load_dword v56, v58, s[{S_WOUT}:{S_WOUT+1}]", tag='touch')
    A("s_mul_i32 s28, s27, 896"); A("v_min_u32 v57, 6, v12"); A("v_lshlrev_b32 v57, 7, v57"); A("v_add_u32 v58, s28, v57")
    A(f"global_load_dword v56, v58, s[{S_WO}:{S_WO+1}]", tag='touch')

def wdma_setup(A, V):
    A("v_lshrrev_b32 v15, 1, v13"); A("v_xor_b32 v15, v15, v14")
    A("v_and_b32 v16, 1, v13"); A("v_lshlrev_b32 v16, 4, v16")
    A("v_mul_u32_u24 v17, 3584, v14"); A("v_add_u32 v16, v16, v17"); A(f"v_mov_b32 v18, {OOB}")
    for uu in range(4):
        if uu == 2: A("v_xor_b32 v15, 4, v15")
        A(f"v_lshl_add_u32 v{V+uu}, v15, 5, v16")
        if uu: A(f"v_add_u32 v{V+uu}, {uu*(4*3584-1024)}, v{V+uu}")
        A("v_cmp_eq_u32 vcc, 7, v15"); A(f"v_cndmask_b32 v{V+uu}, v{V+uu}, v18, vcc")
def wread_setup(A, V, base):
    A("v_lshrrev_b32 v15, 2, v13"); A("v_lshl_add_u32 v16, v14, 3, v15"); A("v_lshlrev_b32 v16, 8, v16")
    A("v_and_b32 v17, 3, v13"); A("v_lshl_add_u32 v16, v17, 3, v16"); A(f"v_add_u32 v16, {base}, v16")
    A("v_and_b32 v17, 1, v14"); A("v_lshl_or_b32 v17, v17, 2, v15")
    for j in range(7):
        A(f"v_xor_b32 v18, {j}, v17"); A(f"v_lshl_add_u32 v{V+j}, v18, 5, v16")

GC = dict(VC1=32, VC2=34, VONE=36)
def gelu_consts(A):
    for r, val in ((32, GELU_C1), (34, GELU_C2), (36, 1.0)):
        A(f"v_mov_b32 v{r}, {hexf(val)}"); A(f"v_mov_b32 v{r+1}, {hexf(val)}")

class Z1Tile:
    WB, XB, ACC, GACC = 120, 176, 192, 220
    VW = 24
    def __init__(self, A, L, ring_base, vdma, sW):
        self.A, self.L, self.ring_base, self.vdma, self.sW = A, L, ring_base, vdma, sW
    def dma_w_list(self, c):
        st = (c + 1) % 3
        return [(f"s_add_u32 m0, s71, {self.ring_base + st*16384}", None), (f"s_add_u32 s23, s{self.sW}, {64*c*3584}", None)] + \
               [(f"buffer_load_dwordx4 v{self.vdma+uu}, s[12:15], s23 offen offset:{uu*1024} lds", ('w1', c)) for uu in range(4)]
    def dma_w(self, c):
        for t, tg in self.dma_w_list(c): self.A(t, tag=tg)
    def reads(self, c, h, buf, xoff):
        out = []
        st = (c + 1) % 3
        out.append((f"ds_read_b128 {v(self.XB+buf*8,4)}, v{20+h} offset:{xoff(c)}", ('zx', c, h)))
        out.append((f"ds_read_b128 {v(self.XB+buf*8+4,4)}, v31 offset:{(2*c+h)*64}", ('zx', c, h)))
        for j in range(7):
            for sec in range(2):
                out.append((f"ds_read_b64_tr_b16 {v(self.WB+buf*28+j*4+2*sec,2)}, v{self.VW+j} offset:{st*16384 + h*8192 + sec*1024}", ('zw', c, h, j)))
        return out
    def run(self, xoff, xwait, hooks):
        A = self.A
        ST(A, 'z1in')
        A.wait_vm([('w1', 0)] + xwait(0)); A.wait_lg(); A("s_barrier")
        if ('pre',) in hooks: hooks[('pre',)]()
        for t, tg in self.reads(0, 0, 0, xoff): A(t, tag=tg)
        for c in range(7):
            for h in range(2):
                kk = 2*c + h; buf = kk & 1
                todo = []
                if h == 0: todo = self.reads(c, 1, buf ^ 1, xoff)
                else:
                    if c < 6:
                        A.wait_vm([('w1', c+1)] + xwait(c+1))
                        A.wait_lg(); A("s_barrier"); ST(A, ('z', c))
                        if c + 3 <= 6: self.dma_w(c + 3)
                        todo = self.reads(c+1, 0, buf ^ 1, xoff)
                if (c, h) in hooks: hooks[(c, h)]()
                A.wait_lg([('zx', c, h)])
                d = v(self.GACC, 4)
                A(f"v_mfma_f32_16x16x32_bf16 {d}, {v(self.XB+buf*8+4,4)}, {v(self.XB+buf*8,4)}, {d if kk else 0}")
                for _ in range(2):
                    if todo: t, tg = todo.pop(0); A(t, tag=tg)
                for j in range(7):
                    A.wait_lg([('zw', c, h, j)])
                    d = v(self.ACC + 4*j, 4)
                    A(f"v_mfma_f32_16x16x32_bf16 {d}, {v(self.WB+buf*28+j*4,4)}, {v(self.XB+buf*8,4)}, {d if kk else 0}")
                    for _ in range(2):
                        if todo: t, tg = todo.pop(0); A(t, tag=tg)
    def epilogue(self, svc):
        A = self.A
        ST(A, 'z1out')
        G = self.GACC
        A(f"v_mul_f32 v{G}, {hexf(1.4426950408889634)}, v{G}")
        A(f"v_exp_f32 v{G}, v{G}"); A(f"v_add_f32 v{G}, 1.0, v{G}"); A(f"v_rcp_f32 v{G}, v{G}")
        A("v_lshlrev_b32 v16, 2, v13")
        A(f"ds_bpermute_b32 v{G+1}, v16, v{G}", tag='gb')
        regs = [self.ACC + 2*p for p in range(14)]
        for q in range(0, 14, 4):
            gelu_pairs(A, regs[q:q+4], 224, 32, 34, 36)
            svc.step()
        A.wait_lg('gb')
        for p in range(14):
            r = self.ACC + 2*p
            A(f"v_mul_f32 v{r}, v{r}, v{G+1}"); A(f"v_mul_f32 v{r+1}, v{r+1}, v{G+1}")
            A(f"v_cvt_pk_bf16_f32 v{240+p}, v{r}, v{r+1}")
        ST(A, 'z1epi')

L_TICKET = 163584
L_AST, L_GW, L_ZR, L_GL, L_RING = 58368, 107520, 108544, 160768, 114688
XH = 57344

def load_gw_tables(A, gwb, zrb, tag):
    A(f"s_mov_b32 s23, 896"); srd_from(A, 16, S_GW, None, 896)
    A("v_lshlrev_b32 v16, 4, v12"); A(f"v_mov_b32 v18, {OOB}")
    A(f"s_mov_b32 m0, {gwb}"); A("buffer_load_dwordx4 v16, s[16:19], 0 offen lds", tag=tag)
    A(f"s_mov_b32 m0, {zrb}"); A("buffer_load_dwordx4 v18, s[16:19], 0 offen lds", tag=tag)
def gw_addr(A, vreg, gwb, zrb):
    A("v_cmp_eq_u32 vcc, 0, v13"); A(f"v_mov_b32 v16, {zrb}"); A(f"v_mov_b32 v17, {gwb}"); A(f"v_cndmask_b32 v{vreg}, v16, v17, vcc")
    A(f"v_lshl_add_u32 v{vreg}, v14, 4, v{vreg}")
def z1_xaddr(A):
    A("v_lshrrev_b32 v15, 2, v13"); A("v_lshlrev_b32 v15, 3, v15"); A("v_and_b32 v16, 3, v13"); A("v_add_u32 v15, v15, v16")
    A("v_and_b32 v16, 7, v13"); A("v_xor_b32 v16, v16, v14"); A("v_lshlrev_b32 v16, 4, v16"); A("v_lshl_add_u32 v16, v15, 7, v16")
    A("s_lshr_b32 s23, s3, 1"); A("s_lshl_b32 s23, s23, 12"); A("s_and_b32 s24, s3, 1"); A("s_lshl_b32 s24, s24, 9"); A("s_add_u32 s23, s23, s24")
    A("v_add_u32 v20, s23, v16"); A("v_xor_b32 v21, 64, v20")
def load_bias(A):
    A(f"s_lshl_b32 s23, s{S_RB2}, 6"); A("s_lshr_b32 s24, s3, 1"); A("s_lshl_b32 s24, s24, 5"); A("s_add_u32 s23, s23, s24")
    A("s_and_b32 s24, s3, 1"); A("s_lshl_b32 s24, s24, 2"); A("s_add_u32 s23, s23, s24")
    A("v_lshrrev_b32 v15, 2, v13"); A("v_lshlrev_b32 v15, 3, v15"); A("v_and_b32 v16, 3, v13"); A("v_add_u32 v15, v15, v16")
    A("v_add_u32 v15, s23, v15"); A("v_lshlrev_b32 v15, 1, v15")
    srd_from(A, 16, S_BSP, None, S*2)
    A("buffer_load_ushort v254, v15, s[16:19], 0 offen", tag='bias')

def role_z(A, L):
    ACC1, ACC2 = 120, 64
    acc1 = lambda j, aa: ACC1 + (j*2+aa)*4
    acc2 = lambda j, aa: ACC2 + (j*2+aa)*4
    WB = 176
    wf = lambda buf, j: WB + buf*28 + j*4
    xf = lambda kk, aa: 144 + (kk*2+aa)*4
    A("v_lshrrev_b32 v15, 3, v12"); A("v_and_b32 v16, 7, v12"); A("v_and_b32 v17, 3, v15"); A("v_xor_b32 v16, v16, v17"); A("v_lshlrev_b32 v16, 4, v16")
    A("v_mul_u32_u24 v17, 896, v15")
    for uu in range(4):
        if uu & 1: A("v_xor_b32 v18, 64, v16"); A(f"v_add_u32 v{1+uu}, v18, v17")
        else: A(f"v_add_u32 v{1+uu}, v16, v17")
        if uu: A(f"v_add_u32 v{1+uu}, {uu*(8*896-1024)}, v{1+uu}")
    wdma_setup(A, 5)
    A(f"s_lshl_b32 s72, s{S_RB}, 2"); A("s_add_u32 s72, s72, s3")
    A(f"s_mul_i32 s23, s72, {32*896}"); srd_from(A, 8, S_X, 23, 32*896)
    srd_from(A, 12, S_WIN, None, 448*3584)
    A(f"s_mul_i32 s25, s3, {16*3584}"); A(f"s_mul_i32 s23, s{S_CB}, 224"); A("s_add_u32 s25, s25, s23"); A("s_add_u32 s24, s25, 1792")
    A("s_lshl_b32 s71, s3, 12")
    def dma_x(c):
        return [(f"s_add_u32 m0, s71, {c*16384}", None), (f"s_mov_b32 s23, {c*128}", None)] + \
               [(f"buffer_load_dwordx4 v{1+uu}, s[8:11], s23 offen offset:{uu*1024} lds", ('x', c)) for uu in range(4)]
    def dma_w(c, which=1, sreg=23):
        base = (L_RING + (c % 3)*16384) if which == 1 else c*16384
        return [(f"s_add_u32 m0, s71, {base}", None), (f"s_add_u32 s{sreg}, s{24 if which == 1 else 25}, {64*c*3584}", None)] + \
               [(f"buffer_load_dwordx4 v{5+uu}, s[12:15], s{sreg} offen offset:{uu*1024} lds", ('w', which, c)) for uu in range(4)]
    def emit(lst):
        for t, tg in lst: A(t, tag=tg)
    ST(A, 'rsetup')
    for c in range(2): emit(dma_w(c)); emit(dma_x(c))
    ST(A, 1)
    A("v_lshrrev_b32 v15, 2, v13"); A("v_lshlrev_b32 v15, 3, v15"); A("v_and_b32 v16, 3, v13"); A("v_add_u32 v15, v15, v16")
    A("v_and_b32 v16, 7, v13"); A("v_xor_b32 v16, v16, v14"); A("v_lshlrev_b32 v16, 4, v16"); A("v_lshl_add_u32 v16, v15, 7, v16")
    A("v_add_u32 v20, s71, v16"); A("v_xor_b32 v21, 64, v20"); A("v_add_u32 v22, 0x10000, v20"); A("v_add_u32 v23, 0x10000, v21")
    wread_setup(A, 24, L_RING)
    gelu_consts(A)
    svc = AService(A)
    def reads_w(which, c, h, buf):
        out = []
        off = ((c % 3) if which == 1 else (c % 4))*16384 + h*8192
        for j in range(7):
            for sec in range(2):
                out.append((f"ds_read_b64_tr_b16 {v(wf(buf,j)+2*sec,2)}, v{24+j} offset:{off + sec*1024}", ('wf', which, c, h, j)))
        return out
    def reads_x(c):
        return [(f"ds_read_b128 {a(xf(2*c+h,aa),4)}, v{20 + h + (2 if c >= 4 else 0)} offset:{(c % 4)*16384 + aa*512}", ('xf', c, h)) for h in range(2) for aa in range(2)]
    A.wait_vm([('w', 1, 0), ('x', 0)]); A("s_barrier")
    ST(A, 2)
    emit(reads_x(0)); emit(reads_w(1, 0, 0, 0))
    for c in range(7):
        for h in range(2):
            kk = 2*c + h; buf = kk & 1
            todo = []; vq = []
            if h == 0:
                ST(A, ('gs', c, 0))
                todo = reads_w(1, c, 1, buf ^ 1)
                if c == 0: vq += dma_w(2)
                if c + 2 <= 6: vq += dma_x(c + 2)
            else:
                ST(A, ('gs', c, 1))
                if c < 6: A.wait_vm([('w', 1, c+1), ('x', c+1)])
                ST(A, ('gs', c, 2))
                A.wait_lg(); ST(A, ('gs', c, 3)); A("s_barrier"); ST(A, ('g', c)); ST(A, ('gs', c, 4))
                if c + 3 <= 6: vq += dma_w(c + 3)
                MODE = os.environ.get('W2MODE', 'epi')
                if MODE == 'loop':
                    for cc in {5: (0, 1, 2, 3), 6: (4, 5, 6)}.get(c, ()): vq += dma_w(cc, 2)
                elif c == 6:
                    for cc in range(7): A.bg += dma_w(cc, 2, 75)
                    A.bg_every = int(os.environ.get('BGW2', '12'))
                if c < 6: todo = reads_w(1, c+1, 0, buf ^ 1)[:2] + reads_x(c+1) + reads_w(1, c+1, 0, buf ^ 1)[2:]
            A.wait_lg([('xf', c, h)])
            for j in range(7):
                A.wait_lg([('wf', 1, c, h, j)])
                for aa in range(2):
                    d = v(acc1(j,aa), 4)
                    A(f"v_mfma_f32_16x16x32_bf16 {d}, {a(xf(kk,aa),4)}, {v(wf(buf,j),4)}, {d if kk else 0}")
                    for _ in range(2):
                        if todo: t, tg = todo.pop(0); A(t, tag=tg)
                    if vq: t, tg = vq.pop(0); A(t, tag=tg)
            emit(todo); emit(vq)
            if c == 0 and h == 0: A("global_load_dword v56, v61, s[30:31]", tag='touch'); A("global_load_dword v56, v62, s[30:31]", tag='touch')
            if c == 2 and h == 1: touch_z1w(A)
            if (c, h) == (int(os.environ.get('WSPC', '4')), 1):
                for t, tg in prefetch_wsp_list(): A(t, tag=tg)
    ST(A, 3)
    svc.setup(); svc.base('A', 12288, L_RING)
    TMP = 232 - 8 - 0
    TMP = 176
    regs = [ACC1 + 2*p for p in range(28)]
    for q in range(0, 28, 4): gelu_pairs(A, regs[q:q+4], TMP, 32, 34, 36)
    SUM, M2, PUB = 192, 200, 208
    for aa in range(2):
        for rp in range(2):
            d = SUM + aa*4 + rp*2
            A(f"v_pk_add_f32 {v(d,2)}, {v(acc1(0,aa)+2*rp,2)}, {v(acc1(1,aa)+2*rp,2)}")
            for j in range(2, 7): A(f"v_pk_add_f32 {v(d,2)}, {v(d,2)}, {v(acc1(j,aa)+2*rp,2)}")
    def dpp16(rs):
        for sh in (8, 4, 2, 1):
            for r in rs: A(f"v_add_f32_dpp v{r}, v{r}, v{r} row_ror:{sh} row_mask:0xf bank_mask:0xf")
    dpp16(range(SUM, SUM+8))
    A(f"v_mov_b32 v38, {hexf(1.0/112)}"); A(f"v_mov_b32 v39, {hexf(1.0/112)}")
    for p in range(4): A(f"v_pk_mul_f32 {v(SUM+2*p,2)}, {v(SUM+2*p,2)}, {v(38,2)}")
    for aa in range(2):
        for rp in range(2):
            d = M2 + aa*4 + rp*2; mreg = SUM + aa*4 + rp*2
            for j in range(7):
                t = TMP + 2*(j & 1)
                A(f"v_pk_add_f32 {v(t,2)}, {v(acc1(j,aa)+2*rp,2)}, {v(mreg,2)} neg_lo:[0,1] neg_hi:[0,1]")
                if j == 0: A(f"v_pk_mul_f32 {v(d,2)}, {v(t,2)}, {v(t,2)}")
                else: A(f"v_pk_fma_f32 {v(d,2)}, {v(t,2)}, {v(t,2)}, {v(d,2)}")
    dpp16(range(M2, M2+8))
    A("v_and_b32 v16, 3, v13")
    for q in range(3): A(f"v_cmp_eq_u32 s[{26+2*q}:{27+2*q}], {q+1}, v16")
    for e, (base, odd) in enumerate(((SUM, 0), (M2, 0), (SUM, 1), (M2, 1))):
        A(f"v_mov_b32 v{PUB+e}, v{base+odd}")
        for q in range(3): A(f"v_cndmask_b32 v{PUB+e}, v{PUB+e}, v{base+2*(q+1)+odd}, s[{26+2*q}:{27+2*q}]")
    A(f"s_lshl_b32 s23, s{S_RB}, 3"); A(f"s_add_u32 s23, s23, s{S_CB}"); A("s_lshl_b32 s23, s23, 7")
    A("s_lshl_b32 s27, s3, 5"); A("s_add_u32 s23, s23, s27"); A("s_lshl_b32 s23, s23, 3")
    A(f"s_mov_b32 s27, {WS_LNP}"); srd_from(A, 16, S_WS, 27, 16*8*128*8)
    A("v_lshlrev_b32 v19, 6, v14"); A("v_lshl_add_u32 v19, v16, 4, v19")
    A("s_mov_b64 s[34:35], exec"); A("s_mov_b32 exec_lo, 0x000f000f"); A("s_mov_b32 exec_hi, 0x000f000f")
    A(f"buffer_store_dwordx4 {v(PUB,4)}, v19, s[16:19], s23 offen sc1", tag='lnp')
    A("s_mov_b64 exec, s[34:35]")
    A.bg_flush(); A.bg_every = 0
    tag_issue(A)
    ST(A, 4)
    Q, MB = 40, 216
    A.wait_vm([('w', 2, c) for c in range(7)]); A("s_barrier"); ST(A, 'w2')
    for j in range(7): A(f"v_subrev_u32 v{24+j}, {L_RING}, v{24+j}")
    emit(reads_w(2, 0, 0, 0))
    for c in range(7):
        for h in range(2):
            kk = 2*c + h; buf = kk & 1
            nxt = (c, 1) if h == 0 else ((c+1, 0) if c < 6 else None)
            if kk in (0, 2, 4): svc.bg_dma([kk // 2], [('A', kk // 2)]); A.bg_every = 3
            if kk in (7, 9, 11):
                n = (kk - 7) // 2
                svc.wait_read([n], [('A', n)])
            if kk in (8, 10, 12):
                n = (kk - 8) // 2
                A.wait_lg(('Ar', n)); svc.bg_dma([n + 3], [('A', n)])
            if kk == 10:
                A(f"s_lshl_b32 s27, s{S_RB}, 7"); A(f"s_add_u32 s27, s27, {WS_F0}"); A("v_and_b32 v17, 7, v12"); A("v_lshl_add_u32 v17, v17, 3, s27")
                A(f"global_load_dwordx2 v[18:19], v17, s[{S_WS}:{S_WS+1}] sc1", tag='lnf')
            if kk == 13:
                A.wait_vm('lnf')
                A(f"v_xor_b32 v18, s{S_TAG}, v18"); A(f"v_xor_b32 v19, s{S_TAG+1}, v19"); A("v_or_b32 v18, v18, v19"); A("v_cmp_eq_u32 vcc, 0, v18")
                A("s_nop 1"); A("s_cmp_eq_u64 vcc, exec"); A(f"s_cbranch_scc1 {L('lnok')}")
                poll_wave(A, L, 'plnw', 17, reset=False)
                A.label(L('lnok'))
                A(f"s_lshl_b32 s23, s{S_RB}, 10"); A("s_lshl_b32 s27, s3, 5"); A("s_add_u32 s23, s23, s27"); A("s_lshl_b32 s23, s23, 3")
                A(f"s_mov_b32 s27, {WS_LNP}"); srd_from(A, 16, S_WS, 27, 16*8*128*8)
                A("v_and_b32 v18, 7, v12"); A("v_lshlrev_b32 v18, 10, v18"); A("v_lshl_add_u32 v18, v14, 6, v18")
                for q in range(4): A(f"buffer_load_dwordx4 {v(Q+4*q,4)}, v18, s[16:19], s23 offen offset:{16*q} sc1", tag='lnq')
            if kk == 4:
                A.wait_vm('lnp'); tag_take(A, lambda x: L('z' + x)); A("s_barrier")
                A(f"s_lshl_b32 s27, s{S_RB}, 7"); A(f"s_lshl_b32 s28, s{S_CB}, 3"); A("s_add_u32 s27, s27, s28"); A(f"s_add_u32 s27, s27, {WS_F0}")
                signal(A, L, 'sigln', 27)
            todo = []
            if nxt:
                if nxt == (4, 0):
                    for j in range(7): A(f"v_add_u32 v{24+j}, 0x10000, v{24+j}")
                todo = reads_w(2, nxt[0], nxt[1], buf ^ 1)
            for j in range(7):
                A.wait_lg([('wf', 2, c, h, j)])
                for aa in range(2):
                    d = v(acc2(j,aa), 4)
                    A(f"v_mfma_f32_16x16x32_bf16 {d}, {v(wf(buf,j),4)}, {a(xf(kk,aa),4)}, {d if kk else 0}")
                    if todo: t, tg = todo.pop(0); A(t, tag=tg)
            emit(todo)
    ST(A, 5)
    A.bg_flush(); A.bg_every = 0
    svc.wait_read([3, 4], [('A', 0), ('A', 1)]); svc.base('B', 28672, 0); A.wait_lg(); A("s_barrier")
    svc.bg_dma([13, 14], [('A', 0), ('A', 1)]); svc.bg_dma(list(range(6, 13)), [('B', k) for k in range(7)]); A.bg_every = 10
    ST(A, 7)
    A.wait_vm('lnq')
    ST(A, 'lnq')
    def red8(rs):
        for pat in ("quad_perm:[1,0,3,2]", "quad_perm:[2,3,0,1]", "row_half_mirror"):
            for r in rs: A(f"v_add_f32_dpp v{r}, v{r}, v{r} {pat} row_mask:0xf bank_mask:0xf")
    for q in range(8): A(f"v_mov_b32 v{MB+q}, v{Q+2*q}")
    red8(range(MB, MB+8))
    for q in range(8): A(f"v_mul_f32 v{MB+q}, 0.125, v{MB+q}")
    A(f"v_mov_b32 v38, {hexf(112.0)}")
    for q in range(8):
        A(f"v_sub_f32 v{Q+2*q}, v{Q+2*q}, v{MB+q}"); A(f"v_mul_f32 v{Q+2*q}, v{Q+2*q}, v{Q+2*q}")
        A(f"v_fma_f32 v{MB+8+q}, v{Q+2*q}, v38, v{Q+2*q+1}")
    red8(range(MB+8, MB+16))
    A(f"v_mov_b32 v38, {hexf(1.0/896)}"); A(f"v_mov_b32 v39, {hexf(1e-5)}")
    for q in range(8): A(f"v_fma_f32 v{MB+8+q}, v{MB+8+q}, v38, v39")
    for q in range(8): A(f"v_rsq_f32 v{MB+8+q}, v{MB+8+q}")
    for q in range(8): A(f"v_mul_f32 v{MB+q}, v{MB+q}, v{MB+8+q}")
    A(f"s_mul_i32 s23, s{S_CB}, {64*7168}"); A("s_mul_i32 s27, s72, 7168"); A("s_add_u32 s23, s23, s27")
    srd_from(A, 16, S_WS, 23, 7168)
    A("v_lshlrev_b32 v18, 4, v12"); A("v_add_u32 v19, 4096, v18")
    for j in range(7):
        p = 200 + 4*(j & 3)
        for aa in range(2):
            c = acc1(j,aa)
            for rp in range(2):
                A(f"v_pk_fma_f32 {v(c+2*rp,2)}, {v(c+2*rp,2)}, {v(MB+8+aa*4+2*rp,2)}, {v(MB+aa*4+2*rp,2)} neg_lo:[0,0,1] neg_hi:[0,0,1]")
            A(f"v_cvt_pk_bf16_f32 v{p+2*aa}, v{c}, v{c+1}"); A(f"v_cvt_pk_bf16_f32 v{p+2*aa+1}, v{c+2}, v{c+3}")
        A(f"buffer_store_dwordx4 {v(p,4)}, v{18 if j < 4 else 19}, s[16:19], 0 offen offset:{(j%4)*1024} sc1", tag='pubst')
    ST(A, 'norm')
    p2 = P2(A, L); p2.pre()
    TMP = 216
    regs = [ACC2 + 2*p for p in range(28)]
    for q in range(0, 8, 4): gelu_pairs(A, regs[q:q+4], TMP, 32, 34, 36)
    A.wait_vm('pubst'); ST(A, 'pubw'); A("s_barrier")
    A(f"s_lshl_b32 s27, s{S_CB}, 4"); A(f"s_add_u32 s27, s27, s{S_RB}"); A("s_lshl_b32 s27, s27, 3"); A(f"s_add_u32 s27, s27, {WS_F1}")
    signal(A, L, 'sigzd', 27)
    ST(A, 6)
    svc.wait_read([5], [('A', 2)]); A.wait_lg(('Ar', 5)); svc.bg_dma([15], [('A', 2)])
    for q in range(8, 28, 4): gelu_pairs(A, regs[q:q+4], TMP, 32, 34, 36)
    A.bg_flush(); A.bg_every = 0
    p2.flag_issue()
    A("s_lshl_b32 s23, s72, 1"); A("s_mul_i32 s23, s23, 56"); A(f"s_mul_i32 s28, s{S_CB}, 7"); A("s_add_u32 s23, s23, s28"); A("s_lshl_b32 s23, s23, 9")
    A(f"s_add_u32 s23, s23, {WS_Z1F}"); srd_from(A, 16, S_WS, 23, 56*512 + 7*512)
    A("v_lshlrev_b32 v18, 3, v12")
    P = 40
    for aa in range(2):
        if aa: A(f"s_mov_b32 s23, {56*512}")
        for j in range(7):
            c = acc2(j,aa); p = P + 2*(j & 3)
            A(f"v_cvt_pk_bf16_f32 v{p}, v{c}, v{c+1}"); A(f"v_cvt_pk_bf16_f32 v{p+1}, v{c+2}, v{c+3}")
            A(f"buffer_store_dwordx2 {v(p,2)}, v18, s[16:19], {'s23' if aa else 0} offen offset:{j*512} sc1", tag='z1st')
    ST(A, 9)
    p2.flag_take('z')
    p2.first()
    A.wait_vm(('Au', 15))
    for n, sl in [(13, ('A', 0)), (14, ('A', 1)), (15, ('A', 2))] + [(6 + k, ('B', k)) for k in range(7)]: svc.read(n, sl)
    p2.plumbing()
    A.wait_lg()
    ST(A, 8)
    p2.loop('z')

QSTG = 45056; QGW = 3*QSTG; QZR = QGW + 1024; QP = 400
def role_q(A, L):
    A("v_lshrrev_b32 v15, 3, v12"); A("v_and_b32 v16, 7, v12")
    A("v_and_b32 v17, 3, v15"); A("v_xor_b32 v17, v16, v17"); A("v_lshlrev_b32 v17, 4, v17")
    A(f"s_lshl_b32 s24, s{S_RB}, 7"); A("s_sub_u32 s24, s24, 16"); A("s_mul_i32 s25, s3, 5")
    for uu in range(5):
        A(f"s_add_u32 s26, s25, {uu}")
        A("s_lshl_b32 s27, s26, 3"); A("s_add_u32 s27, s27, s24")
        A("v_add_u32 v18, s27, v15"); A("v_max_i32 v18, 0, v18"); A("v_mul_u32_u24 v18, 896, v18")
        A("s_and_b32 s27, s26, 1"); A("s_lshl_b32 s27, s27, 6"); A("v_xor_b32 v19, s27, v17")
        A("s_cmp_ge_u32 s26, 18"); A(f"s_cselect_b32 s27, {OOB}, 0")
        A(f"v_add3_u32 v{1+uu}, v18, v19, s27")
        if uu in (1, 2, 3): A(f"v_subrev_u32 v{1+uu}, {uu*1024}, v{1+uu}")
    A("v_and_b32 v18, 2, v15"); A("v_xor_b32 v18, v16, v18"); A("v_mul_u32_u24 v19, 2688, v15")
    for uu in range(2):
        if uu: A("v_xor_b32 v18, 4, v18")
        A(f"v_lshl_add_u32 v{6+uu}, v18, 4, v19")
        if uu: A(f"v_add_u32 v{6+uu}, {8*2688-1024}, v{6+uu}")
        A("v_cmp_eq_u32 vcc, 7, v18"); A(f"v_mov_b32 v16, {OOB}"); A(f"v_cndmask_b32 v{6+uu}, v{6+uu}, v16, vcc")
    A.wait_lg()
    A(f"s_sub_u32 s8, s{S_X}, 4096"); A(f"s_subb_u32 s9, s{S_X+1}, 0"); A("s_and_b32 s9, s9, 0xffff"); A(f"s_mov_b32 s10, {S*896 + 4096}"); A("s_mov_b32 s11, 0x20000")
    for uu in range(5): A(f"v_add_u32 v{1+uu}, 4096, v{1+uu}")
    srd_from(A, 12, S_WQKV, None, 448*2688)
    A(f"s_mul_i32 s24, s3, {16*2688}"); A(f"s_mul_i32 s25, s{S_CB}, 112"); A("s_add_u32 s24, s24, s25")
    A("s_mul_i32 s25, s3, 5120"); A("s_lshl_b32 s26, s3, 11"); A("s_add_u32 s26, s26, 20480")
    def dma(c):
        st = (c % 3)*QSTG; out = []
        for seg in range(3):
            out += [(f"s_add_u32 m0, s26, {st + seg*8192}", None), (f"s_add_u32 s23, s24, {64*c*2688 + seg*896}", None)]
            out += [(f"buffer_load_dwordx4 v{6+uu}, s[12:15], s23 offen offset:{uu*1024} lds", ('c', c)) for uu in range(2)]
        out += [(f"s_add_u32 m0, s25, {st}", None), (f"s_mov_b32 s23, {c*128}", None)]
        out += [(f"buffer_load_dwordx4 v{1+uu}, s[8:11], s23 offen offset:{uu*1024} lds", ('c', c)) for uu in range(4)]
        out += [(f"s_add_u32 m0, s25, {st + 4096}", None), (f"buffer_load_dwordx4 v5, s[8:11], s23 offen lds", ('c', c))]
        return out
    def emit(lst):
        for t, tg in lst: A(t, tag=tg)
    ST(A, 'rsetup')
    load_gw_tables(A, QGW, QZR, ('c', 0))
    for c in range(2): emit(dma(c))
    ST(A, 1)
    A("v_lshrrev_b32 v15, 3, v13"); A("v_lshlrev_b32 v15, 2, v15"); A("v_and_b32 v16, 3, v13"); A("v_or_b32 v15, v15, v16")
    A("v_xor_b32 v15, v15, v14"); A("v_lshlrev_b32 v15, 4, v15"); A("v_lshl_add_u32 v20, v13, 7, v15"); A("v_xor_b32 v21, 64, v20")
    A("s_lshl_b32 s23, s3, 12"); A("s_add_u32 s23, s23, 2048"); A("v_add_u32 v22, s23, v20"); A("v_add_u32 v23, s23, v21")
    A("s_lshr_b32 s23, s3, 1"); A("s_mul_i32 s23, s23, 56"); A("s_and_b32 s33, s3, 1"); A("s_lshl_b32 s34, s33, 5"); A("s_add_u32 s23, s23, s34")
    A("v_and_b32 v15, 3, v13"); A("v_lshlrev_b32 v16, 3, v15"); A("v_add_u32 v16, s23, v16")
    A("v_cmp_eq_u32 vcc, 3, v15"); A("s_cmp_eq_u32 s33, 1"); A("s_cselect_b64 s[34:35], vcc, 0")
    A("v_mov_b32 v17, 112"); A("v_cndmask_b32 v16, v16, v17, s[34:35]")
    A("v_lshrrev_b32 v17, 3, v13"); A("v_lshlrev_b32 v17, 1, v17"); A("v_and_b32 v18, 1, v14"); A("v_lshl_or_b32 v17, v18, 2, v17")
    A("v_lshrrev_b32 v18, 4, v16"); A("v_xor_b32 v18, v18, v17"); A("v_and_b32 v16, 8, v16"); A("v_lshl_or_b32 v16, v18, 4, v16")
    A("v_lshrrev_b32 v17, 2, v13"); A("v_lshl_add_u32 v17, v14, 3, v17"); A("v_lshl_add_u32 v24, v17, 7, v16"); A("v_add_u32 v24, 20480, v24")
    gw_addr(A, 25, QGW, QZR)
    XB = 256; xf = lambda buf, t: XB + buf*44 + t*4
    WB = 256 + 88; wf = lambda buf, t: WB + buf*16 + t*4
    ACC = 64
    def acc(t, RT):
        if t == 0: return ACC + (RT-1)*4
        if t == 3: return ACC + (26 + RT)*4
        return ACC + (8 + (t-1)*9 + RT)*4
    def reads(c, h, buf):
        out = []
        for t in range(3):
            for sec in range(2):
                out.append((f"ds_read_b64_tr_b16 {u(wf(buf,t)+2*sec,2)}, v24 offset:{t*8192 + h*4096 + sec*512}", ('w', c, h)))
        out.append((f"ds_read_b128 {u(wf(buf,3),4)}, v25 offset:{(2*c+h)*64}", ('w', c, h)))
        for RT in range(9): out.append((f"ds_read_b128 {u(xf(buf,RT),4)}, v{20+h} offset:{RT*2048}", ('x', c, h, RT)))
        for q in range(2): out.append((f"ds_read_b128 {u(xf(buf,9+q),4)}, v{22+h} offset:{q*2048}", ('x', c, h, 9+q)))
        return out
    def bump(c):
        d = QSTG if (c % 3) < 2 else -2*QSTG
        for r in (20, 21, 22, 23, 24):
            if d > 0: A(f"v_add_u32 v{r}, {d}, v{r}")
            else: A(f"v_subrev_u32 v{r}, {-d}, v{r}")
    A.wait_vm(('c', 0)); A("s_barrier")
    ST(A, 2)
    for t, tg in reads(0, 0, 0): A(t, tag=tg)
    for c in range(7):
        for h in range(2):
            kk = 2*c + h; buf = kk & 1
            todo = []; vq = []
            if h == 0:
                ST(A, ('gs', c, 0))
                todo = reads(c, 1, buf ^ 1)
                if c == 0: vq = dma(2)
            else:
                ST(A, ('gs', c, 1))
                if c < 6: A.wait_vm(('c', c+1))
                ST(A, ('gs', c, 2))
                A.wait_lg(); ST(A, ('gs', c, 3)); A("s_barrier"); ST(A, ('g', c)); ST(A, ('gs', c, 4))
                if c + 3 <= 6: vq = dma(c+3)
                if c < 6:
                    bump(c); todo = reads(c+1, 0, buf ^ 1)
            order = [(1,0),(2,0)] + [(t, RT) for RT in range(1, 9) for t in range(3)] + [(3,0),(3,1)]
            n = 0
            for (t, RT) in order:
                xt = RT if t < 3 else 9 + RT
                A.wait_lg([('w', c, h), ('x', c, h, xt)])
                d = v(acc(t, RT), 4)
                A(f"v_mfma_f32_16x16x32_bf16 {d}, {u(wf(buf,t),4)}, {u(xf(buf,xt),4)}, {d if kk else 0}")
                n += 1
                if todo: tt, tg = todo.pop(0); A(tt, tag=tg)
                if vq: tt, tg = vq.pop(0); A(tt, tag=tg)
            while todo: tt, tg = todo.pop(0); A(tt, tag=tg)
            emit(vq)
            if c == 0 and h == 0: A("global_load_dword v56, v61, s[30:31]", tag='touch'); A("global_load_dword v56, v62, s[30:31]", tag='touch')
            if c == 4 and h == 1:
                for t, tg in prefetch_wsp_list(): A(t, tag=tg)
                touch_small(A)
    ST(A, 3)
    tag_issue(A)
    svc = AService(A); svc.setup(); svc.base('A', 24576, L_AST); svc.base('B', 14336, 0)
    svc.bg_dma(list(range(6)), [('A', k) for k in range(6)]); A.bg_every = 6
    A(f"v_mul_u32_u24 v15, {QP}, v13")
    A("s_lshr_b32 s23, s3, 1"); A("s_lshl_b32 s23, s23, 6"); A("s_and_b32 s33, s3, 1"); A("s_lshl_b32 s33, s33, 5"); A("s_add_u32 s23, s23, s33")
    A("v_lshl_add_u32 v15, v14, 3, v15"); A("v_add_u32 v26, s23, v15")
    P = 176; n = 0
    for t in range(3):
        for RT in range(0 if t else 1, 9):
            c = acc(t, RT); p = P + 2*(n & 7); n += 1
            A(f"v_cvt_pk_bf16_f32 v{p}, v{c}, v{c+1}"); A(f"v_cvt_pk_bf16_f32 v{p+1}, v{c+2}, v{c+3}")
            A(f"ds_write_b64 v26, {v(p,2)} offset:{RT*16*QP + t*128}", tag='qkv')
    for q in range(2):
        c = acc(3, q)
        A(f"v_mul_f32 v{c}, {hexf(-1.4426950408889634)}, v{c}")
        A(f"v_exp_f32 v{c}, v{c}"); A(f"v_add_f32 v{c}, 1.0, v{c}"); A(f"v_rcp_f32 v{c}, v{c}")
    A("s_lshl_b32 s23, s3, 7"); A(f"s_add_u32 s23, s23, {L_GL}")
    A("v_lshlrev_b32 v15, 2, v13"); A("v_add_u32 v16, s23, v15")
    A("s_mov_b64 s[34:35], exec"); A("s_mov_b64 exec, 0xffff")
    for q in range(2): A(f"ds_write_b32 v16, v{acc(3,q)} offset:{q*64}", tag='qkv')
    A(f"s_mov_b32 s23, {WS_GATE}"); srd_from(A, 16, S_WS, 23, S*4)
    A(f"s_cmp_eq_u32 s{S_CB}, 0"); A("s_cselect_b32 s18, s18, 0")
    A(f"s_lshl_b32 s23, s{S_RB}, 9"); A("s_lshl_b32 s33, s3, 7"); A("s_add_u32 s23, s23, s33")
    for q in range(2): A(f"buffer_store_dword v{acc(3,q)}, v15, s[16:19], s23 offen offset:{q*64} sc1", tag='pubst')
    A("s_mov_b64 exec, s[34:35]")
    A.wait_lg(); A("s_barrier")
    ST(A, 4)
    A("s_lshr_b32 s33, s3, 1"); A("s_and_b32 s34, s3, 1"); A("s_lshl_b32 s35, s33, 6")
    A(f"s_mul_i32 s32, s34, {64*QP}"); A("s_add_u32 s35, s35, s32")
    A("v_lshlrev_b32 v15, 1, v13")
    A(f"v_mul_u32_u24 v16, {QP}, v15"); A("v_lshl_add_u32 v16, v14, 4, v16"); A("v_add_u32 v16, s35, v16")
    A(f"v_add_u32 v20, {16*QP}, v16"); A(f"v_add_u32 v21, 128, v16")
    A("v_lshlrev_b32 v17, 2, v15"); A("s_lshl_b32 s32, s34, 8"); A(f"s_add_u32 s32, s32, {L_GL}"); A("v_add_u32 v22, s32, v17")
    A("v_lshrrev_b32 v17, 2, v13"); A("v_and_b32 v18, 3, v13"); A("v_lshlrev_b32 v18, 3, v18"); A("v_add_u32 v18, s35, v18"); A("v_add_u32 v18, 256, v18")
    for T in range(2):
        if T == 0: A("v_lshl_add_u32 v19, v14, 2, v17")
        else: A("v_and_b32 v19, 1, v14"); A("v_lshl_add_u32 v19, v19, 2, v17"); A("v_add_u32 v19, 16, v19")
        A("v_lshlrev_b32 v19, 1, v19"); A(f"v_mul_u32_u24 v19, {QP}, v19"); A(f"v_add_u32 v{23+T}, v19, v18")
    UB = 64
    rowoff = lambda b: (32*(b >> 1) + (b & 1))
    Q_ = lambda b: UB + b*24; K_ = lambda b, T: UB + b*24 + 4 + 4*T; V_ = lambda b, mt: UB + b*24 + 12 + 4*mt; G_ = lambda b: UB + b*24 + 20
    for b in range(4):
        A(f"ds_read_b128 {v(Q_(b),4)}, v20 offset:{rowoff(b)*QP}", tag=('u', b))
        for T in range(2): A(f"ds_read_b128 {v(K_(b,T),4)}, v21 offset:{(rowoff(b)+32*T)*QP}", tag=('u', b))
    for b in range(4):
        for mt in range(2):
            for T in range(2): A(f"ds_read_b64_tr_b16 {v(V_(b,mt)+2*T,2)}, v{23+T} offset:{rowoff(b)*QP + mt*32}", tag=('vv', b))
        A(f"ds_read_b32 v{G_(b)}, v22 offset:{rowoff(b)*4}", tag=('vv', b))
    SC = 160; sc = lambda b, T: SC + b*8 + 4*T
    for b in range(4):
        A.wait_lg(('u', b))
        for T in range(2): A(f"v_mfma_f32_16x16x32_bf16 {v(sc(b,T),4)}, {v(K_(b,T),4)}, {v(Q_(b),4)}, 0")
    A.wait_lg(); A("s_barrier")
    A.bg_flush()
    svc.wait_read(list(range(6)), [('A', k) for k in range(6)])
    wf_issue(A, [0, 1, 2])
    A.wait_lg()
    svc.bg_dma([6, 7, 8], [('B', k) for k in range(3)]); svc.bg_dma(list(range(9, 15)), [('A', k) for k in range(6)]); A.bg_every = 6
    cs = (28 ** -0.5) * 1.4426950408889634
    A(f"v_mov_b32 v26, {hexf(cs)}"); A(f"v_mov_b32 v27, {hexf(cs)}"); A(f"v_mov_b32 v28, {hexf(-1e30)}")
    for b in range(4):
        for q in range(4): A(f"v_pk_mul_f32 {v(sc(b,0)+2*q,2)}, {v(sc(b,0)+2*q,2)}, {v(26,2)}")
    A("v_lshlrev_b32 v15, 2, v14"); A("v_sub_u32 v15, v13, v15"); A("v_add_u32 v15, 8, v15")
    A("s_and_b32 s34, s3, 1"); A(f"s_or_b32 s34, s34, s{S_RB}")
    A("v_min_u32 v16, 7, v13"); A("s_cmp_eq_u32 s34, 0"); A("s_cselect_b64 s[34:35], -1, 0")
    A("v_mov_b32 v17, 7"); A("v_cndmask_b32 v16, v17, v16, s[34:35]")
    MS = [24, 26, 28, 30, 64, 66, 32, 34]
    for (lim, bs) in ((17, (2, 3)), (16, (0, 1))):
        for q in range(8):
            A(f"v_subrev_u32 v18, {16*(q >> 2) + (q & 3)}, v15")
            A(f"v_cmp_le_u32 s[{MS[q]}:{MS[q]+1}], v18, v{lim}")
        for b in bs:
            for q in range(8):
                A(f"v_cndmask_b32 v{sc(b,0)+q}, v28, v{sc(b,0)+q}, s[{MS[q]}:{MS[q]+1}]")
    MX = 192; M2 = 196
    def xreduce(op):
        for swap in ("v_permlane16_swap_b32", "v_permlane32_swap_b32"):
            for b in range(4): A(f"v_mov_b32 v{M2+b}, v{MX+b}")
            for b in range(4): A(f"{swap} v{MX+b}, v{M2+b}")
            for b in range(4): A(f"{op} v{MX+b}, v{MX+b}, v{M2+b}")
    for b in range(4): s0 = sc(b,0); A(f"v_max3_f32 v{MX+b}, v{s0}, v{s0+1}, v{s0+2}")
    for b in range(4): s0 = sc(b,0); A(f"v_max3_f32 v{MX+b}, v{MX+b}, v{s0+3}, v{s0+4}")
    for b in range(4): s0 = sc(b,0); A(f"v_max3_f32 v{MX+b}, v{MX+b}, v{s0+5}, v{s0+6}")
    for b in range(4): s0 = sc(b,0); A(f"v_max_f32 v{MX+b}, v{MX+b}, v{s0+7}")
    xreduce("v_max_f32")
    for b in range(4):
        for q in range(8): A(f"v_sub_f32 v{sc(b,0)+q}, v{sc(b,0)+q}, v{MX+b}")
    for b in range(4):
        for q in range(8): A(f"v_exp_f32 v{sc(b,0)+q}, v{sc(b,0)+q}")

    for b in range(4): s0 = sc(b,0); A(f"v_add_f32 v{MX+b}, v{s0}, v{s0+1}")
    for q in range(2, 8):
        for b in range(4): A(f"v_add_f32 v{MX+b}, v{MX+b}, v{sc(b,0)+q}")
    xreduce("v_add_f32")
    for b in range(4): A(f"v_rcp_f32 v{MX+b}, v{MX+b}")
    PB = 200
    for b in range(4):
        for q in range(8): A(f"v_mul_f32 v{sc(b,0)+q}, v{sc(b,0)+q}, v{MX+b}")
    for b in range(4):
        for q in range(4): A(f"v_cvt_pk_bf16_f32 v{PB+4*b+q}, v{sc(b,0)+2*q}, v{sc(b,0)+2*q+1}")
    OB = 160
    for b in range(4):
        for mt in range(2): A(f"v_mfma_f32_16x16x32_bf16 {v(OB+8*b+4*mt,4)}, {v(V_(b,mt),4)}, {v(PB+4*b,4)}, 0")
    ST(A, 5)
    wf_store(A, [0, 1, 2])
    A("v_and_b32 v15, 1, v13"); A("v_lshlrev_b32 v15, 1, v15"); A("v_bfe_u32 v16, v13, 1, 1"); A("v_or_b32 v15, v15, v16")
    A("v_and_b32 v16, 12, v13"); A("v_or_b32 v15, v15, v16"); A("v_lshl_add_u32 v15, v14, 4, v15"); A("v_lshlrev_b32 v29, 4, v15")
    A(f"s_lshl_b32 s23, s{S_RB}, 1"); A("s_and_b32 s33, s3, 1"); A("s_add_u32 s23, s23, s33"); A("s_mul_i32 s23, s23, 44")
    A(f"s_lshl_b32 s33, s{S_CB}, 1"); A("s_add_u32 s23, s23, s33"); A("s_lshr_b32 s33, s3, 1"); A("s_add_u32 s23, s23, s33")
    A("s_lshl_b32 s23, s23, 12"); A(f"s_add_u32 s23, s23, {WS_AF}")
    srd_from(A, 16, S_WS, 23, 4096)
    A("v_and_b32 v15, 2, v13"); A("v_cmp_eq_u32 vcc, 0, v15"); A("v_cmp_ne_u32 s[24:25], 0, v15")
    for b in range(4):
        o = OB + 8*b
        for q in range(8): A(f"v_mul_f32 v{o+q}, v{o+q}, v{G_(b)}")
        for q in range(4): A(f"v_cvt_pk_bf16_f32 v{PB+4*b+q}, v{o+2*q}, v{o+2*q+1}")
    for bb in range(2):
        X0 = PB + 8*bb; X1 = X0 + 4; Y = 216 + 8*bb
        for q in range(4):
            A(f"v_mov_b32_dpp v{Y+q}, v{X1+q} quad_perm:[2,3,0,1] row_mask:0xf bank_mask:0xf")
            A(f"v_mov_b32_dpp v{Y+4+q}, v{X0+q} quad_perm:[2,3,0,1] row_mask:0xf bank_mask:0xf")
        for q in range(4):
            A(f"v_cndmask_b32 v{Y+q}, v{Y+q}, v{X0+q}, vcc")
            A(f"v_cndmask_b32 v{Y+4+q}, v{Y+4+q}, v{X1+q}, s[24:25]")
        for aa in range(2):
            A(f"buffer_store_dwordx4 {v(Y+4*aa,4)}, v29, s[16:19], 0 offen offset:{(2*bb+aa)*1024} sc1", tag='pubst')
    A.bg_flush(); A.bg_every = 0
    ST(A, 6)
    A.wait_vm('pubst'); tag_take(A, lambda x: L('q' + x)); A("s_barrier")
    A(f"s_lshl_b32 s27, s{S_RB}, 3"); A(f"s_add_u32 s27, s27, s{S_CB}"); A("s_add_u32 s27, s27, 128"); A("s_lshl_b32 s27, s27, 3"); A(f"s_add_u32 s27, s27, {WS_F1}")
    signal(A, L, 'sigqd', 27)
    ST(A, 7)
    p2 = P2(A, L); p2.pre(); p2.flag_issue()
    svc.wait_read([6, 7, 8], [('B', k) for k in range(3)]); A.wait_lg(); svc.emit_dma([15], [('B', 0)])
    p2.flag_take('q')
    p2.first()
    svc.wait_read(list(range(9, 15)), [('A', k) for k in range(6)])
    svc.wait_read([15], [('B', 0)])
    p2.plumbing()
    A.wait_lg()
    ST(A, 8)
    p2.loop('q')

def rot7(s_):
    if s_ == 6: return [f"s_add_u32 s30, s29, {3*4096}"]
    return [f"s_add_u32 s30, s{S_CB}, {s_}", "s_cmp_ge_u32 s30, 6", "s_cselect_b32 s31, 6, 0", "s_sub_u32 s30, s30, s31",
            "s_cmp_ge_u32 s30, 6", "s_cselect_b32 s31, 6, 0", "s_sub_u32 s30, s30, s31",
            "s_cmp_ge_u32 s30, 3", "s_addc_u32 s30, s30, 0", "s_lshl_b32 s30, s30, 12", "s_add_u32 s30, s30, s29"]

def poll_p2(A, L):
    tag = 'pa'
    A("s_cmp_lg_u32 s3, 0"); A(f"s_cbranch_scc1 {L(tag+'_done')}")
    A.raw("  s_mov_b32 s33, 0"); A.raw(f"  s_lshl_b32 s30, s{S_CB}, 2"); A.raw("  s_lshl_b64 s[30:31], 15, s30")
    A.label(L(tag+'_loop'))
    for q2 in range(2): A.raw(f"  global_load_dwordx4 {v(16+4*q2,4)}, v2, s[{S_WS}:{S_WS+1}] offset:{16*q2} sc1")
    A.raw("  s_add_u32 s33, s33, 1"); A.raw("  s_waitcnt vmcnt(0)")
    for q in range(8): A.raw(f"  v_xor_b32 v{16+q}, s{S_TAG + (q & 1)}, v{16+q}")
    for t in ("v_or3_b32 v16, v16, v17, v18", "v_or3_b32 v19, v19, v20, v21", "v_or3_b32 v16, v16, v22, v23", "v_or_b32 v16, v16, v19", "v_cmp_eq_u32 vcc, 0, v16"): A.raw("  " + t)
    A.raw("  s_nop 1")
    A.raw("  s_and_b64 s[34:35], vcc, s[30:31]"); A.raw("  s_cmp_eq_u64 s[34:35], s[30:31]")
    A.raw(f"  s_cbranch_scc1 {L(tag+'_out')}")
    A.raw(f"  s_sleep {SLEEP}"); A.raw("  s_cmp_lt_u32 s33, 0x20000"); A.raw(f"  s_cbranch_scc1 {L(tag+'_loop')}")
    A.label(L(tag+'_out'))
    A.raw("  s_cmp_eq_u64 vcc, exec"); A.raw("  s_cselect_b32 s30, 1, 0"); A.raw("  v_mov_b32 v16, s30"); A.raw("  ds_write_b32 v9, v16"); A.raw("  s_waitcnt lgkmcnt(0)")
    A.label(L(tag+'_done'))
    A("s_barrier")

class P2:
    ACC, BR = 32, 144
    def __init__(self, A, L): self.A, self.L = A, L
    def acc(self, j, tau): return self.ACC + (j*4+tau)*4
    def bfrag(self, kk, j): return self.BR + (kk % 4)*28 + j*4
    def afrag(self, kk, tau): return ((kk >> 1)*8 + (kk & 1)*4 + tau)*4
    def pre(self):
        A = self.A
        A("v_lshlrev_b32 v3, 4, v12"); A("v_add_u32 v4, 4096, v3")
        A(f"s_mul_i32 s23, s{S_CB}, {64*7168}"); srd_from(A, 12, S_WS, 23, 64*7168)
        A(f"s_mul_i32 s26, s3, {16*7168}")
        if os.environ.get('ROT', '0') == '1': A(f"s_and_b32 s25, s{S_RB2}, 7"); A("s_lshl_b32 s25, s25, 1")
        else:
            A("s_mov_b32 s25, 0")
            A(f"s_and_b32 s23, s{S_RB2}, 7"); A("s_mul_i32 s23, s23, 896")
            A("v_and_b32 v31, 7, v12"); A("v_min_u32 v31, 6, v31"); A("v_lshlrev_b32 v31, 7, v31"); A("v_bfe_u32 v30, v12, 3, 2"); A("v_mul_u32_u24 v30, 7168, v30")
            A("v_add3_u32 v31, v31, v30, s23")
        A(f"s_lshl_b32 s27, s{S_CB}, 4"); A("s_lshl_b32 s23, s3, 2"); A("s_add_u32 s27, s27, s23"); A("s_lshl_b32 s27, s27, 3"); A(f"s_add_u32 s27, s27, {WS_F1}")
        A("v_and_b32 v9, 3, v12"); A("v_lshl_add_u32 v9, v9, 3, s27")
    def flag_issue(self):
        self.A(f"global_load_dwordx2 v[10:11], v9, s[{S_WS}:{S_WS+1}] sc1", tag='fa')
    def flag_take(self, role):
        A, L = self.A, self.L
        A.wait_vm('fa')
        A(f"v_xor_b32 v10, s{S_TAG}, v10"); A(f"v_xor_b32 v11, s{S_TAG+1}, v11"); A("v_or_b32 v10, v10, v11"); A("v_cmp_eq_u32 vcc, 0, v10")
        A("s_nop 1"); A("s_cmp_eq_u64 vcc, exec"); A(f"s_cbranch_scc1 {L(role+'faok')}")
        poll_wave(A, L, role+'paw', 9, reset=False)
        A.label(L(role+'faok'))
        ST(A, 10)
    def soffB(self, kk):
        if os.environ.get('ROT', '0') != '1': return [f"s_add_u32 s27, s26, {kk*7168}"]
        return [f"s_add_u32 s27, s25, {kk}", "s_and_b32 s27, s27, 15", "s_mul_i32 s27, s27, 7168", "s_add_u32 s27, s27, s26"]
    def touchB(self, k0):
        if os.environ.get('ROT', '0') == '1': return
        A = self.A
        A(f"s_add_u32 s24, s26, {k0*7168}"); A("buffer_load_dword v30, v31, s[12:15], s24 offen sc1", tag='bt')
    def first(self):
        self.issueB(0); self.touchB(3); self.issueB(1)
        if os.environ.get('ROT', '0') != '1': self.issueB(2)
    def issueB(self, kk):
        A = self.A
        for t in self.soffB(kk): A(t)
        for j in range(7):
            A(f"buffer_load_dwordx4 {v(self.bfrag(kk,j),4)}, v{3 if j < 4 else 4}, s[12:15], s27 offen offset:{(j % 4)*1024} sc1", tag=('B', kk))
    def plumbing(self):
        A = self.A
        A(f"s_mul_i32 s23, s{S_CB}, {44*4096}"); A(f"s_add_u32 s23, s23, {WS_WF}"); srd_from(A, 8, S_WS, 23, 44*4096)
        A(f"s_cmp_eq_u32 s{S_CB}, 7"); A("s_cselect_b32 s10, 0, s10")
        A(f"s_mul_i32 s23, s{S_RB2}, {44*4096}"); A(f"s_add_u32 s23, s23, {WS_AF}"); srd_from(A, 16, S_WS, 23, 44*4096)
        for tau in range(4):
            A(f"s_xor_b32 s24, s3, {tau}"); A("s_lshl_b32 s24, s24, 10"); A(f"v_add_u32 v{5+tau}, s24, v3")
        A("s_lshl_b32 s28, s3, 14")
        A(f"s_mul_i32 s29, s3, {7*4096}"); A(f"s_add_u32 s29, s29, {16*4096}")
        A(f"s_lshl_b32 s30, s{S_RB2}, 2"); A("s_add_u32 s30, s30, s3")
        A("s_mul_i32 s31, s30, 56"); A(f"s_mul_i32 s32, s{S_CB}, 7"); A("s_add_u32 s31, s31, s32"); A("s_lshl_b32 s31, s31, 9"); A(f"s_add_u32 s31, s31, {WS_Z1F}")
        srd_from(A, 64, S_WS, 31, 7*512)
        A("v_lshlrev_b32 v10, 3, v12")
        A(f"s_lshl_b32 s31, s{S_RB2}, 6"); A("s_lshr_b32 s32, s3, 1"); A("s_lshl_b32 s32, s32, 5"); A("s_add_u32 s31, s31, s32")
        A("s_and_b32 s32, s3, 1"); A("s_lshl_b32 s32, s32, 2"); A("s_add_u32 s31, s31, s32")
        A("v_lshrrev_b32 v11, 2, v13"); A("v_lshlrev_b32 v11, 3, v11"); A("v_and_b32 v1, 3, v13"); A("v_add_u32 v11, v11, v1"); A("v_add_u32 v11, s31, v11")
        A("v_lshlrev_b32 v15, 2, v11"); A(f"v_add_u32 v15, {WS_GATE}, v15"); A("v_lshlrev_b32 v11, 1, v11")
        A(f"s_mov_b32 s27, {WS_F1 + 1024}"); A("v_lshl_add_u32 v2, v12, 4, s27")
        A(f"s_lshl_b32 s27, s{S_RB}, 3"); A(f"s_add_u32 s27, s27, s{S_CB}"); A("s_lshl_b32 s27, s27, 3"); A(f"s_add_u32 s27, s27, {WS_F3}"); A("v_mov_b32 v9, s27")
    def epi_list(self):
        out = [(f"buffer_load_dwordx2 {v(16+2*j,2)}, v10, s[64:67], 0 offen offset:{j*512} sc1", 'epi') for j in range(7)]
        out += [(f"global_load_ushort v30, v11, s[{S_BSP}:{S_BSP+1}]", 'epi'), (f"global_load_dword v31, v15, s[{S_WS}:{S_WS+1}] sc1", 'epi')]
        return out
    def wlist(self, kind):
        out = []
        if kind == 'Wo':
            for s_ in range(4):
                out.append((f"s_add_u32 s30, s28, {s_*4096}", None))
                out += [(f"buffer_load_dwordx4 {a((s_*4+uu)*4,4)}, v3, s[8:11], s30 offen offset:{uu*1024} sc1", ('Wo', s_)) for uu in range(4)]
        if kind == 'Wh':
            for s_ in range(7):
                out += [(t, None) for t in rot7(s_)]
                out += [(f"buffer_load_dwordx4 {a(64+(s_*4+uu)*4,4)}, v3, s[8:11], s30 offen offset:{uu*1024} sc1", ('Wh', s_)) for uu in range(4)]
        if kind == 'Ao':
            for s_ in range(4):
                out.append((f"s_add_u32 s32, s28, {s_*4096}", None))
                out += [(f"buffer_load_dwordx4 {a(176+(s_*4+tau)*4,4)}, v{5+tau}, s[16:19], s32 offen sc1", ('Ao', s_)) for tau in range(4)]
        return out
    def loop(self, role):
        A = self.A; L = lambda x: self.L(role + x)
        acc, bfrag, afrag = self.acc, self.bfrag, self.afrag
        for kk in range(16):
            A.wait_vm(('B', kk)); ST(A, ('kk', kk))
            pend = [(kk+3, j) for j in range(7)] if kk + 3 < 16 else []
            if kk == 0 and os.environ.get('ROT', '0') == '1': pend = [(2, j) for j in range(7)] + pend
            if kk in (1, 5, 9): self.touchB({1: 7, 5: 11, 9: 15}[kk])
            m = 0
            if kk == 4:
                A.wait_vm('z1st'); A("s_barrier")
                if role == 'z':
                    A(f"s_lshl_b32 s24, s{S_RB}, 3"); A(f"s_add_u32 s24, s24, s{S_CB}"); A("s_lshl_b32 s24, s24, 3"); A(f"s_add_u32 s24, s24, {WS_F3}")
                    signal(A, L, 'sigz1', 24, vtmp=20)
            if kk == 8:
                A(f"global_load_dwordx4 v[16:19], v2, s[{S_WS}:{S_WS+1}] sc1", tag='fl')
                A(f"global_load_dwordx2 v[20:21], v9, s[{S_WS}:{S_WS+1}] sc1", tag='fl')
            if kk == 12:
                def check():
                    return [f"v_xor_b32 v{16+q}, s{S_TAG + (q & 1)}, v{16+q}" for q in range(6)] + ["v_or3_b32 v16, v16, v17, v18", "v_or3_b32 v19, v19, v20, v21", "v_or_b32 v16, v16, v19", "v_cmp_eq_u32 vcc, 0, v16"]
                A.wait_vm('fl')
                for t in check(): A(t)
                A("s_nop 1"); A("s_cmp_eq_u64 vcc, exec"); A(f"s_cbranch_scc1 {L('allok')}")
                A.raw("  s_mov_b32 s33, 0")
                A.raw(f"{L('allloop')}:")
                A.raw(f"  global_load_dwordx4 v[16:19], v2, s[{S_WS}:{S_WS+1}] sc1"); A.raw(f"  global_load_dwordx2 v[20:21], v9, s[{S_WS}:{S_WS+1}] sc1")
                A.raw("  s_add_u32 s33, s33, 1"); A.raw("  s_waitcnt vmcnt(0)")
                for t in check(): A.raw("  " + t)
                A.raw("  s_nop 1"); A.raw("  s_cmp_eq_u64 vcc, exec"); A.raw(f"  s_cbranch_scc1 {L('allok')}")
                A.raw(f"  s_sleep {SLEEP}"); A.raw("  s_cmp_lt_u32 s33, 0x20000"); A.raw(f"  s_cbranch_scc1 {L('allloop')}")
                A.label(L('allok'))
            if kk == 13:
                A.bg += self.epi_list() + self.wlist('Wo')[:15]; A.bg_every = 4
            for j in range(7):
                for tau in range(4):
                    c = v(acc(j,tau),4)
                    A(f"v_mfma_f32_16x16x32_bf16 {c}, {v(bfrag(kk,j),4)}, {a(afrag(kk,tau),4)}, {c if kk else 0}")
                    m += 1
                    if pend and (m % 4 == 1 or (kk == 0 and m % 2 == 1)):
                        k3, jj = pend.pop(0)
                        if jj == 0:
                            for t in self.soffB(k3): A(t)
                        A(f"buffer_load_dwordx4 {v(bfrag(k3,jj),4)}, v{3 if jj < 4 else 4}, s[12:15], s27 offen offset:{(jj % 4)*1024} sc1", tag=('B', k3))
            A.check_vm()
        A.bg_flush(); A.bg_every = 0

def phase2_tail(A, L):
    p2 = P2(A, L); acc = p2.acc; wlist = p2.wlist
    rest = wlist('Wo')[15:] + wlist('Ao') + wlist('Wh')
    nA = len(wlist('Wo')[15:]) + 10
    A.bg += rest[:nA]; bg_late = rest[nA:]; A.bg_every = 7; A.bg_classes = ('valu', 'ds')
    ST(A, 11)
    A("s_mul_i32 s23, s3, 21504"); A("v_add_u32 v9, s23, v3")
    for tau in (1,2,3):
        A(f"s_xor_b32 s24, s3, {tau}"); A("s_mul_i32 s24, s24, 21504"); A(f"s_add_u32 s24, s24, {(tau-1)*7168}"); A(f"v_add_u32 v{(10,11,15)[tau-1]}, s24, v3")
    for tau in (1,2,3):
        for j in range(7): A(f"ds_write_b128 v9, {v(acc(j,tau),4)} offset:{(tau-1)*7168+j*1024}", tag='w')
    A.wait_lg(); ST(A, 'red_w'); A("s_barrier"); ST(A, 'red_b')
    T0 = 144
    for tau in (1,2,3):
        for j in range(7): A(f"ds_read_b128 {v(T0+((tau-1)*7+j)*4,4)}, v{(10,11,15)[tau-1]} offset:{j*1024}", tag=('r',tau))
    for tau in (1,2,3):
        A.wait_lg(('r',tau))
        for j in range(7):
            c = acc(j,0); t = T0+((tau-1)*7+j)*4
            A(f"v_pk_add_f32 {v(c,2)}, {v(c,2)}, {v(t,2)}"); A(f"v_pk_add_f32 {v(c+2,2)}, {v(c+2,2)}, {v(t+2,2)}")
    A.bg_flush(); A.bg_every = 0
    ST(A, 'red_r')
    A.wait_vm('epi')
    A("v_lshlrev_b32 v30, 16, v30"); A("v_sub_f32 v31, 1.0, v31")
    H = 144
    for j in range(7):
        c = acc(j,0)
        for r in range(4):
            z = 16 + 2*j + (r >> 1); t = 1 + (r & 1)
            if r & 1: A(f"v_and_b32 v{t}, 0xffff0000, v{z}")
            else: A(f"v_lshlrev_b32 v{t}, 16, v{z}")
            A(f"v_add_f32 v{c+r}, v{c+r}, v30")
            A(f"v_mul_f32 v{t}, v{t}, v31")
            A(f"v_mul_f32 v{c+r}, v{c+r}, v{t}")
        A(f"v_cvt_pk_bf16_f32 v{H+2*j}, v{c}, v{c+1}"); A(f"v_cvt_pk_bf16_f32 v{H+2*j+1}, v{c+2}, v{c+3}")
    ST(A, 'hcomp')
    A.bg_classes = ('valu', 'mfma')
    A.wait_vm(('Wo', 2))
    A("v_lshlrev_b32 v2, 3, v12")
    A(f"s_mul_i32 s24, s{S_CB}, 7"); A("s_lshr_b32 s33, s24, 1"); A("s_add_u32 s33, s33, 16"); A("s_lshl_b32 s33, s33, 12")
    A("s_lshl_b32 s23, s3, 10"); A("s_add_u32 s33, s33, s23")
    A("s_and_b32 s24, s24, 1"); A("s_cmp_eq_u32 s24, 0"); A(f"s_cbranch_scc0 {L('odd')}")
    vm0 = list(A.vm)
    for p in range(3):
        A(f"buffer_store_dwordx4 {v(H+4*p,4)}, v3, s[16:19], s33 offen sc1", tag='hst'); A("s_add_u32 s33, s33, 4096")
    A(f"buffer_store_dwordx2 {v(H+12,2)}, v2, s[16:19], s33 offen sc1", tag='hst')
    A(f"s_branch {L('hfin')}")
    A.label(L('odd')); A.vm = list(vm0)
    A(f"buffer_store_dwordx2 {v(H,2)}, v2, s[16:19], s33 offen offset:512 sc1", tag='hst')
    for p in range(3):
        A("s_add_u32 s33, s33, 4096"); A(f"buffer_store_dwordx4 {v(H+2+4*p,4)}, v3, s[16:19], s33 offen sc1", tag='hst')
    A.label(L('hfin'))
    ST(A, 12)
    for t, tg in bg_late[:10]: A(t, tag=tg)
    return bg_late[10:]

def phase3(A, L, late):
    ACC = 32; acc = lambda uu, tau: ACC + (uu*4+tau)*4
    HA = 96
    A.wait_vm('hst'); ST(A, 'hack'); A("s_barrier")
    A(f"s_lshl_b32 s27, s{S_RB2}, 7"); A(f"s_lshl_b32 s26, s{S_CB}, 3"); A("s_add_u32 s27, s27, s26"); A(f"s_add_u32 s27, s27, {WS_F2}")
    signal(A, L, 'sighd', 27)
    A(f"s_cmp_eq_u32 s{S_CB}, 7"); A(f"s_cbranch_scc1 {L('fin')}")
    ST(A, 13)
    A.bg += late; A.bg_every = 2
    for s_ in range(4):
        A.wait_vm([('Wo', s_), ('Ao', s_)])
        for tau in range(4):
            for uu in range(4):
                c = v(acc(uu,tau),4)
                A(f"v_mfma_f32_16x16x32_bf16 {c}, {a((s_*4+uu)*4,4)}, {a(176+(s_*4+tau)*4,4)}, {c if s_ else 0}")
    A.bg_flush(); A.bg_every = 0
    ST(A, 'opart')
    A("s_mul_i32 s26, s3, 12288"); A("v_add_u32 v20, s26, v3")
    for tau in (1,2,3):
        A(f"s_xor_b32 s26, s3, {tau}"); A("s_mul_i32 s26, s26, 12288"); A(f"s_add_u32 s26, s26, {(tau-1)*4096}"); A(f"v_add_u32 v{20+tau}, s26, v3")
    A("v_bfe_u32 v15, v13, 2, 1"); A("v_lshlrev_b32 v15, 3, v15"); A("v_and_b32 v16, 3, v13"); A("v_add_u32 v15, v15, v16")
    A(f"s_lshl_b32 s26, s{S_RB2}, 6"); A("s_lshr_b32 s27, s3, 1"); A("s_lshl_b32 s27, s27, 5"); A("s_add_u32 s26, s26, s27")
    A("s_and_b32 s27, s3, 1"); A("s_lshl_b32 s27, s27, 2"); A("s_add_u32 s26, s26, s27")
    A("v_add_u32 v15, s26, v15"); A("v_mul_u32_u24 v15, 896, v15")
    A("v_lshrrev_b32 v16, 3, v13"); A("v_lshl_add_u32 v16, v16, 2, v14"); A("v_lshlrev_b32 v16, 4, v16")
    A(f"s_lshl_b32 s27, s{S_CB}, 7"); A("v_add_u32 v16, s27, v16"); A("v_add_u32 v1, v15, v16")
    A(f"s_mov_b32 s26, {16*896}")
    srd_from(A, 12, S_OUT, None, S*D*2)
    for tau in range(4):
        A(f"s_xor_b32 s24, s3, {tau}"); A("s_lshl_b32 s24, s24, 10"); A(f"v_lshl_add_u32 v{24+tau}, v12, 3, s24")
    A(f"s_lshl_b32 s27, s{S_RB2}, 7"); A(f"s_add_u32 s27, s27, {WS_F2}"); A("v_lshl_add_u32 v17, v12, 3, s27")
    poll(A, L, 'pb', 17, 8)
    ST(A, 14)
    def hload(s_):
        out = [(t, None) for t in rot7(s_)]
        for tau in range(4):
            r = HA + (s_*4+tau)*4
            if s_ < 6: out.append((f"buffer_load_dwordx4 {v(r,4)}, v{5+tau}, s[16:19], s30 offen sc1", ('Ah', s_)))
            else:
                out.append((f"buffer_load_dwordx2 {v(r,2)}, v{24+tau}, s[16:19], s30 offen sc1", ('Ah', s_)))
                out.append((f"buffer_load_dwordx2 {v(r+2,2)}, v{24+tau}, s[16:19], s30 offen offset:512 sc1", ('Ah', s_)))
        return out
    for s_ in range(3):
        for t, tg in hload(s_): A(t, tag=tg)
    for s_ in range(7):
        A.wait_vm(('Ah', s_))
        if s_ == 0: ST(A, 'ah0')
        if s_ == 6: ST(A, 'ahN')
        if s_ + 3 < 7: A.bg += hload(s_ + 3); A.bg_every = 3
        for tau in range(4):
            for uu in range(4):
                c = v(acc(uu,tau),4)
                A(f"v_mfma_f32_16x16x32_bf16 {c}, {a(64+(s_*4+uu)*4,4)}, {v(HA+(s_*4+tau)*4,4)}, {c}")
        A.bg_flush(); A.bg_every = 0
    if not os.environ.get('ENDST'): ST(A, 15)
    for tau in (1,2,3):
        for uu in range(4): A(f"ds_write_b128 v20, {v(acc(uu,tau),4)} offset:{(tau-1)*4096+uu*1024}", tag='w')
    A.wait_lg(); A("s_barrier")
    ST(A, 'p3red')
    T0 = 208
    for tau in (1,2,3):
        for uu in range(4): A(f"ds_read_b128 {v(T0+((tau-1)*4+uu)*4,4)}, v{20+tau} offset:{uu*1024}", tag=('r',tau))
    for tau in (1,2,3):
        A.wait_lg(('r',tau))
        for uu in range(4):
            c = acc(uu,0); t = T0+((tau-1)*4+uu)*4
            A(f"v_pk_add_f32 {v(c,2)}, {v(c,2)}, {v(t,2)}"); A(f"v_pk_add_f32 {v(c+2,2)}, {v(c+2,2)}, {v(t+2,2)}")
    for vv in range(2):
        o = 96 + 4*vv; c0 = acc(2*vv,0); c1 = acc(2*vv+1,0)
        A(f"v_cvt_pk_bf16_f32 v{o}, v{c0}, v{c0+1}"); A(f"v_cvt_pk_bf16_f32 v{o+1}, v{c0+2}, v{c0+3}")
        A(f"v_cvt_pk_bf16_f32 v{o+2}, v{c1}, v{c1+1}"); A(f"v_cvt_pk_bf16_f32 v{o+3}, v{c1+2}, v{c1+3}")
    A("v_cmp_gt_u32 vcc, 8, v13"); A("v_cmp_le_u32 s[24:25], 8, v13")
    for q in range(4):
        A(f"v_mov_b32_dpp v{104+q}, v{100+q} row_ror:8 row_mask:0xf bank_mask:0xf")
        A(f"v_mov_b32_dpp v{108+q}, v{96+q} row_ror:8 row_mask:0xf bank_mask:0xf")
    for q in range(4):
        A(f"v_cndmask_b32 v{104+q}, v{104+q}, v{96+q}, vcc")
        A(f"v_cndmask_b32 v{108+q}, v{108+q}, v{100+q}, s[24:25]")
    ST(A, 'p3st')
    A(f"buffer_store_dwordx4 v[104:107], v1, s[12:15], 0 offen {os.environ.get('OUTSC', 'sc1')}")
    A(f"buffer_store_dwordx4 v[108:111], v1, s[12:15], s26 offen {os.environ.get('OUTSC', 'sc1')}")

def gen_mega(name="mega", code_bytes=0):
    Stamps.map = [78+2*k for k in range(11)] + [4, 6, 42, 0, 74+0*0]
    A = Asm(); L = lambda x: f"{name}_{x}"
    A("s_cmp_ge_u32 s2, 256"); A(f"s_cbranch_scc1 {L('end')}")
    if os.environ.get('DELAY'):
        A.raw(f"  s_mov_b32 s30, {os.environ['DELAY']}")
        A.raw(f"{L('dly')}:")
        for q in range(16): A.raw(f"  v_add_u32 v{100+q}, v{100+q}, v0")
        A.raw("  s_sub_u32 s30, s30, 1"); A.raw("  s_cmp_lg_u32 s30, 0"); A.raw(f"  s_cbranch_scc1 {L('dly')}")
    ST(A, 0)
    A("s_load_dwordx16 s[36:51], s[0:1], 0")
    A("s_load_dwordx8 s[52:59], s[0:1], 64")
    A("v_lshrrev_b32 v6, 6, v0"); A("s_getreg_b32 s20, hwreg(HW_REG_XCC_ID)"); A("v_readfirstlane_b32 s3, v6")
    if code_bytes and os.environ.get('ECP', '1') == '1':
        A("s_cmp_lg_u32 s3, 1"); A(f"s_cbranch_scc1 {L('noecp')}")
        A.raw("  s_getpc_b64 s[22:23]"); A.raw(f"{name}_pc0:")
        A.raw("  v_and_b32 v10, 31, v0"); A.raw("  v_lshlrev_b32 v10, 7, v10"); A.raw("  v_bfe_u32 v11, v0, 5, 1")
        A.raw(f"  v_mul_u32_u24 v11, {L('qrole')}-{name}_pc0, v11"); A.raw("  v_add_u32 v10, v10, v11")
        A.raw("  global_load_dword v56, v10, s[22:23]")
        A.label(L('noecp'))
    A("v_and_b32 v12, 63, v0")
    A("s_and_b32 s20, s20, 7")
    A("v_and_b32 v13, 15, v12"); A("v_lshrrev_b32 v14, 4, v12")
    A(f"v_mov_b32 v18, {L_TICKET}"); A("v_mov_b32 v17, 0")
    A.wait_lg(); ST(A, 'karg')
    A("s_cmp_lg_u32 s3, 0"); A(f"s_cbranch_scc1 {L('notick')}")
    A.raw("  s_lshl_b32 s30, s20, 5"); A.raw("  v_mov_b32 v10, s30"); A.raw("  v_mov_b32 v19, 1")
    A.raw("  s_mov_b64 s[34:35], exec"); A.raw("  s_mov_b64 exec, 1")
    A.raw(f"  global_atomic_add v59, v10, v19, s[{S_DBG}:{S_DBG+1}] sc0 sc1")
    A.raw("  s_mov_b64 exec, s[34:35]")
    A.raw("  s_waitcnt vmcnt(0)")
    A.raw("  v_readfirstlane_b32 s30, v59"); A.raw("  s_nop 1"); A.raw("  v_mov_b32 v59, s30")
    A.raw("  ds_write_b32 v18, v59"); A.raw("  s_waitcnt lgkmcnt(0)")
    A.raw(f"  s_branch {L('tickd')}")
    A.label(L('notick'))
    if os.environ.get('TLBW', '1') == '1':
        for ptr in (S_X, S_WQKV, S_WIN, S_GW, S_WSP, S_WS): A.raw(f"  global_load_dword v56, v17, s[{ptr}:{ptr+1}]")
    A.label(L('tickd'))
    A("s_barrier"); ST(A, 'tkb')
    A("ds_read_b32 v19, v18", tag='tk')
    A("s_cmp_lg_u32 s3, 0"); A(f"s_cbranch_scc1 {L('notag')}")
    tag_publish(A, L)
    A.wait_lg()
    A("v_readfirstlane_b32 s21, v19")
    A("s_cmp_ge_u32 s21, 32"); A(f"s_cbranch_scc1 {L('end')}")
    A("s_lshl_b32 s24, s21, 2"); A("s_add_u32 s24, s24, s3")
    A("s_and_b32 s25, s20, 1"); A("s_mul_i32 s26, s25, 896")
    A("s_cmp_lt_u32 s24, 43"); A(f"s_cbranch_scc1 {L('tx')}")
    A.raw("  s_cmp_lt_u32 s24, 83"); A.raw(f"  s_cbranch_scc1 {L('tw')}")
    A.raw("  s_sub_u32 s27, s24, 83"); A.raw("  s_mul_i32 s27, s27, 8"); A.raw("  v_lshrrev_b32 v57, 3, v12"); A.raw("  v_add_u32 v57, s27, v57"); A.raw("  v_min_u32 v57, 319, v57")
    A.raw("  v_and_b32 v15, 7, v12"); A.raw("  v_min_u32 v15, 5, v15")
    A.raw("  v_lshrrev_b32 v16, 1, v15"); A.raw("  v_mul_u32_u24 v16, 896, v16"); A.raw("  v_and_b32 v15, 1, v15"); A.raw("  v_lshl_add_u32 v15, v15, 8, v16")
    A.raw("  s_lshr_b32 s26, s26, 1"); A.raw("  v_add_u32 v15, s26, v15")
    A.raw("  v_lshrrev_b32 v61, 3, v12"); A.raw("  s_sub_u32 s27, s24, 83"); A.raw("  s_mul_i32 s27, s27, 3"); A.raw("  v_min_u32 v61, 2, v61"); A.raw("  v_add_u32 v61, s27, v61"); A.raw("  v_add_u32 v61, 320, v61"); A.raw("  v_min_u32 v61, 447, v61")
    A.raw("  v_mul_u32_u24 v61, 2688, v61"); A.raw("  v_add_u32 v61, v61, v15")
    A.raw("  v_mul_u32_u24 v57, 2688, v57"); A.raw("  v_add_u32 v57, v57, v15")
    A.raw("  v_add_u32 v60, 128, v57"); A.raw("  v_add_u32 v62, 128, v61")
    A.raw(f"  global_load_dword v56, v60, s[{S_WQKV}:{S_WQKV+1}]")
    A.raw(f"  s_mov_b32 s28, s{S_WQKV}"); A.raw(f"  s_mov_b32 s29, s{S_WQKV+1}"); A.raw(f"  s_branch {L('tgo')}")
    A.raw(f"{L('tw')}:")
    A.raw("  s_sub_u32 s27, s24, 43"); A.raw("  s_lshl_b32 s27, s27, 3"); A.raw("  v_lshrrev_b32 v57, 3, v12"); A.raw("  v_add_u32 v57, s27, v57")
    A.raw("  v_and_b32 v15, 7, v12"); A.raw("  v_min_u32 v15, 6, v15"); A.raw("  v_lshlrev_b32 v15, 7, v15"); A.raw("  s_add_u32 s26, s26, 1792"); A.raw("  v_add_u32 v15, s26, v15")
    A.raw("  s_sub_u32 s27, s24, 43"); A.raw("  s_lshl_b32 s27, s27, 2"); A.raw("  v_lshrrev_b32 v61, 3, v12"); A.raw("  v_min_u32 v61, 3, v61"); A.raw("  v_add_u32 v61, s27, v61"); A.raw("  v_add_u32 v61, 320, v61"); A.raw("  v_min_u32 v61, 447, v61")
    A.raw("  v_mul_u32_u24 v61, 3584, v61"); A.raw("  v_add_u32 v61, v61, v15"); A.raw("  v_mov_b32 v62, v61")
    A.raw("  v_mul_u32_u24 v57, 3584, v57"); A.raw("  v_add_u32 v57, v57, v15")
    A.raw(f"  s_mov_b32 s28, s{S_WIN}"); A.raw(f"  s_mov_b32 s29, s{S_WIN+1}"); A.raw(f"  s_branch {L('tgo')}")
    A.raw(f"{L('tx')}:")
    A.raw("  s_lshr_b32 s27, s20, 1"); A.raw("  s_lshl_b32 s27, s27, 9"); A.raw("  s_mul_i32 s28, s24, 12")
    A.raw("  v_mul_u32_u24 v57, 13108, v12"); A.raw("  v_lshrrev_b32 v57, 16, v57")
    A.raw("  v_mul_u32_u24 v15, 5, v57"); A.raw("  v_sub_u32 v15, v12, v15")
    A.raw("  v_min_u32 v57, 11, v57"); A.raw("  v_add_u32 v57, s28, v57"); A.raw("  v_min_u32 v57, 511, v57"); A.raw("  v_add_u32 v57, s27, v57"); A.raw("  v_mul_u32_u24 v57, 896, v57")
    A.raw("  v_and_b32 v16, 1, v15"); A.raw("  v_add_u32 v16, 5, v16"); A.raw("  v_lshl_add_u32 v61, v16, 7, v57"); A.raw("  v_mov_b32 v62, v61"); A.raw("  v_lshl_add_u32 v57, v15, 7, v57")
    A.raw(f"  s_mov_b32 s28, s{S_X}"); A.raw(f"  s_mov_b32 s29, s{S_X+1}")
    A.label(L('tgo'))
    A("global_load_dword v56, v57, s[28:29]", tag='pf')
    A("s_mov_b32 s30, s28"); A("s_mov_b32 s31, s29")
    if code_bytes:
        assert code_bytes <= 512*128
        A("s_getpc_b64 s[22:23]"); A.raw(f"{name}_pc:")
        A("v_and_b32 v10, 3, v0"); A("s_lshl_b32 s25, s24, 2"); A("v_add_u32 v10, s25, v10"); A("v_lshlrev_b32 v10, 7, v10")
        A(f"v_min_u32 v10, {L('end')}-{name}_pc, v10"); A("global_load_dword v56, v10, s[22:23]", tag='pf')
    A("s_lshl_b32 s2, s21, 3"); A("s_or_b32 s2, s2, s20")
    A("s_lshr_b32 s33, s21, 4"); A("s_and_b32 s21, s21, 15")
    A("s_lshr_b32 s22, s20, 1"); A("s_lshl_b32 s22, s22, 2"); A("s_lshr_b32 s23, s21, 2"); A("s_add_u32 s22, s22, s23")
    A("s_and_b32 s20, s20, 1"); A("s_lshl_b32 s20, s20, 2"); A("s_and_b32 s21, s21, 3"); A("s_add_u32 s21, s21, s20")
    A("s_mov_b32 s20, s22"); A("s_lshl_b32 s22, s20, 1"); A("s_add_u32 s22, s22, s33")
    ST(A, 'tick')
    A("s_cmp_eq_u32 s33, 0"); A(f"s_cbranch_scc0 {L('qrole')}")
    vm0 = list(A.vm); lg0 = list(A.lg)
    role_z(A, L)
    vmz = list(A.vm)
    A(f"s_branch {L('p2')}")
    A.label(L('qrole')); A.vm = list(vm0); A.lg = list(lg0)
    role_q(A, L)
    vmj = list(A.vm)
    assert vmj[-21:] == vmz[-21:], (vmj, vmz)
    vmj = vmj[-21:] if len(vmj) >= len(vmz) else vmz
    A.label(L('p2')); A.vm = vmj; A.lg = []
    wl = phase2_tail(A, L)
    phase3(A, L, wl)
    if Stamps.enabled:
        A.raw("  s_waitcnt vmcnt(0)")
        if os.environ.get('ENDST'): Stamps.mark(A, 15)
    A.label(L('fin'))
    if os.environ.get('DBGOUT'):
        A.raw("  s_waitcnt vmcnt(0) lgkmcnt(0)")
        A.raw(f"  s_cmp_lg_u32 s2, {os.environ['DBGOUT']}"); A.raw(f"  s_cbranch_scc1 {L('end')}"); A.raw("  s_cmp_lg_u32 s3, 0"); A.raw(f"  s_cbranch_scc1 {L('end')}")
        A.raw("  v_mov_b32 v250, 0")
        for k in range(1, 15):
            kk = k if k < 14 else 15
            A.raw(f"  s_sub_u32 s100, s{Stamps.reg(kk)}, s{Stamps.reg(0)}"); A.raw("  v_mov_b32 v251, s100")
            A.raw(f"  global_store_dword v250, v251, s[{S_DBG}:{S_DBG+1}] offset:{4*(k+1)}")
    else:
        Stamps.flush(A, 0, 16, S_WS)
    A.label(L('end'))
    A("s_endpgm")
    return A

if __name__ == "__main__":
    import sys, asmlib
    from build import assemble
    if len(sys.argv) > 2 and sys.argv[2].startswith('stamp'): asmlib.Stamps.enabled = True
    if len(sys.argv) > 2 and sys.argv[2] == 'stampcyc': asmlib.Stamps.op = 's_memtime'
    t = gen_mega().text(); sz = len([l for l in t.split('\n') if l.startswith('  ')])*8
    A = gen_mega(code_bytes=sz)
    if os.environ.get('FINAL'):
        from build import assemble_single
        open(sys.argv[1], 'w').write(assemble_single(dict(name="gated_mix__sliding_local_dilated__mixer_gmlp__prompt_kernel", text=A.text(), grid=256, block=256, lds=163840, vgpr=512, accum=256)))
    else:
        open(sys.argv[1], 'w').write(assemble([dict(name="mega_kernel", text=A.text(), grid=256, block=256, lds=163840, vgpr=512, accum=256)]))
    print("nops", A.nops_inserted, "est bytes", sz)
```

```python
S, D, F, FH = 2048, 448, 1792, 896
WS_Z2F = 0
WS_Z1F = 0x380000
WS_AF  = 0x700000
WS_WF  = 0xC80000
WS_GATE= 0xDB4000
WS_LNP = 0xDB6000
WS_END = 0xDD6000
KA_AX, KA_WQKV, KA_WO, KA_BX, KA_WIN, KA_WSP, KA_BSP, KA_WOUT, KA_GW, KA_OUT, KA_DBG, KA_WS = [8*i for i in range(12)]
def trow(TT, i):
    return 32*(TT >> 1) + 8*(i >> 2) + 4*(TT & 1) + (i & 3)
def dslot(g, e):
    return 4*g + e if e < 4 else 16 + 4*g + (e-4)

WS_F0 = 0xDD8000
WS_F1 = 0xDDA000
WS_F2 = 0xDDC000
WS_F3 = 0xDDE000
WS_END = 0xDE0000

FS = 4352
WS_F0 = 0xE20000
WS_F1Z = 0xE40000
WS_F1Q = 0xE60000
WS_F2 = 0xE80000
WS_F3 = 0xEC0000
WS_END2 = 0xF00000
```

```python
from asmlib import *
from layout import *
from k1z import hexf, gelu_pairs, GELU_C1, GELU_C2
import os
PROFILE = os.environ.get('PROFILE', 'all')
SLEEP = int(os.environ.get('SLEEP', '2'))
def ST(A, k):
    if PROFILE == 'all':
        if isinstance(k, int): Stamps.mark(A, k)
    elif PROFILE == 'p1':
        if isinstance(k, str): return
        if isinstance(k, int) and k in (0, 1, 2): Stamps.mark(A, k)
        elif isinstance(k, int) and k == 3: Stamps.mark(A, 10)
        elif isinstance(k, int) and k == 4: Stamps.mark(A, 11)
        elif isinstance(k, tuple) and k[0] == 'g': Stamps.mark(A, 3 + k[1])
        elif isinstance(k, int) and k in (5, 6, 7, 8): Stamps.mark(A, 7 + k)
    elif PROFILE == 'p9':
        m = {0: 0, 3: 1, 'gelu1': 2, 'stat1': 3, 4: 4, 'w2': 5, 5: 6, 7: 7, 'lnq': 8, 'comb': 9, 'norm': 10, 'pubw': 11, 6: 12, 9: 13, 10: 14, 8: 15}
        if k in m: Stamps.mark(A, m[k])
    elif PROFILE == 'p8':
        if k == 0: Stamps.mark(A, 0)
        elif isinstance(k, tuple) and k[0] == 'gs' and k[1] in (2, 3): Stamps.mark(A, 1 + (k[1]-2)*6 + k[2])
    elif PROFILE == 'p7':
        m = {0: 0, 11: 1, 'red_w': 2, 'red_b': 3, 'red_r': 4, 'hcomp': 5, 12: 6, 'hack': 7, 13: 8, 'opart': 9, 14: 10, 'ah0': 11, 'ahN': 12, 'p3red': 13, 'p3st': 14}
        if k in m: Stamps.mark(A, m[k])
    elif PROFILE == 'p6':
        m = {0: 0, 'karg': 1, 'tkb': 2, 'tick': 3, 'rsetup': 4, 1: 5, 2: 6, ('g', 0): 7, ('g', 1): 8, ('g', 2): 9, ('g', 3): 10, 3: 11}
        if k in m: Stamps.mark(A, m[k])
    elif PROFILE == 'p5':
        if k == 0: Stamps.mark(A, 0)
        elif k == 10: Stamps.mark(A, 1)
        elif isinstance(k, tuple) and k[0] == 'kk' and k[1] in (0,1,2,3,4,5,6,8,10,12,14,15): Stamps.mark(A, 2 + (0,1,2,3,4,5,6,8,10,12,14,15).index(k[1]))
        elif k == 11: Stamps.mark(A, 14)
    elif PROFILE == 'p4':
        m = {0: 0, 3: 1, 4: 2, 'w2': 3, ('au', 0): 4, ('au', 1): 5, ('au', 2): 6, ('au', 3): 7, ('au', 4): 8, ('au', 5): 9, ('au', 6): 10, ('au', 7): 11, 5: 12, 7: 13, 6: 14}
        if k in m: Stamps.mark(A, m[k])
    elif PROFILE == 'p3':
        m = {0: 0, 3: 1, 4: 2, 5: 3, 6: 4, 7: 5, 'lnq': 6, 'norm': 7, 'pubw': 8, 'sig': 9, 8: 10, 10: 11, 11: 12, 'w2': 13, 'st0': 14, 'st3': 15}
        if k in m: Stamps.mark(A, m[k])
    elif PROFILE == 'p2':
        m = {0: 0, 3: 1, 4: 2, 8: 13, 10: 14, 'z1in': 3, 'z1out': 11, 'z1epi': 12, 11: 15}
        if isinstance(k, tuple) and k[0] == 'z': Stamps.mark(A, 4 + k[1])
        elif k in m: Stamps.mark(A, m[k])

S_X, S_WQKV, S_WO, S_WIN, S_WSP, S_BSP, S_WOUT = 36, 38, 40, 44, 46, 48, 50
S_GW, S_OUT, S_DBG, S_WS = 52, 54, 56, 58
S_RB, S_CB, S_RB2 = 20, 21, 22
SRD_A = 60
OOB = 0x7fff0000
C_LN, C_ZD, C_QD, C_HD = 0, 16, 24, 32

def srd_from(A, d, ptr, off_sreg, nbytes):
    if off_sreg is None:
        A(f"s_mov_b32 s{d}, s{ptr}"); A(f"s_and_b32 s{d+1}, s{ptr+1}, 0xffff")
    else:
        A(f"s_add_u32 s{d}, s{ptr}, s{off_sreg}"); A(f"s_addc_u32 s{d+1}, s{ptr+1}, 0"); A(f"s_and_b32 s{d+1}, s{d+1}, 0xffff")
    A(f"s_mov_b32 s{d+2}, {nbytes}"); A(f"s_mov_b32 s{d+3}, 0x20000")

S_TAG = 76
def tag_publish(A, L):
    A.raw("  s_cmp_lg_u32 s2, 0"); A.raw(f"  s_cbranch_scc1 {L('notag')}")
    A.raw("  s_memrealtime s[30:31]"); A.raw("  s_waitcnt lgkmcnt(0)"); A.raw("  s_or_b32 s30, s30, 1")
    A.raw("  v_mov_b32 v60, s30"); A.raw("  v_mov_b32 v61, s31"); A.raw("  v_mov_b32 v62, 16")
    A.raw("  s_mov_b64 s[34:35], exec"); A.raw("  s_mov_b64 exec, 1")
    A.raw(f"  global_store_dwordx2 v62, v[60:61], s[{S_DBG}:{S_DBG+1}] sc1")
    A.raw("  s_mov_b64 exec, s[34:35]")
    A.raw(f"{L('notag')}:")
def tag_issue(A):
    A("v_mov_b32 v9, 16"); A(f"global_load_dwordx2 v[10:11], v9, s[{S_DBG}:{S_DBG+1}] sc1", tag='tagld')
def tag_take(A, L):
    A.wait_vm('tagld')
    A(f"v_readfirstlane_b32 s{S_TAG}, v10"); A(f"v_readfirstlane_b32 s{S_TAG+1}, v11")
    A(f"s_cmp_lg_u32 s{S_TAG}, 0"); A(f"s_cbranch_scc1 {L('tagd')}")
    A.raw("  s_mov_b32 s33, 0")
    A.raw(f"{L('tagl')}:")
    A.raw(f"  global_load_dwordx2 v[10:11], v9, s[{S_DBG}:{S_DBG+1}] sc1")
    A.raw("  s_add_u32 s33, s33, 1")
    A.raw("  s_waitcnt vmcnt(0)")
    A.raw(f"  v_readfirstlane_b32 s{S_TAG}, v10"); A.raw(f"  v_readfirstlane_b32 s{S_TAG+1}, v11")
    A.raw("  s_nop 1")
    A.raw(f"  s_cmp_lg_u32 s{S_TAG}, 0"); A.raw(f"  s_cbranch_scc1 {L('tagd')}")
    A.raw("  s_cmp_lt_u32 s33, 0x20000"); A.raw(f"  s_cbranch_scc1 {L('tagl')}")
    A.label(L('tagd'))

def signal(A, L, tag, off_sreg, vtmp=16):
    A("s_cmp_lg_u32 s3, 0"); A(f"s_cbranch_scc1 {L(tag)}")
    A.raw(f"  v_mov_b32 v{vtmp+2}, s{off_sreg}"); A.raw(f"  v_mov_b32 v{vtmp}, s{S_TAG}"); A.raw(f"  v_mov_b32 v{vtmp+1}, s{S_TAG+1}")
    A.raw("  s_mov_b64 s[34:35], exec"); A.raw("  s_mov_b64 exec, 1")
    A.raw(f"  global_store_dwordx2 v{vtmp+2}, v[{vtmp}:{vtmp+1}], s[{S_WS}:{S_WS+1}] sc1")
    A.raw("  s_mov_b64 exec, s[34:35]")
    A.label(L(tag))

def poll(A, L, tag, vaddr, nlanes):
    A("s_cmp_lg_u32 s3, 0"); A(f"s_cbranch_scc1 {L(tag+'_done')}")
    A.raw("  s_mov_b32 s33, 0"); A.raw("  s_mov_b64 s[34:35], exec"); A.raw(f"  s_mov_b64 exec, {hex((1 << nlanes) - 1) if nlanes < 64 else -1}")
    A.label(L(tag+'_loop'))
    A.raw(f"  global_load_dwordx2 v[18:19], v{vaddr}, s[{S_WS}:{S_WS+1}] sc1")
    A.raw("  s_add_u32 s33, s33, 1")
    A.raw("  s_waitcnt vmcnt(0)")
    A.raw(f"  v_xor_b32 v18, s{S_TAG}, v18"); A.raw(f"  v_xor_b32 v19, s{S_TAG+1}, v19"); A.raw("  v_or_b32 v18, v18, v19")
    A.raw("  v_cmp_eq_u32 vcc, 0, v18")
    A.raw("  s_nop 1")
    A.raw("  s_cmp_eq_u64 vcc, exec")
    A.raw(f"  s_cbranch_scc1 {L(tag+'_out')}")
    A.raw(f"  s_sleep {SLEEP}")
    A.raw("  s_cmp_lt_u32 s33, 0x20000")
    A.raw(f"  s_cbranch_scc1 {L(tag+'_loop')}")
    A.label(L(tag+'_out'))
    A.raw("  s_mov_b64 exec, s[34:35]")
    A.label(L(tag+'_done'))
    A("s_barrier")

def poll_wave(A, L, tag, vaddr, reset=True):
    A.raw("  s_mov_b32 s33, 0")
    A.label(L(tag+'_loop'))
    A.raw(f"  global_load_dwordx2 v[18:19], v{vaddr}, s[{S_WS}:{S_WS+1}] sc1")
    A.raw("  s_add_u32 s33, s33, 1")
    A.raw("  s_waitcnt vmcnt(0)")
    A.raw(f"  v_xor_b32 v18, s{S_TAG}, v18"); A.raw(f"  v_xor_b32 v19, s{S_TAG+1}, v19"); A.raw("  v_or_b32 v18, v18, v19")
    A.raw("  v_cmp_eq_u32 vcc, 0, v18")
    A.raw("  s_nop 1")
    A.raw("  s_cmp_eq_u64 vcc, exec")
    A.raw(f"  s_cbranch_scc1 {L(tag+'_out')}")
    A.raw(f"  s_sleep {SLEEP}")
    A.raw("  s_cmp_lt_u32 s33, 0x20000")
    A.raw(f"  s_cbranch_scc1 {L(tag+'_loop')}")
    A.label(L(tag+'_out'))
    if reset: A.vm = []

class AService:
    VD, VR, VL = 232, 236, 240
    def __init__(self, A): self.A = A
    def setup(self):
        A = self.A
        A(f"s_lshl_b32 s23, s{S_RB2}, 18"); srd_from(A, SRD_A, S_WSP, 23, 64*4096)
        A("v_lshrrev_b32 v16, 3, v12"); A("v_and_b32 v17, 7, v12"); A("v_and_b32 v18, 3, v16"); A("v_xor_b32 v17, v17, v18")
        A("v_lshlrev_b32 v17, 4, v17"); A("v_lshl_add_u32 v17, v16, 12, v17")
        for uu in range(4):
            if uu & 1: A(f"v_xor_b32 v{self.VD+uu}, 64, v17")
            else: A(f"v_mov_b32 v{self.VD+uu}, v17")
            if uu: A(f"v_add_u32 v{self.VD+uu}, {uu*(32768-1024)}, v{self.VD+uu}")
        A("v_lshrrev_b32 v16, 2, v13"); A("v_lshlrev_b32 v16, 3, v16"); A("v_and_b32 v17, 3, v13"); A("v_add_u32 v16, v16, v17")
        A("v_and_b32 v17, 7, v13"); A("v_xor_b32 v17, v17, v14"); A("v_lshlrev_b32 v17, 4, v17"); A(f"v_lshl_add_u32 v{self.VL}, v16, 7, v17")
        A("s_lshr_b32 s23, s3, 1"); A("s_lshl_b32 s68, s23, 17"); A("s_lshl_b32 s23, s3, 10"); A("s_add_u32 s68, s68, s23")
        A("s_xor_b32 s69, s68, 0x20000")
    BASES = {'A': (74, 236), 'B': (75, 241)}
    def base(self, name, per_wave, start):
        A = self.A; sr, vr = self.BASES[name]
        A(f"s_mul_i32 s{sr}, s3, {per_wave}"); A(f"s_add_u32 s{sr}, s{sr}, {start}")
        A("s_and_b32 s23, s3, 1"); A("s_lshl_b32 s23, s23, 9"); A(f"s_add_u32 s23, s23, s{sr}")
        for b in range(2):
            if b: A("s_xor_b32 s23, s23, 512")
            A(f"v_add_u32 v{vr+2*b}, s23, v{self.VL}"); A(f"v_xor_b32 v{vr+2*b+1}, 64, v{vr+2*b}")
    def dma(self, n, slot):
        ss, gt = n >> 1, n & 1; sr, vr = self.BASES[slot[0]]
        if os.environ.get('ROT', '0') == '1':
            so = [(f"s_add_u32 s70, s{S_RB2}, {ss}", None), ("s_and_b32 s70, s70, 7", None), ("s_lshl_b32 s70, s70, 7", None), (f"s_add_u32 s70, s70, s{68+gt}", None)]
        else: so = [(f"s_add_u32 s70, s{68+gt}, {ss*128}", None)]
        return [(f"s_add_u32 m0, s{sr}, {slot[1]*4096}", None)] + so + \
               [(f"buffer_load_dwordx4 v{self.VD+uu}, s[{SRD_A}:{SRD_A+3}], s70 offen offset:{uu*1024} lds", ('Au', n)) for uu in range(4)]
    def read(self, n, slot):
        ss, gt = n >> 1, n & 1; sr, vr = self.BASES[slot[0]]
        for b in range(2):
            for h in range(2):
                tau = 2*gt + b
                self.A(f"ds_read_b128 {a((ss*8 + h*4 + tau)*4, 4)}, v{vr+2*b+h} offset:{slot[1]*4096}", tag=('Ar', n))
    def emit_dma(self, units, slots):
        for n, sl in zip(units, slots):
            for t, tg in self.dma(n, sl): self.A(t, tag=tg)
    def bg_dma(self, units, slots):
        for n, sl in zip(units, slots): self.A.bg += self.dma(n, sl)
    def wait_read(self, units, slots):
        self.A.wait_vm(('Au', units[-1]))
        for n, sl in zip(units, slots): self.read(n, sl)

class WFJob:
    def __init__(self, A): self.A = A
    def setup(self, slot_sreg, slot_off):
        A = self.A
        A(f"s_lshl_b32 s23, s{S_RB}, 3"); A(f"s_add_u32 s23, s23, s{S_CB}"); A("s_lshl_b32 s23, s23, 2"); A("s_add_u32 s23, s23, s3")
        A("s_min_u32 s24, s23, 307")
        A("s_mul_i32 s26, s24, 1490"); A("s_lshr_b32 s26, s26, 16")
        A("s_mul_i32 s27, s26, 44"); A("s_sub_u32 s27, s24, s27")
        A("s_mul_i32 s28, s27, 28"); A("s_mul_i32 s29, s27, 32"); A("s_sub_u32 s29, s29, 512")
        A("s_cmp_lt_u32 s27, 16")
        A("s_cselect_b32 s28, s28, s29")
        A(f"s_cselect_b32 s8, s{S_WO}, s{S_WOUT}"); A(f"s_cselect_b32 s9, s{S_WO+1}, s{S_WOUT+1}"); A("s_cselect_b32 s29, 28, 32")
        A("s_and_b32 s9, s9, 0xffff"); A("s_add_u32 s29, s29, s28"); A("s_mul_i32 s10, s29, 896"); A("s_mov_b32 s11, 0x20000")
        A("s_mul_i32 s28, s28, 896"); A("s_lshl_b32 s26, s26, 7"); A("s_add_u32 s13, s28, s26")
        A("s_lshl_b32 s14, s23, 12")
        A("s_cmp_ge_u32 s23, 308"); A("s_cselect_b32 s10, 0, s10")
        A(f"s_add_u32 s12, s{slot_sreg}, {slot_off}")
        A("v_lshrrev_b32 v16, 3, v12"); A("v_and_b32 v17, 7, v12"); A("v_bfe_u32 v18, v16, 1, 1"); A("v_lshlrev_b32 v18, 2, v18"); A("v_xor_b32 v17, v17, v18")
        A("v_mul_u32_u24 v16, 896, v16"); A("v_lshl_add_u32 v40, v17, 4, v16")
        for uu in range(1, 4): A(f"v_add_u32 v{40+uu}, {uu*(8*896-1024)}, v40")
        A("v_lshrrev_b32 v16, 2, v13"); A("v_lshl_add_u32 v16, v14, 2, v16"); A("v_lshlrev_b32 v16, 7, v16")
        A("v_and_b32 v17, 3, v13"); A("v_bfe_u32 v18, v13, 3, 1"); A("v_lshlrev_b32 v18, 2, v18"); A("v_xor_b32 v17, v17, v18"); A("v_lshl_add_u32 v16, v17, 4, v16")
        A("v_add_u32 v44, s12, v16"); A("v_xor_b32 v45, 64, v44")
    def dma(self):
        return [("s_mov_b32 m0, s12", None)] + [(f"buffer_load_dwordx4 v{40+uu}, s[8:11], s13 offen offset:{uu*1024} lds", 'wfj') for uu in range(4)]
    def finish(self):
        A = self.A
        A.wait_vm('wfj')
        for uu in range(4):
            for sec in range(2):
                A(f"ds_read_b64_tr_b16 {v(40+4*uu+2*sec,2)}, v{44 + (uu >> 1)} offset:{8*(uu & 1) + 2048*sec}", tag='wfr') if False else None
        for uu in range(4):
            for sec in range(2):
                A(f"ds_read_b64_tr_b16 {v(48+4*uu+2*sec,2)}, v{44 + (uu >> 1)} offset:{8*(uu & 1) + 2048*sec}", tag='wfr')
        A(f"s_mov_b32 s23, {WS_WF}"); srd_from(A, 8, S_WS, 23, 1232*1024)
        A("v_lshlrev_b32 v40, 4, v12")
        A("s_cmp_ge_u32 s14, 1261568"); A("s_cselect_b32 s10, 0, s10")
        A.wait_lg('wfr')
        for uu in range(4): A(f"buffer_store_dwordx4 {v(48+4*uu,4)}, v40, s[8:11], s14 offen offset:{uu*1024} sc1", tag='pubst')

def touch_lines(A, ptr, vaddr, n, step, vdst=56):
    for k in range(n):
        A(f"global_load_dword v{vdst}, v{vaddr}, s[{ptr}:{ptr+1}]", tag='touch')
        if k + 1 < n: A(f"v_add_u32 v{vaddr}, {step}, v{vaddr}")

def touch_z1w(A):
    A(f"s_and_b32 s27, s{S_RB}, 3"); A("s_lshl_b32 s27, s27, 2"); A(f"s_and_b32 s28, s{S_CB}, 3"); A("s_add_u32 s27, s27, s28"); A("s_lshl_b32 s27, s27, 2"); A("s_add_u32 s27, s27, s3")
    A(f"s_mul_i32 s27, s27, {7*3584}"); A(f"s_lshr_b32 s28, s{S_CB}, 2"); A("s_mul_i32 s28, s28, 896"); A("s_add_u32 s27, s27, s28")
    A("v_lshrrev_b32 v57, 3, v12"); A("v_min_u32 v57, 6, v57"); A("v_mul_u32_u24 v57, 3584, v57"); A("v_and_b32 v58, 7, v12"); A("v_min_u32 v58, 6, v58")
    A("v_lshl_add_u32 v57, v58, 7, v57"); A("v_add_u32 v57, s27, v57")
    A(f"global_load_dword v56, v57, s[{S_WIN}:{S_WIN+1}]", tag='touch')

def prefetch_wsp_list():
    return [(f"s_lshl_b32 s75, s{S_RB2}, 18", None), (f"s_lshl_b32 s100, s{S_CB}, 15", None), ("s_add_u32 s75, s75, s100", None),
            ("s_lshl_b32 s100, s3, 13", None), ("s_add_u32 s75, s75, s100", None),
            ("v_lshlrev_b32 v60, 7, v12", None), ("v_add_u32 v60, s75, v60", None),
            (f"global_load_dword v56, v60, s[{S_WSP}:{S_WSP+1}]", 'touch')]
def touch_small(A):
    A(f"s_lshl_b32 s27, s{S_RB}, 3"); A(f"s_add_u32 s27, s27, s{S_CB}"); A("s_lshl_b32 s27, s27, 2"); A("s_add_u32 s27, s27, s3"); A("s_min_u32 s27, s27, 447")
    A("s_mul_i32 s28, s27, 1792"); A("v_min_u32 v57, 13, v12"); A("v_lshlrev_b32 v57, 7, v57"); A("v_add_u32 v58, s28, v57")
    A(f"global_load_dword v56, v58, s[{S_WOUT}:{S_WOUT+1}]", tag='touch')
    A("s_mul_i32 s28, s27, 896"); A("v_min_u32 v57, 6, v12"); A("v_lshlrev_b32 v57, 7, v57"); A("v_add_u32 v58, s28, v57")
    A(f"global_load_dword v56, v58, s[{S_WO}:{S_WO+1}]", tag='touch')

def wdma_setup(A, V):
    A("v_lshrrev_b32 v15, 1, v13"); A("v_xor_b32 v15, v15, v14")
    A("v_and_b32 v16, 1, v13"); A("v_lshlrev_b32 v16, 4, v16")
    A("v_mul_u32_u24 v17, 3584, v14"); A("v_add_u32 v16, v16, v17"); A(f"v_mov_b32 v18, {OOB}")
    for uu in range(4):
        if uu == 2: A("v_xor_b32 v15, 4, v15")
        A(f"v_lshl_add_u32 v{V+uu}, v15, 5, v16")
        if uu: A(f"v_add_u32 v{V+uu}, {uu*(4*3584-1024)}, v{V+uu}")
        A("v_cmp_eq_u32 vcc, 7, v15"); A(f"v_cndmask_b32 v{V+uu}, v{V+uu}, v18, vcc")
def wread_setup(A, V, base):
    A("v_lshrrev_b32 v15, 2, v13"); A("v_lshl_add_u32 v16, v14, 3, v15"); A("v_lshlrev_b32 v16, 8, v16")
    A("v_and_b32 v17, 3, v13"); A("v_lshl_add_u32 v16, v17, 3, v16"); A(f"v_add_u32 v16, {base}, v16")
    A("v_and_b32 v17, 1, v14"); A("v_lshl_or_b32 v17, v17, 2, v15")
    for j in range(7):
        A(f"v_xor_b32 v18, {j}, v17"); A(f"v_lshl_add_u32 v{V+j}, v18, 5, v16")

GC = dict(VC1=32, VC2=34, VONE=36)
def gelu_consts(A):
    for r, val in ((32, GELU_C1), (34, GELU_C2), (36, 1.0)):
        A(f"v_mov_b32 v{r}, {hexf(val)}"); A(f"v_mov_b32 v{r+1}, {hexf(val)}")

class Z1Tile:
    WB, XB, ACC, GACC = 120, 176, 192, 220
    VW = 24
    def __init__(self, A, L, ring_base, vdma, sW):
        self.A, self.L, self.ring_base, self.vdma, self.sW = A, L, ring_base, vdma, sW
    def dma_w_list(self, c):
        st = (c + 1) % 3
        return [(f"s_add_u32 m0, s71, {self.ring_base + st*16384}", None), (f"s_add_u32 s23, s{self.sW}, {64*c*3584}", None)] + \
               [(f"buffer_load_dwordx4 v{self.vdma+uu}, s[12:15], s23 offen offset:{uu*1024} lds", ('w1', c)) for uu in range(4)]
    def dma_w(self, c):
        for t, tg in self.dma_w_list(c): self.A(t, tag=tg)
    def reads(self, c, h, buf, xoff):
        out = []
        st = (c + 1) % 3
        out.append((f"ds_read_b128 {v(self.XB+buf*8,4)}, v{20+h} offset:{xoff(c)}", ('zx', c, h)))
        out.append((f"ds_read_b128 {v(self.XB+buf*8+4,4)}, v31 offset:{(2*c+h)*64}", ('zx', c, h)))
        for j in range(7):
            for sec in range(2):
                out.append((f"ds_read_b64_tr_b16 {v(self.WB+buf*28+j*4+2*sec,2)}, v{self.VW+j} offset:{st*16384 + h*8192 + sec*1024}", ('zw', c, h, j)))
        return out
    def run(self, xoff, xwait, hooks):
        A = self.A
        ST(A, 'z1in')
        A.wait_vm([('w1', 0)] + xwait(0)); A.wait_lg(); A("s_barrier")
        if ('pre',) in hooks: hooks[('pre',)]()
        for t, tg in self.reads(0, 0, 0, xoff): A(t, tag=tg)
        for c in range(7):
            for h in range(2):
                kk = 2*c + h; buf = kk & 1
                todo = []
                if h == 0: todo = self.reads(c, 1, buf ^ 1, xoff)
                else:
                    if c < 6:
                        A.wait_vm([('w1', c+1)] + xwait(c+1))
                        A.wait_lg(); A("s_barrier"); ST(A, ('z', c))
                        if c + 3 <= 6: self.dma_w(c + 3)
                        todo = self.reads(c+1, 0, buf ^ 1, xoff)
                if (c, h) in hooks: hooks[(c, h)]()
                A.wait_lg([('zx', c, h)])
                d = v(self.GACC, 4)
                A(f"v_mfma_f32_16x16x32_bf16 {d}, {v(self.XB+buf*8+4,4)}, {v(self.XB+buf*8,4)}, {d if kk else 0}")
                for _ in range(2):
                    if todo: t, tg = todo.pop(0); A(t, tag=tg)
                for j in range(7):
                    A.wait_lg([('zw', c, h, j)])
                    d = v(self.ACC + 4*j, 4)
                    A(f"v_mfma_f32_16x16x32_bf16 {d}, {v(self.WB+buf*28+j*4,4)}, {v(self.XB+buf*8,4)}, {d if kk else 0}")
                    for _ in range(2):
                        if todo: t, tg = todo.pop(0); A(t, tag=tg)
    def epilogue(self, svc):
        A = self.A
        ST(A, 'z1out')
        G = self.GACC
        A(f"v_mul_f32 v{G}, {hexf(1.4426950408889634)}, v{G}")
        A(f"v_exp_f32 v{G}, v{G}"); A(f"v_add_f32 v{G}, 1.0, v{G}"); A(f"v_rcp_f32 v{G}, v{G}")
        A("v_lshlrev_b32 v16, 2, v13")
        A(f"ds_bpermute_b32 v{G+1}, v16, v{G}", tag='gb')
        regs = [self.ACC + 2*p for p in range(14)]
        for q in range(0, 14, 4):
            gelu_pairs(A, regs[q:q+4], 224, 32, 34, 36)
            svc.step()
        A.wait_lg('gb')
        for p in range(14):
            r = self.ACC + 2*p
            A(f"v_mul_f32 v{r}, v{r}, v{G+1}"); A(f"v_mul_f32 v{r+1}, v{r+1}, v{G+1}")
            A(f"v_cvt_pk_bf16_f32 v{240+p}, v{r}, v{r+1}")
        ST(A, 'z1epi')

L_TICKET = 163584
L_AST, L_GW, L_ZR, L_GL, L_RING = 58368, 107520, 108544, 160768, 114688
XH = 57344

def load_gw_tables(A, gwb, zrb, tag):
    A(f"s_mov_b32 s23, 896"); srd_from(A, 16, S_GW, None, 896)
    A("v_lshlrev_b32 v16, 4, v12"); A(f"v_mov_b32 v18, {OOB}")
    A(f"s_mov_b32 m0, {gwb}"); A("buffer_load_dwordx4 v16, s[16:19], 0 offen lds", tag=tag)
    A(f"s_mov_b32 m0, {zrb}"); A("buffer_load_dwordx4 v18, s[16:19], 0 offen lds", tag=tag)
def gw_addr(A, vreg, gwb, zrb):
    A("v_cmp_eq_u32 vcc, 0, v13"); A(f"v_mov_b32 v16, {zrb}"); A(f"v_mov_b32 v17, {gwb}"); A(f"v_cndmask_b32 v{vreg}, v16, v17, vcc")
    A(f"v_lshl_add_u32 v{vreg}, v14, 4, v{vreg}")
def z1_xaddr(A):
    A("v_lshrrev_b32 v15, 2, v13"); A("v_lshlrev_b32 v15, 3, v15"); A("v_and_b32 v16, 3, v13"); A("v_add_u32 v15, v15, v16")
    A("v_and_b32 v16, 7, v13"); A("v_xor_b32 v16, v16, v14"); A("v_lshlrev_b32 v16, 4, v16"); A("v_lshl_add_u32 v16, v15, 7, v16")
    A("s_lshr_b32 s23, s3, 1"); A("s_lshl_b32 s23, s23, 12"); A("s_and_b32 s24, s3, 1"); A("s_lshl_b32 s24, s24, 9"); A("s_add_u32 s23, s23, s24")
    A("v_add_u32 v20, s23, v16"); A("v_xor_b32 v21, 64, v20")
def load_bias(A):
    A(f"s_lshl_b32 s23, s{S_RB2}, 6"); A("s_lshr_b32 s24, s3, 1"); A("s_lshl_b32 s24, s24, 5"); A("s_add_u32 s23, s23, s24")
    A("s_and_b32 s24, s3, 1"); A("s_lshl_b32 s24, s24, 2"); A("s_add_u32 s23, s23, s24")
    A("v_lshrrev_b32 v15, 2, v13"); A("v_lshlrev_b32 v15, 3, v15"); A("v_and_b32 v16, 3, v13"); A("v_add_u32 v15, v15, v16")
    A("v_add_u32 v15, s23, v15"); A("v_lshlrev_b32 v15, 1, v15")
    srd_from(A, 16, S_BSP, None, S*2)
    A("buffer_load_ushort v254, v15, s[16:19], 0 offen", tag='bias')

def role_z(A, L):
    ACC1, ACC2 = 120, 64
    acc1 = lambda j, aa: ACC1 + (j*2+aa)*4
    acc2 = lambda j, aa: ACC2 + (j*2+aa)*4
    WB = 176
    wf = lambda buf, j: WB + buf*28 + j*4
    xf = lambda kk, aa: 144 + (kk*2+aa)*4
    A("v_lshrrev_b32 v15, 3, v12"); A("v_and_b32 v16, 7, v12"); A("v_and_b32 v17, 3, v15"); A("v_xor_b32 v16, v16, v17"); A("v_lshlrev_b32 v16, 4, v16")
    A("v_mul_u32_u24 v17, 896, v15")
    for uu in range(4):
        if uu & 1: A("v_xor_b32 v18, 64, v16"); A(f"v_add_u32 v{1+uu}, v18, v17")
        else: A(f"v_add_u32 v{1+uu}, v16, v17")
        if uu: A(f"v_add_u32 v{1+uu}, {uu*(8*896-1024)}, v{1+uu}")
    wdma_setup(A, 5)
    A(f"s_lshl_b32 s72, s{S_RB}, 2"); A("s_add_u32 s72, s72, s3")
    A(f"s_mul_i32 s23, s72, {32*896}"); srd_from(A, 8, S_X, 23, 32*896)
    srd_from(A, 12, S_WIN, None, 448*3584)
    A(f"s_mul_i32 s25, s3, {16*3584}"); A(f"s_mul_i32 s23, s{S_CB}, 224"); A("s_add_u32 s25, s25, s23"); A("s_add_u32 s24, s25, 1792")
    A("s_lshl_b32 s71, s3, 12")
    def dma_x(c):
        return [(f"s_add_u32 m0, s71, {c*16384}", None), (f"s_mov_b32 s23, {c*128}", None)] + \
               [(f"buffer_load_dwordx4 v{1+uu}, s[8:11], s23 offen offset:{uu*1024} lds", ('x', c)) for uu in range(4)]
    def dma_w(c, which=1, sreg=23):
        base = (L_RING + (c % 3)*16384) if which == 1 else c*16384
        return [(f"s_add_u32 m0, s71, {base}", None), (f"s_add_u32 s{sreg}, s{24 if which == 1 else 25}, {64*c*3584}", None)] + \
               [(f"buffer_load_dwordx4 v{5+uu}, s[12:15], s{sreg} offen offset:{uu*1024} lds", ('w', which, c)) for uu in range(4)]
    def emit(lst):
        for t, tg in lst: A(t, tag=tg)
    ST(A, 'rsetup')
    for c in range(2): emit(dma_w(c)); emit(dma_x(c))
    ST(A, 1)
    A("v_lshrrev_b32 v15, 2, v13"); A("v_lshlrev_b32 v15, 3, v15"); A("v_and_b32 v16, 3, v13"); A("v_add_u32 v15, v15, v16")
    A("v_and_b32 v16, 7, v13"); A("v_xor_b32 v16, v16, v14"); A("v_lshlrev_b32 v16, 4, v16"); A("v_lshl_add_u32 v16, v15, 7, v16")
    A("v_add_u32 v20, s71, v16"); A("v_xor_b32 v21, 64, v20"); A("v_add_u32 v22, 0x10000, v20"); A("v_add_u32 v23, 0x10000, v21")
    wread_setup(A, 24, L_RING)
    gelu_consts(A)
    svc = AService(A)
    def reads_w(which, c, h, buf):
        out = []
        off = ((c % 3) if which == 1 else (c % 4))*16384 + h*8192
        for j in range(7):
            for sec in range(2):
                out.append((f"ds_read_b64_tr_b16 {v(wf(buf,j)+2*sec,2)}, v{24+j} offset:{off + sec*1024}", ('wf', which, c, h, j)))
        return out
    def reads_x(c):
        return [(f"ds_read_b128 {a(xf(2*c+h,aa),4)}, v{20 + h + (2 if c >= 4 else 0)} offset:{(c % 4)*16384 + aa*512}", ('xf', c, h)) for h in range(2) for aa in range(2)]
    A.wait_vm([('w', 1, 0), ('x', 0)]); A("s_barrier")
    ST(A, 2)
    emit(reads_x(0)); emit(reads_w(1, 0, 0, 0))
    for c in range(7):
        for h in range(2):
            kk = 2*c + h; buf = kk & 1
            todo = []; vq = []
            if h == 0:
                ST(A, ('gs', c, 0))
                todo = reads_w(1, c, 1, buf ^ 1)
                if c == 0: vq += dma_w(2)
                if c + 2 <= 6: vq += dma_x(c + 2)
            else:
                ST(A, ('gs', c, 1))
                if c < 6: A.wait_vm([('w', 1, c+1), ('x', c+1)])
                ST(A, ('gs', c, 2))
                A.wait_lg(); ST(A, ('gs', c, 3)); A("s_barrier"); ST(A, ('g', c)); ST(A, ('gs', c, 4))
                if c + 3 <= 6: vq += dma_w(c + 3)
                MODE = os.environ.get('W2MODE', 'epi')
                if MODE == 'loop':
                    for cc in {5: (0, 1, 2, 3), 6: (4, 5, 6)}.get(c, ()): vq += dma_w(cc, 2)
                elif c == 6:
                    for cc in range(7): A.bg += dma_w(cc, 2, 75)
                    A.bg_every = int(os.environ.get('BGW2', '12'))
                if c < 6: todo = reads_w(1, c+1, 0, buf ^ 1)[:2] + reads_x(c+1) + reads_w(1, c+1, 0, buf ^ 1)[2:]
            A.wait_lg([('xf', c, h), ('wf', 1, c, h, 6)] if os.environ.get('W1', '1') == '1' else [('xf', c, h)])
            for j in range(7):
                A.wait_lg([('wf', 1, c, h, j)])
                for aa in range(2):
                    d = v(acc1(j,aa), 4)
                    A(f"v_mfma_f32_16x16x32_bf16 {d}, {a(xf(kk,aa),4)}, {v(wf(buf,j),4)}, {d if kk else 0}")
                    for _ in range(2):
                        if todo: t, tg = todo.pop(0); A(t, tag=tg)
                    if vq: t, tg = vq.pop(0); A(t, tag=tg)
            emit(todo); emit(vq)
            if c == 0 and h == 0 and os.environ.get('CHIPT', '1') != '1': A("global_load_dword v56, v61, s[30:31]", tag='touch'); A("global_load_dword v56, v62, s[30:31]", tag='touch')
            if c == 2 and h == 1 and os.environ.get('CHIPT', '1') != '1': touch_z1w(A)
            if (c, h) == (int(os.environ.get('WSPC', '4')), 1):
                for t, tg in prefetch_wsp_list(): A(t, tag=tg)
    ST(A, 3)
    svc.setup(); svc.base('A', 12288, L_RING)
    TMP = 232 - 8 - 0
    TMP = 176
    regs = [ACC1 + 2*p for p in range(28)]
    for q in range(0, 28, 4): gelu_pairs(A, regs[q:q+4], TMP, 32, 34, 36)
    ST(A, 'gelu1')
    SUM, M2, PUB = 192, 200, 208
    for aa in range(2):
        for rp in range(2):
            d = SUM + aa*4 + rp*2
            A(f"v_pk_add_f32 {v(d,2)}, {v(acc1(0,aa)+2*rp,2)}, {v(acc1(1,aa)+2*rp,2)}")
            for j in range(2, 7): A(f"v_pk_add_f32 {v(d,2)}, {v(d,2)}, {v(acc1(j,aa)+2*rp,2)}")
    def dpp16(rs):
        for sh in (8, 4, 2, 1):
            for r in rs: A(f"v_add_f32_dpp v{r}, v{r}, v{r} row_ror:{sh} row_mask:0xf bank_mask:0xf")
    dpp16(range(SUM, SUM+8))
    A(f"v_mov_b32 v38, {hexf(1.0/112)}"); A(f"v_mov_b32 v39, {hexf(1.0/112)}")
    for p in range(4): A(f"v_pk_mul_f32 {v(SUM+2*p,2)}, {v(SUM+2*p,2)}, {v(38,2)}")
    for aa in range(2):
        for rp in range(2):
            d = M2 + aa*4 + rp*2; mreg = SUM + aa*4 + rp*2
            for j in range(7):
                t = TMP + 2*(j & 1)
                A(f"v_pk_add_f32 {v(t,2)}, {v(acc1(j,aa)+2*rp,2)}, {v(mreg,2)} neg_lo:[0,1] neg_hi:[0,1]")
                if j == 0: A(f"v_pk_mul_f32 {v(d,2)}, {v(t,2)}, {v(t,2)}")
                else: A(f"v_pk_fma_f32 {v(d,2)}, {v(t,2)}, {v(t,2)}, {v(d,2)}")
    dpp16(range(M2, M2+8))
    ST(A, 'stat1')
    A("v_and_b32 v16, 3, v13")
    for q in range(3): A(f"v_cmp_eq_u32 s[{26+2*q}:{27+2*q}], {q+1}, v16")
    for e, (base, odd) in enumerate(((SUM, 0), (M2, 0), (SUM, 1), (M2, 1))):
        A(f"v_mov_b32 v{PUB+e}, v{base+odd}")
        for q in range(3): A(f"v_cndmask_b32 v{PUB+e}, v{PUB+e}, v{base+2*(q+1)+odd}, s[{26+2*q}:{27+2*q}]")
    A(f"s_lshl_b32 s23, s{S_RB}, 3"); A(f"s_add_u32 s23, s23, s{S_CB}"); A("s_lshl_b32 s23, s23, 7")
    A("s_lshl_b32 s27, s3, 5"); A("s_add_u32 s23, s23, s27"); A("s_lshl_b32 s23, s23, 3")
    A(f"s_mov_b32 s27, {WS_LNP}"); srd_from(A, 16, S_WS, 27, 16*8*128*8)
    A("v_lshlrev_b32 v19, 6, v14"); A("v_lshl_add_u32 v19, v16, 4, v19")
    A("s_mov_b64 s[34:35], exec"); A("s_mov_b32 exec_lo, 0x000f000f"); A("s_mov_b32 exec_hi, 0x000f000f")
    A(f"buffer_store_dwordx4 {v(PUB,4)}, v19, s[16:19], s23 offen sc1", tag='lnp')
    A("s_mov_b64 exec, s[34:35]")
    A.bg_flush(); A.bg_every = 0
    tag_issue(A)
    ST(A, 4)
    Q, MB = 40, 216
    A.wait_vm([('w', 2, c) for c in range(7)]); A("s_barrier"); ST(A, 'w2')
    for j in range(7): A(f"v_subrev_u32 v{24+j}, {L_RING}, v{24+j}")
    emit(reads_w(2, 0, 0, 0))
    for c in range(7):
        for h in range(2):
            kk = 2*c + h; buf = kk & 1
            nxt = (c, 1) if h == 0 else ((c+1, 0) if c < 6 else None)
            if kk in (0, 2, 4): svc.bg_dma([kk // 2], [('A', kk // 2)]); A.bg_every = 3
            if kk in (7, 9, 11):
                n = (kk - 7) // 2
                svc.wait_read([n], [('A', n)])
            if kk in (8, 10, 12):
                n = (kk - 8) // 2
                A.wait_lg(('Ar', n)); svc.bg_dma([n + 3], [('A', n)])
            if kk == 10:
                A(f"s_mul_i32 s27, s{S_RB}, {FS}"); A(f"s_add_u32 s27, s27, {WS_F0}"); A("v_and_b32 v17, 7, v12"); A("v_lshl_add_u32 v17, v17, 3, s27")
                A(f"global_load_dwordx2 v[18:19], v17, s[{S_WS}:{S_WS+1}] sc1", tag='lnf')
            if kk == 13:
                A.wait_vm('lnf')
                A(f"v_xor_b32 v18, s{S_TAG}, v18"); A(f"v_xor_b32 v19, s{S_TAG+1}, v19"); A("v_or_b32 v18, v18, v19"); A("v_cmp_eq_u32 vcc, 0, v18")
                A("s_nop 1"); A("s_cmp_eq_u64 vcc, exec"); A(f"s_cbranch_scc1 {L('lnok')}")
                poll_wave(A, L, 'plnw', 17, reset=False)
                A.label(L('lnok'))
                A(f"s_lshl_b32 s23, s{S_RB}, 10"); A("s_lshl_b32 s27, s3, 5"); A("s_add_u32 s23, s23, s27"); A("s_lshl_b32 s23, s23, 3")
                A(f"s_mov_b32 s27, {WS_LNP}"); srd_from(A, 16, S_WS, 27, 16*8*128*8)
                A("v_and_b32 v18, 7, v12"); A("v_lshlrev_b32 v18, 10, v18"); A("v_lshl_add_u32 v18, v14, 6, v18")
                for q in range(4): A(f"buffer_load_dwordx4 {v(Q+4*q,4)}, v18, s[16:19], s23 offen offset:{16*q} sc1", tag='lnq')
            if kk == 4:
                A.wait_vm('lnp'); tag_take(A, lambda x: L('z' + x)); A("s_barrier")
                A(f"s_mul_i32 s27, s{S_RB}, {FS}"); A(f"s_lshl_b32 s28, s{S_CB}, 3"); A("s_add_u32 s27, s27, s28"); A(f"s_add_u32 s27, s27, {WS_F0}")
                signal(A, L, 'sigln', 27)
            todo = []
            if nxt:
                if nxt == (4, 0):
                    for j in range(7): A(f"v_add_u32 v{24+j}, 0x10000, v{24+j}")
                todo = reads_w(2, nxt[0], nxt[1], buf ^ 1)
            if os.environ.get('W1', '1') == '1': A.wait_lg([('wf', 2, c, h, 6)])
            for j in range(7):
                A.wait_lg([('wf', 2, c, h, j)])
                for aa in range(2):
                    d = v(acc2(j,aa), 4)
                    A(f"v_mfma_f32_16x16x32_bf16 {d}, {v(wf(buf,j),4)}, {a(xf(kk,aa),4)}, {d if kk else 0}")
                    for _ in range(2 if os.environ.get('W1', '1') == '1' else 1):
                        if todo: t, tg = todo.pop(0); A(t, tag=tg)
            emit(todo)
    ST(A, 5)
    A.bg_flush(); A.bg_every = 0
    svc.wait_read([3, 4], [('A', 0), ('A', 1)]); svc.base('B', 28672, 0); A.wait_lg(); A("s_barrier")
    svc.bg_dma([13, 14], [('A', 0), ('A', 1)]); svc.bg_dma(list(range(6, 13)), [('B', k) for k in range(7)]); A.bg_every = 10
    ST(A, 7)
    A.wait_vm('lnq')
    ST(A, 'lnq')
    def red8(rs):
        for pat in ("quad_perm:[1,0,3,2]", "quad_perm:[2,3,0,1]", "row_half_mirror"):
            for r in rs: A(f"v_add_f32_dpp v{r}, v{r}, v{r} {pat} row_mask:0xf bank_mask:0xf")
    for q in range(8): A(f"v_mov_b32 v{MB+q}, v{Q+2*q}")
    red8(range(MB, MB+8))
    for q in range(8): A(f"v_mul_f32 v{MB+q}, 0.125, v{MB+q}")
    A(f"v_mov_b32 v38, {hexf(112.0)}")
    for q in range(8):
        A(f"v_sub_f32 v{Q+2*q}, v{Q+2*q}, v{MB+q}"); A(f"v_mul_f32 v{Q+2*q}, v{Q+2*q}, v{Q+2*q}")
        A(f"v_fma_f32 v{MB+8+q}, v{Q+2*q}, v38, v{Q+2*q+1}")
    red8(range(MB+8, MB+16))
    A(f"v_mov_b32 v38, {hexf(1.0/896)}"); A(f"v_mov_b32 v39, {hexf(1e-5)}")
    for q in range(8): A(f"v_fma_f32 v{MB+8+q}, v{MB+8+q}, v38, v39")
    for q in range(8): A(f"v_rsq_f32 v{MB+8+q}, v{MB+8+q}")
    for q in range(8): A(f"v_mul_f32 v{MB+q}, v{MB+q}, v{MB+8+q}")
    ST(A, 'comb')
    A(f"s_mul_i32 s23, s{S_CB}, {64*7168}"); A("s_mul_i32 s27, s72, 7168"); A("s_add_u32 s23, s23, s27")
    srd_from(A, 16, S_WS, 23, 7168)
    A("v_lshlrev_b32 v18, 4, v12"); A("v_add_u32 v19, 4096, v18")
    for j in range(7):
        p = 200 + 4*(j & 3)
        for aa in range(2):
            c = acc1(j,aa)
            for rp in range(2):
                A(f"v_pk_fma_f32 {v(c+2*rp,2)}, {v(c+2*rp,2)}, {v(MB+8+aa*4+2*rp,2)}, {v(MB+aa*4+2*rp,2)} neg_lo:[0,0,1] neg_hi:[0,0,1]")
            A(f"v_cvt_pk_bf16_f32 v{p+2*aa}, v{c}, v{c+1}"); A(f"v_cvt_pk_bf16_f32 v{p+2*aa+1}, v{c+2}, v{c+3}")
        A(f"buffer_store_dwordx4 {v(p,4)}, v{18 if j < 4 else 19}, s[16:19], 0 offen offset:{(j%4)*1024} sc1", tag='pubst')
    ST(A, 'norm')
    p2 = P2(A, L); p2.pre()
    TMP = 216
    regs = [ACC2 + 2*p for p in range(28)]
    for q in range(0, 8, 4): gelu_pairs(A, regs[q:q+4], TMP, 32, 34, 36)
    A.wait_vm('pubst'); ST(A, 'pubw'); A("s_barrier")
    A(f"s_mul_i32 s27, s{S_CB}, {FS}"); A(f"s_lshl_b32 s28, s{S_RB}, 3"); A("s_add_u32 s27, s27, s28"); A(f"s_add_u32 s27, s27, {WS_F1Z}")
    signal(A, L, 'sigzd', 27)
    ST(A, 6)
    svc.wait_read([5], [('A', 2)]); A.wait_lg(('Ar', 5)); svc.bg_dma([15], [('A', 2)])
    for q in range(8, 28, 4): gelu_pairs(A, regs[q:q+4], TMP, 32, 34, 36)
    A.bg_flush(); A.bg_every = 0
    p2.flag_issue()
    A("s_lshl_b32 s23, s72, 1"); A("s_mul_i32 s23, s23, 56"); A(f"s_mul_i32 s28, s{S_CB}, 7"); A("s_add_u32 s23, s23, s28"); A("s_lshl_b32 s23, s23, 9")
    A(f"s_add_u32 s23, s23, {WS_Z1F}"); srd_from(A, 16, S_WS, 23, 56*512 + 7*512)
    A("v_lshlrev_b32 v18, 3, v12")
    P = 40
    for aa in range(2):
        if aa: A(f"s_mov_b32 s23, {56*512}")
        for j in range(7):
            c = acc2(j,aa); p = P + 2*(j & 3)
            A(f"v_cvt_pk_bf16_f32 v{p}, v{c}, v{c+1}"); A(f"v_cvt_pk_bf16_f32 v{p+1}, v{c+2}, v{c+3}")
            A(f"buffer_store_dwordx2 {v(p,2)}, v18, s[16:19], {'s23' if aa else 0} offen offset:{j*512} sc1", tag='z1st')
    ST(A, 9)
    p2.flag_take('z')
    p2.first()
    A.wait_vm(('Au', 15))
    for n, sl in [(13, ('A', 0)), (14, ('A', 1)), (15, ('A', 2))] + [(6 + k, ('B', k)) for k in range(7)]: svc.read(n, sl)
    p2.plumbing()
    p2.third()
    A.wait_lg()
    ST(A, 8)
    p2.loop('z')

QSTG = 45056; QGW = 3*QSTG; QZR = QGW + 1024; QP = 400
def role_q(A, L):
    A("v_lshrrev_b32 v15, 3, v12"); A("v_and_b32 v16, 7, v12")
    A("v_and_b32 v17, 3, v15"); A("v_xor_b32 v17, v16, v17"); A("v_lshlrev_b32 v17, 4, v17")
    A(f"s_lshl_b32 s24, s{S_RB}, 7"); A("s_sub_u32 s24, s24, 16"); A("s_mul_i32 s25, s3, 5")
    for uu in range(5):
        A(f"s_add_u32 s26, s25, {uu}")
        A("s_lshl_b32 s27, s26, 3"); A("s_add_u32 s27, s27, s24")
        A("v_add_u32 v18, s27, v15"); A("v_max_i32 v18, 0, v18"); A("v_mul_u32_u24 v18, 896, v18")
        A("s_and_b32 s27, s26, 1"); A("s_lshl_b32 s27, s27, 6"); A("v_xor_b32 v19, s27, v17")
        A("s_cmp_ge_u32 s26, 18"); A(f"s_cselect_b32 s27, {OOB}, 0")
        A(f"v_add3_u32 v{1+uu}, v18, v19, s27")
        if uu in (1, 2, 3): A(f"v_subrev_u32 v{1+uu}, {uu*1024}, v{1+uu}")
    A("v_and_b32 v18, 2, v15"); A("v_xor_b32 v18, v16, v18"); A("v_mul_u32_u24 v19, 2688, v15")
    for uu in range(2):
        if uu: A("v_xor_b32 v18, 4, v18")
        A(f"v_lshl_add_u32 v{6+uu}, v18, 4, v19")
        if uu: A(f"v_add_u32 v{6+uu}, {8*2688-1024}, v{6+uu}")
        A("v_cmp_eq_u32 vcc, 7, v18"); A(f"v_mov_b32 v16, {OOB}"); A(f"v_cndmask_b32 v{6+uu}, v{6+uu}, v16, vcc")
    A.wait_lg()
    A(f"s_sub_u32 s8, s{S_X}, 4096"); A(f"s_subb_u32 s9, s{S_X+1}, 0"); A("s_and_b32 s9, s9, 0xffff"); A(f"s_mov_b32 s10, {S*896 + 4096}"); A("s_mov_b32 s11, 0x20000")
    for uu in range(5): A(f"v_add_u32 v{1+uu}, 4096, v{1+uu}")
    srd_from(A, 12, S_WQKV, None, 448*2688)
    A(f"s_mul_i32 s24, s3, {16*2688}"); A(f"s_mul_i32 s25, s{S_CB}, 112"); A("s_add_u32 s24, s24, s25")
    A("s_mul_i32 s25, s3, 5120"); A("s_lshl_b32 s26, s3, 11"); A("s_add_u32 s26, s26, 20480")
    def dma(c):
        st = (c % 3)*QSTG; out = []
        for seg in range(3):
            out += [(f"s_add_u32 m0, s26, {st + seg*8192}", None), (f"s_add_u32 s23, s24, {64*c*2688 + seg*896}", None)]
            out += [(f"buffer_load_dwordx4 v{6+uu}, s[12:15], s23 offen offset:{uu*1024} lds", ('c', c)) for uu in range(2)]
        out += [(f"s_add_u32 m0, s25, {st}", None), (f"s_mov_b32 s23, {c*128}", None)]
        out += [(f"buffer_load_dwordx4 v{1+uu}, s[8:11], s23 offen offset:{uu*1024} lds", ('c', c)) for uu in range(4)]
        out += [(f"s_add_u32 m0, s25, {st + 4096}", None), (f"buffer_load_dwordx4 v5, s[8:11], s23 offen lds", ('c', c))]
        return out
    def emit(lst):
        for t, tg in lst: A(t, tag=tg)
    ST(A, 'rsetup')
    load_gw_tables(A, QGW, QZR, ('c', 0))
    for c in range(2): emit(dma(c))
    ST(A, 1)
    A("v_lshrrev_b32 v15, 3, v13"); A("v_lshlrev_b32 v15, 2, v15"); A("v_and_b32 v16, 3, v13"); A("v_or_b32 v15, v15, v16")
    A("v_xor_b32 v15, v15, v14"); A("v_lshlrev_b32 v15, 4, v15"); A("v_lshl_add_u32 v20, v13, 7, v15"); A("v_xor_b32 v21, 64, v20")
    A("s_lshl_b32 s23, s3, 12"); A("s_add_u32 s23, s23, 2048"); A("v_add_u32 v22, s23, v20"); A("v_add_u32 v23, s23, v21")
    A("s_lshr_b32 s23, s3, 1"); A("s_mul_i32 s23, s23, 56"); A("s_and_b32 s33, s3, 1"); A("s_lshl_b32 s34, s33, 5"); A("s_add_u32 s23, s23, s34")
    A("v_and_b32 v15, 3, v13"); A("v_lshlrev_b32 v16, 3, v15"); A("v_add_u32 v16, s23, v16")
    A("v_cmp_eq_u32 vcc, 3, v15"); A("s_cmp_eq_u32 s33, 1"); A("s_cselect_b64 s[34:35], vcc, 0")
    A("v_mov_b32 v17, 112"); A("v_cndmask_b32 v16, v16, v17, s[34:35]")
    A("v_lshrrev_b32 v17, 3, v13"); A("v_lshlrev_b32 v17, 1, v17"); A("v_and_b32 v18, 1, v14"); A("v_lshl_or_b32 v17, v18, 2, v17")
    A("v_lshrrev_b32 v18, 4, v16"); A("v_xor_b32 v18, v18, v17"); A("v_and_b32 v16, 8, v16"); A("v_lshl_or_b32 v16, v18, 4, v16")
    A("v_lshrrev_b32 v17, 2, v13"); A("v_lshl_add_u32 v17, v14, 3, v17"); A("v_lshl_add_u32 v24, v17, 7, v16"); A("v_add_u32 v24, 20480, v24")
    gw_addr(A, 25, QGW, QZR)
    XB = 256; xf = lambda buf, t: XB + buf*44 + t*4
    WB = 256 + 88; wf = lambda buf, t: WB + buf*16 + t*4
    ACC = 64
    def acc(t, RT):
        if t == 0: return ACC + (RT-1)*4
        if t == 3: return ACC + (26 + RT)*4
        return ACC + (8 + (t-1)*9 + RT)*4
    def reads(c, h, buf):
        out = []
        for t in range(3):
            for sec in range(2):
                out.append((f"ds_read_b64_tr_b16 {u(wf(buf,t)+2*sec,2)}, v24 offset:{t*8192 + h*4096 + sec*512}", ('w', c, h)))
        out.append((f"ds_read_b128 {u(wf(buf,3),4)}, v25 offset:{(2*c+h)*64}", ('w', c, h)))
        for RT in range(9): out.append((f"ds_read_b128 {u(xf(buf,RT),4)}, v{20+h} offset:{RT*2048}", ('x', c, h, RT)))
        for q in range(2): out.append((f"ds_read_b128 {u(xf(buf,9+q),4)}, v{22+h} offset:{q*2048}", ('x', c, h, 9+q)))
        return out
    def bump(c):
        d = QSTG if (c % 3) < 2 else -2*QSTG
        for r in (20, 21, 22, 23, 24):
            if d > 0: A(f"v_add_u32 v{r}, {d}, v{r}")
            else: A(f"v_subrev_u32 v{r}, {-d}, v{r}")
    A.wait_vm(('c', 0)); A("s_barrier")
    ST(A, 2)
    for t, tg in reads(0, 0, 0): A(t, tag=tg)
    for c in range(7):
        for h in range(2):
            kk = 2*c + h; buf = kk & 1
            todo = []; vq = []
            if h == 0:
                ST(A, ('gs', c, 0))
                todo = reads(c, 1, buf ^ 1)
                if c == 0: vq = dma(2)
            else:
                ST(A, ('gs', c, 1))
                if c < 6: A.wait_vm(('c', c+1))
                ST(A, ('gs', c, 2))
                A.wait_lg(); ST(A, ('gs', c, 3)); A("s_barrier"); ST(A, ('g', c)); ST(A, ('gs', c, 4))
                if c + 3 <= 6: vq = dma(c+3)
                if c < 6:
                    bump(c); todo = reads(c+1, 0, buf ^ 1)
            order = [(1,0),(2,0)] + [(t, RT) for RT in range(1, 9) for t in range(3)] + [(3,0),(3,1)]
            n = 0
            if os.environ.get('W1', '1') == '1': A.wait_lg([('w', c, h)] + [('x', c, h, q) for q in range(11)])
            for (t, RT) in order:
                xt = RT if t < 3 else 9 + RT
                A.wait_lg([('w', c, h), ('x', c, h, xt)])
                d = v(acc(t, RT), 4)
                A(f"v_mfma_f32_16x16x32_bf16 {d}, {u(wf(buf,t),4)}, {u(xf(buf,xt),4)}, {d if kk else 0}")
                n += 1
                if todo: tt, tg = todo.pop(0); A(tt, tag=tg)
                if vq: tt, tg = vq.pop(0); A(tt, tag=tg)
            while todo: tt, tg = todo.pop(0); A(tt, tag=tg)
            emit(vq)
            if c == 0 and h == 0 and os.environ.get('CHIPT', '1') != '1': A("global_load_dword v56, v61, s[30:31]", tag='touch'); A("global_load_dword v56, v62, s[30:31]", tag='touch')
            if c == 4 and h == 1:
                for t, tg in prefetch_wsp_list(): A(t, tag=tg)
                touch_small(A)
    ST(A, 3)
    tag_issue(A)
    svc = AService(A); svc.setup(); svc.base('A', 24576, L_AST); svc.base('B', 14336, 0)
    svc.bg_dma(list(range(6)), [('A', k) for k in range(6)]); A.bg_every = 6
    A(f"v_mul_u32_u24 v15, {QP}, v13")
    A("s_lshr_b32 s23, s3, 1"); A("s_lshl_b32 s23, s23, 6"); A("s_and_b32 s33, s3, 1"); A("s_lshl_b32 s33, s33, 5"); A("s_add_u32 s23, s23, s33")
    A("v_lshl_add_u32 v15, v14, 3, v15"); A("v_add_u32 v26, s23, v15")
    P = 176; n = 0
    for t in range(3):
        for RT in range(0 if t else 1, 9):
            c = acc(t, RT); p = P + 2*(n & 7); n += 1
            A(f"v_cvt_pk_bf16_f32 v{p}, v{c}, v{c+1}"); A(f"v_cvt_pk_bf16_f32 v{p+1}, v{c+2}, v{c+3}")
            A(f"ds_write_b64 v26, {v(p,2)} offset:{RT*16*QP + t*128}", tag='qkv')
    for q in range(2):
        c = acc(3, q)
        A(f"v_mul_f32 v{c}, {hexf(-1.4426950408889634)}, v{c}")
        A(f"v_exp_f32 v{c}, v{c}"); A(f"v_add_f32 v{c}, 1.0, v{c}"); A(f"v_rcp_f32 v{c}, v{c}")
    A("s_lshl_b32 s23, s3, 7"); A(f"s_add_u32 s23, s23, {L_GL}")
    A("v_lshlrev_b32 v15, 2, v13"); A("v_add_u32 v16, s23, v15")
    A("s_mov_b64 s[34:35], exec"); A("s_mov_b64 exec, 0xffff")
    for q in range(2): A(f"ds_write_b32 v16, v{acc(3,q)} offset:{q*64}", tag='qkv')
    A(f"s_mov_b32 s23, {WS_GATE}"); srd_from(A, 16, S_WS, 23, S*4)
    A(f"s_cmp_eq_u32 s{S_CB}, 0"); A("s_cselect_b32 s18, s18, 0")
    A(f"s_lshl_b32 s23, s{S_RB}, 9"); A("s_lshl_b32 s33, s3, 7"); A("s_add_u32 s23, s23, s33")
    for q in range(2): A(f"buffer_store_dword v{acc(3,q)}, v15, s[16:19], s23 offen offset:{q*64} sc1", tag='pubst')
    A("s_mov_b64 exec, s[34:35]")
    A.wait_lg(); A("s_barrier")
    ST(A, 4)
    A("s_lshr_b32 s33, s3, 1"); A("s_and_b32 s34, s3, 1"); A("s_lshl_b32 s35, s33, 6")
    A(f"s_mul_i32 s32, s34, {64*QP}"); A("s_add_u32 s35, s35, s32")
    A("v_lshlrev_b32 v15, 1, v13")
    A(f"v_mul_u32_u24 v16, {QP}, v15"); A("v_lshl_add_u32 v16, v14, 4, v16"); A("v_add_u32 v16, s35, v16")
    A(f"v_add_u32 v20, {16*QP}, v16"); A(f"v_add_u32 v21, 128, v16")
    A("v_lshlrev_b32 v17, 2, v15"); A("s_lshl_b32 s32, s34, 8"); A(f"s_add_u32 s32, s32, {L_GL}"); A("v_add_u32 v22, s32, v17")
    A("v_lshrrev_b32 v17, 2, v13"); A("v_and_b32 v18, 3, v13"); A("v_lshlrev_b32 v18, 3, v18"); A("v_add_u32 v18, s35, v18"); A("v_add_u32 v18, 256, v18")
    for T in range(2):
        if T == 0: A("v_lshl_add_u32 v19, v14, 2, v17")
        else: A("v_and_b32 v19, 1, v14"); A("v_lshl_add_u32 v19, v19, 2, v17"); A("v_add_u32 v19, 16, v19")
        A("v_lshlrev_b32 v19, 1, v19"); A(f"v_mul_u32_u24 v19, {QP}, v19"); A(f"v_add_u32 v{23+T}, v19, v18")
    UB = 64
    rowoff = lambda b: (32*(b >> 1) + (b & 1))
    Q_ = lambda b: UB + b*24; K_ = lambda b, T: UB + b*24 + 4 + 4*T; V_ = lambda b, mt: UB + b*24 + 12 + 4*mt; G_ = lambda b: UB + b*24 + 20
    for b in range(4):
        A(f"ds_read_b128 {v(Q_(b),4)}, v20 offset:{rowoff(b)*QP}", tag=('u', b))
        for T in range(2): A(f"ds_read_b128 {v(K_(b,T),4)}, v21 offset:{(rowoff(b)+32*T)*QP}", tag=('u', b))
    for b in range(4):
        for mt in range(2):
            for T in range(2): A(f"ds_read_b64_tr_b16 {v(V_(b,mt)+2*T,2)}, v{23+T} offset:{rowoff(b)*QP + mt*32}", tag=('vv', b))
        A(f"ds_read_b32 v{G_(b)}, v22 offset:{rowoff(b)*4}", tag=('vv', b))
    SC = 160; sc = lambda b, T: SC + b*8 + 4*T
    for b in range(4):
        A.wait_lg(('u', b))
        for T in range(2): A(f"v_mfma_f32_16x16x32_bf16 {v(sc(b,T),4)}, {v(K_(b,T),4)}, {v(Q_(b),4)}, 0")
    A.wait_lg(); A("s_barrier")
    A.bg_flush()
    svc.wait_read(list(range(6)), [('A', k) for k in range(6)])
    wfj = WFJob(A); wfj.setup(75, 2*4096)
    A.wait_lg()
    svc.bg_dma([6, 7], [('B', 0), ('B', 1)]); A.bg += wfj.dma(); svc.bg_dma(list(range(8, 14)), [('A', k) for k in range(6)]); A.bg_every = 7
    cs = (28 ** -0.5) * 1.4426950408889634
    A(f"v_mov_b32 v26, {hexf(cs)}"); A(f"v_mov_b32 v27, {hexf(cs)}"); A(f"v_mov_b32 v28, {hexf(-1e30)}")
    for b in range(4):
        for q in range(4): A(f"v_pk_mul_f32 {v(sc(b,0)+2*q,2)}, {v(sc(b,0)+2*q,2)}, {v(26,2)}")
    A("v_lshlrev_b32 v15, 2, v14"); A("v_sub_u32 v15, v13, v15"); A("v_add_u32 v15, 8, v15")
    A("s_and_b32 s34, s3, 1"); A(f"s_or_b32 s34, s34, s{S_RB}")
    A("v_min_u32 v16, 7, v13"); A("s_cmp_eq_u32 s34, 0"); A("s_cselect_b64 s[34:35], -1, 0")
    A("v_mov_b32 v17, 7"); A("v_cndmask_b32 v16, v17, v16, s[34:35]")
    MS = [24, 26, 28, 30, 64, 66, 32, 34]
    for (lim, bs) in ((17, (2, 3)), (16, (0, 1))):
        for q in range(8):
            A(f"v_subrev_u32 v18, {16*(q >> 2) + (q & 3)}, v15")
            A(f"v_cmp_le_u32 s[{MS[q]}:{MS[q]+1}], v18, v{lim}")
        for b in bs:
            for q in range(8):
                A(f"v_cndmask_b32 v{sc(b,0)+q}, v28, v{sc(b,0)+q}, s[{MS[q]}:{MS[q]+1}]")
    MX = 192; M2 = 196
    def xreduce(op):
        for swap in ("v_permlane16_swap_b32", "v_permlane32_swap_b32"):
            for b in range(4): A(f"v_mov_b32 v{M2+b}, v{MX+b}")
            for b in range(4): A(f"{swap} v{MX+b}, v{M2+b}")
            for b in range(4): A(f"{op} v{MX+b}, v{MX+b}, v{M2+b}")
    for b in range(4): s0 = sc(b,0); A(f"v_max3_f32 v{MX+b}, v{s0}, v{s0+1}, v{s0+2}")
    for b in range(4): s0 = sc(b,0); A(f"v_max3_f32 v{MX+b}, v{MX+b}, v{s0+3}, v{s0+4}")
    for b in range(4): s0 = sc(b,0); A(f"v_max3_f32 v{MX+b}, v{MX+b}, v{s0+5}, v{s0+6}")
    for b in range(4): s0 = sc(b,0); A(f"v_max_f32 v{MX+b}, v{MX+b}, v{s0+7}")
    xreduce("v_max_f32")
    for b in range(4):
        for q in range(8): A(f"v_sub_f32 v{sc(b,0)+q}, v{sc(b,0)+q}, v{MX+b}")
    for b in range(4):
        for q in range(8): A(f"v_exp_f32 v{sc(b,0)+q}, v{sc(b,0)+q}")

    for b in range(4): s0 = sc(b,0); A(f"v_add_f32 v{MX+b}, v{s0}, v{s0+1}")
    for q in range(2, 8):
        for b in range(4): A(f"v_add_f32 v{MX+b}, v{MX+b}, v{sc(b,0)+q}")
    xreduce("v_add_f32")
    for b in range(4): A(f"v_rcp_f32 v{MX+b}, v{MX+b}")
    PB = 200
    for b in range(4):
        for q in range(8): A(f"v_mul_f32 v{sc(b,0)+q}, v{sc(b,0)+q}, v{MX+b}")
    for b in range(4):
        for q in range(4): A(f"v_cvt_pk_bf16_f32 v{PB+4*b+q}, v{sc(b,0)+2*q}, v{sc(b,0)+2*q+1}")
    OB = 160
    for b in range(4):
        for mt in range(2): A(f"v_mfma_f32_16x16x32_bf16 {v(OB+8*b+4*mt,4)}, {v(V_(b,mt),4)}, {v(PB+4*b,4)}, 0")
    ST(A, 5)
    wfj.finish()
    svc.wait_read([6, 7], [('B', 0), ('B', 1)]); A.wait_lg(); svc.bg_dma([14, 15], [('B', 0), ('B', 1)])
    A("v_and_b32 v15, 1, v13"); A("v_lshlrev_b32 v15, 1, v15"); A("v_bfe_u32 v16, v13, 1, 1"); A("v_or_b32 v15, v15, v16")
    A("v_and_b32 v16, 12, v13"); A("v_or_b32 v15, v15, v16"); A("v_lshl_add_u32 v15, v14, 4, v15"); A("v_lshlrev_b32 v29, 4, v15")
    A(f"s_lshl_b32 s23, s{S_RB}, 1"); A("s_and_b32 s33, s3, 1"); A("s_add_u32 s23, s23, s33"); A("s_mul_i32 s23, s23, 44")
    A(f"s_lshl_b32 s33, s{S_CB}, 1"); A("s_add_u32 s23, s23, s33"); A("s_lshr_b32 s33, s3, 1"); A("s_add_u32 s23, s23, s33")
    A("s_lshl_b32 s23, s23, 12"); A(f"s_add_u32 s23, s23, {WS_AF}")
    srd_from(A, 16, S_WS, 23, 4096)
    A("v_and_b32 v15, 2, v13"); A("v_cmp_eq_u32 vcc, 0, v15"); A("v_cmp_ne_u32 s[24:25], 0, v15")
    for b in range(4):
        o = OB + 8*b
        for q in range(8): A(f"v_mul_f32 v{o+q}, v{o+q}, v{G_(b)}")
        for q in range(4): A(f"v_cvt_pk_bf16_f32 v{PB+4*b+q}, v{o+2*q}, v{o+2*q+1}")
    for bb in range(2):
        X0 = PB + 8*bb; X1 = X0 + 4; Y = 216 + 8*bb
        for q in range(4):
            A(f"v_mov_b32_dpp v{Y+q}, v{X1+q} quad_perm:[2,3,0,1] row_mask:0xf bank_mask:0xf")
            A(f"v_mov_b32_dpp v{Y+4+q}, v{X0+q} quad_perm:[2,3,0,1] row_mask:0xf bank_mask:0xf")
        for q in range(4):
            A(f"v_cndmask_b32 v{Y+q}, v{Y+q}, v{X0+q}, vcc")
            A(f"v_cndmask_b32 v{Y+4+q}, v{Y+4+q}, v{X1+q}, s[24:25]")
        for aa in range(2):
            A(f"buffer_store_dwordx4 {v(Y+4*aa,4)}, v29, s[16:19], 0 offen offset:{(2*bb+aa)*1024} sc1", tag='pubst')
    A.bg_flush(); A.bg_every = 0
    ST(A, 6)
    A.wait_vm('pubst'); tag_take(A, lambda x: L('q' + x)); A("s_barrier")
    A(f"s_mul_i32 s27, s{S_RB}, {FS}"); A(f"s_lshl_b32 s28, s{S_CB}, 3"); A("s_add_u32 s27, s27, s28"); A(f"s_add_u32 s27, s27, {WS_F1Q}")
    signal(A, L, 'sigqd', 27)
    ST(A, 7)
    p2 = P2(A, L); p2.pre(); p2.flag_issue()
    p2.flag_take('q')
    p2.first()
    svc.wait_read(list(range(8, 14)), [('A', k) for k in range(6)])
    svc.wait_read([14, 15], [('B', 0), ('B', 1)])
    p2.plumbing()
    p2.third()
    A.wait_lg()
    ST(A, 8)
    p2.loop('q')

def rot7(s_):
    if s_ == 6: return [f"s_add_u32 s30, s29, {3*4096}"]
    return [f"s_add_u32 s30, s{S_CB}, {s_}", "s_cmp_ge_u32 s30, 6", "s_cselect_b32 s31, 6, 0", "s_sub_u32 s30, s30, s31",
            "s_cmp_ge_u32 s30, 6", "s_cselect_b32 s31, 6, 0", "s_sub_u32 s30, s30, s31",
            "s_cmp_ge_u32 s30, 3", "s_addc_u32 s30, s30, 0", "s_lshl_b32 s30, s30, 12", "s_add_u32 s30, s30, s29"]

def poll_p2(A, L):
    tag = 'pa'
    A("s_cmp_lg_u32 s3, 0"); A(f"s_cbranch_scc1 {L(tag+'_done')}")
    A.raw("  s_mov_b32 s33, 0"); A.raw(f"  s_lshl_b32 s30, s{S_CB}, 2"); A.raw("  s_lshl_b64 s[30:31], 15, s30")
    A.label(L(tag+'_loop'))
    for q2 in range(2): A.raw(f"  global_load_dwordx4 {v(16+4*q2,4)}, v2, s[{S_WS}:{S_WS+1}] offset:{16*q2} sc1")
    A.raw("  s_add_u32 s33, s33, 1"); A.raw("  s_waitcnt vmcnt(0)")
    for q in range(8): A.raw(f"  v_xor_b32 v{16+q}, s{S_TAG + (q & 1)}, v{16+q}")
    for t in ("v_or3_b32 v16, v16, v17, v18", "v_or3_b32 v19, v19, v20, v21", "v_or3_b32 v16, v16, v22, v23", "v_or_b32 v16, v16, v19", "v_cmp_eq_u32 vcc, 0, v16"): A.raw("  " + t)
    A.raw("  s_nop 1")
    A.raw("  s_and_b64 s[34:35], vcc, s[30:31]"); A.raw("  s_cmp_eq_u64 s[34:35], s[30:31]")
    A.raw(f"  s_cbranch_scc1 {L(tag+'_out')}")
    A.raw(f"  s_sleep {SLEEP}"); A.raw("  s_cmp_lt_u32 s33, 0x20000"); A.raw(f"  s_cbranch_scc1 {L(tag+'_loop')}")
    A.label(L(tag+'_out'))
    A.raw("  s_cmp_eq_u64 vcc, exec"); A.raw("  s_cselect_b32 s30, 1, 0"); A.raw("  v_mov_b32 v16, s30"); A.raw("  ds_write_b32 v9, v16"); A.raw("  s_waitcnt lgkmcnt(0)")
    A.label(L(tag+'_done'))
    A("s_barrier")

class P2:
    ACC, BR = 32, 144
    def __init__(self, A, L): self.A, self.L = A, L
    def acc(self, j, tau): return self.ACC + (j*4+tau)*4
    def bfrag(self, kk, j): return self.BR + (kk % 4)*28 + j*4
    def afrag(self, kk, tau): return ((kk >> 1)*8 + (kk & 1)*4 + tau)*4
    def pre(self):
        A = self.A
        A("v_lshlrev_b32 v3, 4, v12"); A("v_add_u32 v4, 4096, v3")
        A(f"s_mul_i32 s23, s{S_CB}, {64*7168}"); srd_from(A, 12, S_WS, 23, 64*7168)
        A(f"s_mul_i32 s26, s3, {16*7168}")
        if os.environ.get('ROT', '0') == '1': A(f"s_and_b32 s25, s{S_RB2}, 7"); A("s_lshl_b32 s25, s25, 1")
        else:
            A("s_mov_b32 s25, 0")
            A(f"s_and_b32 s23, s{S_RB2}, 7"); A("s_mul_i32 s23, s23, 896")
            A("v_and_b32 v31, 7, v12"); A("v_min_u32 v31, 6, v31"); A("v_lshlrev_b32 v31, 7, v31"); A("v_bfe_u32 v30, v12, 3, 2"); A("v_mul_u32_u24 v30, 7168, v30")
            A("v_add3_u32 v31, v31, v30, s23")
        A(f"s_mul_i32 s27, s{S_CB}, {FS}"); A("s_lshl_b32 s23, s3, 5"); A("s_add_u32 s27, s27, s23"); A(f"s_add_u32 s27, s27, {WS_F1Z}")
        A("v_and_b32 v9, 3, v12"); A("v_lshl_add_u32 v9, v9, 3, s27")
    def flag_issue(self):
        self.A(f"global_load_dwordx2 v[10:11], v9, s[{S_WS}:{S_WS+1}] sc1", tag='fa')
    def flag_take(self, role):
        A, L = self.A, self.L
        A.wait_vm('fa')
        A(f"v_xor_b32 v10, s{S_TAG}, v10"); A(f"v_xor_b32 v11, s{S_TAG+1}, v11"); A("v_or_b32 v10, v10, v11"); A("v_cmp_eq_u32 vcc, 0, v10")
        A("s_nop 1"); A("s_cmp_eq_u64 vcc, exec"); A(f"s_cbranch_scc1 {L(role+'faok')}")
        poll_wave(A, L, role+'paw', 9, reset=False)
        A.label(L(role+'faok'))
        ST(A, 10)
    def soffB(self, kk):
        if os.environ.get('ROT', '0') != '1': return [f"s_add_u32 s27, s26, {kk*7168}"]
        return [f"s_add_u32 s27, s25, {kk}", "s_and_b32 s27, s27, 15", "s_mul_i32 s27, s27, 7168", "s_add_u32 s27, s27, s26"]
    def touchB(self, k0):
        if os.environ.get('ROT', '0') == '1': return
        A = self.A
        A(f"s_add_u32 s24, s26, {k0*7168}"); A("buffer_load_dword v30, v31, s[12:15], s24 offen sc1", tag='bt')
    def first(self):
        self.issueB(0)
        if os.environ.get('EARLY', '1') == '0': self.second()
    def second(self):
        self.touchB(3); self.issueB(1)
        if os.environ.get('ROT', '0') != '1': self.issueB(2)
    def third(self):
        if os.environ.get('EARLY', '1') == '1': self.second()
    def issueB(self, kk):
        A = self.A
        for t in self.soffB(kk): A(t)
        for j in range(7):
            A(f"buffer_load_dwordx4 {v(self.bfrag(kk,j),4)}, v{3 if j < 4 else 4}, s[12:15], s27 offen offset:{(j % 4)*1024} sc1", tag=('B', kk))
    def plumbing(self):
        A = self.A
        A(f"s_mul_i32 s23, s{S_CB}, {44*4096}"); A(f"s_add_u32 s23, s23, {WS_WF}"); srd_from(A, 8, S_WS, 23, 44*4096)
        A(f"s_cmp_eq_u32 s{S_CB}, 7"); A("s_cselect_b32 s10, 0, s10")
        A(f"s_mul_i32 s23, s{S_RB2}, {44*4096}"); A(f"s_add_u32 s23, s23, {WS_AF}"); srd_from(A, 16, S_WS, 23, 44*4096)
        for tau in range(4):
            A(f"s_xor_b32 s24, s3, {tau}"); A("s_lshl_b32 s24, s24, 10"); A(f"v_add_u32 v{5+tau}, s24, v3")
        A("s_lshl_b32 s28, s3, 14")
        A(f"s_mul_i32 s29, s3, {7*4096}"); A(f"s_add_u32 s29, s29, {16*4096}")
        A(f"s_lshl_b32 s30, s{S_RB2}, 2"); A("s_add_u32 s30, s30, s3")
        A("s_mul_i32 s31, s30, 56"); A(f"s_mul_i32 s32, s{S_CB}, 7"); A("s_add_u32 s31, s31, s32"); A("s_lshl_b32 s31, s31, 9"); A(f"s_add_u32 s31, s31, {WS_Z1F}")
        srd_from(A, 64, S_WS, 31, 7*512)
        A("v_lshlrev_b32 v10, 3, v12")
        A(f"s_lshl_b32 s31, s{S_RB2}, 6"); A("s_lshr_b32 s32, s3, 1"); A("s_lshl_b32 s32, s32, 5"); A("s_add_u32 s31, s31, s32")
        A("s_and_b32 s32, s3, 1"); A("s_lshl_b32 s32, s32, 2"); A("s_add_u32 s31, s31, s32")
        A("v_lshrrev_b32 v11, 2, v13"); A("v_lshlrev_b32 v11, 3, v11"); A("v_and_b32 v1, 3, v13"); A("v_add_u32 v11, v11, v1"); A("v_add_u32 v11, s31, v11")
        A("v_lshlrev_b32 v15, 2, v11"); A(f"v_add_u32 v15, {WS_GATE}, v15"); A("v_lshlrev_b32 v11, 1, v11")
        A("v_lshrrev_b32 v2, 2, v12"); A(f"v_mul_u32_u24 v2, {FS}, v2"); A("v_and_b32 v1, 3, v12"); A("v_lshl_add_u32 v2, v1, 4, v2"); A(f"v_add_u32 v2, {WS_F1Q}, v2")
        A(f"s_mul_i32 s27, s{S_RB}, {FS}"); A(f"s_lshl_b32 s23, s{S_CB}, 3"); A("s_add_u32 s27, s27, s23"); A(f"s_add_u32 s27, s27, {WS_F3}"); A("v_mov_b32 v9, s27")
    def epi_list(self):
        out = [(f"buffer_load_dwordx2 {v(16+2*j,2)}, v10, s[64:67], 0 offen offset:{j*512} sc1", 'epi') for j in range(7)]
        out += [(f"global_load_ushort v30, v11, s[{S_BSP}:{S_BSP+1}]", 'epi'), (f"global_load_dword v31, v15, s[{S_WS}:{S_WS+1}] sc1", 'epi')]
        return out
    def wlist(self, kind):
        out = []
        if kind == 'Wo':
            for s_ in range(4):
                out.append((f"s_add_u32 s30, s28, {s_*4096}", None))
                out += [(f"buffer_load_dwordx4 {a((s_*4+uu)*4,4)}, v3, s[8:11], s30 offen offset:{uu*1024} sc1", ('Wo', s_)) for uu in range(4)]
        if kind == 'Wh':
            for s_ in range(7):
                out += [(t, None) for t in rot7(s_)]
                out += [(f"buffer_load_dwordx4 {a(64+(s_*4+uu)*4,4)}, v3, s[8:11], s30 offen offset:{uu*1024} sc1", ('Wh', s_)) for uu in range(4)]
        if kind == 'Ao':
            for s_ in range(4):
                out.append((f"s_add_u32 s32, s28, {s_*4096}", None))
                out += [(f"buffer_load_dwordx4 {a(176+(s_*4+tau)*4,4)}, v{5+tau}, s[16:19], s32 offen sc1", ('Ao', s_)) for tau in range(4)]
        return out
    def loop(self, role):
        A = self.A; L = lambda x: self.L(role + x)
        acc, bfrag, afrag = self.acc, self.bfrag, self.afrag
        for kk in range(16):
            A.wait_vm(('B', kk)); ST(A, ('kk', kk))
            pend = [(kk+3, j) for j in range(7)] if kk + 3 < 16 else []
            if kk == 0 and os.environ.get('ROT', '0') == '1': pend = [(2, j) for j in range(7)] + pend
            if kk in (1, 5, 9): self.touchB({1: 7, 5: 11, 9: 15}[kk])
            m = 0
            if kk == 4:
                A.wait_vm('z1st'); A("s_barrier")
                if role == 'z':
                    A(f"s_mul_i32 s24, s{S_RB}, {FS}"); A(f"s_lshl_b32 s23, s{S_CB}, 3"); A("s_add_u32 s24, s24, s23"); A(f"s_add_u32 s24, s24, {WS_F3}")
                    signal(A, L, 'sigz1', 24, vtmp=20)
            if kk == 8:
                A(f"global_load_dwordx4 v[16:19], v2, s[{S_WS}:{S_WS+1}] sc1", tag='fl')
                A(f"global_load_dwordx2 v[20:21], v9, s[{S_WS}:{S_WS+1}] sc1", tag='fl')
            if kk == 12:
                def check():
                    return [f"v_xor_b32 v{16+q}, s{S_TAG + (q & 1)}, v{16+q}" for q in range(6)] + ["v_or3_b32 v16, v16, v17, v18", "v_or3_b32 v19, v19, v20, v21", "v_or_b32 v16, v16, v19", "v_cmp_eq_u32 vcc, 0, v16"]
                A.wait_vm('fl')
                for t in check(): A(t)
                A("s_nop 1"); A("s_cmp_eq_u64 vcc, exec"); A(f"s_cbranch_scc1 {L('allok')}")
                A.raw("  s_mov_b32 s33, 0")
                A.raw(f"{L('allloop')}:")
                A.raw(f"  global_load_dwordx4 v[16:19], v2, s[{S_WS}:{S_WS+1}] sc1"); A.raw(f"  global_load_dwordx2 v[20:21], v9, s[{S_WS}:{S_WS+1}] sc1")
                A.raw("  s_add_u32 s33, s33, 1"); A.raw("  s_waitcnt vmcnt(0)")
                for t in check(): A.raw("  " + t)
                A.raw("  s_nop 1"); A.raw("  s_cmp_eq_u64 vcc, exec"); A.raw(f"  s_cbranch_scc1 {L('allok')}")
                A.raw(f"  s_sleep {SLEEP}"); A.raw("  s_cmp_lt_u32 s33, 0x20000"); A.raw(f"  s_cbranch_scc1 {L('allloop')}")
                A.label(L('allok'))
            if kk == 13:
                A.bg += self.epi_list() + self.wlist('Wo')[:15]; A.bg_every = 4
            for j in range(7):
                for tau in range(4):
                    c = v(acc(j,tau),4)
                    A(f"v_mfma_f32_16x16x32_bf16 {c}, {v(bfrag(kk,j),4)}, {a(afrag(kk,tau),4)}, {c if kk else 0}")
                    m += 1
                    if pend and (m % 4 == 1 or (kk == 0 and m % 2 == 1)):
                        k3, jj = pend.pop(0)
                        if jj == 0:
                            for t in self.soffB(k3): A(t)
                        A(f"buffer_load_dwordx4 {v(bfrag(k3,jj),4)}, v{3 if jj < 4 else 4}, s[12:15], s27 offen offset:{(jj % 4)*1024} sc1", tag=('B', k3))
            A.check_vm()
        A.bg_flush(); A.bg_every = 0

def phase2_tail(A, L):
    p2 = P2(A, L); acc = p2.acc; wlist = p2.wlist
    rest = wlist('Wo')[15:] + wlist('Ao') + wlist('Wh')
    groups = []; cur = []
    for it in rest:
        cur.append(it)
        if it[1] is not None and sum(1 for x in cur if x[1] is not None) == 4: groups.append(cur); cur = []
    n1, n2 = [int(x) for x in os.environ.get('TAILG', '5,4').split(',')]
    for gq in groups[:n1]: A.bg += gq
    bg_mid = [it for gq in groups[n1:n1+n2] for it in gq]; bg_late = [it for gq in groups[n1+n2:] for it in gq]
    A.bg_every = int(os.environ.get('TAILE', '5')); A.bg_classes = ('valu', 'ds')
    ST(A, 11)
    A("s_mul_i32 s23, s3, 21504"); A("v_add_u32 v9, s23, v3")
    for tau in (1,2,3):
        A(f"s_xor_b32 s24, s3, {tau}"); A("s_mul_i32 s24, s24, 21504"); A(f"s_add_u32 s24, s24, {(tau-1)*7168}"); A(f"v_add_u32 v{(10,11,15)[tau-1]}, s24, v3")
    for tau in (1,2,3):
        for j in range(7): A(f"ds_write_b128 v9, {v(acc(j,tau),4)} offset:{(tau-1)*7168+j*1024}", tag='w')
    A.wait_lg(); ST(A, 'red_w'); A("s_barrier"); ST(A, 'red_b')
    T0 = 144
    for tau in (1,2,3):
        for j in range(7): A(f"ds_read_b128 {v(T0+((tau-1)*7+j)*4,4)}, v{(10,11,15)[tau-1]} offset:{j*1024}", tag=('r',tau))
    for tau in (1,2,3):
        A.wait_lg(('r',tau))
        for j in range(7):
            c = acc(j,0); t = T0+((tau-1)*7+j)*4
            A(f"v_pk_add_f32 {v(c,2)}, {v(c,2)}, {v(t,2)}"); A(f"v_pk_add_f32 {v(c+2,2)}, {v(c+2,2)}, {v(t+2,2)}")
    A.bg_flush(); A.bg_every = 0
    ST(A, 'red_r')
    A.wait_vm('epi')
    A("v_lshlrev_b32 v30, 16, v30"); A("v_sub_f32 v31, 1.0, v31")
    H = 144
    for j in range(7):
        c = acc(j,0)
        for r in range(4):
            z = 16 + 2*j + (r >> 1); t = 1 + (r & 1)
            if r & 1: A(f"v_and_b32 v{t}, 0xffff0000, v{z}")
            else: A(f"v_lshlrev_b32 v{t}, 16, v{z}")
            A(f"v_add_f32 v{c+r}, v{c+r}, v30")
            A(f"v_mul_f32 v{t}, v{t}, v31")
            A(f"v_mul_f32 v{c+r}, v{c+r}, v{t}")
        A(f"v_cvt_pk_bf16_f32 v{H+2*j}, v{c}, v{c+1}"); A(f"v_cvt_pk_bf16_f32 v{H+2*j+1}, v{c+2}, v{c+3}")
    ST(A, 'hcomp')
    A.bg_classes = ('valu', 'mfma')
    A.wait_vm(('Wo', 2))
    A("v_lshlrev_b32 v2, 3, v12")
    A(f"s_mul_i32 s24, s{S_CB}, 7"); A("s_lshr_b32 s33, s24, 1"); A("s_add_u32 s33, s33, 16"); A("s_lshl_b32 s33, s33, 12")
    A("s_lshl_b32 s23, s3, 10"); A("s_add_u32 s33, s33, s23")
    A("s_and_b32 s24, s24, 1"); A("s_cmp_eq_u32 s24, 0"); A(f"s_cbranch_scc0 {L('odd')}")
    vm0 = list(A.vm)
    for p in range(3):
        A(f"buffer_store_dwordx4 {v(H+4*p,4)}, v3, s[16:19], s33 offen sc1", tag='hst'); A("s_add_u32 s33, s33, 4096")
    A(f"buffer_store_dwordx2 {v(H+12,2)}, v2, s[16:19], s33 offen sc1", tag='hst')
    A(f"s_branch {L('hfin')}")
    A.label(L('odd')); A.vm = list(vm0)
    A(f"buffer_store_dwordx2 {v(H,2)}, v2, s[16:19], s33 offen offset:512 sc1", tag='hst')
    for p in range(3):
        A("s_add_u32 s33, s33, 4096"); A(f"buffer_store_dwordx4 {v(H+2+4*p,4)}, v3, s[16:19], s33 offen sc1", tag='hst')
    A.label(L('hfin'))
    ST(A, 12)
    for t, tg in bg_mid: A(t, tag=tg)
    return bg_late

def phase3(A, L, late):
    ACC = 32; acc = lambda uu, tau: ACC + (uu*4+tau)*4
    HA = 96
    A.wait_vm('hst'); ST(A, 'hack'); A("s_barrier")
    A(f"s_mul_i32 s27, s{S_RB2}, {FS}"); A(f"s_lshl_b32 s26, s{S_CB}, 3"); A("s_add_u32 s27, s27, s26"); A(f"s_add_u32 s27, s27, {WS_F2}")
    signal(A, L, 'sighd', 27)
    A(f"s_cmp_eq_u32 s{S_CB}, 7"); A(f"s_cbranch_scc1 {L('fin')}")
    ST(A, 13)
    nl = sum(1 for x in late if x[1] is not None)
    A.bg += late; A.bg_every = max(1, 60 // max(nl, 1))
    for s_ in range(4):
        A.wait_vm([('Wo', s_), ('Ao', s_)])
        for tau in range(4):
            for uu in range(4):
                c = v(acc(uu,tau),4)
                A(f"v_mfma_f32_16x16x32_bf16 {c}, {a((s_*4+uu)*4,4)}, {a(176+(s_*4+tau)*4,4)}, {c if s_ else 0}")
    A.bg_flush(); A.bg_every = 0
    ST(A, 'opart')
    A("s_mul_i32 s26, s3, 12288"); A("v_add_u32 v20, s26, v3")
    for tau in (1,2,3):
        A(f"s_xor_b32 s26, s3, {tau}"); A("s_mul_i32 s26, s26, 12288"); A(f"s_add_u32 s26, s26, {(tau-1)*4096}"); A(f"v_add_u32 v{20+tau}, s26, v3")
    A("v_bfe_u32 v15, v13, 2, 1"); A("v_lshlrev_b32 v15, 3, v15"); A("v_and_b32 v16, 3, v13"); A("v_add_u32 v15, v15, v16")
    A(f"s_lshl_b32 s26, s{S_RB2}, 6"); A("s_lshr_b32 s27, s3, 1"); A("s_lshl_b32 s27, s27, 5"); A("s_add_u32 s26, s26, s27")
    A("s_and_b32 s27, s3, 1"); A("s_lshl_b32 s27, s27, 2"); A("s_add_u32 s26, s26, s27")
    A("v_add_u32 v15, s26, v15"); A("v_mul_u32_u24 v15, 896, v15")
    A("v_lshrrev_b32 v16, 3, v13"); A("v_lshl_add_u32 v16, v16, 2, v14"); A("v_lshlrev_b32 v16, 4, v16")
    A(f"s_lshl_b32 s27, s{S_CB}, 7"); A("v_add_u32 v16, s27, v16"); A("v_add_u32 v1, v15, v16")
    A(f"s_mov_b32 s26, {16*896}")
    srd_from(A, 12, S_OUT, None, S*D*2)
    for tau in range(4):
        A(f"s_xor_b32 s24, s3, {tau}"); A("s_lshl_b32 s24, s24, 10"); A(f"v_lshl_add_u32 v{24+tau}, v12, 3, s24")
    A(f"s_mul_i32 s27, s{S_RB2}, {FS}"); A(f"s_add_u32 s27, s27, {WS_F2}"); A("v_lshl_add_u32 v17, v12, 3, s27")
    poll(A, L, 'pb', 17, 8)
    ST(A, 14)
    def hload(s_):
        out = [(t, None) for t in rot7(s_)]
        for tau in range(4):
            r = HA + (s_*4+tau)*4
            if s_ < 6: out.append((f"buffer_load_dwordx4 {v(r,4)}, v{5+tau}, s[16:19], s30 offen sc1", ('Ah', s_)))
            else:
                out.append((f"buffer_load_dwordx2 {v(r,2)}, v{24+tau}, s[16:19], s30 offen sc1", ('Ah', s_)))
                out.append((f"buffer_load_dwordx2 {v(r+2,2)}, v{24+tau}, s[16:19], s30 offen offset:512 sc1", ('Ah', s_)))
        return out
    for s_ in range(3):
        for t, tg in hload(s_): A(t, tag=tg)
    for s_ in range(7):
        A.wait_vm(('Ah', s_))
        if s_ == 0: ST(A, 'ah0')
        if s_ == 6: ST(A, 'ahN')
        if s_ + 3 < 7: A.bg += hload(s_ + 3); A.bg_every = 3
        for tau in range(4):
            for uu in range(4):
                c = v(acc(uu,tau),4)
                A(f"v_mfma_f32_16x16x32_bf16 {c}, {a(64+(s_*4+uu)*4,4)}, {v(HA+(s_*4+tau)*4,4)}, {c}")
        A.bg_flush(); A.bg_every = 0
    if not os.environ.get('ENDST'): ST(A, 15)
    for tau in (1,2,3):
        for uu in range(4): A(f"ds_write_b128 v20, {v(acc(uu,tau),4)} offset:{(tau-1)*4096+uu*1024}", tag='w')
    A.wait_lg(); A("s_barrier")
    ST(A, 'p3red')
    T0 = 208
    for tau in (1,2,3):
        for uu in range(4): A(f"ds_read_b128 {v(T0+((tau-1)*4+uu)*4,4)}, v{20+tau} offset:{uu*1024}", tag=('r',tau))
    for tau in (1,2,3):
        A.wait_lg(('r',tau))
        for uu in range(4):
            c = acc(uu,0); t = T0+((tau-1)*4+uu)*4
            A(f"v_pk_add_f32 {v(c,2)}, {v(c,2)}, {v(t,2)}"); A(f"v_pk_add_f32 {v(c+2,2)}, {v(c+2,2)}, {v(t+2,2)}")
    for vv in range(2):
        o = 96 + 4*vv; c0 = acc(2*vv,0); c1 = acc(2*vv+1,0)
        A(f"v_cvt_pk_bf16_f32 v{o}, v{c0}, v{c0+1}"); A(f"v_cvt_pk_bf16_f32 v{o+1}, v{c0+2}, v{c0+3}")
        A(f"v_cvt_pk_bf16_f32 v{o+2}, v{c1}, v{c1+1}"); A(f"v_cvt_pk_bf16_f32 v{o+3}, v{c1+2}, v{c1+3}")
    A("v_cmp_gt_u32 vcc, 8, v13"); A("v_cmp_le_u32 s[24:25], 8, v13")
    for q in range(4):
        A(f"v_mov_b32_dpp v{104+q}, v{100+q} row_ror:8 row_mask:0xf bank_mask:0xf")
        A(f"v_mov_b32_dpp v{108+q}, v{96+q} row_ror:8 row_mask:0xf bank_mask:0xf")
    for q in range(4):
        A(f"v_cndmask_b32 v{104+q}, v{104+q}, v{96+q}, vcc")
        A(f"v_cndmask_b32 v{108+q}, v{108+q}, v{100+q}, s[24:25]")
    ST(A, 'p3st')
    A(f"buffer_store_dwordx4 v[104:107], v1, s[12:15], 0 offen {os.environ.get('OUTSC', 'sc1')}")
    A(f"buffer_store_dwordx4 v[108:111], v1, s[12:15], s26 offen {os.environ.get('OUTSC', 'sc1')}")

def gen_mega(name="mega", code_bytes=0):
    Stamps.map = [78+2*k for k in range(11)] + [4, 6, 42, 0, 74+0*0]
    A = Asm(); L = lambda x: f"{name}_{x}"
    A("s_cmp_ge_u32 s2, 256"); A(f"s_cbranch_scc1 {L('end')}")
    if os.environ.get('DELAY'):
        A.raw(f"  s_mov_b32 s30, {os.environ['DELAY']}")
        A.raw(f"{L('dly')}:")
        for q in range(16): A.raw(f"  v_add_u32 v{100+q}, v{100+q}, v0")
        A.raw("  s_sub_u32 s30, s30, 1"); A.raw("  s_cmp_lg_u32 s30, 0"); A.raw(f"  s_cbranch_scc1 {L('dly')}")
    ST(A, 0)
    A("s_load_dwordx16 s[36:51], s[0:1], 0")
    A("s_load_dwordx8 s[52:59], s[0:1], 64")
    A("v_lshrrev_b32 v6, 6, v0"); A("s_getreg_b32 s20, hwreg(HW_REG_XCC_ID)"); A("v_readfirstlane_b32 s3, v6")
    if code_bytes and os.environ.get('ECP', '1') == '1':
        A("s_cmp_lg_u32 s3, 1"); A(f"s_cbranch_scc1 {L('noecp')}")
        A.raw("  s_getpc_b64 s[22:23]"); A.raw(f"{name}_pc0:")
        A.raw("  v_and_b32 v10, 31, v0"); A.raw("  v_lshlrev_b32 v10, 7, v10"); A.raw("  v_bfe_u32 v11, v0, 5, 1")
        A.raw(f"  v_mul_u32_u24 v11, {L('qrole')}-{name}_pc0, v11"); A.raw("  v_add_u32 v10, v10, v11")
        A.raw("  global_load_dword v56, v10, s[22:23]")
        A.label(L('noecp'))
    A("v_and_b32 v12, 63, v0")
    A("s_and_b32 s20, s20, 7")
    A("v_and_b32 v13, 15, v12"); A("v_lshrrev_b32 v14, 4, v12")
    A(f"v_mov_b32 v18, {L_TICKET}"); A("v_mov_b32 v17, 0")
    A.wait_lg(); ST(A, 'karg')
    CH = os.environ.get('CHIPT', '1') == '1'
    A("s_cmp_lg_u32 s3, 0"); A(f"s_cbranch_scc1 {L('notick')}")
    A.raw("  s_lshl_b32 s30, s20, 5"); A.raw("  v_mov_b32 v10, s30"); A.raw("  v_mov_b32 v19, 1")
    A.raw("  s_mov_b64 s[34:35], exec"); A.raw("  s_mov_b64 exec, 1")
    A.raw(f"  global_atomic_add v59, v10, v19, s[{S_DBG}:{S_DBG+1}] sc0 sc1")
    A.raw("  s_mov_b64 exec, s[34:35]")
    A.label(L('notick'))
    if CH:
        A("s_lshl_b32 s24, s2, 2"); A("s_add_u32 s24, s24, s3")
        A("s_mul_i32 s25, s24, 1792"); A("v_min_u32 v57, 13, v12"); A("v_lshlrev_b32 v57, 7, v57"); A("v_add_u32 v58, s25, v57")
        A(f"global_load_dword v56, v58, s[{S_X}:{S_X+1}]", tag='pf')
        A("s_cmp_lt_u32 s24, 448"); A(f"s_cselect_b32 s28, s{S_WIN}, s{S_WQKV}"); A(f"s_cselect_b32 s29, s{S_WIN+1}, s{S_WQKV+1}")
        A("s_cselect_b32 s26, 27, 20"); A("s_cselect_b32 s27, 4, 3"); A("s_cselect_b32 s25, 0, 448"); A("s_mul_i32 s27, s27, 896")
        A("s_sub_u32 s25, s24, s25"); A("s_min_u32 s25, s25, 447"); A("s_mul_i32 s25, s25, s27")
        A("v_min_u32 v57, s26, v12"); A("v_lshlrev_b32 v57, 7, v57"); A("v_add_u32 v58, s25, v57")
        A("global_load_dword v56, v58, s[28:29]", tag='pf')
    A("s_cmp_lg_u32 s3, 0"); A(f"s_cbranch_scc1 {L('tickd')}")
    A.raw(f"  s_waitcnt vmcnt({2 if CH else 0})")
    A.raw("  v_readfirstlane_b32 s30, v59"); A.raw("  s_nop 1"); A.raw("  v_mov_b32 v59, s30")
    A.raw("  ds_write_b32 v18, v59"); A.raw("  s_waitcnt lgkmcnt(0)")
    A.label(L('tickd'))
    A("s_barrier"); ST(A, 'tkb')
    A("ds_read_b32 v19, v18", tag='tk')
    A("s_cmp_lg_u32 s3, 0"); A(f"s_cbranch_scc1 {L('notag')}")
    tag_publish(A, L)
    A.wait_lg()
    A("v_readfirstlane_b32 s21, v19")
    A("s_cmp_ge_u32 s21, 32"); A(f"s_cbranch_scc1 {L('end')}")
    A("s_lshl_b32 s24, s21, 2"); A("s_add_u32 s24, s24, s3")
    if not CH:
        A("s_and_b32 s25, s20, 1"); A("s_mul_i32 s26, s25, 896")
        A("s_cmp_lt_u32 s24, 43"); A(f"s_cbranch_scc1 {L('tx')}")
        A.raw("  s_cmp_lt_u32 s24, 83"); A.raw(f"  s_cbranch_scc1 {L('tw')}")
        A.raw("  s_sub_u32 s27, s24, 83"); A.raw("  s_mul_i32 s27, s27, 8"); A.raw("  v_lshrrev_b32 v57, 3, v12"); A.raw("  v_add_u32 v57, s27, v57"); A.raw("  v_min_u32 v57, 319, v57")
        A.raw("  v_and_b32 v15, 7, v12"); A.raw("  v_min_u32 v15, 5, v15")
        A.raw("  v_lshrrev_b32 v16, 1, v15"); A.raw("  v_mul_u32_u24 v16, 896, v16"); A.raw("  v_and_b32 v15, 1, v15"); A.raw("  v_lshl_add_u32 v15, v15, 8, v16")
        A.raw("  s_lshr_b32 s26, s26, 1"); A.raw("  v_add_u32 v15, s26, v15")
        A.raw("  v_lshrrev_b32 v61, 3, v12"); A.raw("  s_sub_u32 s27, s24, 83"); A.raw("  s_mul_i32 s27, s27, 3"); A.raw("  v_min_u32 v61, 2, v61"); A.raw("  v_add_u32 v61, s27, v61"); A.raw("  v_add_u32 v61, 320, v61"); A.raw("  v_min_u32 v61, 447, v61")
        A.raw("  v_mul_u32_u24 v61, 2688, v61"); A.raw("  v_add_u32 v61, v61, v15")
        A.raw("  v_mul_u32_u24 v57, 2688, v57"); A.raw("  v_add_u32 v57, v57, v15")
        A.raw("  v_add_u32 v60, 128, v57"); A.raw("  v_add_u32 v62, 128, v61")
        A.raw(f"  global_load_dword v56, v60, s[{S_WQKV}:{S_WQKV+1}]")
        A.raw(f"  s_mov_b32 s28, s{S_WQKV}"); A.raw(f"  s_mov_b32 s29, s{S_WQKV+1}"); A.raw(f"  s_branch {L('tgo')}")
        A.raw(f"{L('tw')}:")
        A.raw("  s_sub_u32 s27, s24, 43"); A.raw("  s_lshl_b32 s27, s27, 3"); A.raw("  v_lshrrev_b32 v57, 3, v12"); A.raw("  v_add_u32 v57, s27, v57")
        A.raw("  v_and_b32 v15, 7, v12"); A.raw("  v_min_u32 v15, 6, v15"); A.raw("  v_lshlrev_b32 v15, 7, v15"); A.raw("  s_add_u32 s26, s26, 1792"); A.raw("  v_add_u32 v15, s26, v15")
        A.raw("  s_sub_u32 s27, s24, 43"); A.raw("  s_lshl_b32 s27, s27, 2"); A.raw("  v_lshrrev_b32 v61, 3, v12"); A.raw("  v_min_u32 v61, 3, v61"); A.raw("  v_add_u32 v61, s27, v61"); A.raw("  v_add_u32 v61, 320, v61"); A.raw("  v_min_u32 v61, 447, v61")
        A.raw("  v_mul_u32_u24 v61, 3584, v61"); A.raw("  v_add_u32 v61, v61, v15"); A.raw("  v_mov_b32 v62, v61")
        A.raw("  v_mul_u32_u24 v57, 3584, v57"); A.raw("  v_add_u32 v57, v57, v15")
        A.raw(f"  s_mov_b32 s28, s{S_WIN}"); A.raw(f"  s_mov_b32 s29, s{S_WIN+1}"); A.raw(f"  s_branch {L('tgo')}")
        A.raw(f"{L('tx')}:")
        A.raw("  s_lshr_b32 s27, s20, 1"); A.raw("  s_lshl_b32 s27, s27, 9"); A.raw("  s_mul_i32 s28, s24, 12")
        A.raw("  v_mul_u32_u24 v57, 13108, v12"); A.raw("  v_lshrrev_b32 v57, 16, v57")
        A.raw("  v_mul_u32_u24 v15, 5, v57"); A.raw("  v_sub_u32 v15, v12, v15")
        A.raw("  v_min_u32 v57, 11, v57"); A.raw("  v_add_u32 v57, s28, v57"); A.raw("  v_min_u32 v57, 511, v57"); A.raw("  v_add_u32 v57, s27, v57"); A.raw("  v_mul_u32_u24 v57, 896, v57")
        A.raw("  v_and_b32 v16, 1, v15"); A.raw("  v_add_u32 v16, 5, v16"); A.raw("  v_lshl_add_u32 v61, v16, 7, v57"); A.raw("  v_mov_b32 v62, v61"); A.raw("  v_lshl_add_u32 v57, v15, 7, v57")
        A.raw(f"  s_mov_b32 s28, s{S_X}"); A.raw(f"  s_mov_b32 s29, s{S_X+1}")
        A.label(L('tgo'))
        A("global_load_dword v56, v57, s[28:29]", tag='pf')
        A("s_mov_b32 s30, s28"); A("s_mov_b32 s31, s29")
    if code_bytes:
        assert code_bytes <= 512*128
        A("s_getpc_b64 s[22:23]"); A.raw(f"{name}_pc:")
        A("v_and_b32 v10, 3, v0"); A("s_lshl_b32 s25, s24, 2"); A("v_add_u32 v10, s25, v10"); A("v_lshlrev_b32 v10, 7, v10")
        A(f"v_min_u32 v10, {L('end')}-{name}_pc, v10"); A("global_load_dword v56, v10, s[22:23]", tag='pf')
    A("s_lshl_b32 s2, s21, 3"); A("s_or_b32 s2, s2, s20")
    A("s_lshr_b32 s33, s21, 4"); A("s_and_b32 s21, s21, 15")
    A("s_lshr_b32 s22, s20, 1"); A("s_lshl_b32 s22, s22, 2"); A("s_lshr_b32 s23, s21, 2"); A("s_add_u32 s22, s22, s23")
    A("s_and_b32 s20, s20, 1"); A("s_lshl_b32 s20, s20, 2"); A("s_and_b32 s21, s21, 3"); A("s_add_u32 s21, s21, s20")
    A("s_mov_b32 s20, s22"); A("s_lshl_b32 s22, s20, 1"); A("s_add_u32 s22, s22, s33")
    ST(A, 'tick')
    A("s_cmp_eq_u32 s33, 0"); A(f"s_cbranch_scc0 {L('qrole')}")
    vm0 = list(A.vm); lg0 = list(A.lg)
    role_z(A, L)
    vmz = list(A.vm)
    A(f"s_branch {L('p2')}")
    A.label(L('qrole')); A.vm = list(vm0); A.lg = list(lg0)
    role_q(A, L)
    vmj = list(A.vm)
    assert vmj[-21:] == vmz[-21:], (vmj, vmz)
    vmj = vmj[-21:] if len(vmj) >= len(vmz) else vmz
    A.label(L('p2')); A.vm = vmj; A.lg = []
    wl = phase2_tail(A, L)
    phase3(A, L, wl)
    if Stamps.enabled:
        A.raw("  s_waitcnt vmcnt(0)")
        if os.environ.get('ENDST'): Stamps.mark(A, 15)
    A.label(L('fin'))
    if os.environ.get('DBGOUT'):
        A.raw("  s_waitcnt vmcnt(0) lgkmcnt(0)")
        A.raw(f"  s_cmp_lg_u32 s2, {os.environ['DBGOUT']}"); A.raw(f"  s_cbranch_scc1 {L('end')}"); A.raw("  s_cmp_lg_u32 s3, 0"); A.raw(f"  s_cbranch_scc1 {L('end')}")
        A.raw("  v_mov_b32 v250, 0")
        for k in range(1, 15):
            kk = k if k < 14 else 15
            A.raw(f"  s_sub_u32 s100, s{Stamps.reg(kk)}, s{Stamps.reg(0)}"); A.raw("  v_mov_b32 v251, s100")
            A.raw(f"  global_store_dword v250, v251, s[{S_DBG}:{S_DBG+1}] offset:{4*(k+1)}")
    else:
        Stamps.flush(A, 0, 16, S_WS)
    A.label(L('end'))
    A("s_endpgm")
    return A

if __name__ == "__main__":
    import sys, asmlib
    from build import assemble
    if len(sys.argv) > 2 and sys.argv[2].startswith('stamp'): asmlib.Stamps.enabled = True
    if len(sys.argv) > 2 and sys.argv[2] == 'stampcyc': asmlib.Stamps.op = 's_memtime'
    t = gen_mega().text(); sz = len([l for l in t.split('\n') if l.startswith('  ')])*8
    A = gen_mega(code_bytes=sz)
    if os.environ.get('FINAL'):
        from build import assemble_single
        open(sys.argv[1], 'w').write(assemble_single(dict(name="gated_mix__sliding_local_dilated__mixer_gmlp__prompt_kernel", text=A.text(), grid=256, block=256, lds=163840, vgpr=512, accum=256)))
    else:
        open(sys.argv[1], 'w').write(assemble([dict(name="mega_kernel", text=A.text(), grid=256, block=256, lds=163840, vgpr=512, accum=256)]))
    print("nops", A.nops_inserted, "est bytes", sz)
```

```python
from asmlib import *
from layout import *
from k1z import hexf, gelu_pairs, GELU_C1, GELU_C2
import os
PROFILE = os.environ.get('PROFILE', 'all')
SLEEP = int(os.environ.get('SLEEP', '2'))
NT = 'nt ' if os.environ.get('NTW') == '1' else ''
NTA = 'nt ' if os.environ.get('NTA') == '1' else ''
def ST(A, k):
    if PROFILE == 'all':
        if isinstance(k, int): Stamps.mark(A, k)
    elif PROFILE == 'p1':
        if isinstance(k, str): return
        if isinstance(k, int) and k in (0, 1, 2): Stamps.mark(A, k)
        elif isinstance(k, int) and k == 3: Stamps.mark(A, 10)
        elif isinstance(k, int) and k == 4: Stamps.mark(A, 11)
        elif isinstance(k, tuple) and k[0] == 'g': Stamps.mark(A, 3 + k[1])
        elif isinstance(k, int) and k in (5, 6, 7, 8): Stamps.mark(A, 7 + k)
    elif PROFILE == 'p9':
        m = {0: 0, 3: 1, 'gelu1': 2, 'stat1': 3, 4: 4, 'w2': 5, 5: 6, 7: 7, 'lnq': 8, 'comb': 9, 'norm': 10, 'pubw': 11, 6: 12, 9: 13, 10: 14, 8: 15}
        if k in m: Stamps.mark(A, m[k])
    elif PROFILE == 'p8':
        if k == 0: Stamps.mark(A, 0)
        elif isinstance(k, tuple) and k[0] == 'gs' and k[1] in (2, 3): Stamps.mark(A, 1 + (k[1]-2)*6 + k[2])
    elif PROFILE == 'p7':
        m = {0: 0, 11: 1, 'red_w': 2, 'red_b': 3, 'red_r': 4, 'hcomp': 5, 12: 6, 'hack': 7, 13: 8, 'opart': 9, 14: 10, 'ah0': 11, 'ahN': 12, 'p3red': 13, 'p3st': 14}
        if k in m: Stamps.mark(A, m[k])
    elif PROFILE == 'p6':
        m = {0: 0, 'karg': 1, 'tkb': 2, 'tick': 3, 'rsetup': 4, 1: 5, 2: 6, ('g', 0): 7, ('g', 1): 8, ('g', 2): 9, ('g', 3): 10, 3: 11}
        if k in m: Stamps.mark(A, m[k])
    elif PROFILE == 'p5':
        if k == 0: Stamps.mark(A, 0)
        elif k == 10: Stamps.mark(A, 1)
        elif isinstance(k, tuple) and k[0] == 'kk' and k[1] in (0,1,2,3,4,5,6,8,10,12,14,15): Stamps.mark(A, 2 + (0,1,2,3,4,5,6,8,10,12,14,15).index(k[1]))
        elif k == 11: Stamps.mark(A, 14)
    elif PROFILE == 'p4':
        m = {0: 0, 3: 1, 4: 2, 'w2': 3, ('au', 0): 4, ('au', 1): 5, ('au', 2): 6, ('au', 3): 7, ('au', 4): 8, ('au', 5): 9, ('au', 6): 10, ('au', 7): 11, 5: 12, 7: 13, 6: 14}
        if k in m: Stamps.mark(A, m[k])
    elif PROFILE == 'p3':
        m = {0: 0, 3: 1, 4: 2, 5: 3, 6: 4, 7: 5, 'lnq': 6, 'norm': 7, 'pubw': 8, 'sig': 9, 8: 10, 10: 11, 11: 12, 'w2': 13, 'st0': 14, 'st3': 15}
        if k in m: Stamps.mark(A, m[k])
    elif PROFILE == 'p2':
        m = {0: 0, 3: 1, 4: 2, 8: 13, 10: 14, 'z1in': 3, 'z1out': 11, 'z1epi': 12, 11: 15}
        if isinstance(k, tuple) and k[0] == 'z': Stamps.mark(A, 4 + k[1])
        elif k in m: Stamps.mark(A, m[k])

S_X, S_WQKV, S_WO, S_WIN, S_WSP, S_BSP, S_WOUT = 36, 38, 40, 44, 46, 48, 50
S_GW, S_OUT, S_DBG, S_WS = 52, 54, 56, 58
S_RB, S_CB, S_RB2 = 20, 21, 22
SRD_A = 60
OOB = 0x7fff0000
C_LN, C_ZD, C_QD, C_HD = 0, 16, 24, 32

def srd_from(A, d, ptr, off_sreg, nbytes):
    if off_sreg is None:
        A(f"s_mov_b32 s{d}, s{ptr}"); A(f"s_and_b32 s{d+1}, s{ptr+1}, 0xffff")
    else:
        A(f"s_add_u32 s{d}, s{ptr}, s{off_sreg}"); A(f"s_addc_u32 s{d+1}, s{ptr+1}, 0"); A(f"s_and_b32 s{d+1}, s{d+1}, 0xffff")
    A(f"s_mov_b32 s{d+2}, {nbytes}"); A(f"s_mov_b32 s{d+3}, 0x20000")

S_TAG = 76
def tag_publish(A, L):
    A.raw("  s_cmp_lg_u32 s2, 0"); A.raw(f"  s_cbranch_scc1 {L('notag')}")
    A.raw("  s_memrealtime s[30:31]"); A.raw("  s_waitcnt lgkmcnt(0)"); A.raw("  s_or_b32 s30, s30, 1")
    A.raw("  v_mov_b32 v60, s30"); A.raw("  v_mov_b32 v61, s31"); A.raw("  v_mov_b32 v62, 16")
    A.raw("  s_mov_b64 s[34:35], exec"); A.raw("  s_mov_b64 exec, 1")
    A.raw(f"  global_store_dwordx2 v62, v[60:61], s[{S_DBG}:{S_DBG+1}] sc1")
    A.raw("  s_mov_b64 exec, s[34:35]")
    A.raw(f"{L('notag')}:")
def tag_issue(A):
    A("v_mov_b32 v9, 16"); A(f"global_load_dwordx2 v[10:11], v9, s[{S_DBG}:{S_DBG+1}] sc1", tag='tagld')
def tag_take(A, L):
    A.wait_vm('tagld')
    A(f"v_readfirstlane_b32 s{S_TAG}, v10"); A(f"v_readfirstlane_b32 s{S_TAG+1}, v11")
    A(f"s_cmp_lg_u32 s{S_TAG}, 0"); A(f"s_cbranch_scc1 {L('tagd')}")
    A.raw("  s_mov_b32 s33, 0")
    A.raw(f"{L('tagl')}:")
    A.raw(f"  global_load_dwordx2 v[10:11], v9, s[{S_DBG}:{S_DBG+1}] sc1")
    A.raw("  s_add_u32 s33, s33, 1")
    A.raw("  s_waitcnt vmcnt(0)")
    A.raw(f"  v_readfirstlane_b32 s{S_TAG}, v10"); A.raw(f"  v_readfirstlane_b32 s{S_TAG+1}, v11")
    A.raw("  s_nop 1")
    A.raw(f"  s_cmp_lg_u32 s{S_TAG}, 0"); A.raw(f"  s_cbranch_scc1 {L('tagd')}")
    A.raw("  s_cmp_lt_u32 s33, 0x20000"); A.raw(f"  s_cbranch_scc1 {L('tagl')}")
    A.label(L('tagd'))

def signal(A, L, tag, off_sreg, vtmp=16):
    A("s_cmp_lg_u32 s3, 0"); A(f"s_cbranch_scc1 {L(tag)}")
    A.raw(f"  v_mov_b32 v{vtmp+2}, s{off_sreg}"); A.raw(f"  v_mov_b32 v{vtmp}, s{S_TAG}"); A.raw(f"  v_mov_b32 v{vtmp+1}, s{S_TAG+1}")
    A.raw("  s_mov_b64 s[34:35], exec"); A.raw("  s_mov_b64 exec, 1")
    A.raw(f"  global_store_dwordx2 v{vtmp+2}, v[{vtmp}:{vtmp+1}], s[{S_WS}:{S_WS+1}] sc1")
    A.raw("  s_mov_b64 exec, s[34:35]")
    A.label(L(tag))

def poll(A, L, tag, vaddr, nlanes):
    A("s_cmp_lg_u32 s3, 0"); A(f"s_cbranch_scc1 {L(tag+'_done')}")
    A.raw("  s_mov_b32 s33, 0"); A.raw("  s_mov_b64 s[34:35], exec"); A.raw(f"  s_mov_b64 exec, {hex((1 << nlanes) - 1) if nlanes < 64 else -1}")
    A.label(L(tag+'_loop'))
    A.raw(f"  global_load_dwordx2 v[18:19], v{vaddr}, s[{S_WS}:{S_WS+1}] sc1")
    A.raw("  s_add_u32 s33, s33, 1")
    A.raw("  s_waitcnt vmcnt(0)")
    A.raw(f"  v_xor_b32 v18, s{S_TAG}, v18"); A.raw(f"  v_xor_b32 v19, s{S_TAG+1}, v19"); A.raw("  v_or_b32 v18, v18, v19")
    A.raw("  v_cmp_eq_u32 vcc, 0, v18")
    A.raw("  s_nop 1")
    A.raw("  s_cmp_eq_u64 vcc, exec")
    A.raw(f"  s_cbranch_scc1 {L(tag+'_out')}")
    A.raw(f"  s_sleep {SLEEP}")
    A.raw("  s_cmp_lt_u32 s33, 0x20000")
    A.raw(f"  s_cbranch_scc1 {L(tag+'_loop')}")
    A.label(L(tag+'_out'))
    A.raw("  s_mov_b64 exec, s[34:35]")
    A.label(L(tag+'_done'))
    A("s_barrier")

def poll_wave(A, L, tag, vaddr, reset=True):
    A.raw("  s_mov_b32 s33, 0")
    A.label(L(tag+'_loop'))
    A.raw(f"  global_load_dwordx2 v[18:19], v{vaddr}, s[{S_WS}:{S_WS+1}] sc1")
    A.raw("  s_add_u32 s33, s33, 1")
    A.raw("  s_waitcnt vmcnt(0)")
    A.raw(f"  v_xor_b32 v18, s{S_TAG}, v18"); A.raw(f"  v_xor_b32 v19, s{S_TAG+1}, v19"); A.raw("  v_or_b32 v18, v18, v19")
    A.raw("  v_cmp_eq_u32 vcc, 0, v18")
    A.raw("  s_nop 1")
    A.raw("  s_cmp_eq_u64 vcc, exec")
    A.raw(f"  s_cbranch_scc1 {L(tag+'_out')}")
    A.raw(f"  s_sleep {SLEEP}")
    A.raw("  s_cmp_lt_u32 s33, 0x20000")
    A.raw(f"  s_cbranch_scc1 {L(tag+'_loop')}")
    A.label(L(tag+'_out'))
    if reset: A.vm = []

class AService:
    VD, VR, VL = 232, 236, 240
    def __init__(self, A): self.A = A
    def setup(self):
        A = self.A
        A(f"s_lshl_b32 s23, s{S_RB2}, 18"); srd_from(A, SRD_A, S_WSP, 23, 64*4096)
        A("v_lshrrev_b32 v16, 3, v12"); A("v_and_b32 v17, 7, v12"); A("v_and_b32 v18, 3, v16"); A("v_xor_b32 v17, v17, v18")
        A("v_lshlrev_b32 v17, 4, v17"); A("v_lshl_add_u32 v17, v16, 12, v17")
        for uu in range(4):
            if uu & 1: A(f"v_xor_b32 v{self.VD+uu}, 64, v17")
            else: A(f"v_mov_b32 v{self.VD+uu}, v17")
            if uu: A(f"v_add_u32 v{self.VD+uu}, {uu*(32768-1024)}, v{self.VD+uu}")
        A("v_lshrrev_b32 v16, 2, v13"); A("v_lshlrev_b32 v16, 3, v16"); A("v_and_b32 v17, 3, v13"); A("v_add_u32 v16, v16, v17")
        A("v_and_b32 v17, 7, v13"); A("v_xor_b32 v17, v17, v14"); A("v_lshlrev_b32 v17, 4, v17"); A(f"v_lshl_add_u32 v{self.VL}, v16, 7, v17")
        A("s_lshr_b32 s23, s3, 1"); A("s_lshl_b32 s68, s23, 17"); A("s_lshl_b32 s23, s3, 10"); A("s_add_u32 s68, s68, s23")
        A("s_xor_b32 s69, s68, 0x20000")
    BASES = {'A': (74, 236), 'B': (75, 241)}
    def base(self, name, per_wave, start):
        A = self.A; sr, vr = self.BASES[name]
        A(f"s_mul_i32 s{sr}, s3, {per_wave}"); A(f"s_add_u32 s{sr}, s{sr}, {start}")
        A("s_and_b32 s23, s3, 1"); A("s_lshl_b32 s23, s23, 9"); A(f"s_add_u32 s23, s23, s{sr}")
        for b in range(2):
            if b: A("s_xor_b32 s23, s23, 512")
            A(f"v_add_u32 v{vr+2*b}, s23, v{self.VL}"); A(f"v_xor_b32 v{vr+2*b+1}, 64, v{vr+2*b}")
    def dma(self, n, slot):
        ss, gt = n >> 1, n & 1; sr, vr = self.BASES[slot[0]]
        if os.environ.get('ROT', '0') == '1':
            so = [(f"s_add_u32 s70, s{S_RB2}, {ss}", None), ("s_and_b32 s70, s70, 7", None), ("s_lshl_b32 s70, s70, 7", None), (f"s_add_u32 s70, s70, s{68+gt}", None)]
        else: so = [(f"s_add_u32 s70, s{68+gt}, {ss*128}", None)]
        return [(f"s_add_u32 m0, s{sr}, {slot[1]*4096}", None)] + so + \
               [(f"buffer_load_dwordx4 v{self.VD+uu}, s[{SRD_A}:{SRD_A+3}], s70 offen offset:{uu*1024} {NTA}lds", ('Au', n)) for uu in range(4)]
    def read(self, n, slot):
        ss, gt = n >> 1, n & 1; sr, vr = self.BASES[slot[0]]
        for b in range(2):
            for h in range(2):
                tau = 2*gt + b
                self.A(f"ds_read_b128 {a((ss*8 + h*4 + tau)*4, 4)}, v{vr+2*b+h} offset:{slot[1]*4096}", tag=('Ar', n))
    def emit_dma(self, units, slots):
        for n, sl in zip(units, slots):
            for t, tg in self.dma(n, sl): self.A(t, tag=tg)
    def bg_dma(self, units, slots):
        for n, sl in zip(units, slots): self.A.bg += self.dma(n, sl)
    def wait_read(self, units, slots):
        self.A.wait_vm(('Au', units[-1]))
        for n, sl in zip(units, slots): self.read(n, sl)

class WFJob:
    def __init__(self, A): self.A = A
    def setup(self, slot_sreg, slot_off):
        A = self.A
        A(f"s_lshl_b32 s23, s{S_RB}, 3"); A(f"s_add_u32 s23, s23, s{S_CB}"); A("s_lshl_b32 s23, s23, 2"); A("s_add_u32 s23, s23, s3")
        A("s_min_u32 s24, s23, 307")
        A("s_mul_i32 s26, s24, 1490"); A("s_lshr_b32 s26, s26, 16")
        A("s_mul_i32 s27, s26, 44"); A("s_sub_u32 s27, s24, s27")
        A("s_mul_i32 s28, s27, 28"); A("s_mul_i32 s29, s27, 32"); A("s_sub_u32 s29, s29, 512")
        A("s_cmp_lt_u32 s27, 16")
        A("s_cselect_b32 s28, s28, s29")
        A(f"s_cselect_b32 s8, s{S_WO}, s{S_WOUT}"); A(f"s_cselect_b32 s9, s{S_WO+1}, s{S_WOUT+1}"); A("s_cselect_b32 s29, 28, 32")
        A("s_and_b32 s9, s9, 0xffff"); A("s_add_u32 s29, s29, s28"); A("s_mul_i32 s10, s29, 896"); A("s_mov_b32 s11, 0x20000")
        A("s_mul_i32 s28, s28, 896"); A("s_lshl_b32 s26, s26, 7"); A("s_add_u32 s13, s28, s26")
        A("s_lshl_b32 s14, s23, 12")
        A("s_cmp_ge_u32 s23, 308"); A("s_cselect_b32 s10, 0, s10")
        A(f"s_add_u32 s12, s{slot_sreg}, {slot_off}")
        A("v_lshrrev_b32 v16, 3, v12"); A("v_and_b32 v17, 7, v12"); A("v_bfe_u32 v18, v16, 1, 1"); A("v_lshlrev_b32 v18, 2, v18"); A("v_xor_b32 v17, v17, v18")
        A("v_mul_u32_u24 v16, 896, v16"); A("v_lshl_add_u32 v40, v17, 4, v16")
        for uu in range(1, 4): A(f"v_add_u32 v{40+uu}, {uu*(8*896-1024)}, v40")
        A("v_lshrrev_b32 v16, 2, v13"); A("v_lshl_add_u32 v16, v14, 2, v16"); A("v_lshlrev_b32 v16, 7, v16")
        A("v_and_b32 v17, 3, v13"); A("v_bfe_u32 v18, v13, 3, 1"); A("v_lshlrev_b32 v18, 2, v18"); A("v_xor_b32 v17, v17, v18"); A("v_lshl_add_u32 v16, v17, 4, v16")
        A("v_add_u32 v44, s12, v16"); A("v_xor_b32 v45, 64, v44")
    def dma(self):
        return [("s_mov_b32 m0, s12", None)] + [(f"buffer_load_dwordx4 v{40+uu}, s[8:11], s13 offen offset:{uu*1024} lds", 'wfj') for uu in range(4)]
    def finish(self):
        A = self.A
        A.wait_vm('wfj')
        for uu in range(4):
            for sec in range(2):
                A(f"ds_read_b64_tr_b16 {v(40+4*uu+2*sec,2)}, v{44 + (uu >> 1)} offset:{8*(uu & 1) + 2048*sec}", tag='wfr') if False else None
        for uu in range(4):
            for sec in range(2):
                A(f"ds_read_b64_tr_b16 {v(48+4*uu+2*sec,2)}, v{44 + (uu >> 1)} offset:{8*(uu & 1) + 2048*sec}", tag='wfr')
        A(f"s_mov_b32 s23, {WS_WF}"); srd_from(A, 8, S_WS, 23, 1232*1024)
        A("v_lshlrev_b32 v40, 4, v12")
        A("s_cmp_ge_u32 s14, 1261568"); A("s_cselect_b32 s10, 0, s10")
        A.wait_lg('wfr')
        for uu in range(4): A(f"buffer_store_dwordx4 {v(48+4*uu,4)}, v40, s[8:11], s14 offen offset:{uu*1024} sc1", tag='pubst')

def touch_lines(A, ptr, vaddr, n, step, vdst=56):
    for k in range(n):
        A(f"global_load_dword v{vdst}, v{vaddr}, s[{ptr}:{ptr+1}]", tag='touch')
        if k + 1 < n: A(f"v_add_u32 v{vaddr}, {step}, v{vaddr}")

def touch_z1w(A):
    A(f"s_and_b32 s27, s{S_RB}, 3"); A("s_lshl_b32 s27, s27, 2"); A(f"s_and_b32 s28, s{S_CB}, 3"); A("s_add_u32 s27, s27, s28"); A("s_lshl_b32 s27, s27, 2"); A("s_add_u32 s27, s27, s3")
    A(f"s_mul_i32 s27, s27, {7*3584}"); A(f"s_lshr_b32 s28, s{S_CB}, 2"); A("s_mul_i32 s28, s28, 896"); A("s_add_u32 s27, s27, s28")
    A("v_lshrrev_b32 v57, 3, v12"); A("v_min_u32 v57, 6, v57"); A("v_mul_u32_u24 v57, 3584, v57"); A("v_and_b32 v58, 7, v12"); A("v_min_u32 v58, 6, v58")
    A("v_lshl_add_u32 v57, v58, 7, v57"); A("v_add_u32 v57, s27, v57")
    A(f"global_load_dword v56, v57, s[{S_WIN}:{S_WIN+1}]", tag='touch')

def prefetch_wsp_list(kind=None):
    if (kind or os.environ.get('PREF', 'chip')) in ('chip', 'both') and kind != 'die':
        return [(f"s_lshl_b32 s75, s{S_RB2}, 18", None), (f"s_lshl_b32 s100, s{S_CB}, 15", None), ("s_add_u32 s75, s75, s100", None),
                ("s_lshl_b32 s100, s3, 13", None), ("s_add_u32 s75, s75, s100", None),
                ("v_lshlrev_b32 v60, 7, v12", None), ("v_add_u32 v60, s75, v60", None),
                (f"global_load_dword v56, v60, s[{S_WSP}:{S_WSP+1}]", 'touch')]
    return [(f"s_lshl_b32 s75, s{S_RB2}, 18", None), (f"s_and_b32 s100, s{S_CB}, 3", None), ("s_lshl_b32 s100, s100, 16", None), ("s_add_u32 s75, s75, s100", None),
            ("s_lshl_b32 s100, s3, 14", None), ("s_add_u32 s75, s75, s100", None),
            ("v_lshlrev_b32 v60, 7, v12", None), ("v_add_u32 v60, s75, v60", None),
            (f"global_load_dword v56, v60, s[{S_WSP}:{S_WSP+1}]", 'touch'), ("v_add_u32 v60, 0x2000, v60", None),
            (f"global_load_dword v56, v60, s[{S_WSP}:{S_WSP+1}]", 'touch')]
def touch_small(A):
    A(f"s_lshl_b32 s27, s{S_RB}, 3"); A(f"s_add_u32 s27, s27, s{S_CB}"); A("s_lshl_b32 s27, s27, 2"); A("s_add_u32 s27, s27, s3"); A("s_min_u32 s27, s27, 447")
    A("s_mul_i32 s28, s27, 1792"); A("v_min_u32 v57, 13, v12"); A("v_lshlrev_b32 v57, 7, v57"); A("v_add_u32 v58, s28, v57")
    A(f"global_load_dword v56, v58, s[{S_WOUT}:{S_WOUT+1}]", tag='touch')
    A("s_mul_i32 s28, s27, 896"); A("v_min_u32 v57, 6, v12"); A("v_lshlrev_b32 v57, 7, v57"); A("v_add_u32 v58, s28, v57")
    A(f"global_load_dword v56, v58, s[{S_WO}:{S_WO+1}]", tag='touch')

def wdma_setup(A, V):
    A("v_lshrrev_b32 v15, 1, v13"); A("v_xor_b32 v15, v15, v14")
    A("v_and_b32 v16, 1, v13"); A("v_lshlrev_b32 v16, 4, v16")
    A("v_mul_u32_u24 v17, 3584, v14"); A("v_add_u32 v16, v16, v17"); A(f"v_mov_b32 v18, {OOB}")
    for uu in range(4):
        if uu == 2: A("v_xor_b32 v15, 4, v15")
        A(f"v_lshl_add_u32 v{V+uu}, v15, 5, v16")
        if uu: A(f"v_add_u32 v{V+uu}, {uu*(4*3584-1024)}, v{V+uu}")
        A("v_cmp_eq_u32 vcc, 7, v15"); A(f"v_cndmask_b32 v{V+uu}, v{V+uu}, v18, vcc")
def wread_setup(A, V, base):
    A("v_lshrrev_b32 v15, 2, v13"); A("v_lshl_add_u32 v16, v14, 3, v15"); A("v_lshlrev_b32 v16, 8, v16")
    A("v_and_b32 v17, 3, v13"); A("v_lshl_add_u32 v16, v17, 3, v16"); A(f"v_add_u32 v16, {base}, v16")
    A("v_and_b32 v17, 1, v14"); A("v_lshl_or_b32 v17, v17, 2, v15")
    for j in range(7):
        A(f"v_xor_b32 v18, {j}, v17"); A(f"v_lshl_add_u32 v{V+j}, v18, 5, v16")

GC = dict(VC1=32, VC2=34, VONE=36)
def gelu_consts(A):
    for r, val in ((32, GELU_C1), (34, GELU_C2), (36, 1.0)):
        A(f"v_mov_b32 v{r}, {hexf(val)}"); A(f"v_mov_b32 v{r+1}, {hexf(val)}")

class Z1Tile:
    WB, XB, ACC, GACC = 120, 176, 192, 220
    VW = 24
    def __init__(self, A, L, ring_base, vdma, sW):
        self.A, self.L, self.ring_base, self.vdma, self.sW = A, L, ring_base, vdma, sW
    def dma_w_list(self, c):
        st = (c + 1) % 3
        return [(f"s_add_u32 m0, s71, {self.ring_base + st*16384}", None), (f"s_add_u32 s23, s{self.sW}, {64*c*3584}", None)] + \
               [(f"buffer_load_dwordx4 v{self.vdma+uu}, s[12:15], s23 offen offset:{uu*1024} lds", ('w1', c)) for uu in range(4)]
    def dma_w(self, c):
        for t, tg in self.dma_w_list(c): self.A(t, tag=tg)
    def reads(self, c, h, buf, xoff):
        out = []
        st = (c + 1) % 3
        out.append((f"ds_read_b128 {v(self.XB+buf*8,4)}, v{20+h} offset:{xoff(c)}", ('zx', c, h)))
        out.append((f"ds_read_b128 {v(self.XB+buf*8+4,4)}, v31 offset:{(2*c+h)*64}", ('zx', c, h)))
        for j in range(7):
            for sec in range(2):
                out.append((f"ds_read_b64_tr_b16 {v(self.WB+buf*28+j*4+2*sec,2)}, v{self.VW+j} offset:{st*16384 + h*8192 + sec*1024}", ('zw', c, h, j)))
        return out
    def run(self, xoff, xwait, hooks):
        A = self.A
        ST(A, 'z1in')
        A.wait_vm([('w1', 0)] + xwait(0)); A.wait_lg(); A("s_barrier")
        if ('pre',) in hooks: hooks[('pre',)]()
        for t, tg in self.reads(0, 0, 0, xoff): A(t, tag=tg)
        for c in range(7):
            for h in range(2):
                kk = 2*c + h; buf = kk & 1
                todo = []
                if h == 0: todo = self.reads(c, 1, buf ^ 1, xoff)
                else:
                    if c < 6:
                        A.wait_vm([('w1', c+1)] + xwait(c+1))
                        A.wait_lg(); A("s_barrier"); ST(A, ('z', c))
                        if c + 3 <= 6: self.dma_w(c + 3)
                        todo = self.reads(c+1, 0, buf ^ 1, xoff)
                if (c, h) in hooks: hooks[(c, h)]()
                A.wait_lg([('zx', c, h)])
                d = v(self.GACC, 4)
                A(f"v_mfma_f32_16x16x32_bf16 {d}, {v(self.XB+buf*8+4,4)}, {v(self.XB+buf*8,4)}, {d if kk else 0}")
                for _ in range(2):
                    if todo: t, tg = todo.pop(0); A(t, tag=tg)
                for j in range(7):
                    A.wait_lg([('zw', c, h, j)])
                    d = v(self.ACC + 4*j, 4)
                    A(f"v_mfma_f32_16x16x32_bf16 {d}, {v(self.WB+buf*28+j*4,4)}, {v(self.XB+buf*8,4)}, {d if kk else 0}")
                    for _ in range(2):
                        if todo: t, tg = todo.pop(0); A(t, tag=tg)
    def epilogue(self, svc):
        A = self.A
        ST(A, 'z1out')
        G = self.GACC
        A(f"v_mul_f32 v{G}, {hexf(1.4426950408889634)}, v{G}")
        A(f"v_exp_f32 v{G}, v{G}"); A(f"v_add_f32 v{G}, 1.0, v{G}"); A(f"v_rcp_f32 v{G}, v{G}")
        A("v_lshlrev_b32 v16, 2, v13")
        A(f"ds_bpermute_b32 v{G+1}, v16, v{G}", tag='gb')
        regs = [self.ACC + 2*p for p in range(14)]
        for q in range(0, 14, 4):
            gelu_pairs(A, regs[q:q+4], 224, 32, 34, 36)
            svc.step()
        A.wait_lg('gb')
        for p in range(14):
            r = self.ACC + 2*p
            A(f"v_mul_f32 v{r}, v{r}, v{G+1}"); A(f"v_mul_f32 v{r+1}, v{r+1}, v{G+1}")
            A(f"v_cvt_pk_bf16_f32 v{240+p}, v{r}, v{r+1}")
        ST(A, 'z1epi')

L_TICKET = 163584
L_AST, L_GW, L_ZR, L_GL, L_RING = 58368, 107520, 108544, 160768, 114688
XH = 57344

def load_gw_tables(A, gwb, zrb, tag):
    A(f"s_mov_b32 s23, 896"); srd_from(A, 16, S_GW, None, 896)
    A("v_lshlrev_b32 v16, 4, v12"); A(f"v_mov_b32 v18, {OOB}")
    A(f"s_mov_b32 m0, {gwb}"); A("buffer_load_dwordx4 v16, s[16:19], 0 offen lds", tag=tag)
    A(f"s_mov_b32 m0, {zrb}"); A("buffer_load_dwordx4 v18, s[16:19], 0 offen lds", tag=tag)
def gw_addr(A, vreg, gwb, zrb):
    A("v_cmp_eq_u32 vcc, 0, v13"); A(f"v_mov_b32 v16, {zrb}"); A(f"v_mov_b32 v17, {gwb}"); A(f"v_cndmask_b32 v{vreg}, v16, v17, vcc")
    A(f"v_lshl_add_u32 v{vreg}, v14, 4, v{vreg}")
def z1_xaddr(A):
    A("v_lshrrev_b32 v15, 2, v13"); A("v_lshlrev_b32 v15, 3, v15"); A("v_and_b32 v16, 3, v13"); A("v_add_u32 v15, v15, v16")
    A("v_and_b32 v16, 7, v13"); A("v_xor_b32 v16, v16, v14"); A("v_lshlrev_b32 v16, 4, v16"); A("v_lshl_add_u32 v16, v15, 7, v16")
    A("s_lshr_b32 s23, s3, 1"); A("s_lshl_b32 s23, s23, 12"); A("s_and_b32 s24, s3, 1"); A("s_lshl_b32 s24, s24, 9"); A("s_add_u32 s23, s23, s24")
    A("v_add_u32 v20, s23, v16"); A("v_xor_b32 v21, 64, v20")
def load_bias(A):
    A(f"s_lshl_b32 s23, s{S_RB2}, 6"); A("s_lshr_b32 s24, s3, 1"); A("s_lshl_b32 s24, s24, 5"); A("s_add_u32 s23, s23, s24")
    A("s_and_b32 s24, s3, 1"); A("s_lshl_b32 s24, s24, 2"); A("s_add_u32 s23, s23, s24")
    A("v_lshrrev_b32 v15, 2, v13"); A("v_lshlrev_b32 v15, 3, v15"); A("v_and_b32 v16, 3, v13"); A("v_add_u32 v15, v15, v16")
    A("v_add_u32 v15, s23, v15"); A("v_lshlrev_b32 v15, 1, v15")
    srd_from(A, 16, S_BSP, None, S*2)
    A("buffer_load_ushort v254, v15, s[16:19], 0 offen", tag='bias')

def role_z(A, L):
    ACC1, ACC2 = 120, 64
    acc1 = lambda j, aa: ACC1 + (j*2+aa)*4
    acc2 = lambda j, aa: ACC2 + (j*2+aa)*4
    WB = 176
    wf = lambda buf, j: WB + buf*28 + j*4
    xf = lambda kk, aa: 144 + (kk*2+aa)*4
    A("v_lshrrev_b32 v15, 3, v12"); A("v_and_b32 v16, 7, v12"); A("v_and_b32 v17, 3, v15"); A("v_xor_b32 v16, v16, v17"); A("v_lshlrev_b32 v16, 4, v16")
    A("v_mul_u32_u24 v17, 896, v15")
    for uu in range(4):
        if uu & 1: A("v_xor_b32 v18, 64, v16"); A(f"v_add_u32 v{1+uu}, v18, v17")
        else: A(f"v_add_u32 v{1+uu}, v16, v17")
        if uu: A(f"v_add_u32 v{1+uu}, {uu*(8*896-1024)}, v{1+uu}")
    wdma_setup(A, 5)
    A(f"s_lshl_b32 s72, s{S_RB}, 2"); A("s_add_u32 s72, s72, s3")
    A(f"s_mul_i32 s23, s72, {32*896}"); srd_from(A, 8, S_X, 23, 32*896)
    srd_from(A, 12, S_WIN, None, 448*3584)
    A(f"s_mul_i32 s25, s3, {16*3584}"); A(f"s_mul_i32 s23, s{S_CB}, 224"); A("s_add_u32 s25, s25, s23"); A("s_add_u32 s24, s25, 1792")
    A("s_lshl_b32 s71, s3, 12")
    def dma_x(c):
        return [(f"s_add_u32 m0, s71, {c*16384}", None), (f"s_mov_b32 s23, {c*128}", None)] + \
               [(f"buffer_load_dwordx4 v{1+uu}, s[8:11], s23 offen offset:{uu*1024} {NT}lds", ('x', c)) for uu in range(4)]
    def dma_w(c, which=1, sreg=23):
        base = (L_RING + (c % 3)*16384) if which == 1 else c*16384
        return [(f"s_add_u32 m0, s71, {base}", None), (f"s_add_u32 s{sreg}, s{24 if which == 1 else 25}, {64*c*3584}", None)] + \
               [(f"buffer_load_dwordx4 v{5+uu}, s[12:15], s{sreg} offen offset:{uu*1024} {NT}lds", ('w', which, c)) for uu in range(4)]
    def emit(lst):
        for t, tg in lst: A(t, tag=tg)
    ST(A, 'rsetup')
    for c in range(2): emit(dma_w(c)); emit(dma_x(c))
    ST(A, 1)
    A("v_lshrrev_b32 v15, 2, v13"); A("v_lshlrev_b32 v15, 3, v15"); A("v_and_b32 v16, 3, v13"); A("v_add_u32 v15, v15, v16")
    A("v_and_b32 v16, 7, v13"); A("v_xor_b32 v16, v16, v14"); A("v_lshlrev_b32 v16, 4, v16"); A("v_lshl_add_u32 v16, v15, 7, v16")
    A("v_add_u32 v20, s71, v16"); A("v_xor_b32 v21, 64, v20"); A("v_add_u32 v22, 0x10000, v20"); A("v_add_u32 v23, 0x10000, v21")
    wread_setup(A, 24, L_RING)
    gelu_consts(A)
    svc = AService(A)
    def reads_w(which, c, h, buf):
        out = []
        off = ((c % 3) if which == 1 else (c % 4))*16384 + h*8192
        for j in range(7):
            for sec in range(2):
                out.append((f"ds_read_b64_tr_b16 {v(wf(buf,j)+2*sec,2)}, v{24+j} offset:{off + sec*1024}", ('wf', which, c, h, j)))
        return out
    def reads_x(c):
        return [(f"ds_read_b128 {a(xf(2*c+h,aa),4)}, v{20 + h + (2 if c >= 4 else 0)} offset:{(c % 4)*16384 + aa*512}", ('xf', c, h)) for h in range(2) for aa in range(2)]
    A.wait_vm([('w', 1, 0), ('x', 0)]); A("s_barrier")
    ST(A, 2)
    emit(reads_x(0)); emit(reads_w(1, 0, 0, 0))
    for c in range(7):
        for h in range(2):
            kk = 2*c + h; buf = kk & 1
            todo = []; vq = []
            if h == 0:
                ST(A, ('gs', c, 0))
                todo = reads_w(1, c, 1, buf ^ 1)
                if c == 0: vq += dma_w(2)
                if c + 2 <= 6: vq += dma_x(c + 2)
            else:
                ST(A, ('gs', c, 1))
                if c < 6: A.wait_vm([('w', 1, c+1), ('x', c+1)])
                ST(A, ('gs', c, 2))
                A.wait_lg(); ST(A, ('gs', c, 3)); A("s_barrier"); ST(A, ('g', c)); ST(A, ('gs', c, 4))
                if c + 3 <= 6: vq += dma_w(c + 3)
                MODE = os.environ.get('W2MODE', 'epi')
                if MODE == 'loop':
                    for cc in {5: (0, 1, 2, 3), 6: (4, 5, 6)}.get(c, ()): vq += dma_w(cc, 2)
                elif c == 6:
                    for cc in range(7): A.bg += dma_w(cc, 2, 75)
                    if os.environ.get('PREF', 'chip') == 'both': A.bg += prefetch_wsp_list('die')
                    A.bg_every = int(os.environ.get('BGW2', '12'))
                if c < 6: todo = reads_w(1, c+1, 0, buf ^ 1)[:2] + reads_x(c+1) + reads_w(1, c+1, 0, buf ^ 1)[2:]
            A.wait_lg([('xf', c, h), ('wf', 1, c, h, 6)] if os.environ.get('W1', '1') == '1' else [('xf', c, h)])
            for j in range(7):
                A.wait_lg([('wf', 1, c, h, j)])
                for aa in range(2):
                    d = v(acc1(j,aa), 4)
                    A(f"v_mfma_f32_16x16x32_bf16 {d}, {a(xf(kk,aa),4)}, {v(wf(buf,j),4)}, {d if kk else 0}")
                    for _ in range(2):
                        if todo: t, tg = todo.pop(0); A(t, tag=tg)
                    if vq: t, tg = vq.pop(0); A(t, tag=tg)
            emit(todo); emit(vq)
            if c == 0 and h == 0 and os.environ.get('CHIPT', '1') != '1': A("global_load_dword v56, v61, s[30:31]", tag='touch'); A("global_load_dword v56, v62, s[30:31]", tag='touch')
            if c == 2 and h == 1 and os.environ.get('CHIPT', '1') != '1': touch_z1w(A)
            if (c, h) == (int(os.environ.get('WSPC', '4')), 1):
                for t, tg in prefetch_wsp_list(): A(t, tag=tg)
    ST(A, 3)
    svc.setup(); svc.base('A', 12288, L_RING)
    TMP = 232 - 8 - 0
    TMP = 176
    regs = [ACC1 + 2*p for p in range(28)]
    for q in range(0, 28, 4): gelu_pairs(A, regs[q:q+4], TMP, 32, 34, 36)
    ST(A, 'gelu1')
    SUM, M2, PUB = 192, 200, 208
    for aa in range(2):
        for rp in range(2):
            d = SUM + aa*4 + rp*2
            A(f"v_pk_add_f32 {v(d,2)}, {v(acc1(0,aa)+2*rp,2)}, {v(acc1(1,aa)+2*rp,2)}")
            for j in range(2, 7): A(f"v_pk_add_f32 {v(d,2)}, {v(d,2)}, {v(acc1(j,aa)+2*rp,2)}")
    def dpp16(rs):
        for sh in (8, 4, 2, 1):
            for r in rs: A(f"v_add_f32_dpp v{r}, v{r}, v{r} row_ror:{sh} row_mask:0xf bank_mask:0xf")
    dpp16(range(SUM, SUM+8))
    A(f"v_mov_b32 v38, {hexf(1.0/112)}"); A(f"v_mov_b32 v39, {hexf(1.0/112)}")
    for p in range(4): A(f"v_pk_mul_f32 {v(SUM+2*p,2)}, {v(SUM+2*p,2)}, {v(38,2)}")
    for aa in range(2):
        for rp in range(2):
            d = M2 + aa*4 + rp*2; mreg = SUM + aa*4 + rp*2
            for j in range(7):
                t = TMP + 2*(j & 1)
                A(f"v_pk_add_f32 {v(t,2)}, {v(acc1(j,aa)+2*rp,2)}, {v(mreg,2)} neg_lo:[0,1] neg_hi:[0,1]")
                if j == 0: A(f"v_pk_mul_f32 {v(d,2)}, {v(t,2)}, {v(t,2)}")
                else: A(f"v_pk_fma_f32 {v(d,2)}, {v(t,2)}, {v(t,2)}, {v(d,2)}")
    dpp16(range(M2, M2+8))
    ST(A, 'stat1')
    A("v_and_b32 v16, 3, v13")
    for q in range(3): A(f"v_cmp_eq_u32 s[{26+2*q}:{27+2*q}], {q+1}, v16")
    for e, (base, odd) in enumerate(((SUM, 0), (M2, 0), (SUM, 1), (M2, 1))):
        A(f"v_mov_b32 v{PUB+e}, v{base+odd}")
        for q in range(3): A(f"v_cndmask_b32 v{PUB+e}, v{PUB+e}, v{base+2*(q+1)+odd}, s[{26+2*q}:{27+2*q}]")
    A(f"s_lshl_b32 s23, s{S_RB}, 3"); A(f"s_add_u32 s23, s23, s{S_CB}"); A("s_lshl_b32 s23, s23, 7")
    A("s_lshl_b32 s27, s3, 5"); A("s_add_u32 s23, s23, s27"); A("s_lshl_b32 s23, s23, 3")
    A(f"s_mov_b32 s27, {WS_LNP}"); srd_from(A, 16, S_WS, 27, 16*8*128*8)
    A("v_lshlrev_b32 v19, 6, v14"); A("v_lshl_add_u32 v19, v16, 4, v19")
    A("s_mov_b64 s[34:35], exec"); A("s_mov_b32 exec_lo, 0x000f000f"); A("s_mov_b32 exec_hi, 0x000f000f")
    A(f"buffer_store_dwordx4 {v(PUB,4)}, v19, s[16:19], s23 offen sc1", tag='lnp')
    A("s_mov_b64 exec, s[34:35]")
    A.bg_flush(); A.bg_every = 0
    tag_issue(A)
    ST(A, 4)
    Q, MB = 40, 216
    A.wait_vm([('w', 2, c) for c in range(7)]); A("s_barrier"); ST(A, 'w2')
    for j in range(7): A(f"v_subrev_u32 v{24+j}, {L_RING}, v{24+j}")
    emit(reads_w(2, 0, 0, 0))
    for c in range(7):
        for h in range(2):
            kk = 2*c + h; buf = kk & 1
            nxt = (c, 1) if h == 0 else ((c+1, 0) if c < 6 else None)
            if kk in (0, 2, 4): svc.bg_dma([kk // 2], [('A', kk // 2)]); A.bg_every = 3
            if kk in (7, 9, 11):
                n = (kk - 7) // 2
                svc.wait_read([n], [('A', n)])
            if kk in (8, 10, 12):
                n = (kk - 8) // 2
                A.wait_lg(('Ar', n)); svc.bg_dma([n + 3], [('A', n)])
            if kk == 10:
                A(f"s_mul_i32 s27, s{S_RB}, {FS}"); A(f"s_add_u32 s27, s27, {WS_F0}"); A("v_and_b32 v17, 7, v12"); A("v_lshl_add_u32 v17, v17, 3, s27")
                A(f"global_load_dwordx2 v[18:19], v17, s[{S_WS}:{S_WS+1}] sc1", tag='lnf')
            if kk == 13:
                A.wait_vm('lnf')
                A(f"v_xor_b32 v18, s{S_TAG}, v18"); A(f"v_xor_b32 v19, s{S_TAG+1}, v19"); A("v_or_b32 v18, v18, v19"); A("v_cmp_eq_u32 vcc, 0, v18")
                A("s_nop 1"); A("s_cmp_eq_u64 vcc, exec"); A(f"s_cbranch_scc1 {L('lnok')}")
                poll_wave(A, L, 'plnw', 17, reset=False)
                A.label(L('lnok'))
                A(f"s_lshl_b32 s23, s{S_RB}, 10"); A("s_lshl_b32 s27, s3, 5"); A("s_add_u32 s23, s23, s27"); A("s_lshl_b32 s23, s23, 3")
                A(f"s_mov_b32 s27, {WS_LNP}"); srd_from(A, 16, S_WS, 27, 16*8*128*8)
                A("v_and_b32 v18, 7, v12"); A("v_lshlrev_b32 v18, 10, v18"); A("v_lshl_add_u32 v18, v14, 6, v18")
                for q in range(4): A(f"buffer_load_dwordx4 {v(Q+4*q,4)}, v18, s[16:19], s23 offen offset:{16*q} sc1", tag='lnq')
            if kk == 4:
                A.wait_vm('lnp'); tag_take(A, lambda x: L('z' + x)); A("s_barrier")
                A(f"s_mul_i32 s27, s{S_RB}, {FS}"); A(f"s_lshl_b32 s28, s{S_CB}, 3"); A("s_add_u32 s27, s27, s28"); A(f"s_add_u32 s27, s27, {WS_F0}")
                signal(A, L, 'sigln', 27)
            todo = []
            if nxt:
                if nxt == (4, 0):
                    for j in range(7): A(f"v_add_u32 v{24+j}, 0x10000, v{24+j}")
                todo = reads_w(2, nxt[0], nxt[1], buf ^ 1)
            if os.environ.get('W1', '1') == '1': A.wait_lg([('wf', 2, c, h, 6)])
            for j in range(7):
                A.wait_lg([('wf', 2, c, h, j)])
                for aa in range(2):
                    d = v(acc2(j,aa), 4)
                    A(f"v_mfma_f32_16x16x32_bf16 {d}, {v(wf(buf,j),4)}, {a(xf(kk,aa),4)}, {d if kk else 0}")
                    for _ in range(2 if os.environ.get('W1', '1') == '1' else 1):
                        if todo: t, tg = todo.pop(0); A(t, tag=tg)
            emit(todo)
    ST(A, 5)
    A.bg_flush(); A.bg_every = 0
    svc.wait_read([3, 4], [('A', 0), ('A', 1)]); svc.base('B', 28672, 0); A.wait_lg(); A("s_barrier")
    svc.bg_dma([13, 14], [('A', 0), ('A', 1)]); svc.bg_dma(list(range(6, 13)), [('B', k) for k in range(7)]); A.bg_every = 10
    ST(A, 7)
    A.wait_vm('lnq')
    ST(A, 'lnq')
    def red8(rs):
        for pat in ("quad_perm:[1,0,3,2]", "quad_perm:[2,3,0,1]", "row_half_mirror"):
            for r in rs: A(f"v_add_f32_dpp v{r}, v{r}, v{r} {pat} row_mask:0xf bank_mask:0xf")
    for q in range(8): A(f"v_mov_b32 v{MB+q}, v{Q+2*q}")
    red8(range(MB, MB+8))
    for q in range(8): A(f"v_mul_f32 v{MB+q}, 0.125, v{MB+q}")
    A(f"v_mov_b32 v38, {hexf(112.0)}")
    for q in range(8):
        A(f"v_sub_f32 v{Q+2*q}, v{Q+2*q}, v{MB+q}"); A(f"v_mul_f32 v{Q+2*q}, v{Q+2*q}, v{Q+2*q}")
        A(f"v_fma_f32 v{MB+8+q}, v{Q+2*q}, v38, v{Q+2*q+1}")
    red8(range(MB+8, MB+16))
    A(f"v_mov_b32 v38, {hexf(1.0/896)}"); A(f"v_mov_b32 v39, {hexf(1e-5)}")
    for q in range(8): A(f"v_fma_f32 v{MB+8+q}, v{MB+8+q}, v38, v39")
    for q in range(8): A(f"v_rsq_f32 v{MB+8+q}, v{MB+8+q}")
    for q in range(8): A(f"v_mul_f32 v{MB+q}, v{MB+q}, v{MB+8+q}")
    ST(A, 'comb')
    A(f"s_mul_i32 s23, s{S_CB}, {64*7168}"); A("s_mul_i32 s27, s72, 7168"); A("s_add_u32 s23, s23, s27")
    srd_from(A, 16, S_WS, 23, 7168)
    A("v_lshlrev_b32 v18, 4, v12"); A("v_add_u32 v19, 4096, v18")
    for j in range(7):
        p = 200 + 4*(j & 3)
        for aa in range(2):
            c = acc1(j,aa)
            for rp in range(2):
                A(f"v_pk_fma_f32 {v(c+2*rp,2)}, {v(c+2*rp,2)}, {v(MB+8+aa*4+2*rp,2)}, {v(MB+aa*4+2*rp,2)} neg_lo:[0,0,1] neg_hi:[0,0,1]")
            A(f"v_cvt_pk_bf16_f32 v{p+2*aa}, v{c}, v{c+1}"); A(f"v_cvt_pk_bf16_f32 v{p+2*aa+1}, v{c+2}, v{c+3}")
        A(f"buffer_store_dwordx4 {v(p,4)}, v{18 if j < 4 else 19}, s[16:19], 0 offen offset:{(j%4)*1024} sc1", tag='pubst')
    ST(A, 'norm')
    p2 = P2(A, L); p2.pre()
    TMP = 216
    regs = [ACC2 + 2*p for p in range(28)]
    for q in range(0, 8, 4): gelu_pairs(A, regs[q:q+4], TMP, 32, 34, 36)
    A.wait_vm('pubst'); ST(A, 'pubw'); A("s_barrier")
    A(f"s_mul_i32 s27, s{S_CB}, {FS}"); A(f"s_lshl_b32 s28, s{S_RB}, 3"); A("s_add_u32 s27, s27, s28"); A(f"s_add_u32 s27, s27, {WS_F1Z}")
    signal(A, L, 'sigzd', 27)
    ST(A, 6)
    svc.wait_read([5], [('A', 2)]); A.wait_lg(('Ar', 5)); svc.bg_dma([15], [('A', 2)])
    for q in range(8, 28, 4): gelu_pairs(A, regs[q:q+4], TMP, 32, 34, 36)
    A.bg_flush(); A.bg_every = 0
    p2.flag_issue()
    A("s_lshl_b32 s23, s72, 1"); A("s_mul_i32 s23, s23, 56"); A(f"s_mul_i32 s28, s{S_CB}, 7"); A("s_add_u32 s23, s23, s28"); A("s_lshl_b32 s23, s23, 9")
    A(f"s_add_u32 s23, s23, {WS_Z1F}"); srd_from(A, 16, S_WS, 23, 56*512 + 7*512)
    A("v_lshlrev_b32 v18, 3, v12")
    P = 40
    for aa in range(2):
        if aa: A(f"s_mov_b32 s23, {56*512}")
        for j in range(7):
            c = acc2(j,aa); p = P + 2*(j & 3)
            A(f"v_cvt_pk_bf16_f32 v{p}, v{c}, v{c+1}"); A(f"v_cvt_pk_bf16_f32 v{p+1}, v{c+2}, v{c+3}")
            A(f"buffer_store_dwordx2 {v(p,2)}, v18, s[16:19], {'s23' if aa else 0} offen offset:{j*512} sc1", tag='z1st')
    ST(A, 9)
    p2.flag_take('z')
    p2.first()
    A.wait_vm(('Au', 15))
    for n, sl in [(13, ('A', 0)), (14, ('A', 1)), (15, ('A', 2))] + [(6 + k, ('B', k)) for k in range(7)]: svc.read(n, sl)
    p2.plumbing()
    p2.third()
    A.wait_lg()
    ST(A, 8)
    p2.loop('z')

QSTG = 45056; QGW = 3*QSTG; QZR = QGW + 1024; QP = 400
def role_q(A, L):
    A("v_lshrrev_b32 v15, 3, v12"); A("v_and_b32 v16, 7, v12")
    A("v_and_b32 v17, 3, v15"); A("v_xor_b32 v17, v16, v17"); A("v_lshlrev_b32 v17, 4, v17")
    A(f"s_lshl_b32 s24, s{S_RB}, 7"); A("s_sub_u32 s24, s24, 16"); A("s_mul_i32 s25, s3, 5")
    for uu in range(5):
        A(f"s_add_u32 s26, s25, {uu}")
        A("s_lshl_b32 s27, s26, 3"); A("s_add_u32 s27, s27, s24")
        A("v_add_u32 v18, s27, v15"); A("v_max_i32 v18, 0, v18"); A("v_mul_u32_u24 v18, 896, v18")
        A("s_and_b32 s27, s26, 1"); A("s_lshl_b32 s27, s27, 6"); A("v_xor_b32 v19, s27, v17")
        A("s_cmp_ge_u32 s26, 18"); A(f"s_cselect_b32 s27, {OOB}, 0")
        A(f"v_add3_u32 v{1+uu}, v18, v19, s27")
        if uu in (1, 2, 3): A(f"v_subrev_u32 v{1+uu}, {uu*1024}, v{1+uu}")
    A("v_and_b32 v18, 2, v15"); A("v_xor_b32 v18, v16, v18"); A("v_mul_u32_u24 v19, 2688, v15")
    for uu in range(2):
        if uu: A("v_xor_b32 v18, 4, v18")
        A(f"v_lshl_add_u32 v{6+uu}, v18, 4, v19")
        if uu: A(f"v_add_u32 v{6+uu}, {8*2688-1024}, v{6+uu}")
        A("v_cmp_eq_u32 vcc, 7, v18"); A(f"v_mov_b32 v16, {OOB}"); A(f"v_cndmask_b32 v{6+uu}, v{6+uu}, v16, vcc")
    A.wait_lg()
    A(f"s_sub_u32 s8, s{S_X}, 4096"); A(f"s_subb_u32 s9, s{S_X+1}, 0"); A("s_and_b32 s9, s9, 0xffff"); A(f"s_mov_b32 s10, {S*896 + 4096}"); A("s_mov_b32 s11, 0x20000")
    for uu in range(5): A(f"v_add_u32 v{1+uu}, 4096, v{1+uu}")
    srd_from(A, 12, S_WQKV, None, 448*2688)
    A(f"s_mul_i32 s24, s3, {16*2688}"); A(f"s_mul_i32 s25, s{S_CB}, 112"); A("s_add_u32 s24, s24, s25")
    A("s_mul_i32 s25, s3, 5120"); A("s_lshl_b32 s26, s3, 11"); A("s_add_u32 s26, s26, 20480")
    def dma(c):
        st = (c % 3)*QSTG; out = []
        for seg in range(3):
            out += [(f"s_add_u32 m0, s26, {st + seg*8192}", None), (f"s_add_u32 s23, s24, {64*c*2688 + seg*896}", None)]
            out += [(f"buffer_load_dwordx4 v{6+uu}, s[12:15], s23 offen offset:{uu*1024} {NT}lds", ('c', c)) for uu in range(2)]
        out += [(f"s_add_u32 m0, s25, {st}", None), (f"s_mov_b32 s23, {c*128}", None)]
        out += [(f"buffer_load_dwordx4 v{1+uu}, s[8:11], s23 offen offset:{uu*1024} {NT}lds", ('c', c)) for uu in range(4)]
        out += [(f"s_add_u32 m0, s25, {st + 4096}", None), (f"buffer_load_dwordx4 v5, s[8:11], s23 offen {NT}lds", ('c', c))]
        return out
    def emit(lst):
        for t, tg in lst: A(t, tag=tg)
    ST(A, 'rsetup')
    load_gw_tables(A, QGW, QZR, ('c', 0))
    for c in range(2): emit(dma(c))
    ST(A, 1)
    A("v_lshrrev_b32 v15, 3, v13"); A("v_lshlrev_b32 v15, 2, v15"); A("v_and_b32 v16, 3, v13"); A("v_or_b32 v15, v15, v16")
    A("v_xor_b32 v15, v15, v14"); A("v_lshlrev_b32 v15, 4, v15"); A("v_lshl_add_u32 v20, v13, 7, v15"); A("v_xor_b32 v21, 64, v20")
    A("s_lshl_b32 s23, s3, 12"); A("s_add_u32 s23, s23, 2048"); A("v_add_u32 v22, s23, v20"); A("v_add_u32 v23, s23, v21")
    A("s_lshr_b32 s23, s3, 1"); A("s_mul_i32 s23, s23, 56"); A("s_and_b32 s33, s3, 1"); A("s_lshl_b32 s34, s33, 5"); A("s_add_u32 s23, s23, s34")
    A("v_and_b32 v15, 3, v13"); A("v_lshlrev_b32 v16, 3, v15"); A("v_add_u32 v16, s23, v16")
    A("v_cmp_eq_u32 vcc, 3, v15"); A("s_cmp_eq_u32 s33, 1"); A("s_cselect_b64 s[34:35], vcc, 0")
    A("v_mov_b32 v17, 112"); A("v_cndmask_b32 v16, v16, v17, s[34:35]")
    A("v_lshrrev_b32 v17, 3, v13"); A("v_lshlrev_b32 v17, 1, v17"); A("v_and_b32 v18, 1, v14"); A("v_lshl_or_b32 v17, v18, 2, v17")
    A("v_lshrrev_b32 v18, 4, v16"); A("v_xor_b32 v18, v18, v17"); A("v_and_b32 v16, 8, v16"); A("v_lshl_or_b32 v16, v18, 4, v16")
    A("v_lshrrev_b32 v17, 2, v13"); A("v_lshl_add_u32 v17, v14, 3, v17"); A("v_lshl_add_u32 v24, v17, 7, v16"); A("v_add_u32 v24, 20480, v24")
    gw_addr(A, 25, QGW, QZR)
    XB = 256; xf = lambda buf, t: XB + buf*44 + t*4
    WB = 256 + 88; wf = lambda buf, t: WB + buf*16 + t*4
    ACC = 64
    def acc(t, RT):
        if t == 0: return ACC + (RT-1)*4
        if t == 3: return ACC + (26 + RT)*4
        return ACC + (8 + (t-1)*9 + RT)*4
    def reads(c, h, buf):
        out = []
        for t in range(3):
            for sec in range(2):
                out.append((f"ds_read_b64_tr_b16 {u(wf(buf,t)+2*sec,2)}, v24 offset:{t*8192 + h*4096 + sec*512}", ('w', c, h)))
        out.append((f"ds_read_b128 {u(wf(buf,3),4)}, v25 offset:{(2*c+h)*64}", ('w', c, h)))
        for RT in range(9): out.append((f"ds_read_b128 {u(xf(buf,RT),4)}, v{20+h} offset:{RT*2048}", ('x', c, h, RT)))
        for q in range(2): out.append((f"ds_read_b128 {u(xf(buf,9+q),4)}, v{22+h} offset:{q*2048}", ('x', c, h, 9+q)))
        return out
    def bump(c):
        d = QSTG if (c % 3) < 2 else -2*QSTG
        for r in (20, 21, 22, 23, 24):
            if d > 0: A(f"v_add_u32 v{r}, {d}, v{r}")
            else: A(f"v_subrev_u32 v{r}, {-d}, v{r}")
    A.wait_vm(('c', 0)); A("s_barrier")
    carry = []
    ST(A, 2)
    for t, tg in reads(0, 0, 0): A(t, tag=tg)
    for c in range(7):
        for h in range(2):
            kk = 2*c + h; buf = kk & 1
            todo = []; vq = []
            if h == 0:
                ST(A, ('gs', c, 0))
                todo = reads(c, 1, buf ^ 1)
                if c == 0: vq = dma(2)
                vq = vq + carry; carry = []
            else:
                ST(A, ('gs', c, 1))
                if c < 6: A.wait_vm(('c', c+1))
                ST(A, ('gs', c, 2))
                A.wait_lg(); ST(A, ('gs', c, 3)); A("s_barrier"); ST(A, ('g', c)); ST(A, ('gs', c, 4))
                if c + 3 <= 6:
                    vq = dma(c+3)
                    if os.environ.get('QSPREAD', '0') == '1':
                        nW = 12; carry = vq[nW:]; vq = vq[:nW]
                if c < 6:
                    bump(c); todo = reads(c+1, 0, buf ^ 1)
            order = [(1,0),(2,0)] + [(t, RT) for RT in range(1, 9) for t in range(3)] + [(3,0),(3,1)]
            n = 0
            if os.environ.get('W1', '1') == '1': A.wait_lg([('w', c, h)] + [('x', c, h, q) for q in range(11)])
            for (t, RT) in order:
                xt = RT if t < 3 else 9 + RT
                A.wait_lg([('w', c, h), ('x', c, h, xt)])
                d = v(acc(t, RT), 4)
                A(f"v_mfma_f32_16x16x32_bf16 {d}, {u(wf(buf,t),4)}, {u(xf(buf,xt),4)}, {d if kk else 0}")
                n += 1
                if todo: tt, tg = todo.pop(0); A(tt, tag=tg)
                if vq and (os.environ.get('QSPREAD', '0') != '1' or n % 2 == 0):
                    while vq:
                        tt, tg = vq.pop(0); A(tt, tag=tg)
                        if tg is not None or os.environ.get('QSPREAD', '0') != '1': break
            while todo: tt, tg = todo.pop(0); A(tt, tag=tg)
            emit(vq)
            if c == 0 and h == 0 and os.environ.get('CHIPT', '1') != '1': A("global_load_dword v56, v61, s[30:31]", tag='touch'); A("global_load_dword v56, v62, s[30:31]", tag='touch')
            if (c, h) == (int(os.environ.get('WSPQ', '4')), 1):
                for t, tg in prefetch_wsp_list(): A(t, tag=tg)
                touch_small(A)
    ST(A, 3)
    if os.environ.get('PREF', 'chip') == 'both':
        for t, tg in prefetch_wsp_list('die'): A(t, tag=tg)
    tag_issue(A)
    svc = AService(A); svc.setup(); svc.base('A', 24576, L_AST); svc.base('B', 14336, 0)
    svc.bg_dma(list(range(6)), [('A', k) for k in range(6)]); A.bg_every = 6
    A(f"v_mul_u32_u24 v15, {QP}, v13")
    A("s_lshr_b32 s23, s3, 1"); A("s_lshl_b32 s23, s23, 6"); A("s_and_b32 s33, s3, 1"); A("s_lshl_b32 s33, s33, 5"); A("s_add_u32 s23, s23, s33")
    A("v_lshl_add_u32 v15, v14, 3, v15"); A("v_add_u32 v26, s23, v15")
    P = 176; n = 0
    for t in range(3):
        for RT in range(0 if t else 1, 9):
            c = acc(t, RT); p = P + 2*(n & 7); n += 1
            A(f"v_cvt_pk_bf16_f32 v{p}, v{c}, v{c+1}"); A(f"v_cvt_pk_bf16_f32 v{p+1}, v{c+2}, v{c+3}")
            A(f"ds_write_b64 v26, {v(p,2)} offset:{RT*16*QP + t*128}", tag='qkv')
    for q in range(2):
        c = acc(3, q)
        A(f"v_mul_f32 v{c}, {hexf(-1.4426950408889634)}, v{c}")
        A(f"v_exp_f32 v{c}, v{c}"); A(f"v_add_f32 v{c}, 1.0, v{c}"); A(f"v_rcp_f32 v{c}, v{c}")
    A("s_lshl_b32 s23, s3, 7"); A(f"s_add_u32 s23, s23, {L_GL}")
    A("v_lshlrev_b32 v15, 2, v13"); A("v_add_u32 v16, s23, v15")
    A("s_mov_b64 s[34:35], exec"); A("s_mov_b64 exec, 0xffff")
    for q in range(2): A(f"ds_write_b32 v16, v{acc(3,q)} offset:{q*64}", tag='qkv')
    A(f"s_mov_b32 s23, {WS_GATE}"); srd_from(A, 16, S_WS, 23, S*4)
    A(f"s_cmp_eq_u32 s{S_CB}, 0"); A("s_cselect_b32 s18, s18, 0")
    A(f"s_lshl_b32 s23, s{S_RB}, 9"); A("s_lshl_b32 s33, s3, 7"); A("s_add_u32 s23, s23, s33")
    for q in range(2): A(f"buffer_store_dword v{acc(3,q)}, v15, s[16:19], s23 offen offset:{q*64} sc1", tag='pubst')
    A("s_mov_b64 exec, s[34:35]")
    A.wait_lg(); A("s_barrier")
    ST(A, 4)
    A("s_lshr_b32 s33, s3, 1"); A("s_and_b32 s34, s3, 1"); A("s_lshl_b32 s35, s33, 6")
    A(f"s_mul_i32 s32, s34, {64*QP}"); A("s_add_u32 s35, s35, s32")
    A("v_lshlrev_b32 v15, 1, v13")
    A(f"v_mul_u32_u24 v16, {QP}, v15"); A("v_lshl_add_u32 v16, v14, 4, v16"); A("v_add_u32 v16, s35, v16")
    A(f"v_add_u32 v20, {16*QP}, v16"); A(f"v_add_u32 v21, 128, v16")
    A("v_lshlrev_b32 v17, 2, v15"); A("s_lshl_b32 s32, s34, 8"); A(f"s_add_u32 s32, s32, {L_GL}"); A("v_add_u32 v22, s32, v17")
    A("v_lshrrev_b32 v17, 2, v13"); A("v_and_b32 v18, 3, v13"); A("v_lshlrev_b32 v18, 3, v18"); A("v_add_u32 v18, s35, v18"); A("v_add_u32 v18, 256, v18")
    for T in range(2):
        if T == 0: A("v_lshl_add_u32 v19, v14, 2, v17")
        else: A("v_and_b32 v19, 1, v14"); A("v_lshl_add_u32 v19, v19, 2, v17"); A("v_add_u32 v19, 16, v19")
        A("v_lshlrev_b32 v19, 1, v19"); A(f"v_mul_u32_u24 v19, {QP}, v19"); A(f"v_add_u32 v{23+T}, v19, v18")
    UB = 64
    rowoff = lambda b: (32*(b >> 1) + (b & 1))
    Q_ = lambda b: UB + b*24; K_ = lambda b, T: UB + b*24 + 4 + 4*T; V_ = lambda b, mt: UB + b*24 + 12 + 4*mt; G_ = lambda b: UB + b*24 + 20
    for b in range(4):
        A(f"ds_read_b128 {v(Q_(b),4)}, v20 offset:{rowoff(b)*QP}", tag=('u', b))
        for T in range(2): A(f"ds_read_b128 {v(K_(b,T),4)}, v21 offset:{(rowoff(b)+32*T)*QP}", tag=('u', b))
    for b in range(4):
        for mt in range(2):
            for T in range(2): A(f"ds_read_b64_tr_b16 {v(V_(b,mt)+2*T,2)}, v{23+T} offset:{rowoff(b)*QP + mt*32}", tag=('vv', b))
        A(f"ds_read_b32 v{G_(b)}, v22 offset:{rowoff(b)*4}", tag=('vv', b))
    SC = 160; sc = lambda b, T: SC + b*8 + 4*T
    for b in range(4):
        A.wait_lg(('u', b))
        for T in range(2): A(f"v_mfma_f32_16x16x32_bf16 {v(sc(b,T),4)}, {v(K_(b,T),4)}, {v(Q_(b),4)}, 0")
    A.wait_lg(); A("s_barrier")
    A.bg_flush()
    svc.wait_read(list(range(6)), [('A', k) for k in range(6)])
    wfj = WFJob(A); wfj.setup(75, 2*4096)
    A.wait_lg()
    svc.bg_dma([6, 7], [('B', 0), ('B', 1)]); A.bg += wfj.dma(); svc.bg_dma(list(range(8, 14)), [('A', k) for k in range(6)]); A.bg_every = 7
    cs = (28 ** -0.5) * 1.4426950408889634
    A(f"v_mov_b32 v26, {hexf(cs)}"); A(f"v_mov_b32 v27, {hexf(cs)}"); A(f"v_mov_b32 v28, {hexf(-1e30)}")
    for b in range(4):
        for q in range(4): A(f"v_pk_mul_f32 {v(sc(b,0)+2*q,2)}, {v(sc(b,0)+2*q,2)}, {v(26,2)}")
    A("v_lshlrev_b32 v15, 2, v14"); A("v_sub_u32 v15, v13, v15"); A("v_add_u32 v15, 8, v15")
    A("s_and_b32 s34, s3, 1"); A(f"s_or_b32 s34, s34, s{S_RB}")
    A("v_min_u32 v16, 7, v13"); A("s_cmp_eq_u32 s34, 0"); A("s_cselect_b64 s[34:35], -1, 0")
    A("v_mov_b32 v17, 7"); A("v_cndmask_b32 v16, v17, v16, s[34:35]")
    MS = [24, 26, 28, 30, 64, 66, 32, 34]
    for (lim, bs) in ((17, (2, 3)), (16, (0, 1))):
        for q in range(8):
            A(f"v_subrev_u32 v18, {16*(q >> 2) + (q & 3)}, v15")
            A(f"v_cmp_le_u32 s[{MS[q]}:{MS[q]+1}], v18, v{lim}")
        for b in bs:
            for q in range(8):
                A(f"v_cndmask_b32 v{sc(b,0)+q}, v28, v{sc(b,0)+q}, s[{MS[q]}:{MS[q]+1}]")
    MX = 192; M2 = 196
    def xreduce(op):
        for swap in ("v_permlane16_swap_b32", "v_permlane32_swap_b32"):
            for b in range(4): A(f"v_mov_b32 v{M2+b}, v{MX+b}")
            for b in range(4): A(f"{swap} v{MX+b}, v{M2+b}")
            for b in range(4): A(f"{op} v{MX+b}, v{MX+b}, v{M2+b}")
    for b in range(4): s0 = sc(b,0); A(f"v_max3_f32 v{MX+b}, v{s0}, v{s0+1}, v{s0+2}")
    for b in range(4): s0 = sc(b,0); A(f"v_max3_f32 v{MX+b}, v{MX+b}, v{s0+3}, v{s0+4}")
    for b in range(4): s0 = sc(b,0); A(f"v_max3_f32 v{MX+b}, v{MX+b}, v{s0+5}, v{s0+6}")
    for b in range(4): s0 = sc(b,0); A(f"v_max_f32 v{MX+b}, v{MX+b}, v{s0+7}")
    xreduce("v_max_f32")
    for b in range(4):
        for q in range(8): A(f"v_sub_f32 v{sc(b,0)+q}, v{sc(b,0)+q}, v{MX+b}")
    for b in range(4):
        for q in range(8): A(f"v_exp_f32 v{sc(b,0)+q}, v{sc(b,0)+q}")

    for b in range(4): s0 = sc(b,0); A(f"v_add_f32 v{MX+b}, v{s0}, v{s0+1}")
    for q in range(2, 8):
        for b in range(4): A(f"v_add_f32 v{MX+b}, v{MX+b}, v{sc(b,0)+q}")
    xreduce("v_add_f32")
    for b in range(4): A(f"v_rcp_f32 v{MX+b}, v{MX+b}")
    PB = 200
    for b in range(4):
        for q in range(8): A(f"v_mul_f32 v{sc(b,0)+q}, v{sc(b,0)+q}, v{MX+b}")
    for b in range(4):
        for q in range(4): A(f"v_cvt_pk_bf16_f32 v{PB+4*b+q}, v{sc(b,0)+2*q}, v{sc(b,0)+2*q+1}")
    OB = 160
    for b in range(4):
        for mt in range(2): A(f"v_mfma_f32_16x16x32_bf16 {v(OB+8*b+4*mt,4)}, {v(V_(b,mt),4)}, {v(PB+4*b,4)}, 0")
    ST(A, 5)
    wfj.finish()
    svc.wait_read([6, 7], [('B', 0), ('B', 1)]); A.wait_lg(); svc.bg_dma([14, 15], [('B', 0), ('B', 1)])
    A("v_and_b32 v15, 1, v13"); A("v_lshlrev_b32 v15, 1, v15"); A("v_bfe_u32 v16, v13, 1, 1"); A("v_or_b32 v15, v15, v16")
    A("v_and_b32 v16, 12, v13"); A("v_or_b32 v15, v15, v16"); A("v_lshl_add_u32 v15, v14, 4, v15"); A("v_lshlrev_b32 v29, 4, v15")
    A(f"s_lshl_b32 s23, s{S_RB}, 1"); A("s_and_b32 s33, s3, 1"); A("s_add_u32 s23, s23, s33"); A("s_mul_i32 s23, s23, 44")
    A(f"s_lshl_b32 s33, s{S_CB}, 1"); A("s_add_u32 s23, s23, s33"); A("s_lshr_b32 s33, s3, 1"); A("s_add_u32 s23, s23, s33")
    A("s_lshl_b32 s23, s23, 12"); A(f"s_add_u32 s23, s23, {WS_AF}")
    srd_from(A, 16, S_WS, 23, 4096)
    A("v_and_b32 v15, 2, v13"); A("v_cmp_eq_u32 vcc, 0, v15"); A("v_cmp_ne_u32 s[24:25], 0, v15")
    for b in range(4):
        o = OB + 8*b
        for q in range(8): A(f"v_mul_f32 v{o+q}, v{o+q}, v{G_(b)}")
        for q in range(4): A(f"v_cvt_pk_bf16_f32 v{PB+4*b+q}, v{o+2*q}, v{o+2*q+1}")
    for bb in range(2):
        X0 = PB + 8*bb; X1 = X0 + 4; Y = 216 + 8*bb
        for q in range(4):
            A(f"v_mov_b32_dpp v{Y+q}, v{X1+q} quad_perm:[2,3,0,1] row_mask:0xf bank_mask:0xf")
            A(f"v_mov_b32_dpp v{Y+4+q}, v{X0+q} quad_perm:[2,3,0,1] row_mask:0xf bank_mask:0xf")
        for q in range(4):
            A(f"v_cndmask_b32 v{Y+q}, v{Y+q}, v{X0+q}, vcc")
            A(f"v_cndmask_b32 v{Y+4+q}, v{Y+4+q}, v{X1+q}, s[24:25]")
        for aa in range(2):
            A(f"buffer_store_dwordx4 {v(Y+4*aa,4)}, v29, s[16:19], 0 offen offset:{(2*bb+aa)*1024} sc1", tag='pubst')
    A.bg_flush(); A.bg_every = 0
    ST(A, 6)
    A.wait_vm('pubst'); tag_take(A, lambda x: L('q' + x)); A("s_barrier")
    A(f"s_mul_i32 s27, s{S_RB}, {FS}"); A(f"s_lshl_b32 s28, s{S_CB}, 3"); A("s_add_u32 s27, s27, s28"); A(f"s_add_u32 s27, s27, {WS_F1Q}")
    signal(A, L, 'sigqd', 27)
    ST(A, 7)
    p2 = P2(A, L); p2.pre(); p2.flag_issue()
    p2.flag_take('q')
    p2.first()
    svc.wait_read(list(range(8, 14)), [('A', k) for k in range(6)])
    svc.wait_read([14, 15], [('B', 0), ('B', 1)])
    p2.plumbing()
    p2.third()
    A.wait_lg()
    ST(A, 8)
    p2.loop('q')

def rot7(s_):
    if s_ == 6: return [f"s_add_u32 s30, s29, {3*4096}"]
    return [f"s_add_u32 s30, s{S_CB}, {s_}", "s_cmp_ge_u32 s30, 6", "s_cselect_b32 s31, 6, 0", "s_sub_u32 s30, s30, s31",
            "s_cmp_ge_u32 s30, 6", "s_cselect_b32 s31, 6, 0", "s_sub_u32 s30, s30, s31",
            "s_cmp_ge_u32 s30, 3", "s_addc_u32 s30, s30, 0", "s_lshl_b32 s30, s30, 12", "s_add_u32 s30, s30, s29"]

def poll_p2(A, L):
    tag = 'pa'
    A("s_cmp_lg_u32 s3, 0"); A(f"s_cbranch_scc1 {L(tag+'_done')}")
    A.raw("  s_mov_b32 s33, 0"); A.raw(f"  s_lshl_b32 s30, s{S_CB}, 2"); A.raw("  s_lshl_b64 s[30:31], 15, s30")
    A.label(L(tag+'_loop'))
    for q2 in range(2): A.raw(f"  global_load_dwordx4 {v(16+4*q2,4)}, v2, s[{S_WS}:{S_WS+1}] offset:{16*q2} sc1")
    A.raw("  s_add_u32 s33, s33, 1"); A.raw("  s_waitcnt vmcnt(0)")
    for q in range(8): A.raw(f"  v_xor_b32 v{16+q}, s{S_TAG + (q & 1)}, v{16+q}")
    for t in ("v_or3_b32 v16, v16, v17, v18", "v_or3_b32 v19, v19, v20, v21", "v_or3_b32 v16, v16, v22, v23", "v_or_b32 v16, v16, v19", "v_cmp_eq_u32 vcc, 0, v16"): A.raw("  " + t)
    A.raw("  s_nop 1")
    A.raw("  s_and_b64 s[34:35], vcc, s[30:31]"); A.raw("  s_cmp_eq_u64 s[34:35], s[30:31]")
    A.raw(f"  s_cbranch_scc1 {L(tag+'_out')}")
    A.raw(f"  s_sleep {SLEEP}"); A.raw("  s_cmp_lt_u32 s33, 0x20000"); A.raw(f"  s_cbranch_scc1 {L(tag+'_loop')}")
    A.label(L(tag+'_out'))
    A.raw("  s_cmp_eq_u64 vcc, exec"); A.raw("  s_cselect_b32 s30, 1, 0"); A.raw("  v_mov_b32 v16, s30"); A.raw("  ds_write_b32 v9, v16"); A.raw("  s_waitcnt lgkmcnt(0)")
    A.label(L(tag+'_done'))
    A("s_barrier")

class P2:
    ACC, BR = 32, 144
    def __init__(self, A, L): self.A, self.L = A, L
    def acc(self, j, tau): return self.ACC + (j*4+tau)*4
    def bfrag(self, kk, j): return self.BR + (kk % 4)*28 + j*4
    def afrag(self, kk, tau): return ((kk >> 1)*8 + (kk & 1)*4 + tau)*4
    def pre(self):
        A = self.A
        A("v_lshlrev_b32 v3, 4, v12"); A("v_add_u32 v4, 4096, v3")
        A(f"s_mul_i32 s23, s{S_CB}, {64*7168}"); srd_from(A, 12, S_WS, 23, 64*7168)
        A(f"s_mul_i32 s26, s3, {16*7168}")
        if os.environ.get('ROT', '0') == '1': A(f"s_and_b32 s25, s{S_RB2}, 7"); A("s_lshl_b32 s25, s25, 1")
        else:
            A("s_mov_b32 s25, 0")
            A(f"s_and_b32 s23, s{S_RB2}, 7"); A("s_mul_i32 s23, s23, 896")
            A("v_and_b32 v31, 7, v12"); A("v_min_u32 v31, 6, v31"); A("v_lshlrev_b32 v31, 7, v31"); A("v_bfe_u32 v30, v12, 3, 2"); A("v_mul_u32_u24 v30, 7168, v30")
            A("v_add3_u32 v31, v31, v30, s23")
        A(f"s_mul_i32 s27, s{S_CB}, {FS}"); A("s_lshl_b32 s23, s3, 5"); A("s_add_u32 s27, s27, s23"); A(f"s_add_u32 s27, s27, {WS_F1Z}")
        A("v_and_b32 v9, 3, v12"); A("v_lshl_add_u32 v9, v9, 3, s27")
    def flag_issue(self):
        if os.environ.get('WGPOLL', '0') == '1': return
        self.A(f"global_load_dwordx2 v[10:11], v9, s[{S_WS}:{S_WS+1}] sc1", tag='fa')
    def flag_take(self, role):
        A, L = self.A, self.L
        if os.environ.get('WGPOLL', '0') == '1':
            A(f"s_mul_i32 s27, s{S_CB}, {FS}"); A(f"s_add_u32 s27, s27, {WS_F1Z}"); A("v_lshl_add_u32 v9, v12, 3, s27")
            poll(A, L, role+'pa', 9, 16)
            ST(A, 10)
            return
        A.wait_vm('fa')
        A(f"v_xor_b32 v10, s{S_TAG}, v10"); A(f"v_xor_b32 v11, s{S_TAG+1}, v11"); A("v_or_b32 v10, v10, v11"); A("v_cmp_eq_u32 vcc, 0, v10")
        A("s_nop 1"); A("s_cmp_eq_u64 vcc, exec"); A(f"s_cbranch_scc1 {L(role+'faok')}")
        poll_wave(A, L, role+'paw', 9, reset=False)
        A.label(L(role+'faok'))
        ST(A, 10)
    def soffB(self, kk):
        if os.environ.get('ROT', '0') != '1': return [f"s_add_u32 s27, s26, {kk*7168}"]
        return [f"s_add_u32 s27, s25, {kk}", "s_and_b32 s27, s27, 15", "s_mul_i32 s27, s27, 7168", "s_add_u32 s27, s27, s26"]
    def touchB(self, k0):
        if os.environ.get('ROT', '0') == '1': return
        A = self.A
        A(f"s_add_u32 s24, s26, {k0*7168}"); A("buffer_load_dword v30, v31, s[12:15], s24 offen sc1", tag='bt')
    def first(self):
        self.issueB(0)
        if os.environ.get('EARLY', '1') == '0': self.second()
    def second(self):
        self.touchB(3); self.issueB(1)
        if os.environ.get('ROT', '0') != '1' or os.environ.get('ROT3'): self.issueB(2)
    def third(self):
        if os.environ.get('EARLY', '1') == '1': self.second()
    def issueB(self, kk):
        A = self.A
        for t in self.soffB(kk): A(t)
        for j in range(7):
            A(f"buffer_load_dwordx4 {v(self.bfrag(kk,j),4)}, v{3 if j < 4 else 4}, s[12:15], s27 offen offset:{(j % 4)*1024} sc1", tag=('B', kk))
    def plumbing(self):
        A = self.A
        A(f"s_mul_i32 s23, s{S_CB}, {44*4096}"); A(f"s_add_u32 s23, s23, {WS_WF}"); srd_from(A, 8, S_WS, 23, 44*4096)
        A(f"s_cmp_eq_u32 s{S_CB}, 7"); A("s_cselect_b32 s10, 0, s10")
        A(f"s_mul_i32 s23, s{S_RB2}, {44*4096}"); A(f"s_add_u32 s23, s23, {WS_AF}"); srd_from(A, 16, S_WS, 23, 44*4096)
        for tau in range(4):
            A(f"s_xor_b32 s24, s3, {tau}"); A("s_lshl_b32 s24, s24, 10"); A(f"v_add_u32 v{5+tau}, s24, v3")
        A("s_lshl_b32 s28, s3, 14")
        A(f"s_mul_i32 s29, s3, {7*4096}"); A(f"s_add_u32 s29, s29, {16*4096}")
        A(f"s_lshl_b32 s30, s{S_RB2}, 2"); A("s_add_u32 s30, s30, s3")
        A("s_mul_i32 s31, s30, 56"); A(f"s_mul_i32 s32, s{S_CB}, 7"); A("s_add_u32 s31, s31, s32"); A("s_lshl_b32 s31, s31, 9"); A(f"s_add_u32 s31, s31, {WS_Z1F}")
        srd_from(A, 64, S_WS, 31, 7*512)
        A("v_lshlrev_b32 v10, 3, v12")
        A(f"s_lshl_b32 s31, s{S_RB2}, 6"); A("s_lshr_b32 s32, s3, 1"); A("s_lshl_b32 s32, s32, 5"); A("s_add_u32 s31, s31, s32")
        A("s_and_b32 s32, s3, 1"); A("s_lshl_b32 s32, s32, 2"); A("s_add_u32 s31, s31, s32")
        A("v_lshrrev_b32 v11, 2, v13"); A("v_lshlrev_b32 v11, 3, v11"); A("v_and_b32 v1, 3, v13"); A("v_add_u32 v11, v11, v1"); A("v_add_u32 v11, s31, v11")
        A("v_lshlrev_b32 v15, 2, v11"); A(f"v_add_u32 v15, {WS_GATE}, v15"); A("v_lshlrev_b32 v11, 1, v11")
        A(f"s_mul_i32 s27, s{S_CB}, 11"); A("v_subrev_u32 v1, 8, v12"); A("v_min_u32 v1, 11, v1"); A("v_add_u32 v1, s27, v1"); A("v_min_u32 v1, 76, v1")
        A(f"s_lshl_b32 s27, s{S_RB}, 3"); A("v_add_u32 v2, s27, v12"); A("v_cmp_gt_u32 vcc, 8, v12"); A("v_cndmask_b32 v1, v1, v2, vcc")
        A("v_lshrrev_b32 v2, 3, v1"); A(f"v_mul_u32_u24 v2, {FS}, v2"); A("v_and_b32 v1, 7, v1"); A("v_lshl_add_u32 v2, v1, 3, v2"); A(f"v_add_u32 v2, {WS_F1Q}, v2")
        A(f"s_mul_i32 s27, s{S_RB}, {FS}"); A(f"s_lshl_b32 s23, s{S_CB}, 3"); A("s_add_u32 s27, s27, s23"); A(f"s_add_u32 s27, s27, {WS_F3}"); A("v_mov_b32 v9, s27")
    def epi_list(self):
        out = [(f"buffer_load_dwordx2 {v(16+2*j,2)}, v10, s[64:67], 0 offen offset:{j*512} sc1", 'epi') for j in range(7)]
        out += [(f"global_load_ushort v30, v11, s[{S_BSP}:{S_BSP+1}]", 'epi'), (f"global_load_dword v31, v15, s[{S_WS}:{S_WS+1}] sc1", 'epi')]
        return out
    def wlist(self, kind):
        out = []
        if kind == 'Wo':
            for s_ in range(4):
                out.append((f"s_add_u32 s30, s28, {s_*4096}", None))
                out += [(f"buffer_load_dwordx4 {a((s_*4+uu)*4,4)}, v3, s[8:11], s30 offen offset:{uu*1024} sc1", ('Wo', s_)) for uu in range(4)]
        if kind == 'Wh':
            for s_ in range(7):
                out += [(t, None) for t in rot7(s_)]
                out += [(f"buffer_load_dwordx4 {a(64+(s_*4+uu)*4,4)}, v3, s[8:11], s30 offen offset:{uu*1024} sc1", ('Wh', s_)) for uu in range(4)]
        if kind == 'Ao':
            for s_ in range(4):
                out.append((f"s_add_u32 s32, s28, {s_*4096}", None))
                out += [(f"buffer_load_dwordx4 {a(176+(s_*4+tau)*4,4)}, v{5+tau}, s[16:19], s32 offen sc1", ('Ao', s_)) for tau in range(4)]
        return out
    def loop(self, role):
        A = self.A; L = lambda x: self.L(role + x)
        acc, bfrag, afrag = self.acc, self.bfrag, self.afrag
        for kk in range(16):
            A.wait_vm(('B', kk)); ST(A, ('kk', kk))
            pend = [(kk+3, j) for j in range(7)] if kk + 3 < 16 else []
            if kk == 0 and os.environ.get('ROT', '0') == '1' and not os.environ.get('ROT3'): pend = [(2, j) for j in range(7)] + pend
            if kk in (1, 5, 9): self.touchB({1: 7, 5: 11, 9: 15}[kk])
            m = 0
            if kk == 4:
                A.wait_vm('z1st'); A("s_barrier")
                if role == 'z':
                    A(f"s_mul_i32 s24, s{S_RB}, {FS}"); A(f"s_lshl_b32 s23, s{S_CB}, 3"); A("s_add_u32 s24, s24, s23"); A(f"s_add_u32 s24, s24, {WS_F3}")
                    signal(A, L, 'sigz1', 24, vtmp=20)
            if kk == 8:
                A(f"global_load_dwordx2 v[16:17], v2, s[{S_WS}:{S_WS+1}] sc1", tag='fl')
                if role == 'q': A(f"global_load_dwordx2 v[18:19], v9, s[{S_WS}:{S_WS+1}] sc1", tag='fl')
                else: A(f"v_mov_b32 v18, s{S_TAG}"); A(f"v_mov_b32 v19, s{S_TAG+1}")
            if kk == 12:
                def check():
                    return [f"v_xor_b32 v{16+q}, s{S_TAG + (q & 1)}, v{16+q}" for q in range(4)] + ["v_or3_b32 v16, v16, v17, v18", "v_or_b32 v16, v16, v19", "v_cmp_eq_u32 vcc, 0, v16"]
                A.wait_vm('fl')
                for t in check(): A(t)
                A("s_nop 1"); A("s_cmp_eq_u64 vcc, exec"); A(f"s_cbranch_scc1 {L('allok')}")
                A.raw("  s_mov_b32 s33, 0")
                A.raw(f"{L('allloop')}:")
                A.raw(f"  global_load_dwordx2 v[16:17], v2, s[{S_WS}:{S_WS+1}] sc1"); A.raw(f"  global_load_dwordx2 v[18:19], v9, s[{S_WS}:{S_WS+1}] sc1")
                A.raw("  s_add_u32 s33, s33, 1"); A.raw("  s_waitcnt vmcnt(0)")
                for t in check(): A.raw("  " + t)
                A.raw("  s_nop 1"); A.raw("  s_cmp_eq_u64 vcc, exec"); A.raw(f"  s_cbranch_scc1 {L('allok')}")
                A.raw(f"  s_sleep {SLEEP}"); A.raw("  s_cmp_lt_u32 s33, 0x20000"); A.raw(f"  s_cbranch_scc1 {L('allloop')}")
                A.label(L('allok'))
            if kk == 13:
                A.bg += self.epi_list() + self.wlist('Wo')[:15]; A.bg_every = 4
            for j in range(7):
                for tau in range(4):
                    c = v(acc(j,tau),4)
                    A(f"v_mfma_f32_16x16x32_bf16 {c}, {v(bfrag(kk,j),4)}, {a(afrag(kk,tau),4)}, {c if kk else 0}")
                    m += 1
                    if pend and (m % 4 == 1 or (kk == 0 and m % 2 == 1)):
                        k3, jj = pend.pop(0)
                        if jj == 0:
                            for t in self.soffB(k3): A(t)
                        A(f"buffer_load_dwordx4 {v(bfrag(k3,jj),4)}, v{3 if jj < 4 else 4}, s[12:15], s27 offen offset:{(jj % 4)*1024} sc1", tag=('B', k3))
            A.check_vm()
        A.bg_flush(); A.bg_every = 0

def phase2_tail(A, L):
    p2 = P2(A, L); acc = p2.acc; wlist = p2.wlist
    rest = wlist('Wo')[15:] + wlist('Ao') + wlist('Wh')
    groups = []; cur = []
    for it in rest:
        cur.append(it)
        if it[1] is not None and sum(1 for x in cur if x[1] is not None) == 4: groups.append(cur); cur = []
    n1, n2 = [int(x) for x in os.environ.get('TAILG', '5,4').split(',')]
    for gq in groups[:n1]: A.bg += gq
    bg_mid = [it for gq in groups[n1:n1+n2] for it in gq]; bg_late = [it for gq in groups[n1+n2:] for it in gq]
    A.bg_every = int(os.environ.get('TAILE', '5')); A.bg_classes = ('valu', 'ds')
    ST(A, 11)
    A("s_mul_i32 s23, s3, 21504"); A("v_add_u32 v9, s23, v3")
    for tau in (1,2,3):
        A(f"s_xor_b32 s24, s3, {tau}"); A("s_mul_i32 s24, s24, 21504"); A(f"s_add_u32 s24, s24, {(tau-1)*7168}"); A(f"v_add_u32 v{(10,11,15)[tau-1]}, s24, v3")
    for tau in (1,2,3):
        for j in range(7): A(f"ds_write_b128 v9, {v(acc(j,tau),4)} offset:{(tau-1)*7168+j*1024}", tag='w')
    A.wait_lg(); ST(A, 'red_w'); A("s_barrier"); ST(A, 'red_b')
    T0 = 144
    for tau in (1,2,3):
        for j in range(7): A(f"ds_read_b128 {v(T0+((tau-1)*7+j)*4,4)}, v{(10,11,15)[tau-1]} offset:{j*1024}", tag=('r',tau))
    for tau in (1,2,3):
        A.wait_lg(('r',tau))
        for j in range(7):
            c = acc(j,0); t = T0+((tau-1)*7+j)*4
            A(f"v_pk_add_f32 {v(c,2)}, {v(c,2)}, {v(t,2)}"); A(f"v_pk_add_f32 {v(c+2,2)}, {v(c+2,2)}, {v(t+2,2)}")
    A.bg_flush(); A.bg_every = 0
    ST(A, 'red_r')
    A.wait_vm('epi')
    A("v_lshlrev_b32 v30, 16, v30"); A("v_sub_f32 v31, 1.0, v31")
    H = 144
    if os.environ.get('PKH', '1') == '1':
        A("v_mov_b32 v33, v31") if False else None
        A("v_mov_b32 v240, v30"); A("v_mov_b32 v241, v30"); A("v_mov_b32 v242, v31"); A("v_mov_b32 v243, v31")
        for j in range(7):
            c = acc(j,0)
            for rp in range(2):
                z = 16 + 2*j + rp; t = 244 + 2*rp
                A(f"v_lshlrev_b32 v{t}, 16, v{z}"); A(f"v_and_b32 v{t+1}, 0xffff0000, v{z}")
                A(f"v_pk_add_f32 {v(c+2*rp,2)}, {v(c+2*rp,2)}, v[240:241]")
                A(f"v_pk_mul_f32 {v(t,2)}, {v(t,2)}, v[242:243]")
                A(f"v_pk_mul_f32 {v(c+2*rp,2)}, {v(c+2*rp,2)}, {v(t,2)}")
            A(f"v_cvt_pk_bf16_f32 v{H+2*j}, v{c}, v{c+1}"); A(f"v_cvt_pk_bf16_f32 v{H+2*j+1}, v{c+2}, v{c+3}")
    else:
        for j in range(7):
            c = acc(j,0)
            for r in range(4):
                z = 16 + 2*j + (r >> 1); t = 1 + (r & 1)
                if r & 1: A(f"v_and_b32 v{t}, 0xffff0000, v{z}")
                else: A(f"v_lshlrev_b32 v{t}, 16, v{z}")
                A(f"v_add_f32 v{c+r}, v{c+r}, v30")
                A(f"v_mul_f32 v{t}, v{t}, v31")
                A(f"v_mul_f32 v{c+r}, v{c+r}, v{t}")
            A(f"v_cvt_pk_bf16_f32 v{H+2*j}, v{c}, v{c+1}"); A(f"v_cvt_pk_bf16_f32 v{H+2*j+1}, v{c+2}, v{c+3}")
    ST(A, 'hcomp')
    A.bg_classes = ('valu', 'mfma')
    A.wait_vm(('Wo', 2))
    A("v_lshlrev_b32 v2, 3, v12")
    A(f"s_mul_i32 s24, s{S_CB}, 7"); A("s_lshr_b32 s33, s24, 1"); A("s_add_u32 s33, s33, 16"); A("s_lshl_b32 s33, s33, 12")
    A("s_lshl_b32 s23, s3, 10"); A("s_add_u32 s33, s33, s23")
    A("s_and_b32 s24, s24, 1"); A("s_cmp_eq_u32 s24, 0"); A(f"s_cbranch_scc0 {L('odd')}")
    vm0 = list(A.vm)
    for p in range(3):
        A(f"buffer_store_dwordx4 {v(H+4*p,4)}, v3, s[16:19], s33 offen sc1", tag='hst'); A("s_add_u32 s33, s33, 4096")
    A(f"buffer_store_dwordx2 {v(H+12,2)}, v2, s[16:19], s33 offen sc1", tag='hst')
    A(f"s_branch {L('hfin')}")
    A.label(L('odd')); A.vm = list(vm0)
    A(f"buffer_store_dwordx2 {v(H,2)}, v2, s[16:19], s33 offen offset:512 sc1", tag='hst')
    for p in range(3):
        A("s_add_u32 s33, s33, 4096"); A(f"buffer_store_dwordx4 {v(H+2+4*p,4)}, v3, s[16:19], s33 offen sc1", tag='hst')
    A.label(L('hfin'))
    ST(A, 12)
    if os.environ.get('OEARLY', '1') == '1': return (bg_mid, bg_late)
    for t, tg in bg_mid: A(t, tag=tg)
    return bg_late

def phase3(A, L, late):
    ACC = 32; acc = lambda uu, tau: ACC + (uu*4+tau)*4
    HA = 96
    def opart():
        for s_ in range(4):
            A.wait_vm([('Wo', s_), ('Ao', s_)])
            for tau in range(4):
                for uu in range(4):
                    c = v(acc(uu,tau),4)
                    A(f"v_mfma_f32_16x16x32_bf16 {c}, {a((s_*4+uu)*4,4)}, {a(176+(s_*4+tau)*4,4)}, {c if s_ else 0}")
    EARLY = os.environ.get('OEARLY', '1') == '1'
    if EARLY:
        mid, late = late
        A.bg += mid; A.bg_every = 4
        opart()
        A.bg_flush(); A.bg_every = 0
    A.wait_vm('hst'); ST(A, 'hack'); A("s_barrier")
    A(f"s_mul_i32 s27, s{S_RB2}, {FS}"); A(f"s_lshl_b32 s26, s{S_CB}, 3"); A("s_add_u32 s27, s27, s26"); A(f"s_add_u32 s27, s27, {WS_F2}")
    signal(A, L, 'sighd', 27)
    A(f"s_cmp_eq_u32 s{S_CB}, 7"); A(f"s_cbranch_scc1 {L('fin')}")
    ST(A, 13)
    if EARLY:
        for t, tg in late: A(t, tag=tg)
    else:
        nl = sum(1 for x in late if x[1] is not None)
        A.bg += late; A.bg_every = max(1, 60 // max(nl, 1))
        opart()
    A.bg_flush(); A.bg_every = 0
    ST(A, 'opart')
    A("s_mul_i32 s26, s3, 12288"); A("v_add_u32 v20, s26, v3")
    for tau in (1,2,3):
        A(f"s_xor_b32 s26, s3, {tau}"); A("s_mul_i32 s26, s26, 12288"); A(f"s_add_u32 s26, s26, {(tau-1)*4096}"); A(f"v_add_u32 v{20+tau}, s26, v3")
    A("v_bfe_u32 v15, v13, 2, 1"); A("v_lshlrev_b32 v15, 3, v15"); A("v_and_b32 v16, 3, v13"); A("v_add_u32 v15, v15, v16")
    A(f"s_lshl_b32 s26, s{S_RB2}, 6"); A("s_lshr_b32 s27, s3, 1"); A("s_lshl_b32 s27, s27, 5"); A("s_add_u32 s26, s26, s27")
    A("s_and_b32 s27, s3, 1"); A("s_lshl_b32 s27, s27, 2"); A("s_add_u32 s26, s26, s27")
    A("v_add_u32 v15, s26, v15"); A("v_mul_u32_u24 v15, 896, v15")
    A("v_lshrrev_b32 v16, 3, v13"); A("v_lshl_add_u32 v16, v16, 2, v14"); A("v_lshlrev_b32 v16, 4, v16")
    A(f"s_lshl_b32 s27, s{S_CB}, 7"); A("v_add_u32 v16, s27, v16"); A("v_add_u32 v1, v15, v16")
    A(f"s_mov_b32 s26, {16*896}")
    srd_from(A, 12, S_OUT, None, S*D*2)
    for tau in range(4):
        A(f"s_xor_b32 s24, s3, {tau}"); A("s_lshl_b32 s24, s24, 10"); A(f"v_lshl_add_u32 v{24+tau}, v12, 3, s24")
    A(f"s_mul_i32 s27, s{S_RB2}, {FS}"); A(f"s_add_u32 s27, s27, {WS_F2}"); A("v_lshl_add_u32 v17, v12, 3, s27")
    poll(A, L, 'pb', 17, 8)
    ST(A, 14)
    def hload(s_):
        out = [(t, None) for t in rot7(s_)]
        for tau in range(4):
            r = HA + (s_*4+tau)*4
            if s_ < 6: out.append((f"buffer_load_dwordx4 {v(r,4)}, v{5+tau}, s[16:19], s30 offen sc1", ('Ah', s_)))
            else:
                out.append((f"buffer_load_dwordx2 {v(r,2)}, v{24+tau}, s[16:19], s30 offen sc1", ('Ah', s_)))
                out.append((f"buffer_load_dwordx2 {v(r+2,2)}, v{24+tau}, s[16:19], s30 offen offset:512 sc1", ('Ah', s_)))
        return out
    for s_ in range(3):
        for t, tg in hload(s_): A(t, tag=tg)
    for s_ in range(7):
        A.wait_vm(('Ah', s_))
        if s_ == 0: ST(A, 'ah0')
        if s_ == 6: ST(A, 'ahN')
        if s_ + 3 < 7: A.bg += hload(s_ + 3); A.bg_every = 3
        for tau in range(4):
            for uu in range(4):
                c = v(acc(uu,tau),4)
                A(f"v_mfma_f32_16x16x32_bf16 {c}, {a(64+(s_*4+uu)*4,4)}, {v(HA+(s_*4+tau)*4,4)}, {c}")
        A.bg_flush(); A.bg_every = 0
    if not os.environ.get('ENDST'): ST(A, 15)
    for tau in (1,2,3):
        for uu in range(4): A(f"ds_write_b128 v20, {v(acc(uu,tau),4)} offset:{(tau-1)*4096+uu*1024}", tag='w')
    A.wait_lg(); A("s_barrier")
    ST(A, 'p3red')
    T0 = 208
    for tau in (1,2,3):
        for uu in range(4): A(f"ds_read_b128 {v(T0+((tau-1)*4+uu)*4,4)}, v{20+tau} offset:{uu*1024}", tag=('r',tau))
    for tau in (1,2,3):
        A.wait_lg(('r',tau))
        for uu in range(4):
            c = acc(uu,0); t = T0+((tau-1)*4+uu)*4
            A(f"v_pk_add_f32 {v(c,2)}, {v(c,2)}, {v(t,2)}"); A(f"v_pk_add_f32 {v(c+2,2)}, {v(c+2,2)}, {v(t+2,2)}")
    for vv in range(2):
        o = 96 + 4*vv; c0 = acc(2*vv,0); c1 = acc(2*vv+1,0)
        A(f"v_cvt_pk_bf16_f32 v{o}, v{c0}, v{c0+1}"); A(f"v_cvt_pk_bf16_f32 v{o+1}, v{c0+2}, v{c0+3}")
        A(f"v_cvt_pk_bf16_f32 v{o+2}, v{c1}, v{c1+1}"); A(f"v_cvt_pk_bf16_f32 v{o+3}, v{c1+2}, v{c1+3}")
    A("v_cmp_gt_u32 vcc, 8, v13"); A("v_cmp_le_u32 s[24:25], 8, v13")
    for q in range(4):
        A(f"v_mov_b32_dpp v{104+q}, v{100+q} row_ror:8 row_mask:0xf bank_mask:0xf")
        A(f"v_mov_b32_dpp v{108+q}, v{96+q} row_ror:8 row_mask:0xf bank_mask:0xf")
    for q in range(4):
        A(f"v_cndmask_b32 v{104+q}, v{104+q}, v{96+q}, vcc")
        A(f"v_cndmask_b32 v{108+q}, v{108+q}, v{100+q}, s[24:25]")
    ST(A, 'p3st')
    A(f"buffer_store_dwordx4 v[104:107], v1, s[12:15], 0 offen {os.environ.get('OUTSC', 'sc1')}")
    A(f"buffer_store_dwordx4 v[108:111], v1, s[12:15], s26 offen {os.environ.get('OUTSC', 'sc1')}")

def gen_mega(name="mega", code_bytes=0):
    Stamps.map = [78+2*k for k in range(11)] + [4, 6, 42, 0, 74+0*0]
    A = Asm(); L = lambda x: f"{name}_{x}"
    A("s_cmp_ge_u32 s2, 256"); A(f"s_cbranch_scc1 {L('end')}")
    if os.environ.get('DELAY'):
        A.raw(f"  s_mov_b32 s30, {os.environ['DELAY']}")
        A.raw(f"{L('dly')}:")
        for q in range(16): A.raw(f"  v_add_u32 v{100+q}, v{100+q}, v0")
        A.raw("  s_sub_u32 s30, s30, 1"); A.raw("  s_cmp_lg_u32 s30, 0"); A.raw(f"  s_cbranch_scc1 {L('dly')}")
    ST(A, 0)
    A("s_load_dwordx16 s[36:51], s[0:1], 0")
    A("s_load_dwordx8 s[52:59], s[0:1], 64")
    A("v_lshrrev_b32 v6, 6, v0"); A("s_getreg_b32 s20, hwreg(HW_REG_XCC_ID)"); A("v_readfirstlane_b32 s3, v6")
    if code_bytes and os.environ.get('ECP', '1') == '1':
        A("s_cmp_lg_u32 s3, 1"); A(f"s_cbranch_scc1 {L('noecp')}")
        A.raw("  s_getpc_b64 s[22:23]"); A.raw(f"{name}_pc0:")
        A.raw("  v_and_b32 v10, 31, v0"); A.raw("  v_lshlrev_b32 v10, 7, v10"); A.raw("  v_bfe_u32 v11, v0, 5, 1")
        A.raw(f"  v_mul_u32_u24 v11, {L('qrole')}-{name}_pc0, v11"); A.raw("  v_add_u32 v10, v10, v11")
        A.raw("  global_load_dword v56, v10, s[22:23]")
        A.label(L('noecp'))
    A("v_and_b32 v12, 63, v0")
    A("s_and_b32 s20, s20, 7")
    A("v_and_b32 v13, 15, v12"); A("v_lshrrev_b32 v14, 4, v12")
    A(f"v_mov_b32 v18, {L_TICKET}"); A("v_mov_b32 v17, 0")
    A.wait_lg(); ST(A, 'karg')
    CH = os.environ.get('CHIPT', '1') == '1'
    A("s_cmp_lg_u32 s3, 0"); A(f"s_cbranch_scc1 {L('notick')}")
    A.raw("  s_lshl_b32 s30, s20, 5"); A.raw("  v_mov_b32 v10, s30"); A.raw("  v_mov_b32 v19, 1")
    A.raw("  s_mov_b64 s[34:35], exec"); A.raw("  s_mov_b64 exec, 1")
    A.raw(f"  global_atomic_add v59, v10, v19, s[{S_DBG}:{S_DBG+1}] sc0 sc1")
    A.raw("  s_mov_b64 exec, s[34:35]")
    A.label(L('notick'))
    if CH:
        A("s_lshl_b32 s24, s2, 2"); A("s_add_u32 s24, s24, s3")
        A("s_mul_i32 s25, s24, 1792"); A("v_min_u32 v57, 13, v12"); A("v_lshlrev_b32 v57, 7, v57"); A("v_add_u32 v58, s25, v57")
        A(f"global_load_dword v56, v58, s[{S_X}:{S_X+1}]", tag='pf')
        A("s_cmp_lt_u32 s24, 448"); A(f"s_cselect_b32 s28, s{S_WIN}, s{S_WQKV}"); A(f"s_cselect_b32 s29, s{S_WIN+1}, s{S_WQKV+1}")
        A("s_cselect_b32 s26, 27, 20"); A("s_cselect_b32 s27, 4, 3"); A("s_cselect_b32 s25, 0, 448"); A("s_mul_i32 s27, s27, 896")
        A("s_sub_u32 s25, s24, s25"); A("s_min_u32 s25, s25, 447"); A("s_mul_i32 s25, s25, s27")
        A("v_min_u32 v57, s26, v12"); A("v_lshlrev_b32 v57, 7, v57"); A("v_add_u32 v58, s25, v57")
        A("global_load_dword v56, v58, s[28:29]", tag='pf')
    A("s_cmp_lg_u32 s3, 0"); A(f"s_cbranch_scc1 {L('tickd')}")
    A.raw(f"  s_waitcnt vmcnt({2 if CH else 0})")
    A.raw("  v_readfirstlane_b32 s30, v59"); A.raw("  s_nop 1"); A.raw("  v_mov_b32 v59, s30")
    A.raw("  ds_write_b32 v18, v59"); A.raw("  s_waitcnt lgkmcnt(0)")
    A.label(L('tickd'))
    A("s_barrier"); ST(A, 'tkb')
    A("ds_read_b32 v19, v18", tag='tk')
    A("s_cmp_lg_u32 s3, 0"); A(f"s_cbranch_scc1 {L('notag')}")
    tag_publish(A, L)
    A.wait_lg()
    A("v_readfirstlane_b32 s21, v19")
    A("s_cmp_ge_u32 s21, 32"); A(f"s_cbranch_scc1 {L('end')}")
    A("s_lshl_b32 s24, s21, 2"); A("s_add_u32 s24, s24, s3")
    if not CH:
        A("s_and_b32 s25, s20, 1"); A("s_mul_i32 s26, s25, 896")
        A("s_cmp_lt_u32 s24, 43"); A(f"s_cbranch_scc1 {L('tx')}")
        A.raw("  s_cmp_lt_u32 s24, 83"); A.raw(f"  s_cbranch_scc1 {L('tw')}")
        A.raw("  s_sub_u32 s27, s24, 83"); A.raw("  s_mul_i32 s27, s27, 8"); A.raw("  v_lshrrev_b32 v57, 3, v12"); A.raw("  v_add_u32 v57, s27, v57"); A.raw("  v_min_u32 v57, 319, v57")
        A.raw("  v_and_b32 v15, 7, v12"); A.raw("  v_min_u32 v15, 5, v15")
        A.raw("  v_lshrrev_b32 v16, 1, v15"); A.raw("  v_mul_u32_u24 v16, 896, v16"); A.raw("  v_and_b32 v15, 1, v15"); A.raw("  v_lshl_add_u32 v15, v15, 8, v16")
        A.raw("  s_lshr_b32 s26, s26, 1"); A.raw("  v_add_u32 v15, s26, v15")
        A.raw("  v_lshrrev_b32 v61, 3, v12"); A.raw("  s_sub_u32 s27, s24, 83"); A.raw("  s_mul_i32 s27, s27, 3"); A.raw("  v_min_u32 v61, 2, v61"); A.raw("  v_add_u32 v61, s27, v61"); A.raw("  v_add_u32 v61, 320, v61"); A.raw("  v_min_u32 v61, 447, v61")
        A.raw("  v_mul_u32_u24 v61, 2688, v61"); A.raw("  v_add_u32 v61, v61, v15")
        A.raw("  v_mul_u32_u24 v57, 2688, v57"); A.raw("  v_add_u32 v57, v57, v15")
        A.raw("  v_add_u32 v60, 128, v57"); A.raw("  v_add_u32 v62, 128, v61")
        A.raw(f"  global_load_dword v56, v60, s[{S_WQKV}:{S_WQKV+1}]")
        A.raw(f"  s_mov_b32 s28, s{S_WQKV}"); A.raw(f"  s_mov_b32 s29, s{S_WQKV+1}"); A.raw(f"  s_branch {L('tgo')}")
        A.raw(f"{L('tw')}:")
        A.raw("  s_sub_u32 s27, s24, 43"); A.raw("  s_lshl_b32 s27, s27, 3"); A.raw("  v_lshrrev_b32 v57, 3, v12"); A.raw("  v_add_u32 v57, s27, v57")
        A.raw("  v_and_b32 v15, 7, v12"); A.raw("  v_min_u32 v15, 6, v15"); A.raw("  v_lshlrev_b32 v15, 7, v15"); A.raw("  s_add_u32 s26, s26, 1792"); A.raw("  v_add_u32 v15, s26, v15")
        A.raw("  s_sub_u32 s27, s24, 43"); A.raw("  s_lshl_b32 s27, s27, 2"); A.raw("  v_lshrrev_b32 v61, 3, v12"); A.raw("  v_min_u32 v61, 3, v61"); A.raw("  v_add_u32 v61, s27, v61"); A.raw("  v_add_u32 v61, 320, v61"); A.raw("  v_min_u32 v61, 447, v61")
        A.raw("  v_mul_u32_u24 v61, 3584, v61"); A.raw("  v_add_u32 v61, v61, v15"); A.raw("  v_mov_b32 v62, v61")
        A.raw("  v_mul_u32_u24 v57, 3584, v57"); A.raw("  v_add_u32 v57, v57, v15")
        A.raw(f"  s_mov_b32 s28, s{S_WIN}"); A.raw(f"  s_mov_b32 s29, s{S_WIN+1}"); A.raw(f"  s_branch {L('tgo')}")
        A.raw(f"{L('tx')}:")
        A.raw("  s_lshr_b32 s27, s20, 1"); A.raw("  s_lshl_b32 s27, s27, 9"); A.raw("  s_mul_i32 s28, s24, 12")
        A.raw("  v_mul_u32_u24 v57, 13108, v12"); A.raw("  v_lshrrev_b32 v57, 16, v57")
        A.raw("  v_mul_u32_u24 v15, 5, v57"); A.raw("  v_sub_u32 v15, v12, v15")
        A.raw("  v_min_u32 v57, 11, v57"); A.raw("  v_add_u32 v57, s28, v57"); A.raw("  v_min_u32 v57, 511, v57"); A.raw("  v_add_u32 v57, s27, v57"); A.raw("  v_mul_u32_u24 v57, 896, v57")
        A.raw("  v_and_b32 v16, 1, v15"); A.raw("  v_add_u32 v16, 5, v16"); A.raw("  v_lshl_add_u32 v61, v16, 7, v57"); A.raw("  v_mov_b32 v62, v61"); A.raw("  v_lshl_add_u32 v57, v15, 7, v57")
        A.raw(f"  s_mov_b32 s28, s{S_X}"); A.raw(f"  s_mov_b32 s29, s{S_X+1}")
        A.label(L('tgo'))
        A("global_load_dword v56, v57, s[28:29]", tag='pf')
        A("s_mov_b32 s30, s28"); A("s_mov_b32 s31, s29")
    if code_bytes:
        assert code_bytes <= 512*128
        A("s_getpc_b64 s[22:23]"); A.raw(f"{name}_pc:")
        A("v_and_b32 v10, 3, v0"); A("s_lshl_b32 s25, s24, 2"); A("v_add_u32 v10, s25, v10"); A("v_lshlrev_b32 v10, 7, v10")
        A(f"v_min_u32 v10, {L('end')}-{name}_pc, v10"); A("global_load_dword v56, v10, s[22:23]", tag='pf')
    A("s_lshl_b32 s2, s21, 3"); A("s_or_b32 s2, s2, s20")
    A("s_lshr_b32 s33, s21, 4"); A("s_and_b32 s21, s21, 15")
    A("s_lshr_b32 s22, s20, 1"); A("s_lshl_b32 s22, s22, 2"); A("s_lshr_b32 s23, s21, 2"); A("s_add_u32 s22, s22, s23")
    A("s_and_b32 s20, s20, 1"); A("s_lshl_b32 s20, s20, 2"); A("s_and_b32 s21, s21, 3"); A("s_add_u32 s21, s21, s20")
    A("s_mov_b32 s20, s22"); A("s_lshl_b32 s22, s20, 1"); A("s_add_u32 s22, s22, s33")
    ST(A, 'tick')
    A("s_cmp_eq_u32 s33, 0"); A(f"s_cbranch_scc0 {L('qrole')}")
    vm0 = list(A.vm); lg0 = list(A.lg)
    role_z(A, L)
    vmz = list(A.vm)
    A(f"s_branch {L('p2')}")
    A.label(L('qrole')); A.vm = list(vm0); A.lg = list(lg0)
    role_q(A, L)
    vmj = list(A.vm)
    assert vmj[-21:] == vmz[-21:], (vmj, vmz)
    vmj = vmj[-21:] if len(vmj) >= len(vmz) else vmz
    A.label(L('p2')); A.vm = vmj; A.lg = []
    wl = phase2_tail(A, L)
    phase3(A, L, wl)
    if Stamps.enabled:
        A.raw("  s_waitcnt vmcnt(0)")
        if os.environ.get('ENDST'): Stamps.mark(A, 15)
    A.label(L('fin'))
    if os.environ.get('DBGOUT'):
        A.raw("  s_waitcnt vmcnt(0) lgkmcnt(0)")
        A.raw(f"  s_cmp_lg_u32 s2, {os.environ['DBGOUT']}"); A.raw(f"  s_cbranch_scc1 {L('end')}"); A.raw("  s_cmp_lg_u32 s3, 0"); A.raw(f"  s_cbranch_scc1 {L('end')}")
        A.raw("  v_mov_b32 v250, 0")
        for k in range(1, 15):
            kk = k if k < 14 else 15
            A.raw(f"  s_sub_u32 s100, s{Stamps.reg(kk)}, s{Stamps.reg(0)}"); A.raw("  v_mov_b32 v251, s100")
            A.raw(f"  global_store_dword v250, v251, s[{S_DBG}:{S_DBG+1}] offset:{4*(k+1)}")
    else:
        Stamps.flush(A, 0, 16, S_WS)
    A.label(L('end'))
    A("s_endpgm")
    return A

if __name__ == "__main__":
    import sys, asmlib
    from build import assemble
    if len(sys.argv) > 2 and sys.argv[2].startswith('stamp'): asmlib.Stamps.enabled = True
    if len(sys.argv) > 2 and sys.argv[2] == 'stampcyc': asmlib.Stamps.op = 's_memtime'
    t = gen_mega().text(); sz = len([l for l in t.split('\n') if l.startswith('  ')])*8
    A = gen_mega(code_bytes=sz)
    if os.environ.get('FINAL'):
        from build import assemble_single
        open(sys.argv[1], 'w').write(assemble_single(dict(name="gated_mix__sliding_local_dilated__mixer_gmlp__prompt_kernel", text=A.text(), grid=256, block=256, lds=163840, vgpr=512, accum=256)))
    else:
        open(sys.argv[1], 'w').write(assemble([dict(name="mega_kernel", text=A.text(), grid=256, block=256, lds=163840, vgpr=512, accum=256)]))
    print("nops", A.nops_inserted, "est bytes", sz)
```

```python
S, D, F, FH = 2048, 448, 1792, 896
WS_Z2F = 0
WS_Z1F = 0x380000
WS_AF  = 0x700000
WS_WF  = 0xC80000
WS_GATE= 0xDB4000
WS_LNP = 0xDB6000
WS_END = 0xDD6000
KA_AX, KA_WQKV, KA_WO, KA_BX, KA_WIN, KA_WSP, KA_BSP, KA_WOUT, KA_GW, KA_OUT, KA_DBG, KA_WS = [8*i for i in range(12)]
def trow(TT, i):
    return 32*(TT >> 1) + 8*(i >> 2) + 4*(TT & 1) + (i & 3)
def dslot(g, e):
    return 4*g + e if e < 4 else 16 + 4*g + (e-4)

WS_F0 = 0xDD8000
WS_F1 = 0xDDA000
WS_F2 = 0xDDC000
WS_F3 = 0xDDE000
WS_END = 0xDE0000

FS = 4352
WS_F0 = 0xE20000
WS_F1Z = 0xE40000
WS_F1Q = 0xE60000
WS_F2 = 0xE80000
WS_F3 = 0xEC0000
WS_END2 = 0xF00000

import os as _os
_B = int(_os.environ.get('WSBASE', '0'), 0)
if _B:
    WS_Z2F += _B; WS_Z1F += _B; WS_AF += _B; WS_WF += _B; WS_GATE += _B; WS_LNP += _B
    WS_F0 += _B; WS_F1Z += _B; WS_F1Q += _B; WS_F2 += _B; WS_F3 += _B
```

```python
from asmlib import *
from layout import *
from k1z import hexf, gelu_pairs, GELU_C1, GELU_C2
import os
PROFILE = os.environ.get('PROFILE', 'all')
SLEEP = int(os.environ.get('SLEEP', '2'))
NT = 'nt ' if os.environ.get('NTW') == '1' else ''
NTA = 'nt ' if os.environ.get('NTA') == '1' else ''
def ST(A, k):
    if PROFILE == 'all':
        if isinstance(k, int): Stamps.mark(A, k)
    elif PROFILE == 'p1':
        if isinstance(k, str): return
        if isinstance(k, int) and k in (0, 1, 2): Stamps.mark(A, k)
        elif isinstance(k, int) and k == 3: Stamps.mark(A, 10)
        elif isinstance(k, int) and k == 4: Stamps.mark(A, 11)
        elif isinstance(k, tuple) and k[0] == 'g': Stamps.mark(A, 3 + k[1])
        elif isinstance(k, int) and k in (5, 6, 7, 8): Stamps.mark(A, 7 + k)
    elif PROFILE == 'p9':
        m = {0: 0, 3: 1, 'gelu1': 2, 'stat1': 3, 4: 4, 'w2': 5, 5: 6, 7: 7, 'lnq': 8, 'comb': 9, 'norm': 10, 'pubw': 11, 6: 12, 9: 13, 10: 14, 8: 15}
        if k in m: Stamps.mark(A, m[k])
    elif PROFILE == 'p8':
        if k == 0: Stamps.mark(A, 0)
        elif isinstance(k, tuple) and k[0] == 'gs' and k[1] in (2, 3): Stamps.mark(A, 1 + (k[1]-2)*6 + k[2])
    elif PROFILE == 'p7':
        m = {0: 0, 11: 1, 'red_w': 2, 'red_b': 3, 'red_r': 4, 'hcomp': 5, 12: 6, 'hack': 7, 13: 8, 'opart': 9, 14: 10, 'ah0': 11, 'ahN': 12, 'p3red': 13, 'p3st': 14}
        if k in m: Stamps.mark(A, m[k])
    elif PROFILE == 'p6':
        m = {0: 0, 'karg': 1, 'tkb': 2, 'tick': 3, 'rsetup': 4, 1: 5, 2: 6, ('g', 0): 7, ('g', 1): 8, ('g', 2): 9, ('g', 3): 10, 3: 11}
        if k in m: Stamps.mark(A, m[k])
    elif PROFILE == 'p5':
        if k == 0: Stamps.mark(A, 0)
        elif k == 10: Stamps.mark(A, 1)
        elif isinstance(k, tuple) and k[0] == 'kk' and k[1] in (0,1,2,3,4,5,6,8,10,12,14,15): Stamps.mark(A, 2 + (0,1,2,3,4,5,6,8,10,12,14,15).index(k[1]))
        elif k == 11: Stamps.mark(A, 14)
    elif PROFILE == 'p4':
        m = {0: 0, 3: 1, 4: 2, 'w2': 3, ('au', 0): 4, ('au', 1): 5, ('au', 2): 6, ('au', 3): 7, ('au', 4): 8, ('au', 5): 9, ('au', 6): 10, ('au', 7): 11, 5: 12, 7: 13, 6: 14}
        if k in m: Stamps.mark(A, m[k])
    elif PROFILE == 'p3':
        m = {0: 0, 3: 1, 4: 2, 5: 3, 6: 4, 7: 5, 'lnq': 6, 'norm': 7, 'pubw': 8, 'sig': 9, 8: 10, 10: 11, 11: 12, 'w2': 13, 'st0': 14, 'st3': 15}
        if k in m: Stamps.mark(A, m[k])
    elif PROFILE == 'p2':
        m = {0: 0, 3: 1, 4: 2, 8: 13, 10: 14, 'z1in': 3, 'z1out': 11, 'z1epi': 12, 11: 15}
        if isinstance(k, tuple) and k[0] == 'z': Stamps.mark(A, 4 + k[1])
        elif k in m: Stamps.mark(A, m[k])

S_X, S_WQKV, S_WO, S_WIN, S_WSP, S_BSP, S_WOUT = 36, 38, 40, 44, 46, 48, 50
S_GW, S_OUT, S_DBG, S_WS = 52, 54, 56, 58
S_RB, S_CB, S_RB2 = 20, 21, 22
SRD_A = 60
OOB = 0x7fff0000
C_LN, C_ZD, C_QD, C_HD = 0, 16, 24, 32

def srd_from(A, d, ptr, off_sreg, nbytes):
    if off_sreg is None:
        A(f"s_mov_b32 s{d}, s{ptr}"); A(f"s_and_b32 s{d+1}, s{ptr+1}, 0xffff")
    else:
        A(f"s_add_u32 s{d}, s{ptr}, s{off_sreg}"); A(f"s_addc_u32 s{d+1}, s{ptr+1}, 0"); A(f"s_and_b32 s{d+1}, s{d+1}, 0xffff")
    A(f"s_mov_b32 s{d+2}, {nbytes}"); A(f"s_mov_b32 s{d+3}, 0x20000")

S_TAG = 76
def tag_publish(A, L):
    A.raw("  s_cmp_lg_u32 s2, 0"); A.raw(f"  s_cbranch_scc1 {L('notag')}")
    A.raw("  s_memrealtime s[30:31]"); A.raw("  s_waitcnt lgkmcnt(0)"); A.raw("  s_or_b32 s30, s30, 1")
    A.raw("  v_mov_b32 v60, s30"); A.raw("  v_mov_b32 v61, s31"); A.raw("  v_mov_b32 v62, 16")
    A.raw("  s_mov_b64 s[34:35], exec"); A.raw("  s_mov_b64 exec, 1")
    A.raw(f"  global_store_dwordx2 v62, v[60:61], s[{S_DBG}:{S_DBG+1}] sc1")
    A.raw("  s_mov_b64 exec, s[34:35]")
    A.raw(f"{L('notag')}:")
def tag_issue(A):
    A("v_mov_b32 v9, 16"); A(f"global_load_dwordx2 v[10:11], v9, s[{S_DBG}:{S_DBG+1}] sc1", tag='tagld')
def tag_take(A, L):
    A.wait_vm('tagld')
    A(f"v_readfirstlane_b32 s{S_TAG}, v10"); A(f"v_readfirstlane_b32 s{S_TAG+1}, v11")
    A(f"s_cmp_lg_u32 s{S_TAG}, 0"); A(f"s_cbranch_scc1 {L('tagd')}")
    A.raw("  s_mov_b32 s33, 0")
    A.raw(f"{L('tagl')}:")
    A.raw(f"  global_load_dwordx2 v[10:11], v9, s[{S_DBG}:{S_DBG+1}] sc1")
    A.raw("  s_add_u32 s33, s33, 1")
    A.raw("  s_waitcnt vmcnt(0)")
    A.raw(f"  v_readfirstlane_b32 s{S_TAG}, v10"); A.raw(f"  v_readfirstlane_b32 s{S_TAG+1}, v11")
    A.raw("  s_nop 1")
    A.raw(f"  s_cmp_lg_u32 s{S_TAG}, 0"); A.raw(f"  s_cbranch_scc1 {L('tagd')}")
    A.raw("  s_cmp_lt_u32 s33, 0x20000"); A.raw(f"  s_cbranch_scc1 {L('tagl')}")
    A.label(L('tagd'))

def signal(A, L, tag, off_sreg, vtmp=16):
    A("s_cmp_lg_u32 s3, 0"); A(f"s_cbranch_scc1 {L(tag)}")
    A.raw(f"  v_mov_b32 v{vtmp+2}, s{off_sreg}"); A.raw(f"  v_mov_b32 v{vtmp}, s{S_TAG}"); A.raw(f"  v_mov_b32 v{vtmp+1}, s{S_TAG+1}")
    A.raw("  s_mov_b64 s[34:35], exec"); A.raw("  s_mov_b64 exec, 1")
    A.raw(f"  global_store_dwordx2 v{vtmp+2}, v[{vtmp}:{vtmp+1}], s[{S_WS}:{S_WS+1}] sc1")
    A.raw("  s_mov_b64 exec, s[34:35]")
    A.label(L(tag))

def poll(A, L, tag, vaddr, nlanes):
    A("s_cmp_lg_u32 s3, 0"); A(f"s_cbranch_scc1 {L(tag+'_done')}")
    A.raw("  s_mov_b32 s33, 0"); A.raw("  s_mov_b64 s[34:35], exec"); A.raw(f"  s_mov_b64 exec, {hex((1 << nlanes) - 1) if nlanes < 64 else -1}")
    A.label(L(tag+'_loop'))
    A.raw(f"  global_load_dwordx2 v[18:19], v{vaddr}, s[{S_WS}:{S_WS+1}] sc1")
    A.raw("  s_add_u32 s33, s33, 1")
    A.raw("  s_waitcnt vmcnt(0)")
    A.raw(f"  v_xor_b32 v18, s{S_TAG}, v18"); A.raw(f"  v_xor_b32 v19, s{S_TAG+1}, v19"); A.raw("  v_or_b32 v18, v18, v19")
    A.raw("  v_cmp_eq_u32 vcc, 0, v18")
    A.raw("  s_nop 1")
    A.raw("  s_cmp_eq_u64 vcc, exec")
    A.raw(f"  s_cbranch_scc1 {L(tag+'_out')}")
    A.raw(f"  s_sleep {SLEEP}")
    A.raw("  s_cmp_lt_u32 s33, 0x20000")
    A.raw(f"  s_cbranch_scc1 {L(tag+'_loop')}")
    A.label(L(tag+'_out'))
    A.raw("  s_mov_b64 exec, s[34:35]")
    A.label(L(tag+'_done'))
    A("s_barrier")

def poll_wave(A, L, tag, vaddr, reset=True):
    A.raw("  s_mov_b32 s33, 0")
    A.label(L(tag+'_loop'))
    A.raw(f"  global_load_dwordx2 v[18:19], v{vaddr}, s[{S_WS}:{S_WS+1}] sc1")
    A.raw("  s_add_u32 s33, s33, 1")
    A.raw("  s_waitcnt vmcnt(0)")
    A.raw(f"  v_xor_b32 v18, s{S_TAG}, v18"); A.raw(f"  v_xor_b32 v19, s{S_TAG+1}, v19"); A.raw("  v_or_b32 v18, v18, v19")
    A.raw("  v_cmp_eq_u32 vcc, 0, v18")
    A.raw("  s_nop 1")
    A.raw("  s_cmp_eq_u64 vcc, exec")
    A.raw(f"  s_cbranch_scc1 {L(tag+'_out')}")
    A.raw(f"  s_sleep {SLEEP}")
    A.raw("  s_cmp_lt_u32 s33, 0x20000")
    A.raw(f"  s_cbranch_scc1 {L(tag+'_loop')}")
    A.label(L(tag+'_out'))
    if reset: A.vm = []

class AService:
    VD, VR, VL = 232, 236, 240
    def __init__(self, A): self.A = A
    def setup(self):
        A = self.A
        A(f"s_lshl_b32 s23, s{S_RB2}, 18"); srd_from(A, SRD_A, S_WSP, 23, 64*4096)
        A("v_lshrrev_b32 v16, 3, v12"); A("v_and_b32 v17, 7, v12"); A("v_and_b32 v18, 3, v16"); A("v_xor_b32 v17, v17, v18")
        A("v_lshlrev_b32 v17, 4, v17"); A("v_lshl_add_u32 v17, v16, 12, v17")
        for uu in range(4):
            if uu & 1: A(f"v_xor_b32 v{self.VD+uu}, 64, v17")
            else: A(f"v_mov_b32 v{self.VD+uu}, v17")
            if uu: A(f"v_add_u32 v{self.VD+uu}, {uu*(32768-1024)}, v{self.VD+uu}")
        A("v_lshrrev_b32 v16, 2, v13"); A("v_lshlrev_b32 v16, 3, v16"); A("v_and_b32 v17, 3, v13"); A("v_add_u32 v16, v16, v17")
        A("v_and_b32 v17, 7, v13"); A("v_xor_b32 v17, v17, v14"); A("v_lshlrev_b32 v17, 4, v17"); A(f"v_lshl_add_u32 v{self.VL}, v16, 7, v17")
        A("s_lshr_b32 s23, s3, 1"); A("s_lshl_b32 s68, s23, 17"); A("s_lshl_b32 s23, s3, 10"); A("s_add_u32 s68, s68, s23")
        A("s_xor_b32 s69, s68, 0x20000")
    BASES = {'A': (74, 236), 'B': (75, 241)}
    def base(self, name, per_wave, start):
        A = self.A; sr, vr = self.BASES[name]
        A(f"s_mul_i32 s{sr}, s3, {per_wave}"); A(f"s_add_u32 s{sr}, s{sr}, {start}")
        A("s_and_b32 s23, s3, 1"); A("s_lshl_b32 s23, s23, 9"); A(f"s_add_u32 s23, s23, s{sr}")
        for b in range(2):
            if b: A("s_xor_b32 s23, s23, 512")
            A(f"v_add_u32 v{vr+2*b}, s23, v{self.VL}"); A(f"v_xor_b32 v{vr+2*b+1}, 64, v{vr+2*b}")
    def dma(self, n, slot):
        ss, gt = n >> 1, n & 1; sr, vr = self.BASES[slot[0]]
        if os.environ.get('ROT', '0') == '1':
            so = [(f"s_add_u32 s70, s{S_RB2}, {ss}", None), ("s_and_b32 s70, s70, 7", None), ("s_lshl_b32 s70, s70, 7", None), (f"s_add_u32 s70, s70, s{68+gt}", None)]
        else: so = [(f"s_add_u32 s70, s{68+gt}, {ss*128}", None)]
        return [(f"s_add_u32 m0, s{sr}, {slot[1]*4096}", None)] + so + \
               [(f"buffer_load_dwordx4 v{self.VD+uu}, s[{SRD_A}:{SRD_A+3}], s70 offen offset:{uu*1024} {NTA}lds", ('Au', n)) for uu in range(4)]
    def read(self, n, slot):
        ss, gt = n >> 1, n & 1; sr, vr = self.BASES[slot[0]]
        for b in range(2):
            for h in range(2):
                tau = 2*gt + b
                self.A(f"ds_read_b128 {a((ss*8 + h*4 + tau)*4, 4)}, v{vr+2*b+h} offset:{slot[1]*4096}", tag=('Ar', n))
    def emit_dma(self, units, slots):
        for n, sl in zip(units, slots):
            for t, tg in self.dma(n, sl): self.A(t, tag=tg)
    def bg_dma(self, units, slots):
        for n, sl in zip(units, slots): self.A.bg += self.dma(n, sl)
    def wait_read(self, units, slots):
        self.A.wait_vm(('Au', units[-1]))
        for n, sl in zip(units, slots): self.read(n, sl)

class WFJob:
    def __init__(self, A): self.A = A
    def setup(self, slot_sreg, slot_off):
        A = self.A
        A(f"s_lshl_b32 s23, s{S_RB}, 3"); A(f"s_add_u32 s23, s23, s{S_CB}"); A("s_lshl_b32 s23, s23, 2"); A("s_add_u32 s23, s23, s3")
        A("s_min_u32 s24, s23, 307")
        A("s_mul_i32 s26, s24, 1490"); A("s_lshr_b32 s26, s26, 16")
        A("s_mul_i32 s27, s26, 44"); A("s_sub_u32 s27, s24, s27")
        A("s_mul_i32 s28, s27, 28"); A("s_mul_i32 s29, s27, 32"); A("s_sub_u32 s29, s29, 512")
        A("s_cmp_lt_u32 s27, 16")
        A("s_cselect_b32 s28, s28, s29")
        A(f"s_cselect_b32 s8, s{S_WO}, s{S_WOUT}"); A(f"s_cselect_b32 s9, s{S_WO+1}, s{S_WOUT+1}"); A("s_cselect_b32 s29, 28, 32")
        A("s_and_b32 s9, s9, 0xffff"); A("s_add_u32 s29, s29, s28"); A("s_mul_i32 s10, s29, 896"); A("s_mov_b32 s11, 0x20000")
        A("s_mul_i32 s28, s28, 896"); A("s_lshl_b32 s26, s26, 7"); A("s_add_u32 s13, s28, s26")
        A("s_lshl_b32 s14, s23, 12")
        A("s_cmp_ge_u32 s23, 308"); A("s_cselect_b32 s10, 0, s10")
        A(f"s_add_u32 s12, s{slot_sreg}, {slot_off}")
        A("v_lshrrev_b32 v16, 3, v12"); A("v_and_b32 v17, 7, v12"); A("v_bfe_u32 v18, v16, 1, 1"); A("v_lshlrev_b32 v18, 2, v18"); A("v_xor_b32 v17, v17, v18")
        A("v_mul_u32_u24 v16, 896, v16"); A("v_lshl_add_u32 v40, v17, 4, v16")
        for uu in range(1, 4): A(f"v_add_u32 v{40+uu}, {uu*(8*896-1024)}, v40")
        A("v_lshrrev_b32 v16, 2, v13"); A("v_lshl_add_u32 v16, v14, 2, v16"); A("v_lshlrev_b32 v16, 7, v16")
        A("v_and_b32 v17, 3, v13"); A("v_bfe_u32 v18, v13, 3, 1"); A("v_lshlrev_b32 v18, 2, v18"); A("v_xor_b32 v17, v17, v18"); A("v_lshl_add_u32 v16, v17, 4, v16")
        A("v_add_u32 v44, s12, v16"); A("v_xor_b32 v45, 64, v44")
    def dma(self):
        return [("s_mov_b32 m0, s12", None)] + [(f"buffer_load_dwordx4 v{40+uu}, s[8:11], s13 offen offset:{uu*1024} lds", 'wfj') for uu in range(4)]
    def finish(self):
        A = self.A
        A.wait_vm('wfj')
        for uu in range(4):
            for sec in range(2):
                A(f"ds_read_b64_tr_b16 {v(40+4*uu+2*sec,2)}, v{44 + (uu >> 1)} offset:{8*(uu & 1) + 2048*sec}", tag='wfr') if False else None
        for uu in range(4):
            for sec in range(2):
                A(f"ds_read_b64_tr_b16 {v(48+4*uu+2*sec,2)}, v{44 + (uu >> 1)} offset:{8*(uu & 1) + 2048*sec}", tag='wfr')
        A(f"s_mov_b32 s23, {WS_WF}"); srd_from(A, 8, S_WS, 23, 1232*1024)
        A("v_lshlrev_b32 v40, 4, v12")
        A("s_cmp_ge_u32 s14, 1261568"); A("s_cselect_b32 s10, 0, s10")
        A.wait_lg('wfr')
        for uu in range(4): A(f"buffer_store_dwordx4 {v(48+4*uu,4)}, v40, s[8:11], s14 offen offset:{uu*1024} sc1", tag='pubst')

def touch_lines(A, ptr, vaddr, n, step, vdst=56):
    for k in range(n):
        A(f"global_load_dword v{vdst}, v{vaddr}, s[{ptr}:{ptr+1}]", tag='touch')
        if k + 1 < n: A(f"v_add_u32 v{vaddr}, {step}, v{vaddr}")

def touch_z1w(A):
    A(f"s_and_b32 s27, s{S_RB}, 3"); A("s_lshl_b32 s27, s27, 2"); A(f"s_and_b32 s28, s{S_CB}, 3"); A("s_add_u32 s27, s27, s28"); A("s_lshl_b32 s27, s27, 2"); A("s_add_u32 s27, s27, s3")
    A(f"s_mul_i32 s27, s27, {7*3584}"); A(f"s_lshr_b32 s28, s{S_CB}, 2"); A("s_mul_i32 s28, s28, 896"); A("s_add_u32 s27, s27, s28")
    A("v_lshrrev_b32 v57, 3, v12"); A("v_min_u32 v57, 6, v57"); A("v_mul_u32_u24 v57, 3584, v57"); A("v_and_b32 v58, 7, v12"); A("v_min_u32 v58, 6, v58")
    A("v_lshl_add_u32 v57, v58, 7, v57"); A("v_add_u32 v57, s27, v57")
    A(f"global_load_dword v56, v57, s[{S_WIN}:{S_WIN+1}]", tag='touch')

def prefetch_wsp_list(kind=None):
    if (kind or os.environ.get('PREF', 'chip')) in ('chip', 'both') and kind != 'die':
        return [(f"s_lshl_b32 s75, s{S_RB2}, 18", None), (f"s_lshl_b32 s100, s{S_CB}, 15", None), ("s_add_u32 s75, s75, s100", None),
                ("s_lshl_b32 s100, s3, 13", None), ("s_add_u32 s75, s75, s100", None),
                ("v_lshlrev_b32 v60, 7, v12", None), ("v_add_u32 v60, s75, v60", None),
                (f"global_load_dword v56, v60, s[{S_WSP}:{S_WSP+1}]", 'touch')]
    return [(f"s_lshl_b32 s75, s{S_RB2}, 18", None), (f"s_and_b32 s100, s{S_CB}, 3", None), ("s_lshl_b32 s100, s100, 16", None), ("s_add_u32 s75, s75, s100", None),
            ("s_lshl_b32 s100, s3, 14", None), ("s_add_u32 s75, s75, s100", None),
            ("v_lshlrev_b32 v60, 7, v12", None), ("v_add_u32 v60, s75, v60", None),
            (f"global_load_dword v56, v60, s[{S_WSP}:{S_WSP+1}]", 'touch'), ("v_add_u32 v60, 0x2000, v60", None),
            (f"global_load_dword v56, v60, s[{S_WSP}:{S_WSP+1}]", 'touch')]
def touch_small(A):
    A(f"s_lshl_b32 s27, s{S_RB}, 3"); A(f"s_add_u32 s27, s27, s{S_CB}"); A("s_lshl_b32 s27, s27, 2"); A("s_add_u32 s27, s27, s3"); A("s_min_u32 s27, s27, 447")
    A("s_mul_i32 s28, s27, 1792"); A("v_min_u32 v57, 13, v12"); A("v_lshlrev_b32 v57, 7, v57"); A("v_add_u32 v58, s28, v57")
    A(f"global_load_dword v56, v58, s[{S_WOUT}:{S_WOUT+1}]", tag='touch')
    A("s_mul_i32 s28, s27, 896"); A("v_min_u32 v57, 6, v12"); A("v_lshlrev_b32 v57, 7, v57"); A("v_add_u32 v58, s28, v57")
    A(f"global_load_dword v56, v58, s[{S_WO}:{S_WO+1}]", tag='touch')

def wdma_setup(A, V):
    A("v_lshrrev_b32 v15, 1, v13"); A("v_xor_b32 v15, v15, v14")
    A("v_and_b32 v16, 1, v13"); A("v_lshlrev_b32 v16, 4, v16")
    A("v_mul_u32_u24 v17, 3584, v14"); A("v_add_u32 v16, v16, v17"); A(f"v_mov_b32 v18, {OOB}")
    for uu in range(4):
        if uu == 2: A("v_xor_b32 v15, 4, v15")
        A(f"v_lshl_add_u32 v{V+uu}, v15, 5, v16")
        if uu: A(f"v_add_u32 v{V+uu}, {uu*(4*3584-1024)}, v{V+uu}")
        A("v_cmp_eq_u32 vcc, 7, v15"); A(f"v_cndmask_b32 v{V+uu}, v{V+uu}, v18, vcc")
def wread_setup(A, V, base):
    A("v_lshrrev_b32 v15, 2, v13"); A("v_lshl_add_u32 v16, v14, 3, v15"); A("v_lshlrev_b32 v16, 8, v16")
    A("v_and_b32 v17, 3, v13"); A("v_lshl_add_u32 v16, v17, 3, v16"); A(f"v_add_u32 v16, {base}, v16")
    A("v_and_b32 v17, 1, v14"); A("v_lshl_or_b32 v17, v17, 2, v15")
    for j in range(7):
        A(f"v_xor_b32 v18, {j}, v17"); A(f"v_lshl_add_u32 v{V+j}, v18, 5, v16")

GC = dict(VC1=32, VC2=34, VONE=36)
def gelu_consts(A):
    for r, val in ((32, GELU_C1), (34, GELU_C2), (36, 1.0)):
        A(f"v_mov_b32 v{r}, {hexf(val)}"); A(f"v_mov_b32 v{r+1}, {hexf(val)}")

class Z1Tile:
    WB, XB, ACC, GACC = 120, 176, 192, 220
    VW = 24
    def __init__(self, A, L, ring_base, vdma, sW):
        self.A, self.L, self.ring_base, self.vdma, self.sW = A, L, ring_base, vdma, sW
    def dma_w_list(self, c):
        st = (c + 1) % 3
        return [(f"s_add_u32 m0, s71, {self.ring_base + st*16384}", None), (f"s_add_u32 s23, s{self.sW}, {64*c*3584}", None)] + \
               [(f"buffer_load_dwordx4 v{self.vdma+uu}, s[12:15], s23 offen offset:{uu*1024} lds", ('w1', c)) for uu in range(4)]
    def dma_w(self, c):
        for t, tg in self.dma_w_list(c): self.A(t, tag=tg)
    def reads(self, c, h, buf, xoff):
        out = []
        st = (c + 1) % 3
        out.append((f"ds_read_b128 {v(self.XB+buf*8,4)}, v{20+h} offset:{xoff(c)}", ('zx', c, h)))
        out.append((f"ds_read_b128 {v(self.XB+buf*8+4,4)}, v31 offset:{(2*c+h)*64}", ('zx', c, h)))
        for j in range(7):
            for sec in range(2):
                out.append((f"ds_read_b64_tr_b16 {v(self.WB+buf*28+j*4+2*sec,2)}, v{self.VW+j} offset:{st*16384 + h*8192 + sec*1024}", ('zw', c, h, j)))
        return out
    def run(self, xoff, xwait, hooks):
        A = self.A
        ST(A, 'z1in')
        A.wait_vm([('w1', 0)] + xwait(0)); A.wait_lg(); A("s_barrier")
        if ('pre',) in hooks: hooks[('pre',)]()
        for t, tg in self.reads(0, 0, 0, xoff): A(t, tag=tg)
        for c in range(7):
            for h in range(2):
                kk = 2*c + h; buf = kk & 1
                todo = []
                if h == 0: todo = self.reads(c, 1, buf ^ 1, xoff)
                else:
                    if c < 6:
                        A.wait_vm([('w1', c+1)] + xwait(c+1))
                        A.wait_lg(); A("s_barrier"); ST(A, ('z', c))
                        if c + 3 <= 6: self.dma_w(c + 3)
                        todo = self.reads(c+1, 0, buf ^ 1, xoff)
                if (c, h) in hooks: hooks[(c, h)]()
                A.wait_lg([('zx', c, h)])
                d = v(self.GACC, 4)
                A(f"v_mfma_f32_16x16x32_bf16 {d}, {v(self.XB+buf*8+4,4)}, {v(self.XB+buf*8,4)}, {d if kk else 0}")
                for _ in range(2):
                    if todo: t, tg = todo.pop(0); A(t, tag=tg)
                for j in range(7):
                    A.wait_lg([('zw', c, h, j)])
                    d = v(self.ACC + 4*j, 4)
                    A(f"v_mfma_f32_16x16x32_bf16 {d}, {v(self.WB+buf*28+j*4,4)}, {v(self.XB+buf*8,4)}, {d if kk else 0}")
                    for _ in range(2):
                        if todo: t, tg = todo.pop(0); A(t, tag=tg)
    def epilogue(self, svc):
        A = self.A
        ST(A, 'z1out')
        G = self.GACC
        A(f"v_mul_f32 v{G}, {hexf(1.4426950408889634)}, v{G}")
        A(f"v_exp_f32 v{G}, v{G}"); A(f"v_add_f32 v{G}, 1.0, v{G}"); A(f"v_rcp_f32 v{G}, v{G}")
        A("v_lshlrev_b32 v16, 2, v13")
        A(f"ds_bpermute_b32 v{G+1}, v16, v{G}", tag='gb')
        regs = [self.ACC + 2*p for p in range(14)]
        for q in range(0, 14, 4):
            gelu_pairs(A, regs[q:q+4], 224, 32, 34, 36)
            svc.step()
        A.wait_lg('gb')
        for p in range(14):
            r = self.ACC + 2*p
            A(f"v_mul_f32 v{r}, v{r}, v{G+1}"); A(f"v_mul_f32 v{r+1}, v{r+1}, v{G+1}")
            A(f"v_cvt_pk_bf16_f32 v{240+p}, v{r}, v{r+1}")
        ST(A, 'z1epi')

L_TICKET = 163584
L_AST, L_GW, L_ZR, L_GL, L_RING = 58368, 107520, 108544, 160768, 114688
XH = 57344

def load_gw_tables(A, gwb, zrb, tag):
    A(f"s_mov_b32 s23, 896"); srd_from(A, 16, S_GW, None, 896)
    A("v_lshlrev_b32 v16, 4, v12"); A(f"v_mov_b32 v18, {OOB}")
    A(f"s_mov_b32 m0, {gwb}"); A("buffer_load_dwordx4 v16, s[16:19], 0 offen lds", tag=tag)
    A(f"s_mov_b32 m0, {zrb}"); A("buffer_load_dwordx4 v18, s[16:19], 0 offen lds", tag=tag)
def gw_addr(A, vreg, gwb, zrb):
    A("v_cmp_eq_u32 vcc, 0, v13"); A(f"v_mov_b32 v16, {zrb}"); A(f"v_mov_b32 v17, {gwb}"); A(f"v_cndmask_b32 v{vreg}, v16, v17, vcc")
    A(f"v_lshl_add_u32 v{vreg}, v14, 4, v{vreg}")
def z1_xaddr(A):
    A("v_lshrrev_b32 v15, 2, v13"); A("v_lshlrev_b32 v15, 3, v15"); A("v_and_b32 v16, 3, v13"); A("v_add_u32 v15, v15, v16")
    A("v_and_b32 v16, 7, v13"); A("v_xor_b32 v16, v16, v14"); A("v_lshlrev_b32 v16, 4, v16"); A("v_lshl_add_u32 v16, v15, 7, v16")
    A("s_lshr_b32 s23, s3, 1"); A("s_lshl_b32 s23, s23, 12"); A("s_and_b32 s24, s3, 1"); A("s_lshl_b32 s24, s24, 9"); A("s_add_u32 s23, s23, s24")
    A("v_add_u32 v20, s23, v16"); A("v_xor_b32 v21, 64, v20")
def load_bias(A):
    A(f"s_lshl_b32 s23, s{S_RB2}, 6"); A("s_lshr_b32 s24, s3, 1"); A("s_lshl_b32 s24, s24, 5"); A("s_add_u32 s23, s23, s24")
    A("s_and_b32 s24, s3, 1"); A("s_lshl_b32 s24, s24, 2"); A("s_add_u32 s23, s23, s24")
    A("v_lshrrev_b32 v15, 2, v13"); A("v_lshlrev_b32 v15, 3, v15"); A("v_and_b32 v16, 3, v13"); A("v_add_u32 v15, v15, v16")
    A("v_add_u32 v15, s23, v15"); A("v_lshlrev_b32 v15, 1, v15")
    srd_from(A, 16, S_BSP, None, S*2)
    A("buffer_load_ushort v254, v15, s[16:19], 0 offen", tag='bias')

def role_z(A, L):
    ACC1, ACC2 = 120, 64
    acc1 = lambda j, aa: ACC1 + (j*2+aa)*4
    acc2 = lambda j, aa: ACC2 + (j*2+aa)*4
    WB = 176
    wf = lambda buf, j: WB + buf*28 + j*4
    xf = lambda kk, aa: 144 + (kk*2+aa)*4
    A("v_lshrrev_b32 v15, 3, v12"); A("v_and_b32 v16, 7, v12"); A("v_and_b32 v17, 3, v15"); A("v_xor_b32 v16, v16, v17"); A("v_lshlrev_b32 v16, 4, v16")
    A("v_mul_u32_u24 v17, 896, v15")
    for uu in range(4):
        if uu & 1: A("v_xor_b32 v18, 64, v16"); A(f"v_add_u32 v{1+uu}, v18, v17")
        else: A(f"v_add_u32 v{1+uu}, v16, v17")
        if uu: A(f"v_add_u32 v{1+uu}, {uu*(8*896-1024)}, v{1+uu}")
    wdma_setup(A, 5)
    A(f"s_lshl_b32 s72, s{S_RB}, 2"); A("s_add_u32 s72, s72, s3")
    A(f"s_mul_i32 s23, s72, {32*896}"); srd_from(A, 8, S_X, 23, 32*896)
    srd_from(A, 12, S_WIN, None, 448*3584)
    A(f"s_mul_i32 s25, s3, {16*3584}"); A(f"s_mul_i32 s23, s{S_CB}, 224"); A("s_add_u32 s25, s25, s23"); A("s_add_u32 s24, s25, 1792")
    A("s_lshl_b32 s71, s3, 12")
    def dma_x(c):
        return [(f"s_add_u32 m0, s71, {c*16384}", None), (f"s_mov_b32 s23, {c*128}", None)] + \
               [(f"buffer_load_dwordx4 v{1+uu}, s[8:11], s23 offen offset:{uu*1024} {NT}lds", ('x', c)) for uu in range(4)]
    def dma_w(c, which=1, sreg=23):
        base = (L_RING + (c % 3)*16384) if which == 1 else c*16384
        return [(f"s_add_u32 m0, s71, {base}", None), (f"s_add_u32 s{sreg}, s{24 if which == 1 else 25}, {64*c*3584}", None)] + \
               [(f"buffer_load_dwordx4 v{5+uu}, s[12:15], s{sreg} offen offset:{uu*1024} {NT}lds", ('w', which, c)) for uu in range(4)]
    def emit(lst):
        for t, tg in lst: A(t, tag=tg)
    ST(A, 'rsetup')
    for c in range(2): emit(dma_w(c)); emit(dma_x(c))
    ST(A, 1)
    A("v_lshrrev_b32 v15, 2, v13"); A("v_lshlrev_b32 v15, 3, v15"); A("v_and_b32 v16, 3, v13"); A("v_add_u32 v15, v15, v16")
    A("v_and_b32 v16, 7, v13"); A("v_xor_b32 v16, v16, v14"); A("v_lshlrev_b32 v16, 4, v16"); A("v_lshl_add_u32 v16, v15, 7, v16")
    A("v_add_u32 v20, s71, v16"); A("v_xor_b32 v21, 64, v20"); A("v_add_u32 v22, 0x10000, v20"); A("v_add_u32 v23, 0x10000, v21")
    wread_setup(A, 24, L_RING)
    gelu_consts(A)
    svc = AService(A)
    def reads_w(which, c, h, buf):
        out = []
        off = ((c % 3) if which == 1 else (c % 4))*16384 + h*8192
        for j in range(7):
            for sec in range(2):
                out.append((f"ds_read_b64_tr_b16 {v(wf(buf,j)+2*sec,2)}, v{24+j} offset:{off + sec*1024}", ('wf', which, c, h, j)))
        return out
    def reads_x(c):
        return [(f"ds_read_b128 {a(xf(2*c+h,aa),4)}, v{20 + h + (2 if c >= 4 else 0)} offset:{(c % 4)*16384 + aa*512}", ('xf', c, h)) for h in range(2) for aa in range(2)]
    A.wait_vm([('w', 1, 0), ('x', 0)]); A("s_barrier")
    ST(A, 2)
    emit(reads_x(0)); emit(reads_w(1, 0, 0, 0))
    for c in range(7):
        for h in range(2):
            kk = 2*c + h; buf = kk & 1
            todo = []; vq = []
            if h == 0:
                ST(A, ('gs', c, 0))
                todo = reads_w(1, c, 1, buf ^ 1)
                if c == 0: vq += dma_w(2)
                if c + 2 <= 6: vq += dma_x(c + 2)
            else:
                ST(A, ('gs', c, 1))
                if c < 6: A.wait_vm([('w', 1, c+1), ('x', c+1)])
                ST(A, ('gs', c, 2))
                A.wait_lg(); ST(A, ('gs', c, 3)); A("s_barrier"); ST(A, ('g', c)); ST(A, ('gs', c, 4))
                if c + 3 <= 6: vq += dma_w(c + 3)
                MODE = os.environ.get('W2MODE', 'epi')
                if MODE == 'loop':
                    for cc in {5: (0, 1, 2, 3), 6: (4, 5, 6)}.get(c, ()): vq += dma_w(cc, 2)
                elif c == 6:
                    for cc in range(7): A.bg += dma_w(cc, 2, 75)
                    if os.environ.get('PREF', 'chip') == 'both': A.bg += prefetch_wsp_list('die')
                    A.bg_every = int(os.environ.get('BGW2', '12'))
                if c < 6: todo = reads_w(1, c+1, 0, buf ^ 1)[:2] + reads_x(c+1) + reads_w(1, c+1, 0, buf ^ 1)[2:]
            A.wait_lg([('xf', c, h), ('wf', 1, c, h, 6)] if os.environ.get('W1', '1') == '1' else [('xf', c, h)])
            for j in range(7):
                A.wait_lg([('wf', 1, c, h, j)])
                for aa in range(2):
                    d = v(acc1(j,aa), 4)
                    A(f"v_mfma_f32_16x16x32_bf16 {d}, {a(xf(kk,aa),4)}, {v(wf(buf,j),4)}, {d if kk else 0}")
                    for _ in range(2):
                        if todo: t, tg = todo.pop(0); A(t, tag=tg)
                    if vq: t, tg = vq.pop(0); A(t, tag=tg)
            emit(todo); emit(vq)
            if c == 0 and h == 0 and os.environ.get('CHIPT', '1') != '1': A("global_load_dword v56, v61, s[30:31]", tag='touch'); A("global_load_dword v56, v62, s[30:31]", tag='touch')
            if c == 2 and h == 1 and (os.environ.get('CHIPT', '1') != '1' or os.environ.get('Z2ONLY', '0') == '1'): touch_z1w(A)
            if (c, h) == (int(os.environ.get('WSPC', '4')), 1):
                for t, tg in prefetch_wsp_list(): A(t, tag=tg)
    ST(A, 3)
    svc.setup(); svc.base('A', 12288, L_RING)
    TMP = 232 - 8 - 0
    TMP = 176
    regs = [ACC1 + 2*p for p in range(28)]
    for q in range(0, 28, 4): gelu_pairs(A, regs[q:q+4], TMP, 32, 34, 36)
    ST(A, 'gelu1')
    SUM, M2, PUB = 192, 200, 208
    for aa in range(2):
        for rp in range(2):
            d = SUM + aa*4 + rp*2
            A(f"v_pk_add_f32 {v(d,2)}, {v(acc1(0,aa)+2*rp,2)}, {v(acc1(1,aa)+2*rp,2)}")
            for j in range(2, 7): A(f"v_pk_add_f32 {v(d,2)}, {v(d,2)}, {v(acc1(j,aa)+2*rp,2)}")
    def dpp16(rs):
        for sh in (8, 4, 2, 1):
            for r in rs: A(f"v_add_f32_dpp v{r}, v{r}, v{r} row_ror:{sh} row_mask:0xf bank_mask:0xf")
    dpp16(range(SUM, SUM+8))
    A(f"v_mov_b32 v38, {hexf(1.0/112)}"); A(f"v_mov_b32 v39, {hexf(1.0/112)}")
    for p in range(4): A(f"v_pk_mul_f32 {v(SUM+2*p,2)}, {v(SUM+2*p,2)}, {v(38,2)}")
    for aa in range(2):
        for rp in range(2):
            d = M2 + aa*4 + rp*2; mreg = SUM + aa*4 + rp*2
            for j in range(7):
                t = TMP + 2*(j & 1)
                A(f"v_pk_add_f32 {v(t,2)}, {v(acc1(j,aa)+2*rp,2)}, {v(mreg,2)} neg_lo:[0,1] neg_hi:[0,1]")
                if j == 0: A(f"v_pk_mul_f32 {v(d,2)}, {v(t,2)}, {v(t,2)}")
                else: A(f"v_pk_fma_f32 {v(d,2)}, {v(t,2)}, {v(t,2)}, {v(d,2)}")
    dpp16(range(M2, M2+8))
    ST(A, 'stat1')
    A("v_and_b32 v16, 3, v13")
    for q in range(3): A(f"v_cmp_eq_u32 s[{26+2*q}:{27+2*q}], {q+1}, v16")
    for e, (base, odd) in enumerate(((SUM, 0), (M2, 0), (SUM, 1), (M2, 1))):
        A(f"v_mov_b32 v{PUB+e}, v{base+odd}")
        for q in range(3): A(f"v_cndmask_b32 v{PUB+e}, v{PUB+e}, v{base+2*(q+1)+odd}, s[{26+2*q}:{27+2*q}]")
    A(f"s_lshl_b32 s23, s{S_RB}, 3"); A(f"s_add_u32 s23, s23, s{S_CB}"); A("s_lshl_b32 s23, s23, 7")
    A("s_lshl_b32 s27, s3, 5"); A("s_add_u32 s23, s23, s27"); A("s_lshl_b32 s23, s23, 3")
    A(f"s_mov_b32 s27, {WS_LNP}"); srd_from(A, 16, S_WS, 27, 16*8*128*8)
    A("v_lshlrev_b32 v19, 6, v14"); A("v_lshl_add_u32 v19, v16, 4, v19")
    A("s_mov_b64 s[34:35], exec"); A("s_mov_b32 exec_lo, 0x000f000f"); A("s_mov_b32 exec_hi, 0x000f000f")
    A(f"buffer_store_dwordx4 {v(PUB,4)}, v19, s[16:19], s23 offen sc1", tag='lnp')
    A("s_mov_b64 exec, s[34:35]")
    A.bg_flush(); A.bg_every = 0
    tag_issue(A)
    ST(A, 4)
    Q, MB = 40, 216
    A.wait_vm([('w', 2, c) for c in range(7)]); A("s_barrier"); ST(A, 'w2')
    for j in range(7): A(f"v_subrev_u32 v{24+j}, {L_RING}, v{24+j}")
    emit(reads_w(2, 0, 0, 0))
    for c in range(7):
        for h in range(2):
            kk = 2*c + h; buf = kk & 1
            nxt = (c, 1) if h == 0 else ((c+1, 0) if c < 6 else None)
            if kk in (0, 2, 4): svc.bg_dma([kk // 2], [('A', kk // 2)]); A.bg_every = 3
            if kk in (7, 9, 11):
                n = (kk - 7) // 2
                svc.wait_read([n], [('A', n)])
            if kk in (8, 10, 12):
                n = (kk - 8) // 2
                A.wait_lg(('Ar', n)); svc.bg_dma([n + 3], [('A', n)])
            if kk == 10:
                A(f"s_mul_i32 s27, s{S_RB}, {FS}"); A(f"s_add_u32 s27, s27, {WS_F0}"); A("v_and_b32 v17, 7, v12"); A("v_lshl_add_u32 v17, v17, 3, s27")
                A(f"global_load_dwordx2 v[18:19], v17, s[{S_WS}:{S_WS+1}] sc1", tag='lnf')
            if kk == 13:
                A.wait_vm('lnf')
                A(f"v_xor_b32 v18, s{S_TAG}, v18"); A(f"v_xor_b32 v19, s{S_TAG+1}, v19"); A("v_or_b32 v18, v18, v19"); A("v_cmp_eq_u32 vcc, 0, v18")
                A("s_nop 1"); A("s_cmp_eq_u64 vcc, exec"); A(f"s_cbranch_scc1 {L('lnok')}")
                poll_wave(A, L, 'plnw', 17, reset=False)
                A.label(L('lnok'))
                A(f"s_lshl_b32 s23, s{S_RB}, 10"); A("s_lshl_b32 s27, s3, 5"); A("s_add_u32 s23, s23, s27"); A("s_lshl_b32 s23, s23, 3")
                A(f"s_mov_b32 s27, {WS_LNP}"); srd_from(A, 16, S_WS, 27, 16*8*128*8)
                A("v_and_b32 v18, 7, v12"); A("v_lshlrev_b32 v18, 10, v18"); A("v_lshl_add_u32 v18, v14, 6, v18")
                for q in range(4): A(f"buffer_load_dwordx4 {v(Q+4*q,4)}, v18, s[16:19], s23 offen offset:{16*q} sc1", tag='lnq')
            if kk == 4:
                A.wait_vm('lnp'); tag_take(A, lambda x: L('z' + x)); A("s_barrier")
                A(f"s_mul_i32 s27, s{S_RB}, {FS}"); A(f"s_lshl_b32 s28, s{S_CB}, 3"); A("s_add_u32 s27, s27, s28"); A(f"s_add_u32 s27, s27, {WS_F0}")
                signal(A, L, 'sigln', 27)
            todo = []
            if nxt:
                if nxt == (4, 0):
                    for j in range(7): A(f"v_add_u32 v{24+j}, 0x10000, v{24+j}")
                todo = reads_w(2, nxt[0], nxt[1], buf ^ 1)
            if os.environ.get('W1', '1') == '1': A.wait_lg([('wf', 2, c, h, 6)])
            for j in range(7):
                A.wait_lg([('wf', 2, c, h, j)])
                for aa in range(2):
                    d = v(acc2(j,aa), 4)
                    A(f"v_mfma_f32_16x16x32_bf16 {d}, {v(wf(buf,j),4)}, {a(xf(kk,aa),4)}, {d if kk else 0}")
                    for _ in range(2 if os.environ.get('W1', '1') == '1' else 1):
                        if todo: t, tg = todo.pop(0); A(t, tag=tg)
            emit(todo)
    ST(A, 5)
    A.bg_flush(); A.bg_every = 0
    svc.wait_read([3, 4], [('A', 0), ('A', 1)]); svc.base('B', 28672, 0); A.wait_lg(); A("s_barrier")
    svc.bg_dma([13, 14], [('A', 0), ('A', 1)]); svc.bg_dma(list(range(6, 13)), [('B', k) for k in range(7)]); A.bg_every = 10
    ST(A, 7)
    A.wait_vm('lnq')
    ST(A, 'lnq')
    def red8(rs):
        for pat in ("quad_perm:[1,0,3,2]", "quad_perm:[2,3,0,1]", "row_half_mirror"):
            for r in rs: A(f"v_add_f32_dpp v{r}, v{r}, v{r} {pat} row_mask:0xf bank_mask:0xf")
    for q in range(8): A(f"v_mov_b32 v{MB+q}, v{Q+2*q}")
    red8(range(MB, MB+8))
    for q in range(8): A(f"v_mul_f32 v{MB+q}, 0.125, v{MB+q}")
    A(f"v_mov_b32 v38, {hexf(112.0)}")
    for q in range(8):
        A(f"v_sub_f32 v{Q+2*q}, v{Q+2*q}, v{MB+q}"); A(f"v_mul_f32 v{Q+2*q}, v{Q+2*q}, v{Q+2*q}")
        A(f"v_fma_f32 v{MB+8+q}, v{Q+2*q}, v38, v{Q+2*q+1}")
    red8(range(MB+8, MB+16))
    A(f"v_mov_b32 v38, {hexf(1.0/896)}"); A(f"v_mov_b32 v39, {hexf(1e-5)}")
    for q in range(8): A(f"v_fma_f32 v{MB+8+q}, v{MB+8+q}, v38, v39")
    for q in range(8): A(f"v_rsq_f32 v{MB+8+q}, v{MB+8+q}")
    for q in range(8): A(f"v_mul_f32 v{MB+q}, v{MB+q}, v{MB+8+q}")
    ST(A, 'comb')
    A(f"s_mul_i32 s23, s{S_CB}, {64*7168}"); A("s_mul_i32 s27, s72, 7168"); A("s_add_u32 s23, s23, s27")
    if WS_Z2F: A(f"s_add_u32 s23, s23, {WS_Z2F}")
    srd_from(A, 16, S_WS, 23, 7168)
    A("v_lshlrev_b32 v18, 4, v12"); A("v_add_u32 v19, 4096, v18")
    for j in range(7):
        p = 200 + 4*(j & 3)
        for aa in range(2):
            c = acc1(j,aa)
            for rp in range(2):
                A(f"v_pk_fma_f32 {v(c+2*rp,2)}, {v(c+2*rp,2)}, {v(MB+8+aa*4+2*rp,2)}, {v(MB+aa*4+2*rp,2)} neg_lo:[0,0,1] neg_hi:[0,0,1]")
            A(f"v_cvt_pk_bf16_f32 v{p+2*aa}, v{c}, v{c+1}"); A(f"v_cvt_pk_bf16_f32 v{p+2*aa+1}, v{c+2}, v{c+3}")
        A(f"buffer_store_dwordx4 {v(p,4)}, v{18 if j < 4 else 19}, s[16:19], 0 offen offset:{(j%4)*1024} sc1", tag='pubst')
    ST(A, 'norm')
    p2 = P2(A, L); p2.pre()
    TMP = 216
    regs = [ACC2 + 2*p for p in range(28)]
    for q in range(0, 8, 4): gelu_pairs(A, regs[q:q+4], TMP, 32, 34, 36)
    A.wait_vm('pubst'); ST(A, 'pubw'); A("s_barrier")
    A(f"s_mul_i32 s27, s{S_CB}, {FS}"); A(f"s_lshl_b32 s28, s{S_RB}, 3"); A("s_add_u32 s27, s27, s28"); A(f"s_add_u32 s27, s27, {WS_F1Z}")
    signal(A, L, 'sigzd', 27)
    ST(A, 6)
    svc.wait_read([5], [('A', 2)]); A.wait_lg(('Ar', 5)); svc.bg_dma([15], [('A', 2)])
    for q in range(8, 28, 4): gelu_pairs(A, regs[q:q+4], TMP, 32, 34, 36)
    A.bg_flush(); A.bg_every = 0
    p2.flag_issue()
    A("s_lshl_b32 s23, s72, 1"); A("s_mul_i32 s23, s23, 56"); A(f"s_mul_i32 s28, s{S_CB}, 7"); A("s_add_u32 s23, s23, s28"); A("s_lshl_b32 s23, s23, 9")
    A(f"s_add_u32 s23, s23, {WS_Z1F}"); srd_from(A, 16, S_WS, 23, 56*512 + 7*512)
    A("v_lshlrev_b32 v18, 3, v12")
    P = 40
    for aa in range(2):
        if aa: A(f"s_mov_b32 s23, {56*512}")
        for j in range(7):
            c = acc2(j,aa); p = P + 2*(j & 3)
            A(f"v_cvt_pk_bf16_f32 v{p}, v{c}, v{c+1}"); A(f"v_cvt_pk_bf16_f32 v{p+1}, v{c+2}, v{c+3}")
            A(f"buffer_store_dwordx2 {v(p,2)}, v18, s[16:19], {'s23' if aa else 0} offen offset:{j*512} sc1", tag='z1st')
    ST(A, 9)
    p2.flag_take('z')
    p2.first()
    A.wait_vm(('Au', 15))
    for n, sl in [(13, ('A', 0)), (14, ('A', 1)), (15, ('A', 2))] + [(6 + k, ('B', k)) for k in range(7)]: svc.read(n, sl)
    p2.plumbing()
    p2.third()
    A.wait_lg()
    ST(A, 8)
    p2.loop('z')

QSTG = 45056; QGW = 3*QSTG; QZR = QGW + 1024; QP = 400
def role_q(A, L):
    A("v_lshrrev_b32 v15, 3, v12"); A("v_and_b32 v16, 7, v12")
    A("v_and_b32 v17, 3, v15"); A("v_xor_b32 v17, v16, v17"); A("v_lshlrev_b32 v17, 4, v17")
    A(f"s_lshl_b32 s24, s{S_RB}, 7"); A("s_sub_u32 s24, s24, 16"); A("s_mul_i32 s25, s3, 5")
    for uu in range(5):
        A(f"s_add_u32 s26, s25, {uu}")
        A("s_lshl_b32 s27, s26, 3"); A("s_add_u32 s27, s27, s24")
        A("v_add_u32 v18, s27, v15"); A("v_max_i32 v18, 0, v18"); A("v_mul_u32_u24 v18, 896, v18")
        A("s_and_b32 s27, s26, 1"); A("s_lshl_b32 s27, s27, 6"); A("v_xor_b32 v19, s27, v17")
        A("s_cmp_ge_u32 s26, 18"); A(f"s_cselect_b32 s27, {OOB}, 0")
        A(f"v_add3_u32 v{1+uu}, v18, v19, s27")
        if uu in (1, 2, 3): A(f"v_subrev_u32 v{1+uu}, {uu*1024}, v{1+uu}")
    A("v_and_b32 v18, 2, v15"); A("v_xor_b32 v18, v16, v18"); A("v_mul_u32_u24 v19, 2688, v15")
    for uu in range(2):
        if uu: A("v_xor_b32 v18, 4, v18")
        A(f"v_lshl_add_u32 v{6+uu}, v18, 4, v19")
        if uu: A(f"v_add_u32 v{6+uu}, {8*2688-1024}, v{6+uu}")
        A("v_cmp_eq_u32 vcc, 7, v18"); A(f"v_mov_b32 v16, {OOB}"); A(f"v_cndmask_b32 v{6+uu}, v{6+uu}, v16, vcc")
    A.wait_lg()
    A(f"s_sub_u32 s8, s{S_X}, 4096"); A(f"s_subb_u32 s9, s{S_X+1}, 0"); A("s_and_b32 s9, s9, 0xffff"); A(f"s_mov_b32 s10, {S*896 + 4096}"); A("s_mov_b32 s11, 0x20000")
    for uu in range(5): A(f"v_add_u32 v{1+uu}, 4096, v{1+uu}")
    srd_from(A, 12, S_WQKV, None, 448*2688)
    A(f"s_mul_i32 s24, s3, {16*2688}"); A(f"s_mul_i32 s25, s{S_CB}, 112"); A("s_add_u32 s24, s24, s25")
    A("s_mul_i32 s25, s3, 5120"); A("s_lshl_b32 s26, s3, 11"); A("s_add_u32 s26, s26, 20480")
    def dma(c):
        st = (c % 3)*QSTG; out = []
        for seg in range(3):
            out += [(f"s_add_u32 m0, s26, {st + seg*8192}", None), (f"s_add_u32 s23, s24, {64*c*2688 + seg*896}", None)]
            out += [(f"buffer_load_dwordx4 v{6+uu}, s[12:15], s23 offen offset:{uu*1024} {NT}lds", ('c', c)) for uu in range(2)]
        out += [(f"s_add_u32 m0, s25, {st}", None), (f"s_mov_b32 s23, {c*128}", None)]
        out += [(f"buffer_load_dwordx4 v{1+uu}, s[8:11], s23 offen offset:{uu*1024} {NT}lds", ('c', c)) for uu in range(4)]
        out += [(f"s_add_u32 m0, s25, {st + 4096}", None), (f"buffer_load_dwordx4 v5, s[8:11], s23 offen {NT}lds", ('c', c))]
        return out
    def emit(lst):
        for t, tg in lst: A(t, tag=tg)
    ST(A, 'rsetup')
    load_gw_tables(A, QGW, QZR, ('c', 0))
    for c in range(2): emit(dma(c))
    ST(A, 1)
    A("v_lshrrev_b32 v15, 3, v13"); A("v_lshlrev_b32 v15, 2, v15"); A("v_and_b32 v16, 3, v13"); A("v_or_b32 v15, v15, v16")
    A("v_xor_b32 v15, v15, v14"); A("v_lshlrev_b32 v15, 4, v15"); A("v_lshl_add_u32 v20, v13, 7, v15"); A("v_xor_b32 v21, 64, v20")
    A("s_lshl_b32 s23, s3, 12"); A("s_add_u32 s23, s23, 2048"); A("v_add_u32 v22, s23, v20"); A("v_add_u32 v23, s23, v21")
    A("s_lshr_b32 s23, s3, 1"); A("s_mul_i32 s23, s23, 56"); A("s_and_b32 s33, s3, 1"); A("s_lshl_b32 s34, s33, 5"); A("s_add_u32 s23, s23, s34")
    A("v_and_b32 v15, 3, v13"); A("v_lshlrev_b32 v16, 3, v15"); A("v_add_u32 v16, s23, v16")
    A("v_cmp_eq_u32 vcc, 3, v15"); A("s_cmp_eq_u32 s33, 1"); A("s_cselect_b64 s[34:35], vcc, 0")
    A("v_mov_b32 v17, 112"); A("v_cndmask_b32 v16, v16, v17, s[34:35]")
    A("v_lshrrev_b32 v17, 3, v13"); A("v_lshlrev_b32 v17, 1, v17"); A("v_and_b32 v18, 1, v14"); A("v_lshl_or_b32 v17, v18, 2, v17")
    A("v_lshrrev_b32 v18, 4, v16"); A("v_xor_b32 v18, v18, v17"); A("v_and_b32 v16, 8, v16"); A("v_lshl_or_b32 v16, v18, 4, v16")
    A("v_lshrrev_b32 v17, 2, v13"); A("v_lshl_add_u32 v17, v14, 3, v17"); A("v_lshl_add_u32 v24, v17, 7, v16"); A("v_add_u32 v24, 20480, v24")
    gw_addr(A, 25, QGW, QZR)
    XB = 256; xf = lambda buf, t: XB + buf*44 + t*4
    WB = 256 + 88; wf = lambda buf, t: WB + buf*16 + t*4
    ACC = 64
    def acc(t, RT):
        if t == 0: return ACC + (RT-1)*4
        if t == 3: return ACC + (26 + RT)*4
        return ACC + (8 + (t-1)*9 + RT)*4
    def reads(c, h, buf):
        out = []
        for t in range(3):
            for sec in range(2):
                out.append((f"ds_read_b64_tr_b16 {u(wf(buf,t)+2*sec,2)}, v24 offset:{t*8192 + h*4096 + sec*512}", ('w', c, h)))
        out.append((f"ds_read_b128 {u(wf(buf,3),4)}, v25 offset:{(2*c+h)*64}", ('w', c, h)))
        for RT in range(9): out.append((f"ds_read_b128 {u(xf(buf,RT),4)}, v{20+h} offset:{RT*2048}", ('x', c, h, RT)))
        for q in range(2): out.append((f"ds_read_b128 {u(xf(buf,9+q),4)}, v{22+h} offset:{q*2048}", ('x', c, h, 9+q)))
        return out
    def bump(c):
        d = QSTG if (c % 3) < 2 else -2*QSTG
        for r in (20, 21, 22, 23, 24):
            if d > 0: A(f"v_add_u32 v{r}, {d}, v{r}")
            else: A(f"v_subrev_u32 v{r}, {-d}, v{r}")
    A.wait_vm(('c', 0)); A("s_barrier")
    carry = []
    ST(A, 2)
    for t, tg in reads(0, 0, 0): A(t, tag=tg)
    for c in range(7):
        for h in range(2):
            kk = 2*c + h; buf = kk & 1
            todo = []; vq = []
            if h == 0:
                ST(A, ('gs', c, 0))
                todo = reads(c, 1, buf ^ 1)
                if c == 0: vq = dma(2)
                vq = vq + carry; carry = []
            else:
                ST(A, ('gs', c, 1))
                if c < 6: A.wait_vm(('c', c+1))
                ST(A, ('gs', c, 2))
                A.wait_lg(); ST(A, ('gs', c, 3)); A("s_barrier"); ST(A, ('g', c)); ST(A, ('gs', c, 4))
                if c + 3 <= 6:
                    vq = dma(c+3)
                    if os.environ.get('QSPREAD', '0') == '1':
                        nW = 12; carry = vq[nW:]; vq = vq[:nW]
                if c < 6:
                    bump(c); todo = reads(c+1, 0, buf ^ 1)
            order = [(1,0),(2,0)] + [(t, RT) for RT in range(1, 9) for t in range(3)] + [(3,0),(3,1)]
            n = 0
            if os.environ.get('W1', '1') == '1': A.wait_lg([('w', c, h)] + [('x', c, h, q) for q in range(11)])
            for (t, RT) in order:
                xt = RT if t < 3 else 9 + RT
                A.wait_lg([('w', c, h), ('x', c, h, xt)])
                d = v(acc(t, RT), 4)
                A(f"v_mfma_f32_16x16x32_bf16 {d}, {u(wf(buf,t),4)}, {u(xf(buf,xt),4)}, {d if kk else 0}")
                n += 1
                if todo: tt, tg = todo.pop(0); A(tt, tag=tg)
                if vq and (os.environ.get('QSPREAD', '0') != '1' or n % 2 == 0):
                    while vq:
                        tt, tg = vq.pop(0); A(tt, tag=tg)
                        if tg is not None or os.environ.get('QSPREAD', '0') != '1': break
            while todo: tt, tg = todo.pop(0); A(tt, tag=tg)
            emit(vq)
            if c == 0 and h == 0 and os.environ.get('CHIPT', '1') != '1': A("global_load_dword v56, v61, s[30:31]", tag='touch'); A("global_load_dword v56, v62, s[30:31]", tag='touch')
            if (c, h) == (int(os.environ.get('WSPQ', '4')), 1):
                for t, tg in prefetch_wsp_list(): A(t, tag=tg)
                touch_small(A)
    ST(A, 3)
    if os.environ.get('PREF', 'chip') == 'both':
        for t, tg in prefetch_wsp_list('die'): A(t, tag=tg)
    tag_issue(A)
    svc = AService(A); svc.setup(); svc.base('A', 24576, L_AST); svc.base('B', 14336, 0)
    svc.bg_dma(list(range(6)), [('A', k) for k in range(6)]); A.bg_every = 6
    A(f"v_mul_u32_u24 v15, {QP}, v13")
    A("s_lshr_b32 s23, s3, 1"); A("s_lshl_b32 s23, s23, 6"); A("s_and_b32 s33, s3, 1"); A("s_lshl_b32 s33, s33, 5"); A("s_add_u32 s23, s23, s33")
    A("v_lshl_add_u32 v15, v14, 3, v15"); A("v_add_u32 v26, s23, v15")
    P = 176; n = 0
    for t in range(3):
        for RT in range(0 if t else 1, 9):
            c = acc(t, RT); p = P + 2*(n & 7); n += 1
            A(f"v_cvt_pk_bf16_f32 v{p}, v{c}, v{c+1}"); A(f"v_cvt_pk_bf16_f32 v{p+1}, v{c+2}, v{c+3}")
            A(f"ds_write_b64 v26, {v(p,2)} offset:{RT*16*QP + t*128}", tag='qkv')
    for q in range(2):
        c = acc(3, q)
        A(f"v_mul_f32 v{c}, {hexf(-1.4426950408889634)}, v{c}")
        A(f"v_exp_f32 v{c}, v{c}"); A(f"v_add_f32 v{c}, 1.0, v{c}"); A(f"v_rcp_f32 v{c}, v{c}")
    A("s_lshl_b32 s23, s3, 7"); A(f"s_add_u32 s23, s23, {L_GL}")
    A("v_lshlrev_b32 v15, 2, v13"); A("v_add_u32 v16, s23, v15")
    A("s_mov_b64 s[34:35], exec"); A("s_mov_b64 exec, 0xffff")
    for q in range(2): A(f"ds_write_b32 v16, v{acc(3,q)} offset:{q*64}", tag='qkv')
    A(f"s_mov_b32 s23, {WS_GATE}"); srd_from(A, 16, S_WS, 23, S*4)
    A(f"s_cmp_eq_u32 s{S_CB}, 0"); A("s_cselect_b32 s18, s18, 0")
    A(f"s_lshl_b32 s23, s{S_RB}, 9"); A("s_lshl_b32 s33, s3, 7"); A("s_add_u32 s23, s23, s33")
    for q in range(2): A(f"buffer_store_dword v{acc(3,q)}, v15, s[16:19], s23 offen offset:{q*64} sc1", tag='pubst')
    A("s_mov_b64 exec, s[34:35]")
    A.wait_lg(); A("s_barrier")
    ST(A, 4)
    A("s_lshr_b32 s33, s3, 1"); A("s_and_b32 s34, s3, 1"); A("s_lshl_b32 s35, s33, 6")
    A(f"s_mul_i32 s32, s34, {64*QP}"); A("s_add_u32 s35, s35, s32")
    A("v_lshlrev_b32 v15, 1, v13")
    A(f"v_mul_u32_u24 v16, {QP}, v15"); A("v_lshl_add_u32 v16, v14, 4, v16"); A("v_add_u32 v16, s35, v16")
    A(f"v_add_u32 v20, {16*QP}, v16"); A(f"v_add_u32 v21, 128, v16")
    A("v_lshlrev_b32 v17, 2, v15"); A("s_lshl_b32 s32, s34, 8"); A(f"s_add_u32 s32, s32, {L_GL}"); A("v_add_u32 v22, s32, v17")
    A("v_lshrrev_b32 v17, 2, v13"); A("v_and_b32 v18, 3, v13"); A("v_lshlrev_b32 v18, 3, v18"); A("v_add_u32 v18, s35, v18"); A("v_add_u32 v18, 256, v18")
    for T in range(2):
        if T == 0: A("v_lshl_add_u32 v19, v14, 2, v17")
        else: A("v_and_b32 v19, 1, v14"); A("v_lshl_add_u32 v19, v19, 2, v17"); A("v_add_u32 v19, 16, v19")
        A("v_lshlrev_b32 v19, 1, v19"); A(f"v_mul_u32_u24 v19, {QP}, v19"); A(f"v_add_u32 v{23+T}, v19, v18")
    UB = 64
    rowoff = lambda b: (32*(b >> 1) + (b & 1))
    Q_ = lambda b: UB + b*24; K_ = lambda b, T: UB + b*24 + 4 + 4*T; V_ = lambda b, mt: UB + b*24 + 12 + 4*mt; G_ = lambda b: UB + b*24 + 20
    for b in range(4):
        A(f"ds_read_b128 {v(Q_(b),4)}, v20 offset:{rowoff(b)*QP}", tag=('u', b))
        for T in range(2): A(f"ds_read_b128 {v(K_(b,T),4)}, v21 offset:{(rowoff(b)+32*T)*QP}", tag=('u', b))
    for b in range(4):
        for mt in range(2):
            for T in range(2): A(f"ds_read_b64_tr_b16 {v(V_(b,mt)+2*T,2)}, v{23+T} offset:{rowoff(b)*QP + mt*32}", tag=('vv', b))
        A(f"ds_read_b32 v{G_(b)}, v22 offset:{rowoff(b)*4}", tag=('vv', b))
    SC = 160; sc = lambda b, T: SC + b*8 + 4*T
    for b in range(4):
        A.wait_lg(('u', b))
        for T in range(2): A(f"v_mfma_f32_16x16x32_bf16 {v(sc(b,T),4)}, {v(K_(b,T),4)}, {v(Q_(b),4)}, 0")
    A.wait_lg(); A("s_barrier")
    A.bg_flush()
    svc.wait_read(list(range(6)), [('A', k) for k in range(6)])
    wfj = WFJob(A); wfj.setup(75, 2*4096)
    A.wait_lg()
    svc.bg_dma([6, 7], [('B', 0), ('B', 1)]); A.bg += wfj.dma(); svc.bg_dma(list(range(8, 14)), [('A', k) for k in range(6)]); A.bg_every = 7
    cs = (28 ** -0.5) * 1.4426950408889634
    A(f"v_mov_b32 v26, {hexf(cs)}"); A(f"v_mov_b32 v27, {hexf(cs)}"); A(f"v_mov_b32 v28, {hexf(-1e30)}")
    for b in range(4):
        for q in range(4): A(f"v_pk_mul_f32 {v(sc(b,0)+2*q,2)}, {v(sc(b,0)+2*q,2)}, {v(26,2)}")
    A("v_lshlrev_b32 v15, 2, v14"); A("v_sub_u32 v15, v13, v15"); A("v_add_u32 v15, 8, v15")
    A("s_and_b32 s34, s3, 1"); A(f"s_or_b32 s34, s34, s{S_RB}")
    A("v_min_u32 v16, 7, v13"); A("s_cmp_eq_u32 s34, 0"); A("s_cselect_b64 s[34:35], -1, 0")
    A("v_mov_b32 v17, 7"); A("v_cndmask_b32 v16, v17, v16, s[34:35]")
    MS = [24, 26, 28, 30, 64, 66, 32, 34]
    for (lim, bs) in ((17, (2, 3)), (16, (0, 1))):
        for q in range(8):
            A(f"v_subrev_u32 v18, {16*(q >> 2) + (q & 3)}, v15")
            A(f"v_cmp_le_u32 s[{MS[q]}:{MS[q]+1}], v18, v{lim}")
        for b in bs:
            for q in range(8):
                A(f"v_cndmask_b32 v{sc(b,0)+q}, v28, v{sc(b,0)+q}, s[{MS[q]}:{MS[q]+1}]")
    MX = 192; M2 = 196
    def xreduce(op):
        for swap in ("v_permlane16_swap_b32", "v_permlane32_swap_b32"):
            for b in range(4): A(f"v_mov_b32 v{M2+b}, v{MX+b}")
            for b in range(4): A(f"{swap} v{MX+b}, v{M2+b}")
            for b in range(4): A(f"{op} v{MX+b}, v{MX+b}, v{M2+b}")
    for b in range(4): s0 = sc(b,0); A(f"v_max3_f32 v{MX+b}, v{s0}, v{s0+1}, v{s0+2}")
    for b in range(4): s0 = sc(b,0); A(f"v_max3_f32 v{MX+b}, v{MX+b}, v{s0+3}, v{s0+4}")
    for b in range(4): s0 = sc(b,0); A(f"v_max3_f32 v{MX+b}, v{MX+b}, v{s0+5}, v{s0+6}")
    for b in range(4): s0 = sc(b,0); A(f"v_max_f32 v{MX+b}, v{MX+b}, v{s0+7}")
    xreduce("v_max_f32")
    for b in range(4):
        for q in range(8): A(f"v_sub_f32 v{sc(b,0)+q}, v{sc(b,0)+q}, v{MX+b}")
    for b in range(4):
        for q in range(8): A(f"v_exp_f32 v{sc(b,0)+q}, v{sc(b,0)+q}")

    for b in range(4): s0 = sc(b,0); A(f"v_add_f32 v{MX+b}, v{s0}, v{s0+1}")
    for q in range(2, 8):
        for b in range(4): A(f"v_add_f32 v{MX+b}, v{MX+b}, v{sc(b,0)+q}")
    xreduce("v_add_f32")
    for b in range(4): A(f"v_rcp_f32 v{MX+b}, v{MX+b}")
    PB = 200
    for b in range(4):
        for q in range(8): A(f"v_mul_f32 v{sc(b,0)+q}, v{sc(b,0)+q}, v{MX+b}")
    for b in range(4):
        for q in range(4): A(f"v_cvt_pk_bf16_f32 v{PB+4*b+q}, v{sc(b,0)+2*q}, v{sc(b,0)+2*q+1}")
    OB = 160
    for b in range(4):
        for mt in range(2): A(f"v_mfma_f32_16x16x32_bf16 {v(OB+8*b+4*mt,4)}, {v(V_(b,mt),4)}, {v(PB+4*b,4)}, 0")
    ST(A, 5)
    wfj.finish()
    svc.wait_read([6, 7], [('B', 0), ('B', 1)]); A.wait_lg(); svc.bg_dma([14, 15], [('B', 0), ('B', 1)])
    A("v_and_b32 v15, 1, v13"); A("v_lshlrev_b32 v15, 1, v15"); A("v_bfe_u32 v16, v13, 1, 1"); A("v_or_b32 v15, v15, v16")
    A("v_and_b32 v16, 12, v13"); A("v_or_b32 v15, v15, v16"); A("v_lshl_add_u32 v15, v14, 4, v15"); A("v_lshlrev_b32 v29, 4, v15")
    A(f"s_lshl_b32 s23, s{S_RB}, 1"); A("s_and_b32 s33, s3, 1"); A("s_add_u32 s23, s23, s33"); A("s_mul_i32 s23, s23, 44")
    A(f"s_lshl_b32 s33, s{S_CB}, 1"); A("s_add_u32 s23, s23, s33"); A("s_lshr_b32 s33, s3, 1"); A("s_add_u32 s23, s23, s33")
    A("s_lshl_b32 s23, s23, 12"); A(f"s_add_u32 s23, s23, {WS_AF}")
    srd_from(A, 16, S_WS, 23, 4096)
    A("v_and_b32 v15, 2, v13"); A("v_cmp_eq_u32 vcc, 0, v15"); A("v_cmp_ne_u32 s[24:25], 0, v15")
    for b in range(4):
        o = OB + 8*b
        for q in range(8): A(f"v_mul_f32 v{o+q}, v{o+q}, v{G_(b)}")
        for q in range(4): A(f"v_cvt_pk_bf16_f32 v{PB+4*b+q}, v{o+2*q}, v{o+2*q+1}")
    for bb in range(2):
        X0 = PB + 8*bb; X1 = X0 + 4; Y = 216 + 8*bb
        for q in range(4):
            A(f"v_mov_b32_dpp v{Y+q}, v{X1+q} quad_perm:[2,3,0,1] row_mask:0xf bank_mask:0xf")
            A(f"v_mov_b32_dpp v{Y+4+q}, v{X0+q} quad_perm:[2,3,0,1] row_mask:0xf bank_mask:0xf")
        for q in range(4):
            A(f"v_cndmask_b32 v{Y+q}, v{Y+q}, v{X0+q}, vcc")
            A(f"v_cndmask_b32 v{Y+4+q}, v{Y+4+q}, v{X1+q}, s[24:25]")
        for aa in range(2):
            A(f"buffer_store_dwordx4 {v(Y+4*aa,4)}, v29, s[16:19], 0 offen offset:{(2*bb+aa)*1024} sc1", tag='pubst')
    A.bg_flush(); A.bg_every = 0
    ST(A, 6)
    A.wait_vm('pubst'); tag_take(A, lambda x: L('q' + x)); A("s_barrier")
    A(f"s_mul_i32 s27, s{S_RB}, {FS}"); A(f"s_lshl_b32 s28, s{S_CB}, 3"); A("s_add_u32 s27, s27, s28"); A(f"s_add_u32 s27, s27, {WS_F1Q}")
    signal(A, L, 'sigqd', 27)
    ST(A, 7)
    p2 = P2(A, L); p2.pre(); p2.flag_issue()
    p2.flag_take('q')
    p2.first()
    svc.wait_read(list(range(8, 14)), [('A', k) for k in range(6)])
    svc.wait_read([14, 15], [('B', 0), ('B', 1)])
    p2.plumbing()
    p2.third()
    A.wait_lg()
    ST(A, 8)
    p2.loop('q')

def rot7(s_):
    if s_ == 6: return [f"s_add_u32 s30, s29, {3*4096}"]
    return [f"s_add_u32 s30, s{S_CB}, {s_}", "s_cmp_ge_u32 s30, 6", "s_cselect_b32 s31, 6, 0", "s_sub_u32 s30, s30, s31",
            "s_cmp_ge_u32 s30, 6", "s_cselect_b32 s31, 6, 0", "s_sub_u32 s30, s30, s31",
            "s_cmp_ge_u32 s30, 3", "s_addc_u32 s30, s30, 0", "s_lshl_b32 s30, s30, 12", "s_add_u32 s30, s30, s29"]

def poll_p2(A, L):
    tag = 'pa'
    A("s_cmp_lg_u32 s3, 0"); A(f"s_cbranch_scc1 {L(tag+'_done')}")
    A.raw("  s_mov_b32 s33, 0"); A.raw(f"  s_lshl_b32 s30, s{S_CB}, 2"); A.raw("  s_lshl_b64 s[30:31], 15, s30")
    A.label(L(tag+'_loop'))
    for q2 in range(2): A.raw(f"  global_load_dwordx4 {v(16+4*q2,4)}, v2, s[{S_WS}:{S_WS+1}] offset:{16*q2} sc1")
    A.raw("  s_add_u32 s33, s33, 1"); A.raw("  s_waitcnt vmcnt(0)")
    for q in range(8): A.raw(f"  v_xor_b32 v{16+q}, s{S_TAG + (q & 1)}, v{16+q}")
    for t in ("v_or3_b32 v16, v16, v17, v18", "v_or3_b32 v19, v19, v20, v21", "v_or3_b32 v16, v16, v22, v23", "v_or_b32 v16, v16, v19", "v_cmp_eq_u32 vcc, 0, v16"): A.raw("  " + t)
    A.raw("  s_nop 1")
    A.raw("  s_and_b64 s[34:35], vcc, s[30:31]"); A.raw("  s_cmp_eq_u64 s[34:35], s[30:31]")
    A.raw(f"  s_cbranch_scc1 {L(tag+'_out')}")
    A.raw(f"  s_sleep {SLEEP}"); A.raw("  s_cmp_lt_u32 s33, 0x20000"); A.raw(f"  s_cbranch_scc1 {L(tag+'_loop')}")
    A.label(L(tag+'_out'))
    A.raw("  s_cmp_eq_u64 vcc, exec"); A.raw("  s_cselect_b32 s30, 1, 0"); A.raw("  v_mov_b32 v16, s30"); A.raw("  ds_write_b32 v9, v16"); A.raw("  s_waitcnt lgkmcnt(0)")
    A.label(L(tag+'_done'))
    A("s_barrier")

class P2:
    ACC, BR = 32, 144
    def __init__(self, A, L): self.A, self.L = A, L
    def acc(self, j, tau): return self.ACC + (j*4+tau)*4
    def bfrag(self, kk, j): return self.BR + (kk % 4)*28 + j*4
    def afrag(self, kk, tau): return ((kk >> 1)*8 + (kk & 1)*4 + tau)*4
    def pre(self):
        A = self.A
        A("v_lshlrev_b32 v3, 4, v12"); A("v_add_u32 v4, 4096, v3")
        A(f"s_mul_i32 s23, s{S_CB}, {64*7168}")
        if WS_Z2F: A(f"s_add_u32 s23, s23, {WS_Z2F}")
        srd_from(A, 12, S_WS, 23, 64*7168)
        A(f"s_mul_i32 s26, s3, {16*7168}")
        if os.environ.get('ROT', '0') == '1': A(f"s_and_b32 s25, s{S_RB2}, 7"); A("s_lshl_b32 s25, s25, 1")
        else:
            A("s_mov_b32 s25, 0")
            A(f"s_and_b32 s23, s{S_RB2}, 7"); A("s_mul_i32 s23, s23, 896")
            A("v_and_b32 v31, 7, v12"); A("v_min_u32 v31, 6, v31"); A("v_lshlrev_b32 v31, 7, v31"); A("v_bfe_u32 v30, v12, 3, 2"); A("v_mul_u32_u24 v30, 7168, v30")
            A("v_add3_u32 v31, v31, v30, s23")
        A(f"s_mul_i32 s27, s{S_CB}, {FS}"); A("s_lshl_b32 s23, s3, 5"); A("s_add_u32 s27, s27, s23"); A(f"s_add_u32 s27, s27, {WS_F1Z}")
        A("v_and_b32 v9, 3, v12"); A("v_lshl_add_u32 v9, v9, 3, s27")
    def flag_issue(self):
        if os.environ.get('WGPOLL', '0') == '1': return
        self.A(f"global_load_dwordx2 v[10:11], v9, s[{S_WS}:{S_WS+1}] sc1", tag='fa')
    def flag_take(self, role):
        A, L = self.A, self.L
        if os.environ.get('WGPOLL', '0') == '1':
            A(f"s_mul_i32 s27, s{S_CB}, {FS}"); A(f"s_add_u32 s27, s27, {WS_F1Z}"); A("v_lshl_add_u32 v9, v12, 3, s27")
            poll(A, L, role+'pa', 9, 16)
            ST(A, 10)
            return
        A.wait_vm('fa')
        A(f"v_xor_b32 v10, s{S_TAG}, v10"); A(f"v_xor_b32 v11, s{S_TAG+1}, v11"); A("v_or_b32 v10, v10, v11"); A("v_cmp_eq_u32 vcc, 0, v10")
        A("s_nop 1"); A("s_cmp_eq_u64 vcc, exec"); A(f"s_cbranch_scc1 {L(role+'faok')}")
        poll_wave(A, L, role+'paw', 9, reset=False)
        A.label(L(role+'faok'))
        ST(A, 10)
    def soffB(self, kk):
        if os.environ.get('ROT', '0') != '1': return [f"s_add_u32 s27, s26, {kk*7168}"]
        return [f"s_add_u32 s27, s25, {kk}", "s_and_b32 s27, s27, 15", "s_mul_i32 s27, s27, 7168", "s_add_u32 s27, s27, s26"]
    def touchB(self, k0):
        if os.environ.get('ROT', '0') == '1': return
        A = self.A
        A(f"s_add_u32 s24, s26, {k0*7168}"); A("buffer_load_dword v30, v31, s[12:15], s24 offen sc1", tag='bt')
    def first(self):
        self.issueB(0)
        if os.environ.get('EARLY', '1') == '0': self.second()
    def second(self):
        self.touchB(3); self.issueB(1)
        if os.environ.get('ROT', '0') != '1' or os.environ.get('ROT3'): self.issueB(2)
    def third(self):
        if os.environ.get('EARLY', '1') == '1': self.second()
    def issueB(self, kk):
        A = self.A
        for t in self.soffB(kk): A(t)
        for j in range(7):
            A(f"buffer_load_dwordx4 {v(self.bfrag(kk,j),4)}, v{3 if j < 4 else 4}, s[12:15], s27 offen offset:{(j % 4)*1024} sc1", tag=('B', kk))
    def plumbing(self):
        A = self.A
        A(f"s_mul_i32 s23, s{S_CB}, {44*4096}"); A(f"s_add_u32 s23, s23, {WS_WF}"); srd_from(A, 8, S_WS, 23, 44*4096)
        A(f"s_cmp_eq_u32 s{S_CB}, 7"); A("s_cselect_b32 s10, 0, s10")
        A(f"s_mul_i32 s23, s{S_RB2}, {44*4096}"); A(f"s_add_u32 s23, s23, {WS_AF}"); srd_from(A, 16, S_WS, 23, 44*4096)
        for tau in range(4):
            A(f"s_xor_b32 s24, s3, {tau}"); A("s_lshl_b32 s24, s24, 10"); A(f"v_add_u32 v{5+tau}, s24, v3")
        A("s_lshl_b32 s28, s3, 14")
        A(f"s_mul_i32 s29, s3, {7*4096}"); A(f"s_add_u32 s29, s29, {16*4096}")
        A(f"s_lshl_b32 s30, s{S_RB2}, 2"); A("s_add_u32 s30, s30, s3")
        A("s_mul_i32 s31, s30, 56"); A(f"s_mul_i32 s32, s{S_CB}, 7"); A("s_add_u32 s31, s31, s32"); A("s_lshl_b32 s31, s31, 9"); A(f"s_add_u32 s31, s31, {WS_Z1F}")
        srd_from(A, 64, S_WS, 31, 7*512)
        A("v_lshlrev_b32 v10, 3, v12")
        A(f"s_lshl_b32 s31, s{S_RB2}, 6"); A("s_lshr_b32 s32, s3, 1"); A("s_lshl_b32 s32, s32, 5"); A("s_add_u32 s31, s31, s32")
        A("s_and_b32 s32, s3, 1"); A("s_lshl_b32 s32, s32, 2"); A("s_add_u32 s31, s31, s32")
        A("v_lshrrev_b32 v11, 2, v13"); A("v_lshlrev_b32 v11, 3, v11"); A("v_and_b32 v1, 3, v13"); A("v_add_u32 v11, v11, v1"); A("v_add_u32 v11, s31, v11")
        A("v_lshlrev_b32 v15, 2, v11"); A(f"v_add_u32 v15, {WS_GATE}, v15"); A("v_lshlrev_b32 v11, 1, v11")
        A(f"s_mul_i32 s27, s{S_CB}, 11"); A("v_subrev_u32 v1, 8, v12"); A("v_min_u32 v1, 11, v1"); A("v_add_u32 v1, s27, v1"); A("v_min_u32 v1, 76, v1")
        A(f"s_lshl_b32 s27, s{S_RB}, 3"); A("v_add_u32 v2, s27, v12"); A("v_cmp_gt_u32 vcc, 8, v12"); A("v_cndmask_b32 v1, v1, v2, vcc")
        A("v_lshrrev_b32 v2, 3, v1"); A(f"v_mul_u32_u24 v2, {FS}, v2"); A("v_and_b32 v1, 7, v1"); A("v_lshl_add_u32 v2, v1, 3, v2"); A(f"v_add_u32 v2, {WS_F1Q}, v2")
        A(f"s_mul_i32 s27, s{S_RB}, {FS}"); A(f"s_lshl_b32 s23, s{S_CB}, 3"); A("s_add_u32 s27, s27, s23"); A(f"s_add_u32 s27, s27, {WS_F3}"); A("v_mov_b32 v9, s27")
    def epi_list(self):
        out = [(f"buffer_load_dwordx2 {v(16+2*j,2)}, v10, s[64:67], 0 offen offset:{j*512} sc1", 'epi') for j in range(7)]
        out += [(f"global_load_ushort v30, v11, s[{S_BSP}:{S_BSP+1}]", 'epi'), (f"global_load_dword v31, v15, s[{S_WS}:{S_WS+1}] sc1", 'epi')]
        return out
    def wlist(self, kind):
        out = []
        if kind == 'Wo':
            for s_ in range(4):
                out.append((f"s_add_u32 s30, s28, {s_*4096}", None))
                out += [(f"buffer_load_dwordx4 {a((s_*4+uu)*4,4)}, v3, s[8:11], s30 offen offset:{uu*1024} sc1", ('Wo', s_)) for uu in range(4)]
        if kind == 'Wh':
            for s_ in range(7):
                out += [(t, None) for t in rot7(s_)]
                out += [(f"buffer_load_dwordx4 {a(64+(s_*4+uu)*4,4)}, v3, s[8:11], s30 offen offset:{uu*1024} sc1", ('Wh', s_)) for uu in range(4)]
        if kind == 'Ao':
            for s_ in range(4):
                out.append((f"s_add_u32 s32, s28, {s_*4096}", None))
                out += [(f"buffer_load_dwordx4 {a(176+(s_*4+tau)*4,4)}, v{5+tau}, s[16:19], s32 offen sc1", ('Ao', s_)) for tau in range(4)]
        return out
    def loop(self, role):
        A = self.A; L = lambda x: self.L(role + x)
        acc, bfrag, afrag = self.acc, self.bfrag, self.afrag
        for kk in range(16):
            A.wait_vm(('B', kk)); ST(A, ('kk', kk))
            pend = [(kk+3, j) for j in range(7)] if kk + 3 < 16 else []
            if kk == 0 and os.environ.get('ROT', '0') == '1' and not os.environ.get('ROT3'): pend = [(2, j) for j in range(7)] + pend
            if kk in (1, 5, 9): self.touchB({1: 7, 5: 11, 9: 15}[kk])
            m = 0
            if kk == 4:
                A.wait_vm('z1st'); A("s_barrier")
                if role == 'z':
                    A(f"s_mul_i32 s24, s{S_RB}, {FS}"); A(f"s_lshl_b32 s23, s{S_CB}, 3"); A("s_add_u32 s24, s24, s23"); A(f"s_add_u32 s24, s24, {WS_F3}")
                    signal(A, L, 'sigz1', 24, vtmp=20)
            if kk == 8:
                A(f"global_load_dwordx2 v[16:17], v2, s[{S_WS}:{S_WS+1}] sc1", tag='fl')
                if role == 'q': A(f"global_load_dwordx2 v[18:19], v9, s[{S_WS}:{S_WS+1}] sc1", tag='fl')
                else: A(f"v_mov_b32 v18, s{S_TAG}"); A(f"v_mov_b32 v19, s{S_TAG+1}")
            if kk == 12:
                def check():
                    return [f"v_xor_b32 v{16+q}, s{S_TAG + (q & 1)}, v{16+q}" for q in range(4)] + ["v_or3_b32 v16, v16, v17, v18", "v_or_b32 v16, v16, v19", "v_cmp_eq_u32 vcc, 0, v16"]
                A.wait_vm('fl')
                for t in check(): A(t)
                A("s_nop 1"); A("s_cmp_eq_u64 vcc, exec"); A(f"s_cbranch_scc1 {L('allok')}")
                A.raw("  s_mov_b32 s33, 0")
                A.raw(f"{L('allloop')}:")
                A.raw(f"  global_load_dwordx2 v[16:17], v2, s[{S_WS}:{S_WS+1}] sc1"); A.raw(f"  global_load_dwordx2 v[18:19], v9, s[{S_WS}:{S_WS+1}] sc1")
                A.raw("  s_add_u32 s33, s33, 1"); A.raw("  s_waitcnt vmcnt(0)")
                for t in check(): A.raw("  " + t)
                A.raw("  s_nop 1"); A.raw("  s_cmp_eq_u64 vcc, exec"); A.raw(f"  s_cbranch_scc1 {L('allok')}")
                A.raw(f"  s_sleep {SLEEP}"); A.raw("  s_cmp_lt_u32 s33, 0x20000"); A.raw(f"  s_cbranch_scc1 {L('allloop')}")
                A.label(L('allok'))
            if kk == 13:
                A.bg += self.epi_list() + self.wlist('Wo')[:15]; A.bg_every = 4
                A("s_mul_i32 s23, s3, 21504"); A("v_add_u32 v9, s23, v3")
            for j in range(7):
                if kk == 15 and j >= 2 and os.environ.get('EARLYW', '0') == '1':
                    for tau in (1, 2, 3): A(f"ds_write_b128 v9, {v(acc(j-2,tau),4)} offset:{(tau-1)*7168+(j-2)*1024}", tag='w')
                for tau in range(4):
                    c = v(acc(j,tau),4)
                    A(f"v_mfma_f32_16x16x32_bf16 {c}, {v(bfrag(kk,j),4)}, {a(afrag(kk,tau),4)}, {c if kk else 0}")
                    m += 1
                    if pend and (m % 4 == 1 or (kk == 0 and m % 2 == 1)):
                        k3, jj = pend.pop(0)
                        if jj == 0:
                            for t in self.soffB(k3): A(t)
                        A(f"buffer_load_dwordx4 {v(bfrag(k3,jj),4)}, v{3 if jj < 4 else 4}, s[12:15], s27 offen offset:{(jj % 4)*1024} sc1", tag=('B', k3))
            A.check_vm()
        A.bg_flush(); A.bg_every = 0

def phase2_tail(A, L):
    p2 = P2(A, L); acc = p2.acc; wlist = p2.wlist
    rest = wlist('Wo')[15:] + wlist('Ao') + wlist('Wh')
    groups = []; cur = []
    for it in rest:
        cur.append(it)
        if it[1] is not None and sum(1 for x in cur if x[1] is not None) == 4: groups.append(cur); cur = []
    n1, n2 = [int(x) for x in os.environ.get('TAILG', '5,4').split(',')]
    for gq in groups[:n1]: A.bg += gq
    bg_mid = [it for gq in groups[n1:n1+n2] for it in gq]; bg_late = [it for gq in groups[n1+n2:] for it in gq]
    A.bg_every = int(os.environ.get('TAILE', '5')); A.bg_classes = ('valu', 'ds')
    ST(A, 11)
    for tau in (1,2,3):
        A(f"s_xor_b32 s24, s3, {tau}"); A("s_mul_i32 s24, s24, 21504"); A(f"s_add_u32 s24, s24, {(tau-1)*7168}"); A(f"v_add_u32 v{(10,11,15)[tau-1]}, s24, v3")
    j0 = 5 if os.environ.get('EARLYW', '0') == '1' else 0
    for j in range(j0, 7):
        for tau in (1,2,3): A(f"ds_write_b128 v9, {v(acc(j,tau),4)} offset:{(tau-1)*7168+j*1024}", tag='w')
    A.wait_lg(); ST(A, 'red_w'); A("s_barrier"); ST(A, 'red_b')
    T0 = 144
    for tau in (1,2,3):
        for j in range(7): A(f"ds_read_b128 {v(T0+((tau-1)*7+j)*4,4)}, v{(10,11,15)[tau-1]} offset:{j*1024}", tag=('r',tau))
    for tau in (1,2,3):
        A.wait_lg(('r',tau))
        for j in range(7):
            c = acc(j,0); t = T0+((tau-1)*7+j)*4
            A(f"v_pk_add_f32 {v(c,2)}, {v(c,2)}, {v(t,2)}"); A(f"v_pk_add_f32 {v(c+2,2)}, {v(c+2,2)}, {v(t+2,2)}")
    A.bg_flush(); A.bg_every = 0
    ST(A, 'red_r')
    A.wait_vm('epi')
    A("v_lshlrev_b32 v30, 16, v30"); A("v_sub_f32 v31, 1.0, v31")
    H = 144
    if os.environ.get('PKH', '1') == '1':
        A("v_mov_b32 v33, v31") if False else None
        A("v_mov_b32 v240, v30"); A("v_mov_b32 v241, v30"); A("v_mov_b32 v242, v31"); A("v_mov_b32 v243, v31")
        for j in range(7):
            c = acc(j,0)
            for rp in range(2):
                z = 16 + 2*j + rp; t = 244 + 2*rp
                A(f"v_lshlrev_b32 v{t}, 16, v{z}"); A(f"v_and_b32 v{t+1}, 0xffff0000, v{z}")
                A(f"v_pk_add_f32 {v(c+2*rp,2)}, {v(c+2*rp,2)}, v[240:241]")
                A(f"v_pk_mul_f32 {v(t,2)}, {v(t,2)}, v[242:243]")
                A(f"v_pk_mul_f32 {v(c+2*rp,2)}, {v(c+2*rp,2)}, {v(t,2)}")
            A(f"v_cvt_pk_bf16_f32 v{H+2*j}, v{c}, v{c+1}"); A(f"v_cvt_pk_bf16_f32 v{H+2*j+1}, v{c+2}, v{c+3}")
    else:
        for j in range(7):
            c = acc(j,0)
            for r in range(4):
                z = 16 + 2*j + (r >> 1); t = 1 + (r & 1)
                if r & 1: A(f"v_and_b32 v{t}, 0xffff0000, v{z}")
                else: A(f"v_lshlrev_b32 v{t}, 16, v{z}")
                A(f"v_add_f32 v{c+r}, v{c+r}, v30")
                A(f"v_mul_f32 v{t}, v{t}, v31")
                A(f"v_mul_f32 v{c+r}, v{c+r}, v{t}")
            A(f"v_cvt_pk_bf16_f32 v{H+2*j}, v{c}, v{c+1}"); A(f"v_cvt_pk_bf16_f32 v{H+2*j+1}, v{c+2}, v{c+3}")
    ST(A, 'hcomp')
    A.bg_classes = ('valu', 'mfma')
    A.wait_vm(('Wo', 2))
    A("v_lshlrev_b32 v2, 3, v12")
    A(f"s_mul_i32 s24, s{S_CB}, 7"); A("s_lshr_b32 s33, s24, 1"); A("s_add_u32 s33, s33, 16"); A("s_lshl_b32 s33, s33, 12")
    A("s_lshl_b32 s23, s3, 10"); A("s_add_u32 s33, s33, s23")
    A("s_and_b32 s24, s24, 1"); A("s_cmp_eq_u32 s24, 0"); A(f"s_cbranch_scc0 {L('odd')}")
    vm0 = list(A.vm)
    for p in range(3):
        A(f"buffer_store_dwordx4 {v(H+4*p,4)}, v3, s[16:19], s33 offen sc1", tag='hst'); A("s_add_u32 s33, s33, 4096")
    A(f"buffer_store_dwordx2 {v(H+12,2)}, v2, s[16:19], s33 offen sc1", tag='hst')
    A(f"s_branch {L('hfin')}")
    A.label(L('odd')); A.vm = list(vm0)
    A(f"buffer_store_dwordx2 {v(H,2)}, v2, s[16:19], s33 offen offset:512 sc1", tag='hst')
    for p in range(3):
        A("s_add_u32 s33, s33, 4096"); A(f"buffer_store_dwordx4 {v(H+2+4*p,4)}, v3, s[16:19], s33 offen sc1", tag='hst')
    A.label(L('hfin'))
    ST(A, 12)
    if os.environ.get('OEARLY', '1') == '1': return (bg_mid, bg_late)
    for t, tg in bg_mid: A(t, tag=tg)
    return bg_late

def phase3(A, L, late):
    ACC = 32; acc = lambda uu, tau: ACC + (uu*4+tau)*4
    HA = 96
    def opart():
        for s_ in range(4):
            A.wait_vm([('Wo', s_), ('Ao', s_)])
            for tau in range(4):
                for uu in range(4):
                    c = v(acc(uu,tau),4)
                    A(f"v_mfma_f32_16x16x32_bf16 {c}, {a((s_*4+uu)*4,4)}, {a(176+(s_*4+tau)*4,4)}, {c if s_ else 0}")
    EARLY = os.environ.get('OEARLY', '1') == '1'
    if EARLY:
        mid, late = late
        A.bg += mid; A.bg_every = 4
        opart()
        A.bg_flush(); A.bg_every = 0
    A.wait_vm('hst'); ST(A, 'hack'); A("s_barrier")
    A(f"s_mul_i32 s27, s{S_RB2}, {FS}"); A(f"s_lshl_b32 s26, s{S_CB}, 3"); A("s_add_u32 s27, s27, s26"); A(f"s_add_u32 s27, s27, {WS_F2}")
    signal(A, L, 'sighd', 27)
    A(f"s_cmp_eq_u32 s{S_CB}, 7"); A(f"s_cbranch_scc1 {L('fin')}")
    ST(A, 13)
    if EARLY:
        for t, tg in late: A(t, tag=tg)
    else:
        nl = sum(1 for x in late if x[1] is not None)
        A.bg += late; A.bg_every = max(1, 60 // max(nl, 1))
        opart()
    A.bg_flush(); A.bg_every = 0
    ST(A, 'opart')
    A("s_mul_i32 s26, s3, 12288"); A("v_add_u32 v20, s26, v3")
    for tau in (1,2,3):
        A(f"s_xor_b32 s26, s3, {tau}"); A("s_mul_i32 s26, s26, 12288"); A(f"s_add_u32 s26, s26, {(tau-1)*4096}"); A(f"v_add_u32 v{20+tau}, s26, v3")
    A("v_bfe_u32 v15, v13, 2, 1"); A("v_lshlrev_b32 v15, 3, v15"); A("v_and_b32 v16, 3, v13"); A("v_add_u32 v15, v15, v16")
    A(f"s_lshl_b32 s26, s{S_RB2}, 6"); A("s_lshr_b32 s27, s3, 1"); A("s_lshl_b32 s27, s27, 5"); A("s_add_u32 s26, s26, s27")
    A("s_and_b32 s27, s3, 1"); A("s_lshl_b32 s27, s27, 2"); A("s_add_u32 s26, s26, s27")
    A("v_add_u32 v15, s26, v15"); A("v_mul_u32_u24 v15, 896, v15")
    A("v_lshrrev_b32 v16, 3, v13"); A("v_lshl_add_u32 v16, v16, 2, v14"); A("v_lshlrev_b32 v16, 4, v16")
    A(f"s_lshl_b32 s27, s{S_CB}, 7"); A("v_add_u32 v16, s27, v16"); A("v_add_u32 v1, v15, v16")
    A(f"s_mov_b32 s26, {16*896}")
    srd_from(A, 12, S_OUT, None, S*D*2)
    for tau in range(4):
        A(f"s_xor_b32 s24, s3, {tau}"); A("s_lshl_b32 s24, s24, 10"); A(f"v_lshl_add_u32 v{24+tau}, v12, 3, s24")
    A(f"s_mul_i32 s27, s{S_RB2}, {FS}"); A(f"s_add_u32 s27, s27, {WS_F2}"); A("v_lshl_add_u32 v17, v12, 3, s27")
    poll(A, L, 'pb', 17, 8)
    ST(A, 14)
    def hload(s_):
        out = [(t, None) for t in rot7(s_)]
        for tau in range(4):
            r = HA + (s_*4+tau)*4
            if s_ < 6: out.append((f"buffer_load_dwordx4 {v(r,4)}, v{5+tau}, s[16:19], s30 offen sc1", ('Ah', s_)))
            else:
                out.append((f"buffer_load_dwordx2 {v(r,2)}, v{24+tau}, s[16:19], s30 offen sc1", ('Ah', s_)))
                out.append((f"buffer_load_dwordx2 {v(r+2,2)}, v{24+tau}, s[16:19], s30 offen offset:512 sc1", ('Ah', s_)))
        return out
    for s_ in range(3):
        for t, tg in hload(s_): A(t, tag=tg)
    EW3 = os.environ.get('EARLYW', '0') == '1'
    for s_ in range(7):
        A.wait_vm(('Ah', s_))
        if s_ == 0: ST(A, 'ah0')
        if s_ == 6: ST(A, 'ahN')
        if s_ + 3 < 7: A.bg += hload(s_ + 3); A.bg_every = 3
        order = [(tau, uu) for tau in range(4) for uu in range(4)]
        if s_ == 6 and EW3: order = [(tau, uu) for tau in (1, 2, 3, 0) for uu in range(4)]
        for n_, (tau, uu) in enumerate(order):
            c = v(acc(uu,tau),4)
            A(f"v_mfma_f32_16x16x32_bf16 {c}, {a(64+(s_*4+uu)*4,4)}, {v(HA+(s_*4+tau)*4,4)}, {c}")
            if s_ == 6 and EW3 and n_ >= 8:
                t2, u2 = order[n_ - 8]
                if t2 != 0: A(f"ds_write_b128 v20, {v(acc(u2,t2),4)} offset:{(t2-1)*4096+u2*1024}", tag='w')
        A.bg_flush(); A.bg_every = 0
    if not os.environ.get('ENDST'): ST(A, 15)
    done = set(order[:8]) if EW3 else set()
    for tau in (1,2,3):
        for uu in range(4):
            if (tau, uu) not in done: A(f"ds_write_b128 v20, {v(acc(uu,tau),4)} offset:{(tau-1)*4096+uu*1024}", tag='w')
    A.wait_lg(); A("s_barrier")
    ST(A, 'p3red')
    T0 = 208
    for tau in (1,2,3):
        for uu in range(4): A(f"ds_read_b128 {v(T0+((tau-1)*4+uu)*4,4)}, v{20+tau} offset:{uu*1024}", tag=('r',tau))
    for tau in (1,2,3):
        A.wait_lg(('r',tau))
        for uu in range(4):
            c = acc(uu,0); t = T0+((tau-1)*4+uu)*4
            A(f"v_pk_add_f32 {v(c,2)}, {v(c,2)}, {v(t,2)}"); A(f"v_pk_add_f32 {v(c+2,2)}, {v(c+2,2)}, {v(t+2,2)}")
    for vv in range(2):
        o = 96 + 4*vv; c0 = acc(2*vv,0); c1 = acc(2*vv+1,0)
        A(f"v_cvt_pk_bf16_f32 v{o}, v{c0}, v{c0+1}"); A(f"v_cvt_pk_bf16_f32 v{o+1}, v{c0+2}, v{c0+3}")
        A(f"v_cvt_pk_bf16_f32 v{o+2}, v{c1}, v{c1+1}"); A(f"v_cvt_pk_bf16_f32 v{o+3}, v{c1+2}, v{c1+3}")
    A("v_cmp_gt_u32 vcc, 8, v13"); A("v_cmp_le_u32 s[24:25], 8, v13")
    for q in range(4):
        A(f"v_mov_b32_dpp v{104+q}, v{100+q} row_ror:8 row_mask:0xf bank_mask:0xf")
        A(f"v_mov_b32_dpp v{108+q}, v{96+q} row_ror:8 row_mask:0xf bank_mask:0xf")
    for q in range(4):
        A(f"v_cndmask_b32 v{104+q}, v{104+q}, v{96+q}, vcc")
        A(f"v_cndmask_b32 v{108+q}, v{108+q}, v{100+q}, s[24:25]")
    ST(A, 'p3st')
    A(f"buffer_store_dwordx4 v[104:107], v1, s[12:15], 0 offen {os.environ.get('OUTSC', 'sc1')}")
    A(f"buffer_store_dwordx4 v[108:111], v1, s[12:15], s26 offen {os.environ.get('OUTSC', 'sc1')}")

def gen_mega(name="mega", code_bytes=0):
    Stamps.map = [78+2*k for k in range(11)] + [4, 6, 42, 0, 74+0*0]
    A = Asm(); L = lambda x: f"{name}_{x}"
    A("s_cmp_ge_u32 s2, 256"); A(f"s_cbranch_scc1 {L('end')}")
    if os.environ.get('DELAY'):
        A.raw(f"  s_mov_b32 s30, {os.environ['DELAY']}")
        A.raw(f"{L('dly')}:")
        for q in range(16): A.raw(f"  v_add_u32 v{100+q}, v{100+q}, v0")
        A.raw("  s_sub_u32 s30, s30, 1"); A.raw("  s_cmp_lg_u32 s30, 0"); A.raw(f"  s_cbranch_scc1 {L('dly')}")
    ST(A, 0)
    A("s_load_dwordx16 s[36:51], s[0:1], 0")
    A("s_load_dwordx8 s[52:59], s[0:1], 64")
    A("v_lshrrev_b32 v6, 6, v0"); A("s_getreg_b32 s20, hwreg(HW_REG_XCC_ID)"); A("v_readfirstlane_b32 s3, v6")
    if code_bytes and os.environ.get('ECP', '1') == '1':
        A("s_cmp_lg_u32 s3, 1"); A(f"s_cbranch_scc1 {L('noecp')}")
        A.raw("  s_getpc_b64 s[22:23]"); A.raw(f"{name}_pc0:")
        A.raw("  v_and_b32 v10, 31, v0"); A.raw("  v_lshlrev_b32 v10, 7, v10"); A.raw("  v_bfe_u32 v11, v0, 5, 1")
        A.raw(f"  v_mul_u32_u24 v11, {L('qrole')}-{name}_pc0, v11"); A.raw("  v_add_u32 v10, v10, v11")
        A.raw("  global_load_dword v56, v10, s[22:23]")
        A.label(L('noecp'))
    A("v_and_b32 v12, 63, v0")
    A("s_and_b32 s20, s20, 7")
    A("v_and_b32 v13, 15, v12"); A("v_lshrrev_b32 v14, 4, v12")
    A(f"v_mov_b32 v18, {L_TICKET}"); A("v_mov_b32 v17, 0")
    A.wait_lg(); ST(A, 'karg')
    CH = os.environ.get('CHIPT', '1') == '1'
    A("s_cmp_lg_u32 s3, 0"); A(f"s_cbranch_scc1 {L('notick')}")
    A.raw("  s_lshl_b32 s30, s20, 5"); A.raw("  v_mov_b32 v10, s30"); A.raw("  v_mov_b32 v19, 1")
    A.raw("  s_mov_b64 s[34:35], exec"); A.raw("  s_mov_b64 exec, 1")
    A.raw(f"  global_atomic_add v59, v10, v19, s[{S_DBG}:{S_DBG+1}] sc0 sc1")
    A.raw("  s_mov_b64 exec, s[34:35]")
    A.label(L('notick'))
    if CH:
        A("s_lshl_b32 s24, s2, 2"); A("s_add_u32 s24, s24, s3")
        A("s_mul_i32 s25, s24, 1792"); A("v_min_u32 v57, 13, v12"); A("v_lshlrev_b32 v57, 7, v57"); A("v_add_u32 v58, s25, v57")
        A(f"global_load_dword v56, v58, s[{S_X}:{S_X+1}]", tag='pf')
        A("s_cmp_lt_u32 s24, 448"); A(f"s_cselect_b32 s28, s{S_WIN}, s{S_WQKV}"); A(f"s_cselect_b32 s29, s{S_WIN+1}, s{S_WQKV+1}")
        Z2O = os.environ.get('Z2ONLY', '0') == '1'
        A(f"s_cselect_b32 s26, {13 if Z2O else 27}, 20"); A("s_cselect_b32 s27, 4, 3"); A("s_cselect_b32 s25, 0, 448")
        if Z2O: A("s_cselect_b32 s30, 2, 0"); A("s_mul_i32 s30, s30, 896")
        A("s_mul_i32 s27, s27, 896")
        A("s_sub_u32 s25, s24, s25"); A("s_min_u32 s25, s25, 447"); A("s_mul_i32 s25, s25, s27")
        if Z2O: A("s_add_u32 s25, s25, s30")
        A("v_min_u32 v57, s26, v12"); A("v_lshlrev_b32 v57, 7, v57"); A("v_add_u32 v58, s25, v57")
        A("global_load_dword v56, v58, s[28:29]", tag='pf')
    A("s_cmp_lg_u32 s3, 0"); A(f"s_cbranch_scc1 {L('tickd')}")
    A.raw(f"  s_waitcnt vmcnt({2 if CH else 0})")
    A.raw("  v_readfirstlane_b32 s30, v59"); A.raw("  s_nop 1"); A.raw("  v_mov_b32 v59, s30")
    A.raw("  ds_write_b32 v18, v59"); A.raw("  s_waitcnt lgkmcnt(0)")
    A.label(L('tickd'))
    A("s_barrier"); ST(A, 'tkb')
    A("ds_read_b32 v19, v18", tag='tk')
    A("s_cmp_lg_u32 s3, 0"); A(f"s_cbranch_scc1 {L('notag')}")
    tag_publish(A, L)
    A.wait_lg()
    A("v_readfirstlane_b32 s21, v19")
    A("s_cmp_ge_u32 s21, 32"); A(f"s_cbranch_scc1 {L('end')}")
    A("s_lshl_b32 s24, s21, 2"); A("s_add_u32 s24, s24, s3")
    if not CH:
        A("s_and_b32 s25, s20, 1"); A("s_mul_i32 s26, s25, 896")
        A("s_cmp_lt_u32 s24, 43"); A(f"s_cbranch_scc1 {L('tx')}")
        A.raw("  s_cmp_lt_u32 s24, 83"); A.raw(f"  s_cbranch_scc1 {L('tw')}")
        A.raw("  s_sub_u32 s27, s24, 83"); A.raw("  s_mul_i32 s27, s27, 8"); A.raw("  v_lshrrev_b32 v57, 3, v12"); A.raw("  v_add_u32 v57, s27, v57"); A.raw("  v_min_u32 v57, 319, v57")
        A.raw("  v_and_b32 v15, 7, v12"); A.raw("  v_min_u32 v15, 5, v15")
        A.raw("  v_lshrrev_b32 v16, 1, v15"); A.raw("  v_mul_u32_u24 v16, 896, v16"); A.raw("  v_and_b32 v15, 1, v15"); A.raw("  v_lshl_add_u32 v15, v15, 8, v16")
        A.raw("  s_lshr_b32 s26, s26, 1"); A.raw("  v_add_u32 v15, s26, v15")
        A.raw("  v_lshrrev_b32 v61, 3, v12"); A.raw("  s_sub_u32 s27, s24, 83"); A.raw("  s_mul_i32 s27, s27, 3"); A.raw("  v_min_u32 v61, 2, v61"); A.raw("  v_add_u32 v61, s27, v61"); A.raw("  v_add_u32 v61, 320, v61"); A.raw("  v_min_u32 v61, 447, v61")
        A.raw("  v_mul_u32_u24 v61, 2688, v61"); A.raw("  v_add_u32 v61, v61, v15")
        A.raw("  v_mul_u32_u24 v57, 2688, v57"); A.raw("  v_add_u32 v57, v57, v15")
        A.raw("  v_add_u32 v60, 128, v57"); A.raw("  v_add_u32 v62, 128, v61")
        A.raw(f"  global_load_dword v56, v60, s[{S_WQKV}:{S_WQKV+1}]")
        A.raw(f"  s_mov_b32 s28, s{S_WQKV}"); A.raw(f"  s_mov_b32 s29, s{S_WQKV+1}"); A.raw(f"  s_branch {L('tgo')}")
        A.raw(f"{L('tw')}:")
        A.raw("  s_sub_u32 s27, s24, 43"); A.raw("  s_lshl_b32 s27, s27, 3"); A.raw("  v_lshrrev_b32 v57, 3, v12"); A.raw("  v_add_u32 v57, s27, v57")
        A.raw("  v_and_b32 v15, 7, v12"); A.raw("  v_min_u32 v15, 6, v15"); A.raw("  v_lshlrev_b32 v15, 7, v15"); A.raw("  s_add_u32 s26, s26, 1792"); A.raw("  v_add_u32 v15, s26, v15")
        A.raw("  s_sub_u32 s27, s24, 43"); A.raw("  s_lshl_b32 s27, s27, 2"); A.raw("  v_lshrrev_b32 v61, 3, v12"); A.raw("  v_min_u32 v61, 3, v61"); A.raw("  v_add_u32 v61, s27, v61"); A.raw("  v_add_u32 v61, 320, v61"); A.raw("  v_min_u32 v61, 447, v61")
        A.raw("  v_mul_u32_u24 v61, 3584, v61"); A.raw("  v_add_u32 v61, v61, v15"); A.raw("  v_mov_b32 v62, v61")
        A.raw("  v_mul_u32_u24 v57, 3584, v57"); A.raw("  v_add_u32 v57, v57, v15")
        A.raw(f"  s_mov_b32 s28, s{S_WIN}"); A.raw(f"  s_mov_b32 s29, s{S_WIN+1}"); A.raw(f"  s_branch {L('tgo')}")
        A.raw(f"{L('tx')}:")
        A.raw("  s_lshr_b32 s27, s20, 1"); A.raw("  s_lshl_b32 s27, s27, 9"); A.raw("  s_mul_i32 s28, s24, 12")
        A.raw("  v_mul_u32_u24 v57, 13108, v12"); A.raw("  v_lshrrev_b32 v57, 16, v57")
        A.raw("  v_mul_u32_u24 v15, 5, v57"); A.raw("  v_sub_u32 v15, v12, v15")
        A.raw("  v_min_u32 v57, 11, v57"); A.raw("  v_add_u32 v57, s28, v57"); A.raw("  v_min_u32 v57, 511, v57"); A.raw("  v_add_u32 v57, s27, v57"); A.raw("  v_mul_u32_u24 v57, 896, v57")
        A.raw("  v_and_b32 v16, 1, v15"); A.raw("  v_add_u32 v16, 5, v16"); A.raw("  v_lshl_add_u32 v61, v16, 7, v57"); A.raw("  v_mov_b32 v62, v61"); A.raw("  v_lshl_add_u32 v57, v15, 7, v57")
        A.raw(f"  s_mov_b32 s28, s{S_X}"); A.raw(f"  s_mov_b32 s29, s{S_X+1}")
        A.label(L('tgo'))
        A("global_load_dword v56, v57, s[28:29]", tag='pf')
        A("s_mov_b32 s30, s28"); A("s_mov_b32 s31, s29")
    if code_bytes:
        assert code_bytes <= 512*128
        A("s_getpc_b64 s[22:23]"); A.raw(f"{name}_pc:")
        A("v_and_b32 v10, 3, v0"); A("s_lshl_b32 s25, s24, 2"); A("v_add_u32 v10, s25, v10"); A("v_lshlrev_b32 v10, 7, v10")
        A(f"v_min_u32 v10, {L('end')}-{name}_pc, v10"); A("global_load_dword v56, v10, s[22:23]", tag='pf')
    A("s_lshl_b32 s2, s21, 3"); A("s_or_b32 s2, s2, s20")
    A("s_lshr_b32 s33, s21, 4"); A("s_and_b32 s21, s21, 15")
    A("s_lshr_b32 s22, s20, 1"); A("s_lshl_b32 s22, s22, 2"); A("s_lshr_b32 s23, s21, 2"); A("s_add_u32 s22, s22, s23")
    A("s_and_b32 s20, s20, 1"); A("s_lshl_b32 s20, s20, 2"); A("s_and_b32 s21, s21, 3"); A("s_add_u32 s21, s21, s20")
    A("s_mov_b32 s20, s22"); A("s_lshl_b32 s22, s20, 1"); A("s_add_u32 s22, s22, s33")
    ST(A, 'tick')
    A("s_cmp_eq_u32 s33, 0"); A(f"s_cbranch_scc0 {L('qrole')}")
    vm0 = list(A.vm); lg0 = list(A.lg)
    role_z(A, L)
    vmz = list(A.vm)
    A(f"s_branch {L('p2')}")
    A.label(L('qrole')); A.vm = list(vm0); A.lg = list(lg0)
    role_q(A, L)
    vmj = list(A.vm)
    assert vmj[-21:] == vmz[-21:], (vmj, vmz)
    vmj = vmj[-21:] if len(vmj) >= len(vmz) else vmz
    A.label(L('p2')); A.vm = vmj; A.lg = []
    wl = phase2_tail(A, L)
    phase3(A, L, wl)
    if Stamps.enabled:
        A.raw("  s_waitcnt vmcnt(0)")
        if os.environ.get('ENDST'): Stamps.mark(A, 15)
    A.label(L('fin'))
    if os.environ.get('DBGOUT'):
        A.raw("  s_waitcnt vmcnt(0) lgkmcnt(0)")
        A.raw(f"  s_cmp_lg_u32 s2, {os.environ['DBGOUT']}"); A.raw(f"  s_cbranch_scc1 {L('end')}"); A.raw("  s_cmp_lg_u32 s3, 0"); A.raw(f"  s_cbranch_scc1 {L('end')}")
        A.raw("  v_mov_b32 v250, 0")
        for k in range(1, 15):
            kk = k if k < 14 else 15
            A.raw(f"  s_sub_u32 s100, s{Stamps.reg(kk)}, s{Stamps.reg(0)}"); A.raw("  v_mov_b32 v251, s100")
            A.raw(f"  global_store_dword v250, v251, s[{S_DBG}:{S_DBG+1}] offset:{4*(k+1)}")
    else:
        Stamps.flush(A, 0, 16, S_WS)
    A.label(L('end'))
    A("s_endpgm")
    return A

if __name__ == "__main__":
    import sys, asmlib
    from build import assemble
    if len(sys.argv) > 2 and sys.argv[2].startswith('stamp'): asmlib.Stamps.enabled = True
    if len(sys.argv) > 2 and sys.argv[2] == 'stampcyc': asmlib.Stamps.op = 's_memtime'
    t = gen_mega().text(); sz = len([l for l in t.split('\n') if l.startswith('  ')])*8
    A = gen_mega(code_bytes=sz)
    if os.environ.get('FINAL'):
        from build import assemble_single
        open(sys.argv[1], 'w').write(assemble_single(dict(name="gated_mix__sliding_local_dilated__mixer_gmlp__prompt_kernel", text=A.text(), grid=256, block=256, lds=163840, vgpr=512, accum=256)))
    else:
        open(sys.argv[1], 'w').write(assemble([dict(name="mega_kernel", text=A.text(), grid=256, block=256, lds=163840, vgpr=512, accum=256)]))
    print("nops", A.nops_inserted, "est bytes", sz)
```

```python
import sys, importlib
from layout import *
HEADER = open('gated_mix__sliding_local_dilated__mixer_gmlp__prompt.s.ref').read().split('; Override launch')[0]
KD = """.amdhsa_kernel {name}
  .amdhsa_next_free_vgpr {vgpr}
  .amdhsa_next_free_sgpr 102
  .amdhsa_accum_offset {accum}
  .amdhsa_group_segment_fixed_size 0
  .amdhsa_kernarg_size 96
  .amdhsa_user_sgpr_count 2
  .amdhsa_user_sgpr_kernarg_segment_ptr 1
  .amdhsa_system_sgpr_workgroup_id_x 1
.end_amdhsa_kernel
"""
def assemble(kernels):
    out = [HEADER.rstrip()]
    for k in kernels:
        out.append(f"; @launch kernel={k['name']} grid=({k['grid']},1,1) block=({k['block']},1,1) lds={k['lds']}")
    out.append('.amdgcn_target "amdgcn-amd-amdhsa--gfx950"')
    out.append('.text')
    for k in kernels:
        out += [f".globl {k['name']}", ".p2align 8", f".type {k['name']},@function", f"{k['name']}:", k['text']]
    out.append('.section .rodata,"a"')
    for k in kernels:
        out.append('.p2align 6')
        out.append(KD.format(name=k['name'], vgpr=k['vgpr'], accum=k['accum']))
    return "\n".join(out) + "\n"


DOC = """; ---------------------------------------------------------------------------------------------------------------
; ---------------------------------------------------------------------------------------------------------------"""

def assemble_single(k):
    out = [HEADER.rstrip()]
    out.append(f"; @launch grid=({k['grid']},1,1) block=({k['block']},1,1) lds={k['lds']}")
    out.append(DOC)
    out.append('.amdgcn_target "amdgcn-amd-amdhsa--gfx950"')
    out.append('.text')
    out += [f".globl {k['name']}", ".p2align 8", f".type {k['name']},@function", f"{k['name']}:", k['text']]
    out.append('.section .rodata,"a"')
    out.append('.p2align 6')
    out.append(KD.format(name=k['name'], vgpr=k['vgpr'], accum=k['accum']))
    return "\n".join(out) + "\n"
```

```python
from asmlib import *
from layout import *
from k1z import hexf, gelu_pairs, GELU_C1, GELU_C2
import os
PROFILE = os.environ.get('PROFILE', 'all')
SLEEP = int(os.environ.get('SLEEP', '2'))
NT = 'nt ' if os.environ.get('NTW') == '1' else ''
NTA = 'nt ' if os.environ.get('NTA') == '1' else ''
def ST(A, k):
    if PROFILE == 'all':
        if isinstance(k, int): Stamps.mark(A, k)
    elif PROFILE == 'p1':
        if isinstance(k, str): return
        if isinstance(k, int) and k in (0, 1, 2): Stamps.mark(A, k)
        elif isinstance(k, int) and k == 3: Stamps.mark(A, 10)
        elif isinstance(k, int) and k == 4: Stamps.mark(A, 11)
        elif isinstance(k, tuple) and k[0] == 'g': Stamps.mark(A, 3 + k[1])
        elif isinstance(k, int) and k in (5, 6, 7, 8): Stamps.mark(A, 7 + k)
    elif PROFILE == 'p9':
        m = {0: 0, 3: 1, 'gelu1': 2, 'stat1': 3, 4: 4, 'w2': 5, 5: 6, 7: 7, 'lnq': 8, 'comb': 9, 'norm': 10, 'pubw': 11, 6: 12, 9: 13, 10: 14, 8: 15}
        if k in m: Stamps.mark(A, m[k])
    elif PROFILE == 'p8':
        if k == 0: Stamps.mark(A, 0)
        elif isinstance(k, tuple) and k[0] == 'gs' and k[1] in (2, 3): Stamps.mark(A, 1 + (k[1]-2)*6 + k[2])
    elif PROFILE == 'p7':
        m = {0: 0, 11: 1, 'red_w': 2, 'red_b': 3, 'red_r': 4, 'hcomp': 5, 12: 6, 'hack': 7, 13: 8, 'opart': 9, 14: 10, 'ah0': 11, 'ahN': 12, 'p3red': 13, 'p3st': 14}
        if k in m: Stamps.mark(A, m[k])
    elif PROFILE == 'p6':
        m = {0: 0, 'karg': 1, 'tkb': 2, 'tick': 3, 'rsetup': 4, 1: 5, 2: 6, ('g', 0): 7, ('g', 1): 8, ('g', 2): 9, ('g', 3): 10, 3: 11}
        if k in m: Stamps.mark(A, m[k])
    elif PROFILE == 'p5':
        if k == 0: Stamps.mark(A, 0)
        elif k == 10: Stamps.mark(A, 1)
        elif isinstance(k, tuple) and k[0] == 'kk' and k[1] in (0,1,2,3,4,5,6,8,10,12,14,15): Stamps.mark(A, 2 + (0,1,2,3,4,5,6,8,10,12,14,15).index(k[1]))
        elif k == 11: Stamps.mark(A, 14)
    elif PROFILE == 'p4':
        m = {0: 0, 3: 1, 4: 2, 'w2': 3, ('au', 0): 4, ('au', 1): 5, ('au', 2): 6, ('au', 3): 7, ('au', 4): 8, ('au', 5): 9, ('au', 6): 10, ('au', 7): 11, 5: 12, 7: 13, 6: 14}
        if k in m: Stamps.mark(A, m[k])
    elif PROFILE == 'p3':
        m = {0: 0, 3: 1, 4: 2, 5: 3, 6: 4, 7: 5, 'lnq': 6, 'norm': 7, 'pubw': 8, 'sig': 9, 8: 10, 10: 11, 11: 12, 'w2': 13, 'st0': 14, 'st3': 15}
        if k in m: Stamps.mark(A, m[k])
    elif PROFILE == 'p2':
        m = {0: 0, 3: 1, 4: 2, 8: 13, 10: 14, 'z1in': 3, 'z1out': 11, 'z1epi': 12, 11: 15}
        if isinstance(k, tuple) and k[0] == 'z': Stamps.mark(A, 4 + k[1])
        elif k in m: Stamps.mark(A, m[k])

S_X, S_WQKV, S_WO, S_WIN, S_WSP, S_BSP, S_WOUT = 36, 38, 40, 44, 46, 48, 50
S_GW, S_OUT, S_DBG, S_WS = 52, 54, 56, 58
S_RB, S_CB, S_RB2 = 20, 21, 22
SRD_A = 60
OOB = 0x7fff0000
C_LN, C_ZD, C_QD, C_HD = 0, 16, 24, 32

def srd_from(A, d, ptr, off_sreg, nbytes):
    if off_sreg is None:
        A(f"s_mov_b32 s{d}, s{ptr}"); A(f"s_and_b32 s{d+1}, s{ptr+1}, 0xffff")
    else:
        A(f"s_add_u32 s{d}, s{ptr}, s{off_sreg}"); A(f"s_addc_u32 s{d+1}, s{ptr+1}, 0"); A(f"s_and_b32 s{d+1}, s{d+1}, 0xffff")
    A(f"s_mov_b32 s{d+2}, {nbytes}"); A(f"s_mov_b32 s{d+3}, 0x20000")

S_TAG = 76
def tag_publish(A, L):
    A.raw("  s_cmp_lg_u32 s2, 0"); A.raw(f"  s_cbranch_scc1 {L('notag')}")
    A.raw("  s_memrealtime s[30:31]"); A.raw("  s_waitcnt lgkmcnt(0)"); A.raw("  s_or_b32 s30, s30, 1")
    A.raw("  v_mov_b32 v60, s30"); A.raw("  v_mov_b32 v61, s31"); A.raw("  v_mov_b32 v62, 16")
    A.raw("  s_mov_b64 s[34:35], exec"); A.raw("  s_mov_b64 exec, 1")
    A.raw(f"  global_store_dwordx2 v62, v[60:61], s[{S_DBG}:{S_DBG+1}] sc1")
    A.raw("  s_mov_b64 exec, s[34:35]")
    A.raw(f"{L('notag')}:")
def tag_issue(A):
    A("v_mov_b32 v9, 16"); A(f"global_load_dwordx2 v[10:11], v9, s[{S_DBG}:{S_DBG+1}] sc1", tag='tagld')
def tag_take(A, L):
    A.wait_vm('tagld')
    A(f"v_readfirstlane_b32 s{S_TAG}, v10"); A(f"v_readfirstlane_b32 s{S_TAG+1}, v11")
    A(f"s_cmp_lg_u32 s{S_TAG}, 0"); A(f"s_cbranch_scc1 {L('tagd')}")
    A.raw("  s_mov_b32 s33, 0")
    A.raw(f"{L('tagl')}:")
    A.raw(f"  global_load_dwordx2 v[10:11], v9, s[{S_DBG}:{S_DBG+1}] sc1")
    A.raw("  s_add_u32 s33, s33, 1")
    A.raw("  s_waitcnt vmcnt(0)")
    A.raw(f"  v_readfirstlane_b32 s{S_TAG}, v10"); A.raw(f"  v_readfirstlane_b32 s{S_TAG+1}, v11")
    A.raw("  s_nop 1")
    A.raw(f"  s_cmp_lg_u32 s{S_TAG}, 0"); A.raw(f"  s_cbranch_scc1 {L('tagd')}")
    A.raw("  s_cmp_lt_u32 s33, 0x20000"); A.raw(f"  s_cbranch_scc1 {L('tagl')}")
    A.label(L('tagd'))

def signal(A, L, tag, off_sreg, vtmp=16):
    A("s_cmp_lg_u32 s3, 0"); A(f"s_cbranch_scc1 {L(tag)}")
    A.raw(f"  v_mov_b32 v{vtmp+2}, s{off_sreg}"); A.raw(f"  v_mov_b32 v{vtmp}, s{S_TAG}"); A.raw(f"  v_mov_b32 v{vtmp+1}, s{S_TAG+1}")
    A.raw("  s_mov_b64 s[34:35], exec"); A.raw("  s_mov_b64 exec, 1")
    A.raw(f"  global_store_dwordx2 v{vtmp+2}, v[{vtmp}:{vtmp+1}], s[{S_WS}:{S_WS+1}] sc1")
    A.raw("  s_mov_b64 exec, s[34:35]")
    A.label(L(tag))

def poll(A, L, tag, vaddr, nlanes):
    A("s_cmp_lg_u32 s3, 0"); A(f"s_cbranch_scc1 {L(tag+'_done')}")
    A.raw("  s_mov_b32 s33, 0"); A.raw("  s_mov_b64 s[34:35], exec"); A.raw(f"  s_mov_b64 exec, {hex((1 << nlanes) - 1) if nlanes < 64 else -1}")
    A.label(L(tag+'_loop'))
    A.raw(f"  global_load_dwordx2 v[18:19], v{vaddr}, s[{S_WS}:{S_WS+1}] sc1")
    A.raw("  s_add_u32 s33, s33, 1")
    A.raw("  s_waitcnt vmcnt(0)")
    A.raw(f"  v_xor_b32 v18, s{S_TAG}, v18"); A.raw(f"  v_xor_b32 v19, s{S_TAG+1}, v19"); A.raw("  v_or_b32 v18, v18, v19")
    A.raw("  v_cmp_eq_u32 vcc, 0, v18")
    A.raw("  s_nop 1")
    A.raw("  s_cmp_eq_u64 vcc, exec")
    A.raw(f"  s_cbranch_scc1 {L(tag+'_out')}")
    A.raw(f"  s_sleep {SLEEP}")
    A.raw("  s_cmp_lt_u32 s33, 0x20000")
    A.raw(f"  s_cbranch_scc1 {L(tag+'_loop')}")
    A.label(L(tag+'_out'))
    A.raw("  s_mov_b64 exec, s[34:35]")
    A.label(L(tag+'_done'))
    A("s_barrier")

def poll_wave(A, L, tag, vaddr, reset=True):
    A.raw("  s_mov_b32 s33, 0")
    A.label(L(tag+'_loop'))
    A.raw(f"  global_load_dwordx2 v[18:19], v{vaddr}, s[{S_WS}:{S_WS+1}] sc1")
    A.raw("  s_add_u32 s33, s33, 1")
    A.raw("  s_waitcnt vmcnt(0)")
    A.raw(f"  v_xor_b32 v18, s{S_TAG}, v18"); A.raw(f"  v_xor_b32 v19, s{S_TAG+1}, v19"); A.raw("  v_or_b32 v18, v18, v19")
    A.raw("  v_cmp_eq_u32 vcc, 0, v18")
    A.raw("  s_nop 1")
    A.raw("  s_cmp_eq_u64 vcc, exec")
    A.raw(f"  s_cbranch_scc1 {L(tag+'_out')}")
    A.raw(f"  s_sleep {SLEEP}")
    A.raw("  s_cmp_lt_u32 s33, 0x20000")
    A.raw(f"  s_cbranch_scc1 {L(tag+'_loop')}")
    A.label(L(tag+'_out'))
    if reset: A.vm = []

class Rec:
    def __init__(self): self.items = []
    def __call__(self, text, tag=None): self.items.append([(text, tag)])
    def group(self, fn):
        n = len(self.items); fn(); g = [x for it in self.items[n:] for x in it]; del self.items[n:]; self.items.append(g)

class AService:
    VD, VR, VL = 232, 236, 240
    def __init__(self, A): self.A = A
    def setup(self, rec=None):
        A = rec or self.A; G = (lambda fn: rec.group(fn)) if rec is not None else (lambda fn: fn())
        G(lambda: (A(f"s_lshl_b32 s33, s{S_RB2}, 18"), srd_from(A, SRD_A, S_WSP, 33, 64*4096)))
        A("v_lshrrev_b32 v16, 3, v12"); A("v_and_b32 v17, 7, v12"); A("v_and_b32 v18, 3, v16"); A("v_xor_b32 v17, v17, v18")
        A("v_lshlrev_b32 v17, 4, v17"); A("v_lshl_add_u32 v17, v16, 12, v17")
        for uu in range(4):
            if uu & 1: A(f"v_xor_b32 v{self.VD+uu}, 64, v17")
            else: A(f"v_mov_b32 v{self.VD+uu}, v17")
            if uu: A(f"v_add_u32 v{self.VD+uu}, {uu*(32768-1024)}, v{self.VD+uu}")
        A("v_lshrrev_b32 v16, 2, v13"); A("v_lshlrev_b32 v16, 3, v16"); A("v_and_b32 v17, 3, v13"); A("v_add_u32 v16, v16, v17")
        A("v_and_b32 v17, 7, v13"); A("v_xor_b32 v17, v17, v14"); A("v_lshlrev_b32 v17, 4, v17"); A(f"v_lshl_add_u32 v{self.VL}, v16, 7, v17")
        G(lambda: (A("s_lshr_b32 s33, s3, 1"), A("s_lshl_b32 s68, s33, 17"), A("s_lshl_b32 s33, s3, 10"), A("s_add_u32 s68, s68, s33"), A("s_xor_b32 s69, s68, 0x20000")))
    BASES = {'A': (74, 236), 'B': (75, 241)}
    def base(self, name, per_wave, start, rec=None):
        A = rec or self.A; sr, vr = self.BASES[name]
        def body():
            A(f"s_mul_i32 s{sr}, s3, {per_wave}"); A(f"s_add_u32 s{sr}, s{sr}, {start}")
            A("s_and_b32 s33, s3, 1"); A("s_lshl_b32 s33, s33, 9"); A(f"s_add_u32 s33, s33, s{sr}")
            for b in range(2):
                if b: A("s_xor_b32 s33, s33, 512")
                A(f"v_add_u32 v{vr+2*b}, s33, v{self.VL}"); A(f"v_xor_b32 v{vr+2*b+1}, 64, v{vr+2*b}")
        if rec is not None: rec.group(body)
        else: body()
    def dma(self, n, slot):
        ss, gt = n >> 1, n & 1; sr, vr = self.BASES[slot[0]]
        if os.environ.get('ROT', '0') == '1':
            so = [(f"s_add_u32 s70, s{S_RB2}, {ss}", None), ("s_and_b32 s70, s70, 7", None), ("s_lshl_b32 s70, s70, 7", None), (f"s_add_u32 s70, s70, s{68+gt}", None)]
        else: so = [(f"s_add_u32 s70, s{68+gt}, {ss*128}", None)]
        return [(f"s_add_u32 m0, s{sr}, {slot[1]*4096}", None)] + so + \
               [(f"buffer_load_dwordx4 v{self.VD+uu}, s[{SRD_A}:{SRD_A+3}], s70 offen offset:{uu*1024} {NTA}lds", ('Au', n)) for uu in range(4)]
    def read(self, n, slot):
        ss, gt = n >> 1, n & 1; sr, vr = self.BASES[slot[0]]
        for b in range(2):
            for h in range(2):
                tau = 2*gt + b
                self.A(f"ds_read_b128 {a((ss*8 + h*4 + tau)*4, 4)}, v{vr+2*b+h} offset:{slot[1]*4096}", tag=('Ar', n))
    def emit_dma(self, units, slots):
        for n, sl in zip(units, slots):
            for t, tg in self.dma(n, sl): self.A(t, tag=tg)
    def bg_dma(self, units, slots):
        for n, sl in zip(units, slots): self.A.bg += self.dma(n, sl)
    def wait_read(self, units, slots):
        self.A.wait_vm(('Au', units[-1]))
        for n, sl in zip(units, slots): self.read(n, sl)

class WFJob:
    def __init__(self, A): self.A = A
    def setup(self, slot_sreg, slot_off):
        A = self.A
        A(f"s_lshl_b32 s23, s{S_RB}, 3"); A(f"s_add_u32 s23, s23, s{S_CB}"); A("s_lshl_b32 s23, s23, 2"); A("s_add_u32 s23, s23, s3")
        A("s_min_u32 s24, s23, 307")
        A("s_mul_i32 s26, s24, 1490"); A("s_lshr_b32 s26, s26, 16")
        A("s_mul_i32 s27, s26, 44"); A("s_sub_u32 s27, s24, s27")
        A("s_mul_i32 s28, s27, 28"); A("s_mul_i32 s29, s27, 32"); A("s_sub_u32 s29, s29, 512")
        A("s_cmp_lt_u32 s27, 16")
        A("s_cselect_b32 s28, s28, s29")
        A(f"s_cselect_b32 s8, s{S_WO}, s{S_WOUT}"); A(f"s_cselect_b32 s9, s{S_WO+1}, s{S_WOUT+1}"); A("s_cselect_b32 s29, 28, 32")
        A("s_and_b32 s9, s9, 0xffff"); A("s_add_u32 s29, s29, s28"); A("s_mul_i32 s10, s29, 896"); A("s_mov_b32 s11, 0x20000")
        A("s_mul_i32 s28, s28, 896"); A("s_lshl_b32 s26, s26, 7"); A("s_add_u32 s13, s28, s26")
        A("s_lshl_b32 s14, s23, 12")
        A("s_cmp_ge_u32 s23, 308"); A("s_cselect_b32 s10, 0, s10")
        A(f"s_add_u32 s12, s{slot_sreg}, {slot_off}")
        A("v_lshrrev_b32 v16, 3, v12"); A("v_and_b32 v17, 7, v12"); A("v_bfe_u32 v18, v16, 1, 1"); A("v_lshlrev_b32 v18, 2, v18"); A("v_xor_b32 v17, v17, v18")
        A("v_mul_u32_u24 v16, 896, v16"); A("v_lshl_add_u32 v40, v17, 4, v16")
        for uu in range(1, 4): A(f"v_add_u32 v{40+uu}, {uu*(8*896-1024)}, v40")
        A("v_lshrrev_b32 v16, 2, v13"); A("v_lshl_add_u32 v16, v14, 2, v16"); A("v_lshlrev_b32 v16, 7, v16")
        A("v_and_b32 v17, 3, v13"); A("v_bfe_u32 v18, v13, 3, 1"); A("v_lshlrev_b32 v18, 2, v18"); A("v_xor_b32 v17, v17, v18"); A("v_lshl_add_u32 v16, v17, 4, v16")
        A("v_add_u32 v44, s12, v16"); A("v_xor_b32 v45, 64, v44")
    def dma(self):
        return [("s_mov_b32 m0, s12", None)] + [(f"buffer_load_dwordx4 v{40+uu}, s[8:11], s13 offen offset:{uu*1024} lds", 'wfj') for uu in range(4)]
    def finish(self):
        A = self.A
        A.wait_vm('wfj')
        for uu in range(4):
            for sec in range(2):
                A(f"ds_read_b64_tr_b16 {v(40+4*uu+2*sec,2)}, v{44 + (uu >> 1)} offset:{8*(uu & 1) + 2048*sec}", tag='wfr') if False else None
        for uu in range(4):
            for sec in range(2):
                A(f"ds_read_b64_tr_b16 {v(48+4*uu+2*sec,2)}, v{44 + (uu >> 1)} offset:{8*(uu & 1) + 2048*sec}", tag='wfr')
        A(f"s_mov_b32 s23, {WS_WF}"); srd_from(A, 8, S_WS, 23, 1232*1024)
        A("v_lshlrev_b32 v40, 4, v12")
        A("s_cmp_ge_u32 s14, 1261568"); A("s_cselect_b32 s10, 0, s10")
        A.wait_lg('wfr')
        for uu in range(4): A(f"buffer_store_dwordx4 {v(48+4*uu,4)}, v40, s[8:11], s14 offen offset:{uu*1024} sc1", tag='pubst')

def touch_lines(A, ptr, vaddr, n, step, vdst=56):
    for k in range(n):
        A(f"global_load_dword v{vdst}, v{vaddr}, s[{ptr}:{ptr+1}]", tag='touch')
        if k + 1 < n: A(f"v_add_u32 v{vaddr}, {step}, v{vaddr}")

def touch_z1w(A):
    A(f"s_and_b32 s27, s{S_RB}, 3"); A("s_lshl_b32 s27, s27, 2"); A(f"s_and_b32 s28, s{S_CB}, 3"); A("s_add_u32 s27, s27, s28"); A("s_lshl_b32 s27, s27, 2"); A("s_add_u32 s27, s27, s3")
    A(f"s_mul_i32 s27, s27, {7*3584}"); A(f"s_lshr_b32 s28, s{S_CB}, 2"); A("s_mul_i32 s28, s28, 896"); A("s_add_u32 s27, s27, s28")
    A("v_lshrrev_b32 v57, 3, v12"); A("v_min_u32 v57, 6, v57"); A("v_mul_u32_u24 v57, 3584, v57"); A("v_and_b32 v58, 7, v12"); A("v_min_u32 v58, 6, v58")
    A("v_lshl_add_u32 v57, v58, 7, v57"); A("v_add_u32 v57, s27, v57")
    A(f"global_load_dword v56, v57, s[{S_WIN}:{S_WIN+1}]", tag='touch')

def prefetch_wsp_list(kind=None):
    if (kind or os.environ.get('PREF', 'chip')) in ('chip', 'both') and kind != 'die':
        return [(f"s_lshl_b32 s75, s{S_RB2}, 18", None), (f"s_lshl_b32 s100, s{S_CB}, 15", None), ("s_add_u32 s75, s75, s100", None),
                ("s_lshl_b32 s100, s3, 13", None), ("s_add_u32 s75, s75, s100", None),
                ("v_lshlrev_b32 v60, 7, v12", None), ("v_add_u32 v60, s75, v60", None),
                (f"global_load_dword v56, v60, s[{S_WSP}:{S_WSP+1}]", 'touch')]
    return [(f"s_lshl_b32 s75, s{S_RB2}, 18", None), (f"s_and_b32 s100, s{S_CB}, 3", None), ("s_lshl_b32 s100, s100, 16", None), ("s_add_u32 s75, s75, s100", None),
            ("s_lshl_b32 s100, s3, 14", None), ("s_add_u32 s75, s75, s100", None),
            ("v_lshlrev_b32 v60, 7, v12", None), ("v_add_u32 v60, s75, v60", None),
            (f"global_load_dword v56, v60, s[{S_WSP}:{S_WSP+1}]", 'touch'), ("v_add_u32 v60, 0x2000, v60", None),
            (f"global_load_dword v56, v60, s[{S_WSP}:{S_WSP+1}]", 'touch')]
def touch_small(A):
    A(f"s_lshl_b32 s27, s{S_RB}, 3"); A(f"s_add_u32 s27, s27, s{S_CB}"); A("s_lshl_b32 s27, s27, 2"); A("s_add_u32 s27, s27, s3"); A("s_min_u32 s27, s27, 447")
    A("s_mul_i32 s28, s27, 1792"); A("v_min_u32 v57, 13, v12"); A("v_lshlrev_b32 v57, 7, v57"); A("v_add_u32 v58, s28, v57")
    A(f"global_load_dword v56, v58, s[{S_WOUT}:{S_WOUT+1}]", tag='touch')
    A("s_mul_i32 s28, s27, 896"); A("v_min_u32 v57, 6, v12"); A("v_lshlrev_b32 v57, 7, v57"); A("v_add_u32 v58, s28, v57")
    A(f"global_load_dword v56, v58, s[{S_WO}:{S_WO+1}]", tag='touch')

def wdma_setup(A, V):
    A("v_lshrrev_b32 v15, 1, v13"); A("v_xor_b32 v15, v15, v14")
    A("v_and_b32 v16, 1, v13"); A("v_lshlrev_b32 v16, 4, v16")
    A("v_mul_u32_u24 v17, 3584, v14"); A("v_add_u32 v16, v16, v17"); A(f"v_mov_b32 v18, {OOB}")
    for uu in range(4):
        if uu == 2: A("v_xor_b32 v15, 4, v15")
        A(f"v_lshl_add_u32 v{V+uu}, v15, 5, v16")
        if uu: A(f"v_add_u32 v{V+uu}, {uu*(4*3584-1024)}, v{V+uu}")
        A("v_cmp_eq_u32 vcc, 7, v15"); A(f"v_cndmask_b32 v{V+uu}, v{V+uu}, v18, vcc")
def wread_setup(A, V, base):
    A("v_lshrrev_b32 v15, 2, v13"); A("v_lshl_add_u32 v16, v14, 3, v15"); A("v_lshlrev_b32 v16, 8, v16")
    A("v_and_b32 v17, 3, v13"); A("v_lshl_add_u32 v16, v17, 3, v16"); A(f"v_add_u32 v16, {base}, v16")
    A("v_and_b32 v17, 1, v14"); A("v_lshl_or_b32 v17, v17, 2, v15")
    for j in range(7):
        A(f"v_xor_b32 v18, {j}, v17"); A(f"v_lshl_add_u32 v{V+j}, v18, 5, v16")

GC = dict(VC1=32, VC2=34, VONE=36)
def gelu_consts(A):
    for r, val in ((32, GELU_C1), (34, GELU_C2), (36, 1.0)):
        A(f"v_mov_b32 v{r}, {hexf(val)}"); A(f"v_mov_b32 v{r+1}, {hexf(val)}")

class Z1Tile:
    WB, XB, ACC, GACC = 120, 176, 192, 220
    VW = 24
    def __init__(self, A, L, ring_base, vdma, sW):
        self.A, self.L, self.ring_base, self.vdma, self.sW = A, L, ring_base, vdma, sW
    def dma_w_list(self, c):
        st = (c + 1) % 3
        return [(f"s_add_u32 m0, s71, {self.ring_base + st*16384}", None), (f"s_add_u32 s23, s{self.sW}, {64*c*3584}", None)] + \
               [(f"buffer_load_dwordx4 v{self.vdma+uu}, s[12:15], s23 offen offset:{uu*1024} lds", ('w1', c)) for uu in range(4)]
    def dma_w(self, c):
        for t, tg in self.dma_w_list(c): self.A(t, tag=tg)
    def reads(self, c, h, buf, xoff):
        out = []
        st = (c + 1) % 3
        out.append((f"ds_read_b128 {v(self.XB+buf*8,4)}, v{20+h} offset:{xoff(c)}", ('zx', c, h)))
        out.append((f"ds_read_b128 {v(self.XB+buf*8+4,4)}, v31 offset:{(2*c+h)*64}", ('zx', c, h)))
        for j in range(7):
            for sec in range(2):
                out.append((f"ds_read_b64_tr_b16 {v(self.WB+buf*28+j*4+2*sec,2)}, v{self.VW+j} offset:{st*16384 + h*8192 + sec*1024}", ('zw', c, h, j)))
        return out
    def run(self, xoff, xwait, hooks):
        A = self.A
        ST(A, 'z1in')
        A.wait_vm([('w1', 0)] + xwait(0)); A.wait_lg(); A("s_barrier")
        if ('pre',) in hooks: hooks[('pre',)]()
        for t, tg in self.reads(0, 0, 0, xoff): A(t, tag=tg)
        for c in range(7):
            for h in range(2):
                kk = 2*c + h; buf = kk & 1
                todo = []
                if h == 0: todo = self.reads(c, 1, buf ^ 1, xoff)
                else:
                    if c < 6:
                        A.wait_vm([('w1', c+1)] + xwait(c+1))
                        A.wait_lg(); A("s_barrier"); ST(A, ('z', c))
                        if c + 3 <= 6: self.dma_w(c + 3)
                        todo = self.reads(c+1, 0, buf ^ 1, xoff)
                if (c, h) in hooks: hooks[(c, h)]()
                A.wait_lg([('zx', c, h)])
                d = v(self.GACC, 4)
                A(f"v_mfma_f32_16x16x32_bf16 {d}, {v(self.XB+buf*8+4,4)}, {v(self.XB+buf*8,4)}, {d if kk else 0}")
                for _ in range(2):
                    if todo: t, tg = todo.pop(0); A(t, tag=tg)
                for j in range(7):
                    A.wait_lg([('zw', c, h, j)])
                    d = v(self.ACC + 4*j, 4)
                    A(f"v_mfma_f32_16x16x32_bf16 {d}, {v(self.WB+buf*28+j*4,4)}, {v(self.XB+buf*8,4)}, {d if kk else 0}")
                    for _ in range(2):
                        if todo: t, tg = todo.pop(0); A(t, tag=tg)
    def epilogue(self, svc):
        A = self.A
        ST(A, 'z1out')
        G = self.GACC
        A(f"v_mul_f32 v{G}, {hexf(1.4426950408889634)}, v{G}")
        A(f"v_exp_f32 v{G}, v{G}"); A(f"v_add_f32 v{G}, 1.0, v{G}"); A(f"v_rcp_f32 v{G}, v{G}")
        A("v_lshlrev_b32 v16, 2, v13")
        A(f"ds_bpermute_b32 v{G+1}, v16, v{G}", tag='gb')
        regs = [self.ACC + 2*p for p in range(14)]
        for q in range(0, 14, 4):
            gelu_pairs(A, regs[q:q+4], 224, 32, 34, 36)
            svc.step()
        A.wait_lg('gb')
        for p in range(14):
            r = self.ACC + 2*p
            A(f"v_mul_f32 v{r}, v{r}, v{G+1}"); A(f"v_mul_f32 v{r+1}, v{r+1}, v{G+1}")
            A(f"v_cvt_pk_bf16_f32 v{240+p}, v{r}, v{r+1}")
        ST(A, 'z1epi')

L_TICKET = 163584
L_AST, L_GW, L_ZR, L_GL, L_RING = 58368, 107520, 108544, 160768, 114688
XH = 57344

def load_gw_tables(A, gwb, zrb, tag):
    A(f"s_mov_b32 s23, 896"); srd_from(A, 16, S_GW, None, 896)
    A("v_lshlrev_b32 v16, 4, v12"); A(f"v_mov_b32 v18, {OOB}")
    A(f"s_mov_b32 m0, {gwb}"); A("buffer_load_dwordx4 v16, s[16:19], 0 offen lds", tag=tag)
    A(f"s_mov_b32 m0, {zrb}"); A("buffer_load_dwordx4 v18, s[16:19], 0 offen lds", tag=tag)
def gw_addr(A, vreg, gwb, zrb):
    A("v_cmp_eq_u32 vcc, 0, v13"); A(f"v_mov_b32 v16, {zrb}"); A(f"v_mov_b32 v17, {gwb}"); A(f"v_cndmask_b32 v{vreg}, v16, v17, vcc")
    A(f"v_lshl_add_u32 v{vreg}, v14, 4, v{vreg}")
def z1_xaddr(A):
    A("v_lshrrev_b32 v15, 2, v13"); A("v_lshlrev_b32 v15, 3, v15"); A("v_and_b32 v16, 3, v13"); A("v_add_u32 v15, v15, v16")
    A("v_and_b32 v16, 7, v13"); A("v_xor_b32 v16, v16, v14"); A("v_lshlrev_b32 v16, 4, v16"); A("v_lshl_add_u32 v16, v15, 7, v16")
    A("s_lshr_b32 s23, s3, 1"); A("s_lshl_b32 s23, s23, 12"); A("s_and_b32 s24, s3, 1"); A("s_lshl_b32 s24, s24, 9"); A("s_add_u32 s23, s23, s24")
    A("v_add_u32 v20, s23, v16"); A("v_xor_b32 v21, 64, v20")
def load_bias(A):
    A(f"s_lshl_b32 s23, s{S_RB2}, 6"); A("s_lshr_b32 s24, s3, 1"); A("s_lshl_b32 s24, s24, 5"); A("s_add_u32 s23, s23, s24")
    A("s_and_b32 s24, s3, 1"); A("s_lshl_b32 s24, s24, 2"); A("s_add_u32 s23, s23, s24")
    A("v_lshrrev_b32 v15, 2, v13"); A("v_lshlrev_b32 v15, 3, v15"); A("v_and_b32 v16, 3, v13"); A("v_add_u32 v15, v15, v16")
    A("v_add_u32 v15, s23, v15"); A("v_lshlrev_b32 v15, 1, v15")
    srd_from(A, 16, S_BSP, None, S*2)
    A("buffer_load_ushort v254, v15, s[16:19], 0 offen", tag='bias')

def role_z(A, L):
    ACC1, ACC2 = 120, 64
    acc1 = lambda j, aa: ACC1 + (j*2+aa)*4
    acc2 = lambda j, aa: ACC2 + (j*2+aa)*4
    WB = 176
    wf = lambda buf, j: WB + buf*28 + j*4
    xf = lambda kk, aa: 144 + (kk*2+aa)*4
    A("v_lshrrev_b32 v15, 3, v12"); A("v_and_b32 v16, 7, v12"); A("v_and_b32 v17, 3, v15"); A("v_xor_b32 v16, v16, v17"); A("v_lshlrev_b32 v16, 4, v16")
    A("v_mul_u32_u24 v17, 896, v15")
    for uu in range(4):
        if uu & 1: A("v_xor_b32 v18, 64, v16"); A(f"v_add_u32 v{1+uu}, v18, v17")
        else: A(f"v_add_u32 v{1+uu}, v16, v17")
        if uu: A(f"v_add_u32 v{1+uu}, {uu*(8*896-1024)}, v{1+uu}")
    wdma_setup(A, 5)
    A(f"s_lshl_b32 s72, s{S_RB}, 2"); A("s_add_u32 s72, s72, s3")
    A(f"s_mul_i32 s23, s72, {32*896}"); srd_from(A, 8, S_X, 23, 32*896)
    srd_from(A, 12, S_WIN, None, 448*3584)
    A(f"s_mul_i32 s25, s3, {16*3584}"); A(f"s_mul_i32 s23, s{S_CB}, 224"); A("s_add_u32 s25, s25, s23"); A("s_add_u32 s24, s25, 1792")
    A("s_lshl_b32 s71, s3, 12")
    def dma_x(c):
        return [(f"s_add_u32 m0, s71, {c*16384}", None), (f"s_mov_b32 s23, {c*128}", None)] + \
               [(f"buffer_load_dwordx4 v{1+uu}, s[8:11], s23 offen offset:{uu*1024} {NT}lds", ('x', c)) for uu in range(4)]
    def dma_w(c, which=1, sreg=23):
        base = (L_RING + (c % 3)*16384) if which == 1 else c*16384
        return [(f"s_add_u32 m0, s71, {base}", None), (f"s_add_u32 s{sreg}, s{24 if which == 1 else 25}, {64*c*3584}", None)] + \
               [(f"buffer_load_dwordx4 v{5+uu}, s[12:15], s{sreg} offen offset:{uu*1024} {NT}lds", ('w', which, c)) for uu in range(4)]
    def emit(lst):
        for t, tg in lst: A(t, tag=tg)
    ST(A, 'rsetup')
    for c in range(2): emit(dma_w(c)); emit(dma_x(c))
    ST(A, 1)
    A("v_lshrrev_b32 v15, 2, v13"); A("v_lshlrev_b32 v15, 3, v15"); A("v_and_b32 v16, 3, v13"); A("v_add_u32 v15, v15, v16")
    A("v_and_b32 v16, 7, v13"); A("v_xor_b32 v16, v16, v14"); A("v_lshlrev_b32 v16, 4, v16"); A("v_lshl_add_u32 v16, v15, 7, v16")
    A("v_add_u32 v20, s71, v16"); A("v_xor_b32 v21, 64, v20"); A("v_add_u32 v22, 0x10000, v20"); A("v_add_u32 v23, 0x10000, v21")
    wread_setup(A, 24, L_RING)
    gelu_consts(A)
    svc = AService(A)
    def reads_w(which, c, h, buf):
        out = []
        off = ((c % 3) if which == 1 else (c % 4))*16384 + h*8192
        for j in range(7):
            for sec in range(2):
                out.append((f"ds_read_b64_tr_b16 {v(wf(buf,j)+2*sec,2)}, v{24+j} offset:{off + sec*1024}", ('wf', which, c, h, j)))
        return out
    def reads_x(c):
        return [(f"ds_read_b128 {a(xf(2*c+h,aa),4)}, v{20 + h + (2 if c >= 4 else 0)} offset:{(c % 4)*16384 + aa*512}", ('xf', c, h)) for h in range(2) for aa in range(2)]
    A.wait_vm([('w', 1, 0), ('x', 0)]); A("s_barrier")
    ST(A, 2)
    side = []
    if os.environ.get('SETL', '0') == '1':
        R0 = Rec(); svc.setup(R0); svc.base('A', 12288, L_RING, R0); side = R0.items
    emit(reads_x(0)); emit(reads_w(1, 0, 0, 0))
    for c in range(7):
        for h in range(2):
            kk = 2*c + h; buf = kk & 1
            todo = []; vq = []
            if h == 0:
                ST(A, ('gs', c, 0))
                todo = reads_w(1, c, 1, buf ^ 1)
                if c == 0: vq += dma_w(2)
                if c + 2 <= 6: vq += dma_x(c + 2)
                if os.environ.get('ALPHA', '0') == '1' and c >= 4: vq += dma_w(2*(c - 4) + 1, 2)
            else:
                ST(A, ('gs', c, 1))
                if c < 6: A.wait_vm([('w', 1, c+1), ('x', c+1)])
                ST(A, ('gs', c, 2))
                A.wait_lg(); ST(A, ('gs', c, 3)); A("s_barrier"); ST(A, ('g', c)); ST(A, ('gs', c, 4))
                if c + 3 <= 6: vq += dma_w(c + 3)
                MODE = os.environ.get('W2MODE', 'epi')
                if os.environ.get('ALPHA', '0') == '1':
                    if c >= 3: vq += dma_w(2*(c - 3), 2)
                elif MODE == 'loop':
                    for cc in {5: (0, 1, 2, 3), 6: (4, 5, 6)}.get(c, ()): vq += dma_w(cc, 2)
                elif c == 6:
                    for cc in range(7): A.bg += dma_w(cc, 2, 75)
                    if os.environ.get('PREF', 'chip') == 'both': A.bg += prefetch_wsp_list('die')
                    A.bg_every = int(os.environ.get('BGW2', '12'))
                if c < 6: todo = reads_w(1, c+1, 0, buf ^ 1)[:2] + reads_x(c+1) + reads_w(1, c+1, 0, buf ^ 1)[2:]
            A.wait_lg([('xf', c, h), ('wf', 1, c, h, 6)] if os.environ.get('W1', '1') == '1' else [('xf', c, h)])
            for j in range(7):
                A.wait_lg([('wf', 1, c, h, j)])
                for aa in range(2):
                    d = v(acc1(j,aa), 4)
                    A(f"v_mfma_f32_16x16x32_bf16 {d}, {a(xf(kk,aa),4)}, {v(wf(buf,j),4)}, {d if kk else 0}")
                    for _ in range(2):
                        if todo: t, tg = todo.pop(0); A(t, tag=tg)
                    if vq: t, tg = vq.pop(0); A(t, tag=tg)
                    elif side and kk >= 8 and not todo:
                        for t, tg in side.pop(0): A(t, tag=tg)
            emit(todo); emit(vq)
            if c == 0 and h == 0 and os.environ.get('CHIPT', '1') != '1': A("global_load_dword v56, v61, s[30:31]", tag='touch'); A("global_load_dword v56, v62, s[30:31]", tag='touch')
            if c == 2 and h == 1 and (os.environ.get('CHIPT', '1') != '1' or os.environ.get('Z2ONLY', '0') == '1'): touch_z1w(A)
            if (c, h) == (int(os.environ.get('WSPC', '4')), 1):
                for t, tg in prefetch_wsp_list(): A(t, tag=tg)
    ST(A, 3)
    if os.environ.get('SETL', '0') == '1':
        for it in side:
            for t, tg in it: A(t, tag=tg)
    else: svc.setup(); svc.base('A', 12288, L_RING)
    ALPHA = os.environ.get('ALPHA', '0') == '1'
    regs = [ACC1 + 2*p for p in range(28)]
    def stats(E, TMP, SUM, M2):
        for aa in range(2):
            for rp in range(2):
                d = SUM + aa*4 + rp*2
                E(f"v_pk_add_f32 {v(d,2)}, {v(acc1(0,aa)+2*rp,2)}, {v(acc1(1,aa)+2*rp,2)}")
                for j in range(2, 7): E(f"v_pk_add_f32 {v(d,2)}, {v(d,2)}, {v(acc1(j,aa)+2*rp,2)}")
        def dpp16(rs):
            for sh in (8, 4, 2, 1):
                for r in rs: E(f"v_add_f32_dpp v{r}, v{r}, v{r} row_ror:{sh} row_mask:0xf bank_mask:0xf")
        dpp16(range(SUM, SUM+8))
        E(f"v_mov_b32 v38, {hexf(1.0/112)}"); E(f"v_mov_b32 v39, {hexf(1.0/112)}")
        for p in range(4): E(f"v_pk_mul_f32 {v(SUM+2*p,2)}, {v(SUM+2*p,2)}, {v(38,2)}")
        for aa in range(2):
            for rp in range(2):
                d = M2 + aa*4 + rp*2; mreg = SUM + aa*4 + rp*2
                for j in range(7):
                    t = TMP + 2*(j & 1)
                    E(f"v_pk_add_f32 {v(t,2)}, {v(acc1(j,aa)+2*rp,2)}, {v(mreg,2)} neg_lo:[0,1] neg_hi:[0,1]")
                    if j == 0: E(f"v_pk_mul_f32 {v(d,2)}, {v(t,2)}, {v(t,2)}")
                    else: E(f"v_pk_fma_f32 {v(d,2)}, {v(t,2)}, {v(t,2)}, {v(d,2)}")
        dpp16(range(M2, M2+8))
    def publish(E, SUM, M2, PUB):
        E("v_and_b32 v16, 3, v13")
        for q in range(3): E(f"v_cmp_eq_u32 s[{26+2*q}:{27+2*q}], {q+1}, v16")
        for e, (base, odd) in enumerate(((SUM, 0), (M2, 0), (SUM, 1), (M2, 1))):
            E(f"v_mov_b32 v{PUB+e}, v{base+odd}")
            for q in range(3): E(f"v_cndmask_b32 v{PUB+e}, v{PUB+e}, v{base+2*(q+1)+odd}, s[{26+2*q}:{27+2*q}]")
        E(f"s_lshl_b32 s23, s{S_RB}, 3"); E(f"s_add_u32 s23, s23, s{S_CB}"); E("s_lshl_b32 s23, s23, 7")
        E("s_lshl_b32 s27, s3, 5"); E("s_add_u32 s23, s23, s27"); E("s_lshl_b32 s23, s23, 3")
        E(f"s_mov_b32 s27, {WS_LNP}"); srd_from(E, 16, S_WS, 27, 16*8*128*8)
        E("v_lshlrev_b32 v19, 6, v14"); E("v_lshl_add_u32 v19, v16, 4, v19")
        E("s_mov_b64 s[34:35], exec"); E("s_mov_b32 exec_lo, 0x000f000f"); E("s_mov_b32 exec_hi, 0x000f000f")
        E(f"buffer_store_dwordx4 {v(PUB,4)}, v19, s[16:19], s23 offen sc1", tag='lnp')
        E("s_mov_b64 exec, s[34:35]")
    EQ = []
    if not ALPHA:
        TMP = 176
        for q in range(0, 28, 4): gelu_pairs(A, regs[q:q+4], TMP, 32, 34, 36)
        ST(A, 'gelu1')
        stats(A, TMP, 192, 200)
        ST(A, 'stat1')
        publish(A, 192, 200, 208)
    else:
        for q in range(0, 8, 4): gelu_pairs(A, regs[q:q+4], 244, 32, 34, 36)
        R_ = Rec()
        for q in range(8, 28, 4): gelu_pairs(R_, regs[q:q+4], 244, 32, 34, 36)
        stats(R_, 244, 40, 48)
        R_.group(lambda: publish(R_, 40, 48, 20))
        EQ = R_.items
    A.bg_flush(); A.bg_every = 0
    tag_issue(A)
    ST(A, 4)
    Q, MB = 40, 216
    A.wait_vm([('w', 2, c) for c in range(7)]); A("s_barrier"); ST(A, 'w2')
    for j in range(7): A(f"v_subrev_u32 v{24+j}, {L_RING}, v{24+j}")
    emit(reads_w(2, 0, 0, 0))
    pub_kk = None; signalled = False
    for c in range(7):
        for h in range(2):
            kk = 2*c + h; buf = kk & 1
            nxt = (c, 1) if h == 0 else ((c+1, 0) if c < 6 else None)
            if kk in (0, 2, 4): svc.bg_dma([kk // 2], [('A', kk // 2)]); A.bg_every = 3
            if kk in (7, 9, 11):
                n = (kk - 7) // 2
                svc.wait_read([n], [('A', n)])
            if kk in (8, 10, 12):
                n = (kk - 8) // 2
                A.wait_lg(('Ar', n)); svc.bg_dma([n + 3], [('A', n)])
            if ALPHA and pub_kk is not None and kk == pub_kk + 3 and not signalled:
                signalled = True
                A.wait_vm('lnp'); tag_take(A, lambda x: L('z' + x)); A("s_barrier")
                A(f"s_mul_i32 s27, s{S_RB}, {FS}"); A(f"s_lshl_b32 s28, s{S_CB}, 3"); A("s_add_u32 s27, s27, s28"); A(f"s_add_u32 s27, s27, {WS_F0}")
                signal(A, L, 'sigln', 27)
            if kk == 10 and not ALPHA:
                A(f"s_mul_i32 s27, s{S_RB}, {FS}"); A(f"s_add_u32 s27, s27, {WS_F0}"); A("v_and_b32 v17, 7, v12"); A("v_lshl_add_u32 v17, v17, 3, s27")
                A(f"global_load_dwordx2 v[18:19], v17, s[{S_WS}:{S_WS+1}] sc1", tag='lnf')
            if kk == 13 and not ALPHA:
                A.wait_vm('lnf')
                A(f"v_xor_b32 v18, s{S_TAG}, v18"); A(f"v_xor_b32 v19, s{S_TAG+1}, v19"); A("v_or_b32 v18, v18, v19"); A("v_cmp_eq_u32 vcc, 0, v18")
                A("s_nop 1"); A("s_cmp_eq_u64 vcc, exec"); A(f"s_cbranch_scc1 {L('lnok')}")
                poll_wave(A, L, 'plnw', 17, reset=False)
                A.label(L('lnok'))
                A(f"s_lshl_b32 s23, s{S_RB}, 10"); A("s_lshl_b32 s27, s3, 5"); A("s_add_u32 s23, s23, s27"); A("s_lshl_b32 s23, s23, 3")
                A(f"s_mov_b32 s27, {WS_LNP}"); srd_from(A, 16, S_WS, 27, 16*8*128*8)
                A("v_and_b32 v18, 7, v12"); A("v_lshlrev_b32 v18, 10, v18"); A("v_lshl_add_u32 v18, v14, 6, v18")
                for q in range(4): A(f"buffer_load_dwordx4 {v(Q+4*q,4)}, v18, s[16:19], s23 offen offset:{16*q} sc1", tag='lnq')
            if kk == 4 and not ALPHA:
                A.wait_vm('lnp'); tag_take(A, lambda x: L('z' + x)); A("s_barrier")
                A(f"s_mul_i32 s27, s{S_RB}, {FS}"); A(f"s_lshl_b32 s28, s{S_CB}, 3"); A("s_add_u32 s27, s27, s28"); A(f"s_add_u32 s27, s27, {WS_F0}")
                signal(A, L, 'sigln', 27)
            todo = []
            if nxt:
                if nxt == (4, 0):
                    for j in range(7): A(f"v_add_u32 v{24+j}, 0x10000, v{24+j}")
                todo = reads_w(2, nxt[0], nxt[1], buf ^ 1)
            if os.environ.get('W1', '1') == '1': A.wait_lg([('wf', 2, c, h, 6)])
            for j in range(7):
                A.wait_lg([('wf', 2, c, h, j)])
                for aa in range(2):
                    d = v(acc2(j,aa), 4)
                    A(f"v_mfma_f32_16x16x32_bf16 {d}, {v(wf(buf,j),4)}, {a(xf(kk,aa),4)}, {d if kk else 0}")
                    for _ in range(2 if os.environ.get('W1', '1') == '1' else 1):
                        if todo: t, tg = todo.pop(0); A(t, tag=tg)
                    budget = int(os.environ.get('EQN', '3'))
                    while EQ and budget > 0:
                        it = EQ.pop(0)
                        for t, tg in it:
                            A(t, tag=tg)
                            if tg == 'lnp': pub_kk = kk
                        budget -= 2 if it[0][0].startswith(('v_exp', 'v_rcp')) else 1
            emit(todo)
    ST(A, 5)
    for it in EQ:
        for t, tg in it: A(t, tag=tg)
    EQ = []
    A.bg_flush(); A.bg_every = 0
    svc.wait_read([3, 4], [('A', 0), ('A', 1)]); svc.base('B', 28672, 0); A.wait_lg(); A("s_barrier")
    svc.bg_dma([13, 14], [('A', 0), ('A', 1)]); svc.bg_dma(list(range(6, 13)), [('B', k) for k in range(7)]); A.bg_every = 10
    ST(A, 7)
    regs1 = [ACC2 + 2*p for p in range(28)]; g0 = 0
    if ALPHA:
        if not signalled:
            A.wait_vm('lnp'); tag_take(A, lambda x: L('z' + x)); A("s_barrier")
            A(f"s_mul_i32 s27, s{S_RB}, {FS}"); A(f"s_lshl_b32 s28, s{S_CB}, 3"); A("s_add_u32 s27, s27, s28"); A(f"s_add_u32 s27, s27, {WS_F0}")
            signal(A, L, 'sigln', 27)
        nA_, nB_ = [int(x) for x in os.environ.get('ALF', '8,8').split(',')]
        for q in range(0, nA_, 4): gelu_pairs(A, regs1[q:q+4], 216, 32, 34, 36)
        A(f"s_mul_i32 s27, s{S_RB}, {FS}"); A(f"s_add_u32 s27, s27, {WS_F0}"); A("v_and_b32 v17, 7, v12"); A("v_lshl_add_u32 v17, v17, 3, s27")
        poll_wave(A, L, 'plnw', 17, reset=False)
        A(f"s_lshl_b32 s23, s{S_RB}, 10"); A("s_lshl_b32 s27, s3, 5"); A("s_add_u32 s23, s23, s27"); A("s_lshl_b32 s23, s23, 3")
        A(f"s_mov_b32 s27, {WS_LNP}"); srd_from(A, 16, S_WS, 27, 16*8*128*8)
        A("v_and_b32 v18, 7, v12"); A("v_lshlrev_b32 v18, 10, v18"); A("v_lshl_add_u32 v18, v14, 6, v18")
        for q in range(4): A(f"buffer_load_dwordx4 {v(Q+4*q,4)}, v18, s[16:19], s23 offen offset:{16*q} sc1", tag='lnq')
        for q in range(nA_, nA_ + nB_, 4): gelu_pairs(A, regs1[q:q+4], 216, 32, 34, 36)
        g0 = nA_ + nB_
    A.wait_vm('lnq')
    ST(A, 'lnq')
    def red8(rs):
        for pat in ("quad_perm:[1,0,3,2]", "quad_perm:[2,3,0,1]", "row_half_mirror"):
            for r in rs: A(f"v_add_f32_dpp v{r}, v{r}, v{r} {pat} row_mask:0xf bank_mask:0xf")
    for q in range(8): A(f"v_mov_b32 v{MB+q}, v{Q+2*q}")
    red8(range(MB, MB+8))
    for q in range(8): A(f"v_mul_f32 v{MB+q}, 0.125, v{MB+q}")
    A(f"v_mov_b32 v38, {hexf(112.0)}")
    for q in range(8):
        A(f"v_sub_f32 v{Q+2*q}, v{Q+2*q}, v{MB+q}"); A(f"v_mul_f32 v{Q+2*q}, v{Q+2*q}, v{Q+2*q}")
        A(f"v_fma_f32 v{MB+8+q}, v{Q+2*q}, v38, v{Q+2*q+1}")
    red8(range(MB+8, MB+16))
    A(f"v_mov_b32 v38, {hexf(1.0/896)}"); A(f"v_mov_b32 v39, {hexf(1e-5)}")
    for q in range(8): A(f"v_fma_f32 v{MB+8+q}, v{MB+8+q}, v38, v39")
    for q in range(8): A(f"v_rsq_f32 v{MB+8+q}, v{MB+8+q}")
    for q in range(8): A(f"v_mul_f32 v{MB+q}, v{MB+q}, v{MB+8+q}")
    ST(A, 'comb')
    A(f"s_mul_i32 s23, s{S_CB}, {64*7168}"); A("s_mul_i32 s27, s72, 7168"); A("s_add_u32 s23, s23, s27")
    if WS_Z2F: A(f"s_add_u32 s23, s23, {WS_Z2F}")
    srd_from(A, 16, S_WS, 23, 7168)
    A("v_lshlrev_b32 v18, 4, v12"); A("v_add_u32 v19, 4096, v18")
    for j in range(7):
        p = 200 + 4*(j & 3)
        for aa in range(2):
            c = acc1(j,aa)
            for rp in range(2):
                A(f"v_pk_fma_f32 {v(c+2*rp,2)}, {v(c+2*rp,2)}, {v(MB+8+aa*4+2*rp,2)}, {v(MB+aa*4+2*rp,2)} neg_lo:[0,0,1] neg_hi:[0,0,1]")
            A(f"v_cvt_pk_bf16_f32 v{p+2*aa}, v{c}, v{c+1}"); A(f"v_cvt_pk_bf16_f32 v{p+2*aa+1}, v{c+2}, v{c+3}")
        A(f"buffer_store_dwordx4 {v(p,4)}, v{18 if j < 4 else 19}, s[16:19], 0 offen offset:{(j%4)*1024} sc1", tag='pubst')
    ST(A, 'norm')
    p2 = P2(A, L); p2.pre()
    TMP = 216
    regs = [ACC2 + 2*p for p in range(28)]
    g1 = min(28, g0 + 8)
    for q in range(g0, g1, 4): gelu_pairs(A, regs[q:q+4], TMP, 32, 34, 36)
    A.wait_vm('pubst'); ST(A, 'pubw'); A("s_barrier")
    A(f"s_mul_i32 s27, s{S_CB}, {FS}"); A(f"s_lshl_b32 s28, s{S_RB}, 3"); A("s_add_u32 s27, s27, s28"); A(f"s_add_u32 s27, s27, {WS_F1Z}")
    signal(A, L, 'sigzd', 27)
    ST(A, 6)
    svc.wait_read([5], [('A', 2)]); A.wait_lg(('Ar', 5)); svc.bg_dma([15], [('A', 2)])
    for q in range(g1, 28, 4): gelu_pairs(A, regs[q:q+4], TMP, 32, 34, 36)
    A.bg_flush(); A.bg_every = 0
    p2.flag_issue()
    A("s_lshl_b32 s23, s72, 1"); A("s_mul_i32 s23, s23, 56"); A(f"s_mul_i32 s28, s{S_CB}, 7"); A("s_add_u32 s23, s23, s28"); A("s_lshl_b32 s23, s23, 9")
    A(f"s_add_u32 s23, s23, {WS_Z1F}"); srd_from(A, 16, S_WS, 23, 56*512 + 7*512)
    A("v_lshlrev_b32 v18, 3, v12")
    P = 40
    for aa in range(2):
        if aa: A(f"s_mov_b32 s23, {56*512}")
        for j in range(7):
            c = acc2(j,aa); p = P + 2*(j & 3)
            A(f"v_cvt_pk_bf16_f32 v{p}, v{c}, v{c+1}"); A(f"v_cvt_pk_bf16_f32 v{p+1}, v{c+2}, v{c+3}")
            A(f"buffer_store_dwordx2 {v(p,2)}, v18, s[16:19], {'s23' if aa else 0} offen offset:{j*512} sc1", tag='z1st')
    ST(A, 9)
    p2.flag_take('z')
    p2.first()
    A.wait_vm(('Au', 15))
    for n, sl in [(13, ('A', 0)), (14, ('A', 1)), (15, ('A', 2))] + [(6 + k, ('B', k)) for k in range(7)]: svc.read(n, sl)
    if os.environ.get('PLUMBL', '1') != '1': p2.plumbing()
    p2.third()
    A.wait_lg()
    ST(A, 8)
    p2.loop('z')

QSTG = 45056; QGW = 3*QSTG; QZR = QGW + 1024; QP = 400
def role_q(A, L):
    A("v_lshrrev_b32 v15, 3, v12"); A("v_and_b32 v16, 7, v12")
    A("v_and_b32 v17, 3, v15"); A("v_xor_b32 v17, v16, v17"); A("v_lshlrev_b32 v17, 4, v17")
    A(f"s_lshl_b32 s24, s{S_RB}, 7"); A("s_sub_u32 s24, s24, 16"); A("s_mul_i32 s25, s3, 5")
    for uu in range(5):
        A(f"s_add_u32 s26, s25, {uu}")
        A("s_lshl_b32 s27, s26, 3"); A("s_add_u32 s27, s27, s24")
        A("v_add_u32 v18, s27, v15"); A("v_max_i32 v18, 0, v18"); A("v_mul_u32_u24 v18, 896, v18")
        A("s_and_b32 s27, s26, 1"); A("s_lshl_b32 s27, s27, 6"); A("v_xor_b32 v19, s27, v17")
        A("s_cmp_ge_u32 s26, 18"); A(f"s_cselect_b32 s27, {OOB}, 0")
        A(f"v_add3_u32 v{1+uu}, v18, v19, s27")
        if uu in (1, 2, 3): A(f"v_subrev_u32 v{1+uu}, {uu*1024}, v{1+uu}")
    A("v_and_b32 v18, 2, v15"); A("v_xor_b32 v18, v16, v18"); A("v_mul_u32_u24 v19, 2688, v15")
    for uu in range(2):
        if uu: A("v_xor_b32 v18, 4, v18")
        A(f"v_lshl_add_u32 v{6+uu}, v18, 4, v19")
        if uu: A(f"v_add_u32 v{6+uu}, {8*2688-1024}, v{6+uu}")
        A("v_cmp_eq_u32 vcc, 7, v18"); A(f"v_mov_b32 v16, {OOB}"); A(f"v_cndmask_b32 v{6+uu}, v{6+uu}, v16, vcc")
    A.wait_lg()
    A(f"s_sub_u32 s8, s{S_X}, 4096"); A(f"s_subb_u32 s9, s{S_X+1}, 0"); A("s_and_b32 s9, s9, 0xffff"); A(f"s_mov_b32 s10, {S*896 + 4096}"); A("s_mov_b32 s11, 0x20000")
    for uu in range(5): A(f"v_add_u32 v{1+uu}, 4096, v{1+uu}")
    srd_from(A, 12, S_WQKV, None, 448*2688)
    A(f"s_mul_i32 s24, s3, {16*2688}"); A(f"s_mul_i32 s25, s{S_CB}, 112"); A("s_add_u32 s24, s24, s25")
    A("s_mul_i32 s25, s3, 5120"); A("s_lshl_b32 s26, s3, 11"); A("s_add_u32 s26, s26, 20480")
    def dma(c):
        st = (c % 3)*QSTG; out = []
        for seg in range(3):
            out += [(f"s_add_u32 m0, s26, {st + seg*8192}", None), (f"s_add_u32 s23, s24, {64*c*2688 + seg*896}", None)]
            out += [(f"buffer_load_dwordx4 v{6+uu}, s[12:15], s23 offen offset:{uu*1024} {NT}lds", ('c', c)) for uu in range(2)]
        out += [(f"s_add_u32 m0, s25, {st}", None), (f"s_mov_b32 s23, {c*128}", None)]
        out += [(f"buffer_load_dwordx4 v{1+uu}, s[8:11], s23 offen offset:{uu*1024} {NT}lds", ('c', c)) for uu in range(4)]
        out += [(f"s_add_u32 m0, s25, {st + 4096}", None), (f"buffer_load_dwordx4 v5, s[8:11], s23 offen {NT}lds", ('c', c))]
        return out
    def emit(lst):
        for t, tg in lst: A(t, tag=tg)
    ST(A, 'rsetup')
    load_gw_tables(A, QGW, QZR, ('c', 0))
    for c in range(2): emit(dma(c))
    ST(A, 1)
    A("v_lshrrev_b32 v15, 3, v13"); A("v_lshlrev_b32 v15, 2, v15"); A("v_and_b32 v16, 3, v13"); A("v_or_b32 v15, v15, v16")
    A("v_xor_b32 v15, v15, v14"); A("v_lshlrev_b32 v15, 4, v15"); A("v_lshl_add_u32 v20, v13, 7, v15"); A("v_xor_b32 v21, 64, v20")
    A("s_lshl_b32 s23, s3, 12"); A("s_add_u32 s23, s23, 2048"); A("v_add_u32 v22, s23, v20"); A("v_add_u32 v23, s23, v21")
    A("s_lshr_b32 s23, s3, 1"); A("s_mul_i32 s23, s23, 56"); A("s_and_b32 s33, s3, 1"); A("s_lshl_b32 s34, s33, 5"); A("s_add_u32 s23, s23, s34")
    A("v_and_b32 v15, 3, v13"); A("v_lshlrev_b32 v16, 3, v15"); A("v_add_u32 v16, s23, v16")
    A("v_cmp_eq_u32 vcc, 3, v15"); A("s_cmp_eq_u32 s33, 1"); A("s_cselect_b64 s[34:35], vcc, 0")
    A("v_mov_b32 v17, 112"); A("v_cndmask_b32 v16, v16, v17, s[34:35]")
    A("v_lshrrev_b32 v17, 3, v13"); A("v_lshlrev_b32 v17, 1, v17"); A("v_and_b32 v18, 1, v14"); A("v_lshl_or_b32 v17, v18, 2, v17")
    A("v_lshrrev_b32 v18, 4, v16"); A("v_xor_b32 v18, v18, v17"); A("v_and_b32 v16, 8, v16"); A("v_lshl_or_b32 v16, v18, 4, v16")
    A("v_lshrrev_b32 v17, 2, v13"); A("v_lshl_add_u32 v17, v14, 3, v17"); A("v_lshl_add_u32 v24, v17, 7, v16"); A("v_add_u32 v24, 20480, v24")
    gw_addr(A, 25, QGW, QZR)
    XB = 256; xf = lambda buf, t: XB + buf*44 + t*4
    WB = 256 + 88; wf = lambda buf, t: WB + buf*16 + t*4
    ACC = 64
    def acc(t, RT):
        if t == 0: return ACC + (RT-1)*4
        if t == 3: return ACC + (26 + RT)*4
        return ACC + (8 + (t-1)*9 + RT)*4
    def reads(c, h, buf):
        out = []
        for t in range(3):
            for sec in range(2):
                out.append((f"ds_read_b64_tr_b16 {u(wf(buf,t)+2*sec,2)}, v24 offset:{t*8192 + h*4096 + sec*512}", ('w', c, h)))
        out.append((f"ds_read_b128 {u(wf(buf,3),4)}, v25 offset:{(2*c+h)*64}", ('w', c, h)))
        for RT in range(9): out.append((f"ds_read_b128 {u(xf(buf,RT),4)}, v{20+h} offset:{RT*2048}", ('x', c, h, RT)))
        for q in range(2): out.append((f"ds_read_b128 {u(xf(buf,9+q),4)}, v{22+h} offset:{q*2048}", ('x', c, h, 9+q)))
        return out
    def bump(c):
        d = QSTG if (c % 3) < 2 else -2*QSTG
        for r in (20, 21, 22, 23, 24):
            if d > 0: A(f"v_add_u32 v{r}, {d}, v{r}")
            else: A(f"v_subrev_u32 v{r}, {-d}, v{r}")
    A.wait_vm(('c', 0)); A("s_barrier")
    carry = []
    svc = AService(A); side = []
    if os.environ.get('SETL', '0') == '1':
        R0 = Rec(); svc.setup(R0); svc.base('A', 24576, L_AST, R0); svc.base('B', 14336, 0, R0); side = R0.items
    ST(A, 2)
    for t, tg in reads(0, 0, 0): A(t, tag=tg)
    for c in range(7):
        for h in range(2):
            kk = 2*c + h; buf = kk & 1
            todo = []; vq = []
            if h == 0:
                ST(A, ('gs', c, 0))
                todo = reads(c, 1, buf ^ 1)
                if c == 0: vq = dma(2)
                vq = vq + carry; carry = []
            else:
                ST(A, ('gs', c, 1))
                if c < 6: A.wait_vm(('c', c+1))
                ST(A, ('gs', c, 2))
                A.wait_lg(); ST(A, ('gs', c, 3)); A("s_barrier"); ST(A, ('g', c)); ST(A, ('gs', c, 4))
                if c + 3 <= 6:
                    vq = dma(c+3)
                    if os.environ.get('QSPREAD', '0') == '1':
                        nW = 12; carry = vq[nW:]; vq = vq[:nW]
                if c < 6:
                    bump(c); todo = reads(c+1, 0, buf ^ 1)
            order = [(1,0),(2,0)] + [(t, RT) for RT in range(1, 9) for t in range(3)] + [(3,0),(3,1)]
            n = 0
            if os.environ.get('W1', '1') == '1': A.wait_lg([('w', c, h)] + [('x', c, h, q) for q in range(11)])
            for (t, RT) in order:
                xt = RT if t < 3 else 9 + RT
                A.wait_lg([('w', c, h), ('x', c, h, xt)])
                d = v(acc(t, RT), 4)
                A(f"v_mfma_f32_16x16x32_bf16 {d}, {u(wf(buf,t),4)}, {u(xf(buf,xt),4)}, {d if kk else 0}")
                n += 1
                if todo: tt, tg = todo.pop(0); A(tt, tag=tg)
                if vq and (os.environ.get('QSPREAD', '0') != '1' or n % 2 == 0):
                    while vq:
                        tt, tg = vq.pop(0); A(tt, tag=tg)
                        if tg is not None or os.environ.get('QSPREAD', '0') != '1': break
                elif side and kk >= 10 and not todo and not vq:
                    for t, tg in side.pop(0): A(t, tag=tg)
            while todo: tt, tg = todo.pop(0); A(tt, tag=tg)
            emit(vq)
            if c == 0 and h == 0 and os.environ.get('CHIPT', '1') != '1': A("global_load_dword v56, v61, s[30:31]", tag='touch'); A("global_load_dword v56, v62, s[30:31]", tag='touch')
            if (c, h) == (int(os.environ.get('WSPQ', '4')), 1):
                for t, tg in prefetch_wsp_list(): A(t, tag=tg)
                touch_small(A)
    ST(A, 3)
    if os.environ.get('PREF', 'chip') == 'both':
        for t, tg in prefetch_wsp_list('die'): A(t, tag=tg)
    tag_issue(A)
    if os.environ.get('SETL', '0') == '1':
        for it in side:
            for t, tg in it: A(t, tag=tg)
    else: svc.setup(); svc.base('A', 24576, L_AST); svc.base('B', 14336, 0)
    svc.bg_dma(list(range(6)), [('A', k) for k in range(6)]); A.bg_every = 6
    A(f"v_mul_u32_u24 v15, {QP}, v13")
    A("s_lshr_b32 s23, s3, 1"); A("s_lshl_b32 s23, s23, 6"); A("s_and_b32 s33, s3, 1"); A("s_lshl_b32 s33, s33, 5"); A("s_add_u32 s23, s23, s33")
    A("v_lshl_add_u32 v15, v14, 3, v15"); A("v_add_u32 v26, s23, v15")
    P = 176; n = 0
    for t in range(3):
        for RT in range(0 if t else 1, 9):
            c = acc(t, RT); p = P + 2*(n & 7); n += 1
            A(f"v_cvt_pk_bf16_f32 v{p}, v{c}, v{c+1}"); A(f"v_cvt_pk_bf16_f32 v{p+1}, v{c+2}, v{c+3}")
            A(f"ds_write_b64 v26, {v(p,2)} offset:{RT*16*QP + t*128}", tag='qkv')
    for q in range(2):
        c = acc(3, q)
        A(f"v_mul_f32 v{c}, {hexf(-1.4426950408889634)}, v{c}")
        A(f"v_exp_f32 v{c}, v{c}"); A(f"v_add_f32 v{c}, 1.0, v{c}"); A(f"v_rcp_f32 v{c}, v{c}")
    A("s_lshl_b32 s23, s3, 7"); A(f"s_add_u32 s23, s23, {L_GL}")
    A("v_lshlrev_b32 v15, 2, v13"); A("v_add_u32 v16, s23, v15")
    A("s_mov_b64 s[34:35], exec"); A("s_mov_b64 exec, 0xffff")
    for q in range(2): A(f"ds_write_b32 v16, v{acc(3,q)} offset:{q*64}", tag='qkv')
    A(f"s_mov_b32 s23, {WS_GATE}"); srd_from(A, 16, S_WS, 23, S*4)
    A(f"s_cmp_eq_u32 s{S_CB}, 0"); A("s_cselect_b32 s18, s18, 0")
    A(f"s_lshl_b32 s23, s{S_RB}, 9"); A("s_lshl_b32 s33, s3, 7"); A("s_add_u32 s23, s23, s33")
    for q in range(2): A(f"buffer_store_dword v{acc(3,q)}, v15, s[16:19], s23 offen offset:{q*64} sc1", tag='pubst')
    A("s_mov_b64 exec, s[34:35]")
    A.wait_lg(); A("s_barrier")
    ST(A, 4)
    A("s_lshr_b32 s33, s3, 1"); A("s_and_b32 s34, s3, 1"); A("s_lshl_b32 s35, s33, 6")
    A(f"s_mul_i32 s32, s34, {64*QP}"); A("s_add_u32 s35, s35, s32")
    A("v_lshlrev_b32 v15, 1, v13")
    A(f"v_mul_u32_u24 v16, {QP}, v15"); A("v_lshl_add_u32 v16, v14, 4, v16"); A("v_add_u32 v16, s35, v16")
    A(f"v_add_u32 v20, {16*QP}, v16"); A(f"v_add_u32 v21, 128, v16")
    A("v_lshlrev_b32 v17, 2, v15"); A("s_lshl_b32 s32, s34, 8"); A(f"s_add_u32 s32, s32, {L_GL}"); A("v_add_u32 v22, s32, v17")
    A("v_lshrrev_b32 v17, 2, v13"); A("v_and_b32 v18, 3, v13"); A("v_lshlrev_b32 v18, 3, v18"); A("v_add_u32 v18, s35, v18"); A("v_add_u32 v18, 256, v18")
    for T in range(2):
        if T == 0: A("v_lshl_add_u32 v19, v14, 2, v17")
        else: A("v_and_b32 v19, 1, v14"); A("v_lshl_add_u32 v19, v19, 2, v17"); A("v_add_u32 v19, 16, v19")
        A("v_lshlrev_b32 v19, 1, v19"); A(f"v_mul_u32_u24 v19, {QP}, v19"); A(f"v_add_u32 v{23+T}, v19, v18")
    UB = 64
    rowoff = lambda b: (32*(b >> 1) + (b & 1))
    Q_ = lambda b: UB + b*24; K_ = lambda b, T: UB + b*24 + 4 + 4*T; V_ = lambda b, mt: UB + b*24 + 12 + 4*mt; G_ = lambda b: UB + b*24 + 20
    for b in range(4):
        A(f"ds_read_b128 {v(Q_(b),4)}, v20 offset:{rowoff(b)*QP}", tag=('u', b))
        for T in range(2): A(f"ds_read_b128 {v(K_(b,T),4)}, v21 offset:{(rowoff(b)+32*T)*QP}", tag=('u', b))
    for b in range(4):
        for mt in range(2):
            for T in range(2): A(f"ds_read_b64_tr_b16 {v(V_(b,mt)+2*T,2)}, v{23+T} offset:{rowoff(b)*QP + mt*32}", tag=('vv', b))
        A(f"ds_read_b32 v{G_(b)}, v22 offset:{rowoff(b)*4}", tag=('vv', b))
    SC = 160; sc = lambda b, T: SC + b*8 + 4*T
    for b in range(4):
        A.wait_lg(('u', b))
        for T in range(2): A(f"v_mfma_f32_16x16x32_bf16 {v(sc(b,T),4)}, {v(K_(b,T),4)}, {v(Q_(b),4)}, 0")
    A.wait_lg(); A("s_barrier")
    A.bg_flush()
    svc.wait_read(list(range(6)), [('A', k) for k in range(6)])
    wfj = WFJob(A); wfj.setup(75, 2*4096)
    A.wait_lg()
    svc.bg_dma([6, 7], [('B', 0), ('B', 1)]); A.bg += wfj.dma(); svc.bg_dma(list(range(8, 14)), [('A', k) for k in range(6)]); A.bg_every = 7
    cs = (28 ** -0.5) * 1.4426950408889634
    A(f"v_mov_b32 v26, {hexf(cs)}"); A(f"v_mov_b32 v27, {hexf(cs)}"); A(f"v_mov_b32 v28, {hexf(-1e30)}")
    for b in range(4):
        for q in range(4): A(f"v_pk_mul_f32 {v(sc(b,0)+2*q,2)}, {v(sc(b,0)+2*q,2)}, {v(26,2)}")
    A("v_lshlrev_b32 v15, 2, v14"); A("v_sub_u32 v15, v13, v15"); A("v_add_u32 v15, 8, v15")
    A("s_and_b32 s34, s3, 1"); A(f"s_or_b32 s34, s34, s{S_RB}")
    A("v_min_u32 v16, 7, v13"); A("s_cmp_eq_u32 s34, 0"); A("s_cselect_b64 s[34:35], -1, 0")
    A("v_mov_b32 v17, 7"); A("v_cndmask_b32 v16, v17, v16, s[34:35]")
    MS = [24, 26, 28, 30, 64, 66, 32, 34]
    for (lim, bs) in ((17, (2, 3)), (16, (0, 1))):
        for q in range(8):
            A(f"v_subrev_u32 v18, {16*(q >> 2) + (q & 3)}, v15")
            A(f"v_cmp_le_u32 s[{MS[q]}:{MS[q]+1}], v18, v{lim}")
        for b in bs:
            for q in range(8):
                A(f"v_cndmask_b32 v{sc(b,0)+q}, v28, v{sc(b,0)+q}, s[{MS[q]}:{MS[q]+1}]")
    MX = 192; M2 = 196
    def xreduce(op):
        for swap in ("v_permlane16_swap_b32", "v_permlane32_swap_b32"):
            for b in range(4): A(f"v_mov_b32 v{M2+b}, v{MX+b}")
            for b in range(4): A(f"{swap} v{MX+b}, v{M2+b}")
            for b in range(4): A(f"{op} v{MX+b}, v{MX+b}, v{M2+b}")
    for b in range(4): s0 = sc(b,0); A(f"v_max3_f32 v{MX+b}, v{s0}, v{s0+1}, v{s0+2}")
    for b in range(4): s0 = sc(b,0); A(f"v_max3_f32 v{MX+b}, v{MX+b}, v{s0+3}, v{s0+4}")
    for b in range(4): s0 = sc(b,0); A(f"v_max3_f32 v{MX+b}, v{MX+b}, v{s0+5}, v{s0+6}")
    for b in range(4): s0 = sc(b,0); A(f"v_max_f32 v{MX+b}, v{MX+b}, v{s0+7}")
    xreduce("v_max_f32")
    for b in range(4):
        for q in range(8): A(f"v_sub_f32 v{sc(b,0)+q}, v{sc(b,0)+q}, v{MX+b}")
    for b in range(4):
        for q in range(8): A(f"v_exp_f32 v{sc(b,0)+q}, v{sc(b,0)+q}")

    for b in range(4): s0 = sc(b,0); A(f"v_add_f32 v{MX+b}, v{s0}, v{s0+1}")
    for q in range(2, 8):
        for b in range(4): A(f"v_add_f32 v{MX+b}, v{MX+b}, v{sc(b,0)+q}")
    xreduce("v_add_f32")
    for b in range(4): A(f"v_rcp_f32 v{MX+b}, v{MX+b}")
    PB = 200
    for b in range(4):
        for q in range(8): A(f"v_mul_f32 v{sc(b,0)+q}, v{sc(b,0)+q}, v{MX+b}")
    for b in range(4):
        for q in range(4): A(f"v_cvt_pk_bf16_f32 v{PB+4*b+q}, v{sc(b,0)+2*q}, v{sc(b,0)+2*q+1}")
    OB = 160
    for b in range(4):
        for mt in range(2): A(f"v_mfma_f32_16x16x32_bf16 {v(OB+8*b+4*mt,4)}, {v(V_(b,mt),4)}, {v(PB+4*b,4)}, 0")
    ST(A, 5)
    wfj.finish()
    svc.wait_read([6, 7], [('B', 0), ('B', 1)]); A.wait_lg(); svc.bg_dma([14, 15], [('B', 0), ('B', 1)])
    A("v_and_b32 v15, 1, v13"); A("v_lshlrev_b32 v15, 1, v15"); A("v_bfe_u32 v16, v13, 1, 1"); A("v_or_b32 v15, v15, v16")
    A("v_and_b32 v16, 12, v13"); A("v_or_b32 v15, v15, v16"); A("v_lshl_add_u32 v15, v14, 4, v15"); A("v_lshlrev_b32 v29, 4, v15")
    A(f"s_lshl_b32 s23, s{S_RB}, 1"); A("s_and_b32 s33, s3, 1"); A("s_add_u32 s23, s23, s33"); A("s_mul_i32 s23, s23, 44")
    A(f"s_lshl_b32 s33, s{S_CB}, 1"); A("s_add_u32 s23, s23, s33"); A("s_lshr_b32 s33, s3, 1"); A("s_add_u32 s23, s23, s33")
    A("s_lshl_b32 s23, s23, 12"); A(f"s_add_u32 s23, s23, {WS_AF}")
    srd_from(A, 16, S_WS, 23, 4096)
    A("v_and_b32 v15, 2, v13"); A("v_cmp_eq_u32 vcc, 0, v15"); A("v_cmp_ne_u32 s[24:25], 0, v15")
    for b in range(4):
        o = OB + 8*b
        for q in range(8): A(f"v_mul_f32 v{o+q}, v{o+q}, v{G_(b)}")
        for q in range(4): A(f"v_cvt_pk_bf16_f32 v{PB+4*b+q}, v{o+2*q}, v{o+2*q+1}")
    for bb in range(2):
        X0 = PB + 8*bb; X1 = X0 + 4; Y = 216 + 8*bb
        for q in range(4):
            A(f"v_mov_b32_dpp v{Y+q}, v{X1+q} quad_perm:[2,3,0,1] row_mask:0xf bank_mask:0xf")
            A(f"v_mov_b32_dpp v{Y+4+q}, v{X0+q} quad_perm:[2,3,0,1] row_mask:0xf bank_mask:0xf")
        for q in range(4):
            A(f"v_cndmask_b32 v{Y+q}, v{Y+q}, v{X0+q}, vcc")
            A(f"v_cndmask_b32 v{Y+4+q}, v{Y+4+q}, v{X1+q}, s[24:25]")
        for aa in range(2):
            A(f"buffer_store_dwordx4 {v(Y+4*aa,4)}, v29, s[16:19], 0 offen offset:{(2*bb+aa)*1024} sc1", tag='pubst')
    A.bg_flush(); A.bg_every = 0
    ST(A, 6)
    A.wait_vm('pubst'); tag_take(A, lambda x: L('q' + x)); A("s_barrier")
    A(f"s_mul_i32 s27, s{S_RB}, {FS}"); A(f"s_lshl_b32 s28, s{S_CB}, 3"); A("s_add_u32 s27, s27, s28"); A(f"s_add_u32 s27, s27, {WS_F1Q}")
    signal(A, L, 'sigqd', 27)
    ST(A, 7)
    p2 = P2(A, L); p2.pre(); p2.flag_issue()
    p2.flag_take('q')
    p2.first()
    svc.wait_read(list(range(8, 14)), [('A', k) for k in range(6)])
    svc.wait_read([14, 15], [('B', 0), ('B', 1)])
    if os.environ.get('PLUMBL', '1') != '1': p2.plumbing()
    p2.third()
    A.wait_lg()
    ST(A, 8)
    p2.loop('q')

def rot7(s_):
    if s_ == 6: return [f"s_add_u32 s30, s29, {3*4096}"]
    return [f"s_add_u32 s30, s{S_CB}, {s_}", "s_cmp_ge_u32 s30, 6", "s_cselect_b32 s31, 6, 0", "s_sub_u32 s30, s30, s31",
            "s_cmp_ge_u32 s30, 6", "s_cselect_b32 s31, 6, 0", "s_sub_u32 s30, s30, s31",
            "s_cmp_ge_u32 s30, 3", "s_addc_u32 s30, s30, 0", "s_lshl_b32 s30, s30, 12", "s_add_u32 s30, s30, s29"]

def poll_p2(A, L):
    tag = 'pa'
    A("s_cmp_lg_u32 s3, 0"); A(f"s_cbranch_scc1 {L(tag+'_done')}")
    A.raw("  s_mov_b32 s33, 0"); A.raw(f"  s_lshl_b32 s30, s{S_CB}, 2"); A.raw("  s_lshl_b64 s[30:31], 15, s30")
    A.label(L(tag+'_loop'))
    for q2 in range(2): A.raw(f"  global_load_dwordx4 {v(16+4*q2,4)}, v2, s[{S_WS}:{S_WS+1}] offset:{16*q2} sc1")
    A.raw("  s_add_u32 s33, s33, 1"); A.raw("  s_waitcnt vmcnt(0)")
    for q in range(8): A.raw(f"  v_xor_b32 v{16+q}, s{S_TAG + (q & 1)}, v{16+q}")
    for t in ("v_or3_b32 v16, v16, v17, v18", "v_or3_b32 v19, v19, v20, v21", "v_or3_b32 v16, v16, v22, v23", "v_or_b32 v16, v16, v19", "v_cmp_eq_u32 vcc, 0, v16"): A.raw("  " + t)
    A.raw("  s_nop 1")
    A.raw("  s_and_b64 s[34:35], vcc, s[30:31]"); A.raw("  s_cmp_eq_u64 s[34:35], s[30:31]")
    A.raw(f"  s_cbranch_scc1 {L(tag+'_out')}")
    A.raw(f"  s_sleep {SLEEP}"); A.raw("  s_cmp_lt_u32 s33, 0x20000"); A.raw(f"  s_cbranch_scc1 {L(tag+'_loop')}")
    A.label(L(tag+'_out'))
    A.raw("  s_cmp_eq_u64 vcc, exec"); A.raw("  s_cselect_b32 s30, 1, 0"); A.raw("  v_mov_b32 v16, s30"); A.raw("  ds_write_b32 v9, v16"); A.raw("  s_waitcnt lgkmcnt(0)")
    A.label(L(tag+'_done'))
    A("s_barrier")

class P2:
    ACC, BR = 32, 144
    def __init__(self, A, L): self.A, self.L = A, L
    def acc(self, j, tau): return self.ACC + (j*4+tau)*4
    def bfrag(self, kk, j): return self.BR + (kk % 4)*28 + j*4
    def afrag(self, kk, tau): return ((kk >> 1)*8 + (kk & 1)*4 + tau)*4
    def pre(self):
        A = self.A
        A("v_lshlrev_b32 v3, 4, v12"); A("v_add_u32 v4, 4096, v3")
        A(f"s_mul_i32 s23, s{S_CB}, {64*7168}")
        if WS_Z2F: A(f"s_add_u32 s23, s23, {WS_Z2F}")
        srd_from(A, 12, S_WS, 23, 64*7168)
        A(f"s_mul_i32 s26, s3, {16*7168}")
        if os.environ.get('ROT', '0') == '1': A(f"s_and_b32 s25, s{S_RB2}, 7"); A("s_lshl_b32 s25, s25, 1")
        else:
            A("s_mov_b32 s25, 0")
            A(f"s_and_b32 s23, s{S_RB2}, 7"); A("s_mul_i32 s23, s23, 896")
            A("v_and_b32 v31, 7, v12"); A("v_min_u32 v31, 6, v31"); A("v_lshlrev_b32 v31, 7, v31"); A("v_bfe_u32 v30, v12, 3, 2"); A("v_mul_u32_u24 v30, 7168, v30")
            A("v_add3_u32 v31, v31, v30, s23")
        A(f"s_mul_i32 s27, s{S_CB}, {FS}"); A("s_lshl_b32 s23, s3, 5"); A("s_add_u32 s27, s27, s23"); A(f"s_add_u32 s27, s27, {WS_F1Z}")
        A("v_and_b32 v9, 3, v12"); A("v_lshl_add_u32 v9, v9, 3, s27")
    def flag_issue(self):
        if os.environ.get('WGPOLL', '0') == '1': return
        self.A(f"global_load_dwordx2 v[10:11], v9, s[{S_WS}:{S_WS+1}] sc1", tag='fa')
    def flag_take(self, role):
        A, L = self.A, self.L
        if os.environ.get('WGPOLL', '0') == '1':
            A(f"s_mul_i32 s27, s{S_CB}, {FS}"); A(f"s_add_u32 s27, s27, {WS_F1Z}"); A("v_lshl_add_u32 v9, v12, 3, s27")
            poll(A, L, role+'pa', 9, 16)
            ST(A, 10)
            return
        A.wait_vm('fa')
        A(f"v_xor_b32 v10, s{S_TAG}, v10"); A(f"v_xor_b32 v11, s{S_TAG+1}, v11"); A("v_or_b32 v10, v10, v11"); A("v_cmp_eq_u32 vcc, 0, v10")
        A("s_nop 1"); A("s_cmp_eq_u64 vcc, exec"); A(f"s_cbranch_scc1 {L(role+'faok')}")
        poll_wave(A, L, role+'paw', 9, reset=False)
        A.label(L(role+'faok'))
        ST(A, 10)
    def soffB(self, kk):
        if os.environ.get('ROT', '0') != '1': return [f"s_add_u32 s27, s26, {kk*7168}"]
        return [f"s_add_u32 s27, s25, {kk}", "s_and_b32 s27, s27, 15", "s_mul_i32 s27, s27, 7168", "s_add_u32 s27, s27, s26"]
    def touchB(self, k0):
        if os.environ.get('ROT', '0') == '1': return
        A = self.A
        A(f"s_add_u32 s24, s26, {k0*7168}"); A("buffer_load_dword v30, v31, s[12:15], s24 offen sc1", tag='bt')
    def first(self):
        self.issueB(0)
        if os.environ.get('EARLY', '1') == '0': self.second()
    def second(self):
        self.touchB(3); self.issueB(1)
        if os.environ.get('ROT', '0') != '1' or os.environ.get('ROT3'): self.issueB(2)
    def third(self):
        if os.environ.get('EARLY', '1') == '1': self.second()
    def issueB(self, kk):
        A = self.A
        for t in self.soffB(kk): A(t)
        for j in range(7):
            A(f"buffer_load_dwordx4 {v(self.bfrag(kk,j),4)}, v{3 if j < 4 else 4}, s[12:15], s27 offen offset:{(j % 4)*1024} sc1", tag=('B', kk))
    def plumbing(self, A=None):
        rec = A; A = A or self.A
        G = (lambda fn: rec.group(fn)) if rec is not None else (lambda fn: fn())
        def g1():
            A(f"s_mul_i32 s33, s{S_CB}, {44*4096}"); A(f"s_add_u32 s33, s33, {WS_WF}"); srd_from(A, 8, S_WS, 33, 44*4096)
            A(f"s_cmp_eq_u32 s{S_CB}, 7"); A("s_cselect_b32 s10, 0, s10")
        G(g1)
        def g2():
            A(f"s_mul_i32 s33, s{S_RB2}, {44*4096}"); A(f"s_add_u32 s33, s33, {WS_AF}"); srd_from(A, 16, S_WS, 33, 44*4096)
        G(g2)
        for tau in range(4):
            G(lambda: (A(f"s_xor_b32 s33, s3, {tau}"), A("s_lshl_b32 s33, s33, 10"), A(f"v_add_u32 v{5+tau}, s33, v3")))
        A("s_lshl_b32 s28, s3, 14")
        G(lambda: (A(f"s_mul_i32 s29, s3, {7*4096}"), A(f"s_add_u32 s29, s29, {16*4096}")))
        def g3():
            A(f"s_lshl_b32 s30, s{S_RB2}, 2"); A("s_add_u32 s30, s30, s3")
            A("s_mul_i32 s31, s30, 56"); A(f"s_mul_i32 s32, s{S_CB}, 7"); A("s_add_u32 s31, s31, s32"); A("s_lshl_b32 s31, s31, 9"); A(f"s_add_u32 s31, s31, {WS_Z1F}")
            srd_from(A, 64, S_WS, 31, 7*512)
        G(g3)
        A("v_lshlrev_b32 v10, 3, v12")
        def g4():
            A(f"s_lshl_b32 s31, s{S_RB2}, 6"); A("s_lshr_b32 s32, s3, 1"); A("s_lshl_b32 s32, s32, 5"); A("s_add_u32 s31, s31, s32")
            A("s_and_b32 s32, s3, 1"); A("s_lshl_b32 s32, s32, 2"); A("s_add_u32 s31, s31, s32")
        G(g4)
        A("v_lshrrev_b32 v11, 2, v13"); A("v_lshlrev_b32 v11, 3, v11"); A("v_and_b32 v1, 3, v13"); A("v_add_u32 v11, v11, v1"); A("v_add_u32 v11, s31, v11")
        A("v_lshlrev_b32 v15, 2, v11"); A(f"v_add_u32 v15, {WS_GATE}, v15"); A("v_lshlrev_b32 v11, 1, v11")
        A(f"s_mul_i32 s33, s{S_CB}, 11"); A("v_subrev_u32 v1, 8, v12"); A("v_min_u32 v1, 11, v1"); A("v_add_u32 v1, s33, v1"); A("v_min_u32 v1, 76, v1")
        A(f"s_lshl_b32 s33, s{S_RB}, 3"); A("v_add_u32 v2, s33, v12"); A("v_cmp_gt_u32 vcc, 8, v12"); A("v_cndmask_b32 v1, v1, v2, vcc")
        A("v_lshrrev_b32 v2, 3, v1"); A(f"v_mul_u32_u24 v2, {FS}, v2"); A("v_and_b32 v1, 7, v1"); A("v_lshl_add_u32 v2, v1, 3, v2"); A(f"v_add_u32 v2, {WS_F1Q}, v2")
        def g5():
            A(f"s_mul_i32 s33, s{S_RB}, {FS}"); A(f"s_lshl_b32 s32, s{S_CB}, 3"); A("s_add_u32 s33, s33, s32"); A(f"s_add_u32 s33, s33, {WS_F3}"); A("v_mov_b32 v9, s33")
        G(g5)
    def epi_list(self):
        out = [(f"buffer_load_dwordx2 {v(16+2*j,2)}, v10, s[64:67], 0 offen offset:{j*512} sc1", 'epi') for j in range(7)]
        out += [(f"global_load_ushort v30, v11, s[{S_BSP}:{S_BSP+1}]", 'epi'), (f"global_load_dword v31, v15, s[{S_WS}:{S_WS+1}] sc1", 'epi')]
        return out
    def wlist(self, kind):
        out = []
        if kind == 'Wo':
            for s_ in range(4):
                out.append((f"s_add_u32 s30, s28, {s_*4096}", None))
                out += [(f"buffer_load_dwordx4 {a((s_*4+uu)*4,4)}, v3, s[8:11], s30 offen offset:{uu*1024} sc1", ('Wo', s_)) for uu in range(4)]
        if kind == 'Wh':
            for s_ in range(7):
                out += [(t, None) for t in rot7(s_)]
                out += [(f"buffer_load_dwordx4 {a(64+(s_*4+uu)*4,4)}, v3, s[8:11], s30 offen offset:{uu*1024} sc1", ('Wh', s_)) for uu in range(4)]
        if kind == 'Ao':
            for s_ in range(4):
                out.append((f"s_add_u32 s32, s28, {s_*4096}", None))
                out += [(f"buffer_load_dwordx4 {a(176+(s_*4+tau)*4,4)}, v{5+tau}, s[16:19], s32 offen sc1", ('Ao', s_)) for tau in range(4)]
        return out
    def loop(self, role):
        A = self.A; L = lambda x: self.L(role + x)
        acc, bfrag, afrag = self.acc, self.bfrag, self.afrag
        side = []
        if os.environ.get('PLUMBL', '1') == '1':
            R_ = Rec(); self.plumbing(R_); side = R_.items
        for kk in range(16):
            if kk == 4: assert not side
            A.wait_vm(('B', kk)); ST(A, ('kk', kk))
            pend = [(kk+3, j) for j in range(7)] if kk + 3 < 16 else []
            if kk == 0 and os.environ.get('ROT', '0') == '1' and not os.environ.get('ROT3'): pend = [(2, j) for j in range(7)] + pend
            if kk in (1, 5, 9): self.touchB({1: 7, 5: 11, 9: 15}[kk])
            m = 0
            if kk == 4:
                A.wait_vm('z1st'); A("s_barrier")
                if role == 'z':
                    A(f"s_mul_i32 s24, s{S_RB}, {FS}"); A(f"s_lshl_b32 s23, s{S_CB}, 3"); A("s_add_u32 s24, s24, s23"); A(f"s_add_u32 s24, s24, {WS_F3}")
                    signal(A, L, 'sigz1', 24, vtmp=20)
            if kk == 8:
                A(f"global_load_dwordx2 v[16:17], v2, s[{S_WS}:{S_WS+1}] sc1", tag='fl')
                if role == 'q': A(f"global_load_dwordx2 v[18:19], v9, s[{S_WS}:{S_WS+1}] sc1", tag='fl')
                else: A(f"v_mov_b32 v18, s{S_TAG}"); A(f"v_mov_b32 v19, s{S_TAG+1}")
            if kk == 12:
                def check():
                    return [f"v_xor_b32 v{16+q}, s{S_TAG + (q & 1)}, v{16+q}" for q in range(4)] + ["v_or3_b32 v16, v16, v17, v18", "v_or_b32 v16, v16, v19", "v_cmp_eq_u32 vcc, 0, v16"]
                A.wait_vm('fl')
                for t in check(): A(t)
                A("s_nop 1"); A("s_cmp_eq_u64 vcc, exec"); A(f"s_cbranch_scc1 {L('allok')}")
                A.raw("  s_mov_b32 s33, 0")
                A.raw(f"{L('allloop')}:")
                A.raw(f"  global_load_dwordx2 v[16:17], v2, s[{S_WS}:{S_WS+1}] sc1"); A.raw(f"  global_load_dwordx2 v[18:19], v9, s[{S_WS}:{S_WS+1}] sc1")
                A.raw("  s_add_u32 s33, s33, 1"); A.raw("  s_waitcnt vmcnt(0)")
                for t in check(): A.raw("  " + t)
                A.raw("  s_nop 1"); A.raw("  s_cmp_eq_u64 vcc, exec"); A.raw(f"  s_cbranch_scc1 {L('allok')}")
                A.raw(f"  s_sleep {SLEEP}"); A.raw("  s_cmp_lt_u32 s33, 0x20000"); A.raw(f"  s_cbranch_scc1 {L('allloop')}")
                A.label(L('allok'))
            if kk == 13:
                A.bg += self.epi_list() + self.wlist('Wo')[:15]; A.bg_every = 4
                A("s_mul_i32 s23, s3, 21504"); A("v_add_u32 v9, s23, v3")
            for j in range(7):
                if kk == 15 and j >= 2 and os.environ.get('EARLYW', '0') == '1':
                    for tau in (1, 2, 3): A(f"ds_write_b128 v9, {v(acc(j-2,tau),4)} offset:{(tau-1)*7168+(j-2)*1024}", tag='w')
                for tau in range(4):
                    c = v(acc(j,tau),4)
                    A(f"v_mfma_f32_16x16x32_bf16 {c}, {v(bfrag(kk,j),4)}, {a(afrag(kk,tau),4)}, {c if kk else 0}")
                    m += 1
                    if side:
                        for t, tg in side.pop(0): A(t, tag=tg)
                    if pend and (m % 4 == 1 or (kk == 0 and m % 2 == 1)):
                        k3, jj = pend.pop(0)
                        if jj == 0:
                            for t in self.soffB(k3): A(t)
                        A(f"buffer_load_dwordx4 {v(bfrag(k3,jj),4)}, v{3 if jj < 4 else 4}, s[12:15], s27 offen offset:{(jj % 4)*1024} sc1", tag=('B', k3))
            A.check_vm()
        A.bg_flush(); A.bg_every = 0

def phase2_tail(A, L):
    p2 = P2(A, L); acc = p2.acc; wlist = p2.wlist
    rest = wlist('Wo')[15:] + wlist('Ao') + wlist('Wh')
    groups = []; cur = []
    for it in rest:
        cur.append(it)
        if it[1] is not None and sum(1 for x in cur if x[1] is not None) == 4: groups.append(cur); cur = []
    n1, n2 = [int(x) for x in os.environ.get('TAILG', '5,4').split(',')]
    for gq in groups[:n1]: A.bg += gq
    bg_mid = [it for gq in groups[n1:n1+n2] for it in gq]; bg_late = [it for gq in groups[n1+n2:] for it in gq]
    A.bg_every = int(os.environ.get('TAILE', '5')); A.bg_classes = ('valu', 'ds')
    ST(A, 11)
    for tau in (1,2,3):
        A(f"s_xor_b32 s24, s3, {tau}"); A("s_mul_i32 s24, s24, 21504"); A(f"s_add_u32 s24, s24, {(tau-1)*7168}"); A(f"v_add_u32 v{(10,11,15)[tau-1]}, s24, v3")
    j0 = 5 if os.environ.get('EARLYW', '0') == '1' else 0
    for j in range(j0, 7):
        for tau in (1,2,3): A(f"ds_write_b128 v9, {v(acc(j,tau),4)} offset:{(tau-1)*7168+j*1024}", tag='w')
    A.wait_lg(); ST(A, 'red_w'); A("s_barrier"); ST(A, 'red_b')
    T0 = 144
    for tau in (1,2,3):
        for j in range(7): A(f"ds_read_b128 {v(T0+((tau-1)*7+j)*4,4)}, v{(10,11,15)[tau-1]} offset:{j*1024}", tag=('r',tau))
    for tau in (1,2,3):
        A.wait_lg(('r',tau))
        for j in range(7):
            c = acc(j,0); t = T0+((tau-1)*7+j)*4
            A(f"v_pk_add_f32 {v(c,2)}, {v(c,2)}, {v(t,2)}"); A(f"v_pk_add_f32 {v(c+2,2)}, {v(c+2,2)}, {v(t+2,2)}")
    A.bg_flush(); A.bg_every = 0
    ST(A, 'red_r')
    A.wait_vm('epi')
    A("v_lshlrev_b32 v30, 16, v30"); A("v_sub_f32 v31, 1.0, v31")
    H = 144
    if os.environ.get('PKH', '1') == '1':
        A("v_mov_b32 v33, v31") if False else None
        A("v_mov_b32 v240, v30"); A("v_mov_b32 v241, v30"); A("v_mov_b32 v242, v31"); A("v_mov_b32 v243, v31")
        for j in range(7):
            c = acc(j,0)
            for rp in range(2):
                z = 16 + 2*j + rp; t = 244 + 2*rp
                A(f"v_lshlrev_b32 v{t}, 16, v{z}"); A(f"v_and_b32 v{t+1}, 0xffff0000, v{z}")
                A(f"v_pk_add_f32 {v(c+2*rp,2)}, {v(c+2*rp,2)}, v[240:241]")
                A(f"v_pk_mul_f32 {v(t,2)}, {v(t,2)}, v[242:243]")
                A(f"v_pk_mul_f32 {v(c+2*rp,2)}, {v(c+2*rp,2)}, {v(t,2)}")
            A(f"v_cvt_pk_bf16_f32 v{H+2*j}, v{c}, v{c+1}"); A(f"v_cvt_pk_bf16_f32 v{H+2*j+1}, v{c+2}, v{c+3}")
    else:
        for j in range(7):
            c = acc(j,0)
            for r in range(4):
                z = 16 + 2*j + (r >> 1); t = 1 + (r & 1)
                if r & 1: A(f"v_and_b32 v{t}, 0xffff0000, v{z}")
                else: A(f"v_lshlrev_b32 v{t}, 16, v{z}")
                A(f"v_add_f32 v{c+r}, v{c+r}, v30")
                A(f"v_mul_f32 v{t}, v{t}, v31")
                A(f"v_mul_f32 v{c+r}, v{c+r}, v{t}")
            A(f"v_cvt_pk_bf16_f32 v{H+2*j}, v{c}, v{c+1}"); A(f"v_cvt_pk_bf16_f32 v{H+2*j+1}, v{c+2}, v{c+3}")
    ST(A, 'hcomp')
    A.bg_classes = ('valu', 'mfma')
    A.wait_vm(('Wo', 2))
    A("v_lshlrev_b32 v2, 3, v12")
    A(f"s_mul_i32 s24, s{S_CB}, 7"); A("s_lshr_b32 s33, s24, 1"); A("s_add_u32 s33, s33, 16"); A("s_lshl_b32 s33, s33, 12")
    A("s_lshl_b32 s23, s3, 10"); A("s_add_u32 s33, s33, s23")
    A("s_and_b32 s24, s24, 1"); A("s_cmp_eq_u32 s24, 0"); A(f"s_cbranch_scc0 {L('odd')}")
    vm0 = list(A.vm)
    for p in range(3):
        A(f"buffer_store_dwordx4 {v(H+4*p,4)}, v3, s[16:19], s33 offen sc1", tag='hst'); A("s_add_u32 s33, s33, 4096")
    A(f"buffer_store_dwordx2 {v(H+12,2)}, v2, s[16:19], s33 offen sc1", tag='hst')
    A(f"s_branch {L('hfin')}")
    A.label(L('odd')); A.vm = list(vm0)
    A(f"buffer_store_dwordx2 {v(H,2)}, v2, s[16:19], s33 offen offset:512 sc1", tag='hst')
    for p in range(3):
        A("s_add_u32 s33, s33, 4096"); A(f"buffer_store_dwordx4 {v(H+2+4*p,4)}, v3, s[16:19], s33 offen sc1", tag='hst')
    A.label(L('hfin'))
    ST(A, 12)
    if os.environ.get('OEARLY', '1') == '1': return (bg_mid, bg_late)
    for t, tg in bg_mid: A(t, tag=tg)
    return bg_late

def phase3(A, L, late):
    ACC = 32; acc = lambda uu, tau: ACC + (uu*4+tau)*4
    HA = 96
    def opart():
        for s_ in range(4):
            A.wait_vm([('Wo', s_), ('Ao', s_)])
            for tau in range(4):
                for uu in range(4):
                    c = v(acc(uu,tau),4)
                    A(f"v_mfma_f32_16x16x32_bf16 {c}, {a((s_*4+uu)*4,4)}, {a(176+(s_*4+tau)*4,4)}, {c if s_ else 0}")
    EARLY = os.environ.get('OEARLY', '1') == '1'
    if EARLY:
        mid, late = late
        A.bg += mid; A.bg_every = 4
        opart()
        A.bg_flush(); A.bg_every = 0
    A.wait_vm('hst'); ST(A, 'hack'); A("s_barrier")
    A(f"s_mul_i32 s27, s{S_RB2}, {FS}"); A(f"s_lshl_b32 s26, s{S_CB}, 3"); A("s_add_u32 s27, s27, s26"); A(f"s_add_u32 s27, s27, {WS_F2}")
    signal(A, L, 'sighd', 27)
    A(f"s_cmp_eq_u32 s{S_CB}, 7"); A(f"s_cbranch_scc1 {L('fin')}")
    ST(A, 13)
    if EARLY:
        for t, tg in late: A(t, tag=tg)
    else:
        nl = sum(1 for x in late if x[1] is not None)
        A.bg += late; A.bg_every = max(1, 60 // max(nl, 1))
        opart()
    A.bg_flush(); A.bg_every = 0
    ST(A, 'opart')
    A("s_mul_i32 s26, s3, 12288"); A("v_add_u32 v20, s26, v3")
    for tau in (1,2,3):
        A(f"s_xor_b32 s26, s3, {tau}"); A("s_mul_i32 s26, s26, 12288"); A(f"s_add_u32 s26, s26, {(tau-1)*4096}"); A(f"v_add_u32 v{20+tau}, s26, v3")
    A("v_bfe_u32 v15, v13, 2, 1"); A("v_lshlrev_b32 v15, 3, v15"); A("v_and_b32 v16, 3, v13"); A("v_add_u32 v15, v15, v16")
    A(f"s_lshl_b32 s26, s{S_RB2}, 6"); A("s_lshr_b32 s27, s3, 1"); A("s_lshl_b32 s27, s27, 5"); A("s_add_u32 s26, s26, s27")
    A("s_and_b32 s27, s3, 1"); A("s_lshl_b32 s27, s27, 2"); A("s_add_u32 s26, s26, s27")
    A("v_add_u32 v15, s26, v15"); A("v_mul_u32_u24 v15, 896, v15")
    A("v_lshrrev_b32 v16, 3, v13"); A("v_lshl_add_u32 v16, v16, 2, v14"); A("v_lshlrev_b32 v16, 4, v16")
    A(f"s_lshl_b32 s27, s{S_CB}, 7"); A("v_add_u32 v16, s27, v16"); A("v_add_u32 v1, v15, v16")
    A(f"s_mov_b32 s26, {16*896}")
    srd_from(A, 12, S_OUT, None, S*D*2)
    for tau in range(4):
        A(f"s_xor_b32 s24, s3, {tau}"); A("s_lshl_b32 s24, s24, 10"); A(f"v_lshl_add_u32 v{24+tau}, v12, 3, s24")
    A(f"s_mul_i32 s27, s{S_RB2}, {FS}"); A(f"s_add_u32 s27, s27, {WS_F2}"); A("v_lshl_add_u32 v17, v12, 3, s27")
    poll(A, L, 'pb', 17, 8)
    ST(A, 14)
    def hload(s_):
        out = [(t, None) for t in rot7(s_)]
        for tau in range(4):
            r = HA + (s_*4+tau)*4
            if s_ < 6: out.append((f"buffer_load_dwordx4 {v(r,4)}, v{5+tau}, s[16:19], s30 offen sc1", ('Ah', s_)))
            else:
                out.append((f"buffer_load_dwordx2 {v(r,2)}, v{24+tau}, s[16:19], s30 offen sc1", ('Ah', s_)))
                out.append((f"buffer_load_dwordx2 {v(r+2,2)}, v{24+tau}, s[16:19], s30 offen offset:512 sc1", ('Ah', s_)))
        return out
    for s_ in range(3):
        for t, tg in hload(s_): A(t, tag=tg)
    EW3 = os.environ.get('EARLYW', '0') == '1'
    for s_ in range(7):
        A.wait_vm(('Ah', s_))
        if s_ == 0: ST(A, 'ah0')
        if s_ == 6: ST(A, 'ahN')
        if s_ + 3 < 7: A.bg += hload(s_ + 3); A.bg_every = 3
        order = [(tau, uu) for tau in range(4) for uu in range(4)]
        if s_ == 6 and EW3: order = [(tau, uu) for tau in (1, 2, 3, 0) for uu in range(4)]
        for n_, (tau, uu) in enumerate(order):
            c = v(acc(uu,tau),4)
            A(f"v_mfma_f32_16x16x32_bf16 {c}, {a(64+(s_*4+uu)*4,4)}, {v(HA+(s_*4+tau)*4,4)}, {c}")
            if s_ == 6 and EW3 and n_ >= 8:
                t2, u2 = order[n_ - 8]
                if t2 != 0: A(f"ds_write_b128 v20, {v(acc(u2,t2),4)} offset:{(t2-1)*4096+u2*1024}", tag='w')
        A.bg_flush(); A.bg_every = 0
    if not os.environ.get('ENDST'): ST(A, 15)
    done = set(order[:8]) if EW3 else set()
    for tau in (1,2,3):
        for uu in range(4):
            if (tau, uu) not in done: A(f"ds_write_b128 v20, {v(acc(uu,tau),4)} offset:{(tau-1)*4096+uu*1024}", tag='w')
    A.wait_lg(); A("s_barrier")
    ST(A, 'p3red')
    T0 = 208
    for tau in (1,2,3):
        for uu in range(4): A(f"ds_read_b128 {v(T0+((tau-1)*4+uu)*4,4)}, v{20+tau} offset:{uu*1024}", tag=('r',tau))
    for tau in (1,2,3):
        A.wait_lg(('r',tau))
        for uu in range(4):
            c = acc(uu,0); t = T0+((tau-1)*4+uu)*4
            A(f"v_pk_add_f32 {v(c,2)}, {v(c,2)}, {v(t,2)}"); A(f"v_pk_add_f32 {v(c+2,2)}, {v(c+2,2)}, {v(t+2,2)}")
    for vv in range(2):
        o = 96 + 4*vv; c0 = acc(2*vv,0); c1 = acc(2*vv+1,0)
        A(f"v_cvt_pk_bf16_f32 v{o}, v{c0}, v{c0+1}"); A(f"v_cvt_pk_bf16_f32 v{o+1}, v{c0+2}, v{c0+3}")
        A(f"v_cvt_pk_bf16_f32 v{o+2}, v{c1}, v{c1+1}"); A(f"v_cvt_pk_bf16_f32 v{o+3}, v{c1+2}, v{c1+3}")
    A("v_cmp_gt_u32 vcc, 8, v13"); A("v_cmp_le_u32 s[24:25], 8, v13")
    for q in range(4):
        A(f"v_mov_b32_dpp v{104+q}, v{100+q} row_ror:8 row_mask:0xf bank_mask:0xf")
        A(f"v_mov_b32_dpp v{108+q}, v{96+q} row_ror:8 row_mask:0xf bank_mask:0xf")
    for q in range(4):
        A(f"v_cndmask_b32 v{104+q}, v{104+q}, v{96+q}, vcc")
        A(f"v_cndmask_b32 v{108+q}, v{108+q}, v{100+q}, s[24:25]")
    ST(A, 'p3st')
    A(f"buffer_store_dwordx4 v[104:107], v1, s[12:15], 0 offen {os.environ.get('OUTSC', 'sc1')}")
    A(f"buffer_store_dwordx4 v[108:111], v1, s[12:15], s26 offen {os.environ.get('OUTSC', 'sc1')}")

def gen_mega(name="mega", code_bytes=0):
    Stamps.map = [78+2*k for k in range(11)] + [4, 6, 42, 0, 74+0*0]
    A = Asm(); L = lambda x: f"{name}_{x}"
    A("s_cmp_ge_u32 s2, 256"); A(f"s_cbranch_scc1 {L('end')}")
    if os.environ.get('DELAY'):
        A.raw(f"  s_mov_b32 s30, {os.environ['DELAY']}")
        A.raw(f"{L('dly')}:")
        for q in range(16): A.raw(f"  v_add_u32 v{100+q}, v{100+q}, v0")
        A.raw("  s_sub_u32 s30, s30, 1"); A.raw("  s_cmp_lg_u32 s30, 0"); A.raw(f"  s_cbranch_scc1 {L('dly')}")
    ST(A, 0)
    A("s_load_dwordx16 s[36:51], s[0:1], 0")
    A("s_load_dwordx8 s[52:59], s[0:1], 64")
    A("v_lshrrev_b32 v6, 6, v0"); A("s_getreg_b32 s20, hwreg(HW_REG_XCC_ID)"); A("v_readfirstlane_b32 s3, v6")
    if code_bytes and os.environ.get('ECP', '1') == '1':
        A("s_cmp_lg_u32 s3, 1"); A(f"s_cbranch_scc1 {L('noecp')}")
        A.raw("  s_getpc_b64 s[22:23]"); A.raw(f"{name}_pc0:")
        A.raw("  v_and_b32 v10, 31, v0"); A.raw("  v_lshlrev_b32 v10, 7, v10"); A.raw("  v_bfe_u32 v11, v0, 5, 1")
        A.raw(f"  v_mul_u32_u24 v11, {L('qrole')}-{name}_pc0, v11"); A.raw("  v_add_u32 v10, v10, v11")
        A.raw("  global_load_dword v56, v10, s[22:23]")
        A.label(L('noecp'))
    A("v_and_b32 v12, 63, v0")
    A("s_and_b32 s20, s20, 7")
    A("v_and_b32 v13, 15, v12"); A("v_lshrrev_b32 v14, 4, v12")
    A(f"v_mov_b32 v18, {L_TICKET}"); A("v_mov_b32 v17, 0")
    A.wait_lg(); ST(A, 'karg')
    CH = os.environ.get('CHIPT', '1') == '1'
    A("s_cmp_lg_u32 s3, 0"); A(f"s_cbranch_scc1 {L('notick')}")
    A.raw("  s_lshl_b32 s30, s20, 5"); A.raw("  v_mov_b32 v10, s30"); A.raw("  v_mov_b32 v19, 1")
    A.raw("  s_mov_b64 s[34:35], exec"); A.raw("  s_mov_b64 exec, 1")
    A.raw(f"  global_atomic_add v59, v10, v19, s[{S_DBG}:{S_DBG+1}] sc0 sc1")
    A.raw("  s_mov_b64 exec, s[34:35]")
    A.label(L('notick'))
    if CH:
        A("s_lshl_b32 s24, s2, 2"); A("s_add_u32 s24, s24, s3")
        A("s_mul_i32 s25, s24, 1792"); A("v_min_u32 v57, 13, v12"); A("v_lshlrev_b32 v57, 7, v57"); A("v_add_u32 v58, s25, v57")
        A(f"global_load_dword v56, v58, s[{S_X}:{S_X+1}]", tag='pf')
        A("s_cmp_lt_u32 s24, 448"); A(f"s_cselect_b32 s28, s{S_WIN}, s{S_WQKV}"); A(f"s_cselect_b32 s29, s{S_WIN+1}, s{S_WQKV+1}")
        Z2O = os.environ.get('Z2ONLY', '0') == '1'
        A(f"s_cselect_b32 s26, {13 if Z2O else 27}, 20"); A("s_cselect_b32 s27, 4, 3"); A("s_cselect_b32 s25, 0, 448")
        if Z2O: A("s_cselect_b32 s30, 2, 0"); A("s_mul_i32 s30, s30, 896")
        A("s_mul_i32 s27, s27, 896")
        A("s_sub_u32 s25, s24, s25"); A("s_min_u32 s25, s25, 447"); A("s_mul_i32 s25, s25, s27")
        if Z2O: A("s_add_u32 s25, s25, s30")
        A("v_min_u32 v57, s26, v12"); A("v_lshlrev_b32 v57, 7, v57"); A("v_add_u32 v58, s25, v57")
        A("global_load_dword v56, v58, s[28:29]", tag='pf')
    A("s_cmp_lg_u32 s3, 0"); A(f"s_cbranch_scc1 {L('tickd')}")
    A.raw(f"  s_waitcnt vmcnt({2 if CH else 0})")
    A.raw("  v_readfirstlane_b32 s30, v59"); A.raw("  s_nop 1"); A.raw("  v_mov_b32 v59, s30")
    A.raw("  ds_write_b32 v18, v59"); A.raw("  s_waitcnt lgkmcnt(0)")
    A.label(L('tickd'))
    A("s_barrier"); ST(A, 'tkb')
    A("ds_read_b32 v19, v18", tag='tk')
    A("s_cmp_lg_u32 s3, 0"); A(f"s_cbranch_scc1 {L('notag')}")
    tag_publish(A, L)
    A.wait_lg()
    A("v_readfirstlane_b32 s21, v19")
    A("s_cmp_ge_u32 s21, 32"); A(f"s_cbranch_scc1 {L('end')}")
    A("s_lshl_b32 s24, s21, 2"); A("s_add_u32 s24, s24, s3")
    if not CH:
        A("s_and_b32 s25, s20, 1"); A("s_mul_i32 s26, s25, 896")
        A("s_cmp_lt_u32 s24, 43"); A(f"s_cbranch_scc1 {L('tx')}")
        A.raw("  s_cmp_lt_u32 s24, 83"); A.raw(f"  s_cbranch_scc1 {L('tw')}")
        A.raw("  s_sub_u32 s27, s24, 83"); A.raw("  s_mul_i32 s27, s27, 8"); A.raw("  v_lshrrev_b32 v57, 3, v12"); A.raw("  v_add_u32 v57, s27, v57"); A.raw("  v_min_u32 v57, 319, v57")
        A.raw("  v_and_b32 v15, 7, v12"); A.raw("  v_min_u32 v15, 5, v15")
        A.raw("  v_lshrrev_b32 v16, 1, v15"); A.raw("  v_mul_u32_u24 v16, 896, v16"); A.raw("  v_and_b32 v15, 1, v15"); A.raw("  v_lshl_add_u32 v15, v15, 8, v16")
        A.raw("  s_lshr_b32 s26, s26, 1"); A.raw("  v_add_u32 v15, s26, v15")
        A.raw("  v_lshrrev_b32 v61, 3, v12"); A.raw("  s_sub_u32 s27, s24, 83"); A.raw("  s_mul_i32 s27, s27, 3"); A.raw("  v_min_u32 v61, 2, v61"); A.raw("  v_add_u32 v61, s27, v61"); A.raw("  v_add_u32 v61, 320, v61"); A.raw("  v_min_u32 v61, 447, v61")
        A.raw("  v_mul_u32_u24 v61, 2688, v61"); A.raw("  v_add_u32 v61, v61, v15")
        A.raw("  v_mul_u32_u24 v57, 2688, v57"); A.raw("  v_add_u32 v57, v57, v15")
        A.raw("  v_add_u32 v60, 128, v57"); A.raw("  v_add_u32 v62, 128, v61")
        A.raw(f"  global_load_dword v56, v60, s[{S_WQKV}:{S_WQKV+1}]")
        A.raw(f"  s_mov_b32 s28, s{S_WQKV}"); A.raw(f"  s_mov_b32 s29, s{S_WQKV+1}"); A.raw(f"  s_branch {L('tgo')}")
        A.raw(f"{L('tw')}:")
        A.raw("  s_sub_u32 s27, s24, 43"); A.raw("  s_lshl_b32 s27, s27, 3"); A.raw("  v_lshrrev_b32 v57, 3, v12"); A.raw("  v_add_u32 v57, s27, v57")
        A.raw("  v_and_b32 v15, 7, v12"); A.raw("  v_min_u32 v15, 6, v15"); A.raw("  v_lshlrev_b32 v15, 7, v15"); A.raw("  s_add_u32 s26, s26, 1792"); A.raw("  v_add_u32 v15, s26, v15")
        A.raw("  s_sub_u32 s27, s24, 43"); A.raw("  s_lshl_b32 s27, s27, 2"); A.raw("  v_lshrrev_b32 v61, 3, v12"); A.raw("  v_min_u32 v61, 3, v61"); A.raw("  v_add_u32 v61, s27, v61"); A.raw("  v_add_u32 v61, 320, v61"); A.raw("  v_min_u32 v61, 447, v61")
        A.raw("  v_mul_u32_u24 v61, 3584, v61"); A.raw("  v_add_u32 v61, v61, v15"); A.raw("  v_mov_b32 v62, v61")
        A.raw("  v_mul_u32_u24 v57, 3584, v57"); A.raw("  v_add_u32 v57, v57, v15")
        A.raw(f"  s_mov_b32 s28, s{S_WIN}"); A.raw(f"  s_mov_b32 s29, s{S_WIN+1}"); A.raw(f"  s_branch {L('tgo')}")
        A.raw(f"{L('tx')}:")
        A.raw("  s_lshr_b32 s27, s20, 1"); A.raw("  s_lshl_b32 s27, s27, 9"); A.raw("  s_mul_i32 s28, s24, 12")
        A.raw("  v_mul_u32_u24 v57, 13108, v12"); A.raw("  v_lshrrev_b32 v57, 16, v57")
        A.raw("  v_mul_u32_u24 v15, 5, v57"); A.raw("  v_sub_u32 v15, v12, v15")
        A.raw("  v_min_u32 v57, 11, v57"); A.raw("  v_add_u32 v57, s28, v57"); A.raw("  v_min_u32 v57, 511, v57"); A.raw("  v_add_u32 v57, s27, v57"); A.raw("  v_mul_u32_u24 v57, 896, v57")
        A.raw("  v_and_b32 v16, 1, v15"); A.raw("  v_add_u32 v16, 5, v16"); A.raw("  v_lshl_add_u32 v61, v16, 7, v57"); A.raw("  v_mov_b32 v62, v61"); A.raw("  v_lshl_add_u32 v57, v15, 7, v57")
        A.raw(f"  s_mov_b32 s28, s{S_X}"); A.raw(f"  s_mov_b32 s29, s{S_X+1}")
        A.label(L('tgo'))
        A("global_load_dword v56, v57, s[28:29]", tag='pf')
        A("s_mov_b32 s30, s28"); A("s_mov_b32 s31, s29")
    if code_bytes:
        assert code_bytes <= 512*128
        A("s_getpc_b64 s[22:23]"); A.raw(f"{name}_pc:")
        A("v_and_b32 v10, 3, v0"); A("s_lshl_b32 s25, s24, 2"); A("v_add_u32 v10, s25, v10"); A("v_lshlrev_b32 v10, 7, v10")
        A(f"v_min_u32 v10, {L('end')}-{name}_pc, v10"); A("global_load_dword v56, v10, s[22:23]", tag='pf')
    A("s_lshl_b32 s2, s21, 3"); A("s_or_b32 s2, s2, s20")
    A("s_lshr_b32 s33, s21, 4"); A("s_and_b32 s21, s21, 15")
    A("s_lshr_b32 s22, s20, 1"); A("s_lshl_b32 s22, s22, 2"); A("s_lshr_b32 s23, s21, 2"); A("s_add_u32 s22, s22, s23")
    A("s_and_b32 s20, s20, 1"); A("s_lshl_b32 s20, s20, 2"); A("s_and_b32 s21, s21, 3"); A("s_add_u32 s21, s21, s20")
    A("s_mov_b32 s20, s22"); A("s_lshl_b32 s22, s20, 1"); A("s_add_u32 s22, s22, s33")
    ST(A, 'tick')
    A("s_cmp_eq_u32 s33, 0"); A(f"s_cbranch_scc0 {L('qrole')}")
    vm0 = list(A.vm); lg0 = list(A.lg)
    role_z(A, L)
    vmz = list(A.vm)
    A(f"s_branch {L('p2')}")
    A.label(L('qrole')); A.vm = list(vm0); A.lg = list(lg0)
    role_q(A, L)
    vmj = list(A.vm)
    assert vmj[-21:] == vmz[-21:], (vmj, vmz)
    vmj = vmj[-21:] if len(vmj) >= len(vmz) else vmz
    A.label(L('p2')); A.vm = vmj; A.lg = []
    wl = phase2_tail(A, L)
    phase3(A, L, wl)
    if Stamps.enabled:
        A.raw("  s_waitcnt vmcnt(0)")
        if os.environ.get('ENDST'): Stamps.mark(A, 15)
    A.label(L('fin'))
    if os.environ.get('DBGOUT'):
        A.raw("  s_waitcnt vmcnt(0) lgkmcnt(0)")
        A.raw(f"  s_cmp_lg_u32 s2, {os.environ['DBGOUT']}"); A.raw(f"  s_cbranch_scc1 {L('end')}"); A.raw("  s_cmp_lg_u32 s3, 0"); A.raw(f"  s_cbranch_scc1 {L('end')}")
        A.raw("  v_mov_b32 v250, 0")
        for k in range(1, 15):
            kk = k if k < 14 else 15
            A.raw(f"  s_sub_u32 s100, s{Stamps.reg(kk)}, s{Stamps.reg(0)}"); A.raw("  v_mov_b32 v251, s100")
            A.raw(f"  global_store_dword v250, v251, s[{S_DBG}:{S_DBG+1}] offset:{4*(k+1)}")
    else:
        Stamps.flush(A, 0, 16, S_WS)
    A.label(L('end'))
    A("s_endpgm")
    return A

if __name__ == "__main__":
    import sys, asmlib
    from build import assemble
    if len(sys.argv) > 2 and sys.argv[2].startswith('stamp'): asmlib.Stamps.enabled = True
    if len(sys.argv) > 2 and sys.argv[2] == 'stampcyc': asmlib.Stamps.op = 's_memtime'
    t = gen_mega().text(); sz = len([l for l in t.split('\n') if l.startswith('  ')])*8
    A = gen_mega(code_bytes=sz)
    if os.environ.get('FINAL'):
        from build import assemble_single
        open(sys.argv[1], 'w').write(assemble_single(dict(name="gated_mix__sliding_local_dilated__mixer_gmlp__prompt_kernel", text=A.text(), grid=256, block=256, lds=163840, vgpr=512, accum=256)))
    else:
        open(sys.argv[1], 'w').write(assemble([dict(name="mega_kernel", text=A.text(), grid=256, block=256, lds=163840, vgpr=512, accum=256)]))
    print("nops", A.nops_inserted, "est bytes", sz)
```
